```python
import torch

def _softmax(x, axis=-1):
    return torch.softmax(x, dim=axis)
def _gelu(x):
    return torch.nn.functional.gelu(x, approximate="tanh")
def _silu(x):
    return torch.nn.functional.silu(x)
def _sigmoid(x):
    return torch.sigmoid(x)
def _layernorm(x, axis=-1, eps=1e-5):
    m = x.mean(dim=axis, keepdim=True)
    v = x.var(dim=axis, keepdim=True, unbiased=False)
    return (x - m) / torch.sqrt(v + eps)
def _scatter_add(tgt, idx, src, axis=0):
    return tgt.clone().index_add_(axis, idx, src)
def _segment_sum(src, seg, n):
    out = torch.zeros((n,) + src.shape[1:], dtype=src.dtype)
    return out.index_add_(0, seg, src)
def _pad(x, pw):
    flat = tuple(v for pair in reversed(pw) for v in pair)
    return torch.nn.functional.pad(x, flat)

kernel_name = 'sequential_preLN__sliding_block__dense_activation_relu__prompt'

def setup_inputs():

    _w = (lambda a: (lambda t: t.to(torch.bfloat16) if t.is_floating_point() else t)(torch.as_tensor(a)))
    def _A_setup():
        B, S, D = 1, 2048, 448
        return {
            "x": _w((lambda *s: torch.randn(*s, dtype=torch.bfloat16) * 0.05)(B, S, D)),
            "wqkv": _w((lambda *s: torch.randn(*s, dtype=torch.bfloat16) * 0.05)(D, 3 * D)),
            "wo": _w((lambda *s: torch.randn(*s, dtype=torch.bfloat16) * 0.05)(D, D)),
        }
    _A_in = _A_setup()

    def _B_setup():
        B, S, D, Dff = 1, 2048, 448, 1792
        return {
            "x": _w((lambda *s: torch.randn(*s, dtype=torch.bfloat16) * 0.05)(B, S, D)),
            "w1": _w((lambda *s: torch.randn(*s, dtype=torch.bfloat16) * 0.05)(D, Dff)),
            "w2": _w((lambda *s: torch.randn(*s, dtype=torch.bfloat16) * 0.05)(Dff, D)),
        }
    _B_in = _B_setup()

    return {
        "A_x": _A_in["x"],
        "A_wqkv": _A_in["wqkv"],
        "A_wo": _A_in["wo"],
        "B_x": _B_in["x"],
        "B_w1": _B_in["w1"],
        "B_w2": _B_in["w2"],
    }

def reference(A_x, A_wqkv, A_wo, B_x, B_w1, B_w2):
    def _A_ref(x, wqkv, wo):
        B, S, D = x.shape
        H = 16; Dh = D // H; W = 256
        qkv = (lambda x, *d: x.permute(*d))((x @ wqkv).reshape(B, S, 3, H, Dh), 2, 0, 3, 1, 4)
        q, k, v = qkv[0], qkv[1], qkv[2]
        scores = torch.einsum("bhqd,bhkd->bhqk", q, k) * (Dh ** -0.5)
        idx = torch.arange(S)
        mask = (idx[:, None] - idx[None, :] >= 0) & (idx[:, None] - idx[None, :] < W)
        scores = torch.where(mask[None, None], scores, -1e9)
        p = _softmax(scores, axis=-1)
        o = torch.einsum("bhqk,bhkd->bhqd", p, v)
        return (lambda x, *d: x.permute(*d))(o, 0, 2, 1, 3).reshape(B, S, D) @ wo

    def _B_ref(x, w1, w2):
        h = torch.einsum("bsd,df->bsf", x, w1)
        zero = torch.zeros_like(h)
        h = torch.maximum(h, zero)
        return torch.einsum("bsf,fd->bsd", h, w2)

    x = A_x
    h = x + _A_ref(_layernorm(x, axis=-1), A_wqkv, A_wo)
    h2 = h + _B_ref(_layernorm(h, axis=-1), B_w1, B_w2)
    return h2
```

```python
import re

TRANS = ('v_exp_f32','v_log_f32','v_rcp_f32','v_rsq_f32','v_sqrt_f32','v_sin_f32','v_cos_f32')

def parse_regs(tok):
    tok = tok.strip()
    tok = tok.lstrip('-')
    m = re.match(r'^abs\((.*)\)$', tok)
    if m: tok = m.group(1)
    m = re.match(r'^\|(.*)\|$', tok)
    if m: tok = m.group(1)
    m = re.match(r'^([vsa])\[(\d+):(\d+)\]$', tok)
    if m: return [(m.group(1), i) for i in range(int(m.group(2)), int(m.group(3))+1)]
    m = re.match(r'^([vsa])(\d+)$', tok)
    if m: return [(m.group(1), int(m.group(2)))]
    if tok in ('vcc',): return [('vcc',0)]
    if tok in ('vcc_lo','vcc_hi'): return [('vcc',0)]
    if tok == 'm0': return [('m0',0)]
    if tok in ('exec','exec_lo','exec_hi'): return [('exec',0)]
    return []

class Ins:
    __slots__=('op','cls','w','r','mf_c','mf_ab','passes','wide','text','states','store_data')
    pass

def analyze(text):
    t = text.split(';')[0].strip()
    parts = t.split(None,1)
    op = parts[0]
    rest = parts[1] if len(parts)>1 else ''
    ops = [o.strip() for o in rest.split(',')] if rest else []
    clean=[]; mods=[]
    for o in ops:
        sp = o.split()
        if not sp: continue
        clean.append(sp[0]); mods += sp[1:]
    I = Ins(); I.op=op; I.text=text; I.w=set(); I.r=set(); I.mf_c=None; I.mf_ab=set(); I.passes=0; I.wide=False; I.states=1; I.store_data=set()
    R = [parse_regs(o) for o in clean]
    base = op.replace('_e32','').replace('_e64','')
    if op == 's_nop':
        I.cls='nop'; I.states=int(clean[0],0)+1
    elif op.startswith('v_mfma'):
        I.cls='mfma'; I.w=set(R[0]); I.mf_ab=set(R[1])|set(R[2]); I.mf_c=tuple(R[3]); I.r=I.mf_ab|set(R[3])
        I.passes = 8 if '32x32x16' in op else 4
    elif op.startswith('v_cmp'):
        I.cls='valu'; I.w=set(R[0]);
        for x in R[1:]: I.r|=set(x)
    elif op.startswith('v_readfirstlane') or op.startswith('v_readlane'):
        I.cls='readlane'; I.w=set(R[0])
        for x in R[1:]: I.r|=set(x)
    elif op.startswith('v_permlane'):
        I.cls='permlane'; I.w=set(R[0])|set(R[1]); I.r=set(R[0])|set(R[1])
    elif op.startswith('v_dot2'):
        I.cls='dot'; I.w=set(R[0])
        for x in R[1:]: I.r|=set(x)
        if 'dot2c' in op: I.r|=set(R[0])
    elif op.startswith('v_'):
        I.cls='trans' if base in TRANS else 'valu'
        I.w=set(R[0])
        srcs=R[1:]
        if base in ('v_add_co_u32','v_sub_co_u32','v_addc_co_u32','v_subb_co_u32'):
            I.w|=set(R[1]); srcs=R[2:]
        for x in srcs: I.r|=set(x)
        if base in ('v_fmac_f32','v_pk_fmac_f16'): I.r|=set(R[0])
        if any(m.startswith('row_') or m.startswith('quad_perm') or m.startswith('wave_') for m in mods) or '_dpp' in op:
            I.cls='dpp'
    elif op.startswith('buffer_load') or op.startswith('global_load'):
        if 'lds' in mods or '_lds_' in op:
            I.cls='ldsdma'
            for x in R: I.r|=set(x)
            I.r.add(('m0',0))
        else:
            I.cls='vload'; I.w=set(R[0])
            for x in R[1:]: I.r|=set(x)
    elif op.startswith('buffer_store') or op.startswith('buffer_atomic'):
        I.cls='vstore'
        for x in R: I.r|=set(x)
        I.store_data=set(R[0]); I.wide = ('x4' in op or 'x3' in op)
    elif op.startswith('global_store') or op.startswith('global_atomic'):
        I.cls='vstore'
        for x in R: I.r|=set(x)
        I.store_data=set(R[1]); I.wide = ('x4' in op or 'x3' in op)
    elif op.startswith('ds_read') or op.startswith('ds_bpermute') or op.startswith('ds_swizzle') or op.startswith('ds_permute'):
        I.cls='dsread'; I.w=set(R[0])
        for x in R[1:]: I.r|=set(x)
    elif op.startswith('ds_'):
        I.cls='dswrite'
        for x in R: I.r|=set(x)
    elif op.startswith('s_load') or op.startswith('s_mem') or op.startswith('s_buffer_load'):
        I.cls='smem'; I.w=set(R[0])
        for x in R[1:]: I.r|=set(x)
    elif op.startswith('s_'):
        I.cls='salu'
        if op.startswith('s_cmp') or op.startswith('s_cbranch') or op in ('s_branch','s_barrier','s_waitcnt','s_endpgm','s_sleep','s_setprio','s_bitcmp1_b32','s_bitcmp0_b32'):
            for x in R: I.r|=set(x)
        else:
            if R: I.w=set(R[0])
            for x in R[1:]: I.r|=set(x)
            if 'saveexec' in op: I.w.add(('exec',0))
    else:
        raise ValueError("unknown instr "+text)
    return I

VALUISH = ('valu','trans','dot','permlane','readlane','dpp')

def need(P, X):
    n = 0
    pv = {r for r in P.w if r[0] in 'va'}
    ps = {r for r in P.w if r[0] in ('s','vcc')}
    if P.cls in VALUISH:
        if X.cls=='mfma' and pv & X.r: n=max(n,2)
        if X.cls in ('permlane','dpp') and pv & X.r: n=max(n,2)
        if X.cls=='readlane' and pv & X.r: n=max(n,1)
        if P.cls=='trans' and X.cls!='trans' and pv & X.r: n=max(n,1)
        if P.cls=='dot' and pv & (X.r|X.w):
            if X.cls=='dot' and X.op==P.op:
                srcs = analyze_dot_ab(X)
                if pv & srcs: n=max(n,3)
            else: n=max(n,3)
        if ps:
            if X.cls in VALUISH+('mfma',) and ps & X.r: n=max(n, 4 if X.cls=='readlane' else 2)
            if X.cls in ('vload','vstore','ldsdma') and ps & X.r: n=max(n,5)
            if X.cls in ('salu','smem') and ps & X.r: n=max(n,2)
    if P.cls=='mfma':
        p8 = P.passes==8
        D = P.w
        if X.cls=='mfma':
            if D & X.mf_ab: n=max(n, 12 if p8 else 8)
            c=set(X.mf_c)
            if D & c:
                if c==D and X.passes==P.passes: pass
                else: n=max(n, 10 if p8 else 6)
            elif D & X.w:
                n=max(n, 10 if p8 else 6)
        else:
            if D & (X.r|X.w): n=max(n, 12 if p8 else 8)
            if X.cls in VALUISH and set(P.mf_c) & X.w: n=max(n, 7 if p8 else 3)
            if X.cls in ('vload','dsread') and set(P.mf_c) & X.w: n=max(n, 7 if p8 else 3)
    if P.cls=='salu' and ('m0',0) in P.w and X.cls=='ldsdma': n=max(n,1)
    if P.cls=='vstore' and P.wide and P.store_data & X.w:
        n=max(n, 2 if X.cls in VALUISH+('mfma',) else 1)
    return n

def analyze_dot_ab(X):
    t = X.text.split(';')[0].strip().split(None,1)[1]
    ops=[o.strip().split()[0] for o in t.split(',')]
    s=set()
    for o in ops[1:3]: s|=set(parse_regs(o))
    return s

class Asm:
    def __init__(self):
        self.lines=[]; self.hist=[]
        self.snap={}
        self.nlabel=0; self.ninstr=0; self.nnops=0
    def raw(self, s): self.lines.append(s)
    def comment(self, s): self.lines.append("    ; "+s)
    def _age(self, k):
        for h in self.hist: h[1]+=k
        self.hist=[h for h in self.hist if h[1]<24]
    def __call__(self, text):
        for ln in text.strip().split('\n'):
            ln=ln.strip()
            if not ln or ln.startswith(';'):
                if ln: self.lines.append("    "+ln)
                continue
            self.emit(ln)
    def emit(self, text):
        X=analyze(text)
        req=0
        for P,age in self.hist:
            k=need(P,X)-age
            if k>req: req=k
        while req>0:
            k=min(req,16)
            self.lines.append(f"    s_nop {k-1}")
            self.nnops+=1
            self._age(k); req-=k
        self.lines.append("    "+text)
        self.ninstr+=1
        self._age(X.states)
        self.hist.append([X,0])
        if X.op.startswith('s_cbranch') or X.op=='s_branch':
            lab=text.split()[1]
            self.snap.setdefault(lab,[]).append([[p,a] for p,a in self.hist])
            if X.op=='s_branch': self.hist=[]
    def label(self, name=None):
        if name is None:
            name=self.newlabel()
        self.lines.append(f"{name}:")
        for sn in self.snap.get(name,[]):
            cur={id(p):h for h in self.hist for p in [h[0]]}
            for p,a in sn:
                if id(p) in cur: cur[id(p)][1]=min(cur[id(p)][1],a)
                else: self.hist.append([p,a])
        return name
    def loop_label(self, name=None):
        self.emit("s_nop 15")
        self.hist=[]
        return self.label(name)
    def newlabel(self, pfx="L"):
        self.nlabel+=1
        return f"{pfx}_{self.nlabel}"
    def text(self): return "\n".join(self.lines)+"\n"

def v(a,n=1): return f"v{a}" if n==1 else f"v[{a}:{a+n-1}]"
def s(a,n=1): return f"s{a}" if n==1 else f"s[{a}:{a+n-1}]"
```

```python
import sys, math, struct
from asmlib import Asm, v, s

NAME = "sequential_preLN__sliding_block__dense_activation_relu__prompt"
KV_OFF = 0
Q_OFF  = 4 << 20
O_OFF  = 6 << 20
H_OFF  = 8 << 20
HS_OFF = 10 << 20
H1_OFF = 16 << 20
FL_OFF = 32 << 20
TS_OFF = 33 << 20
WS_SZ  = 40 << 20
SX, SWQKV, SWO, SW1, SW2, SOUT, SDBG, SWS = 24, 28, 32, 36, 40, 44, 48, 52
sR, sC, sW, sT, sROLE, sXCC, sLOCAL, sTMP = 56, 57, 58, 59, 60, 61, 62, 63
sMASK = 64
sONES = 96
sTH, sCT = 97, 23
sT0, sT1, sT2, sT3, sT4, sT5, sT6 = 3, 4, 5, 6, 7, 8, 9
sKC = 10
sBUSY = 17
sSAVE = 18
sHI = 20
sSPIN = 22
sTS = 98
sU0, sU1 = 100, 101
L_XS = 0
L_WP = 65536
L_SC = 151552
L_STAT = L_SC
L_CS = L_SC + 1024
L_FLAG = L_SC + 4096
L_KV = 65536
L_MRG = 122880
L_RED3 = 147456
L_ST4 = 147456
L_HR = 98304
LDS_TOTAL = 163840
R_C, R_A, R_B = 88, 144, 200
vTS = 87
vHRES = 80
vRSTD = 84
vAM1 = 76
LOG2E = 1.4426950408889634
def f32bits(x): return struct.unpack('<I', struct.pack('<f', x))[0]
T, T2 = 14, 15
MF = "v_mfma_f32_32x32x16_bf16"

class Gen:
    def __init__(self, stop_after=5, prof=False, cyc=False):
        self.a = Asm(); self.stop_after = stop_after; self.prof = prof; self.cyc = cyc; self.tsn = {}

    def ts(self, name):
        if not self.prof: return
        a = self.a
        if name not in self.tsn: self.tsn[name] = len(self.tsn)
        n = self.tsn[name]
        a(f"{'s_memtime' if self.cyc else 's_memrealtime'} {s(sTS,2)}")
        a("s_waitcnt lgkmcnt(0)")
        a(f"v_writelane_b32 {v(vTS)}, {s(sTS)}, {n}")

    def srd(self, dst, ptr, size):
        a = self.a
        a(f"s_mov_b32 {s(dst)}, {s(ptr)}")
        a(f"s_and_b32 {s(dst+1)}, {s(ptr+1)}, 0xffff")
        a(f"s_mov_b32 {s(dst+2)}, {size}")
        a(f"s_mov_b32 {s(dst+3)}, 0x20000")

    def dma(self, vsrc, srd, soff, m0expr, sc1=False, off=0):
        a = self.a
        if m0expr is not None:
            if isinstance(m0expr, int): a(f"s_mov_b32 m0, {m0expr}")
            else: a(f"s_add_u32 m0, {s(m0expr[0])}, {m0expr[1]}")
        so = s(soff) if isinstance(soff, int) else soff
        a(f"buffer_load_dwordx4 {v(vsrc)}, {s(srd,4)}, {so} offen{f' offset:{off}' if off else ''}{' sc1' if sc1 else ''} lds")

    def set_exec(self, mask):
        a = self.a
        lo, hi = mask & 0xffffffff, mask >> 32
        a(f"s_mov_b32 exec_lo, {lo:#x}")
        a(f"s_mov_b32 exec_hi, {hi:#x}")

    def poll(self, vaddr, vdst, mask, tag):
        a = self.a
        self.set_exec(mask)
        a(f"s_mov_b32 {s(sSPIN)}, 200000")
        lab = a.loop_label(a.newlabel("POLL"+tag)); done = a.newlabel("PDONE"+tag)
        a(f"buffer_load_dword {v(vdst)}, {v(vaddr)}, {s(SWS,4)}, 0 offen sc1")
        a("s_waitcnt vmcnt(0)")
        a(f"v_cmp_ne_u32 vcc, 1, {v(vdst)}")
        a(f"s_sub_u32 {s(sSPIN)}, {s(sSPIN)}, 1")
        a(f"s_cbranch_scc1 {done}")
        a("s_nop 2")
        a(f"s_cbranch_vccnz {lab}")
        a.label(done)
        a("s_mov_b64 exec, -1")

    def poll_group(self, e, nmem, wave, tag):
        a = self.a
        l = a.newlabel("PG")
        a(f"s_cmp_lg_u32 {s(sW)}, {wave}")
        a(f"s_cbranch_scc1 {l}")
        a(f"s_lshl_b32 {s(sT0)}, {s(sR)}, 7")
        a(f"s_add_u32 {s(sT0)}, {s(sT0)}, {FL_OFF+e*4096}")
        a(f"v_lshlrev_b32 {v(T)}, 2, v1")
        a(f"v_add_u32 {v(T)}, {s(sT0)}, {v(T)}")
        self.poll(T, T2, (1 << nmem) - 1, tag)
        a.label(l)
        a("s_waitcnt lgkmcnt(0)")
        a("s_barrier")

    def two_path(self, fn):
        a = self.a
        l1, l2 = a.newlabel("SL"), a.newlabel("SL")
        a(f"s_cmp_eq_u32 {s(sLOCAL)}, 1")
        a(f"s_cbranch_scc0 {l1}")
        fn("")
        a(f"s_branch {l2}")
        a.label(l1)
        fn(" sc1")
        a.label(l2)

    def publish(self, e, always_sc1=False):
        a = self.a
        a("s_waitcnt vmcnt(0) lgkmcnt(0)")
        a("s_barrier")
        lf = a.newlabel("PUB")
        a(f"s_cmp_lg_u32 {s(sW)}, 0")
        a(f"s_cbranch_scc1 {lf}")
        a(f"s_lshl_b32 {s(sT1)}, {s(sR)}, 7")
        a(f"s_lshl_b32 {s(sT2)}, {s(sC)}, 2")
        a(f"s_add_u32 {s(sT1)}, {s(sT1)}, {s(sT2)}")
        a(f"s_add_u32 {s(sT1)}, {s(sT1)}, {FL_OFF+e*4096}")
        a(f"v_mov_b32 {v(T)}, {s(sT1)}")
        a(f"v_mov_b32 {v(T2)}, 1")
        a(f"s_mov_b64 exec, 1")
        st = lambda sc: a(f"buffer_store_dword {v(T2)}, {v(T)}, {s(SWS,4)}, 0 offen{sc}")
        if always_sc1: st(" sc1")
        else: self.two_path(st)
        a(f"s_mov_b64 exec, -1")
        a.label(lf)

    def announce(self):
        a = self.a
        la = a.newlabel("NOANN")
        a(f"s_cmp_lg_u32 {s(sW)}, 0")
        a(f"s_cbranch_scc1 {la}")
        a(f"s_lshl_b32 {s(sT0)}, {s(sR)}, 4")
        a(f"s_add_u32 {s(sT0)}, {s(sT0)}, {s(sC)}")
        a(f"s_or_b32 {s(sT1)}, {s(sXCC)}, 0x80")
        a(f"v_mov_b32 {v(T)}, {s(sT0)}")
        a(f"v_mov_b32 {v(T2)}, {s(sT1)}")
        a(f"s_mov_b64 exec, 1")
        a(f"buffer_store_byte {v(T2)}, {v(T)}, {s(SDBG,4)}, 0 offen sc1")
        a(f"s_mov_b64 exec, -1")
        a.label(la)

    def mean_operand(self, BM, vnm, tmp):
        a = self.a
        a(f"v_cvt_pk_bf16_f32 {v(BM)}, {v(vnm)}, {v(vnm)}")
        a(f"v_and_b32 {v(tmp)}, 0xffff0000, {v(BM)}")
        a(f"v_sub_f32 {v(tmp)}, {v(vnm)}, {v(tmp)}")
        a(f"v_cvt_pk_bf16_f32 {v(BM+1)}, {v(tmp)}, 0")
        a(f"v_mov_b32 {v(BM+2)}, 0")
        a(f"v_mov_b32 {v(BM+3)}, 0")

    def cs_operand(self, AM, vcs):
        a = self.a
        a(f"v_cndmask_b32 {v(vcs)}, {v(vcs)}, 0, {s(sHI,2)}")
        a(f"v_cvt_pk_bf16_f32 {v(AM+1)}, {v(vcs)}, 0")
        a(f"v_lshlrev_b32 {v(AM+2)}, 16, {v(AM+1)}")
        a(f"v_sub_f32 {v(AM+2)}, {v(vcs)}, {v(AM+2)}")
        a(f"v_cvt_pk_bf16_f32 {v(AM)}, {v(vcs)}, {v(AM+2)}")
        a(f"v_mov_b32 {v(AM+2)}, 0")
        a(f"v_mov_b32 {v(AM+3)}, 0")

    def stats_finish(self, vsum, vsq, vnm, vrs):
        a = self.a
        a(f"v_mul_f32 {v(vnm)}, {f32bits(-1.0/448):#x}, {v(vsum)}")
        a(f"v_mul_f32 {v(vsq)}, {f32bits(1.0/448):#x}, {v(vsq)}")
        a(f"v_fma_f32 {v(vsq)}, -{v(vnm)}, {v(vnm)}, {v(vsq)}")
        a(f"v_max_f32 {v(vsq)}, 0, {v(vsq)}")
        a(f"v_add_f32 {v(vsq)}, {f32bits(1e-5):#x}, {v(vsq)}")
        a(f"v_rsq_f32 {v(vrs)}, {v(vsq)}")

    def rows128_src(self, vd, rowstride, srow0, scol):
        a = self.a
        a(f"v_lshrrev_b32 {v(T)}, 3, v1")
        a(f"v_bfe_u32 {v(T2)}, v1, 4, 1")
        a(f"v_lshlrev_b32 {v(T2)}, 2, {v(T2)}")
        a(f"v_xor_b32 {v(T2)}, {v(T2)}, v1")
        a(f"v_and_b32 {v(T2)}, 7, {v(T2)}")
        a(f"v_add_u32 {v(T)}, {s(srow0)}, {v(T)}")
        a(f"v_mul_u32_u24 {v(T)}, {rowstride}, {v(T)}")
        a(f"v_lshl_add_u32 {v(T)}, {v(T2)}, 4, {v(T)}")
        a(f"v_add_u32 {v(vd)}, {s(scol)}, {v(T)}")

    def tr128_addr(self, vd, perm, sbase):
        a = self.a
        a(f"v_lshrrev_b32 {v(T)}, 5, v1")
        a(f"v_lshlrev_b32 {v(T)}, {9 if perm else 10}, {v(T)}")
        a(f"v_bfe_u32 {v(T2)}, v1, 2, 2")
        a(f"v_lshl_add_u32 {v(T)}, {v(T2)}, 7, {v(T)}")
        a(f"v_bfe_u32 {v(T2)}, v1, 4, 1")
        a(f"v_lshl_add_u32 {v(T)}, {v(T2)}, 5, {v(T)}")
        a(f"v_and_b32 {v(T2)}, 3, v1")
        a(f"v_lshl_add_u32 {v(T)}, {v(T2)}, 3, {v(T)}")
        a(f"v_bfe_u32 {v(T2)}, v1, 3, 1")
        a(f"v_lshlrev_b32 {v(T2)}, 6, {v(T2)}")
        a(f"v_xor_b32 {v(T2)}, {s(sU0)}, {v(T2)}")
        a(f"v_add_u32 {v(T)}, {v(T)}, {v(T2)}")
        a(f"v_add_u32 {v(vd)}, {s(sbase)}, {v(T)}")

    def prologue(self):
        a = self.a
        a(f"s_cmp_ge_u32 s2, 256")
        a(f"s_cbranch_scc1 L_END")
        a("s_load_dwordx16 s[4:19], s[0:1], 0")
        a("s_load_dwordx2 s[20:21], s[0:1], 64")
        a("v_and_b32 v1, 63, v0")
        a("v_lshrrev_b32 v2, 6, v0")
        a(f"v_readfirstlane_b32 {s(sW)}, v2")
        a(f"s_and_b32 {s(sT)}, {s(sW)}, 3")
        a(f"s_lshr_b32 {s(sROLE)}, {s(sW)}, 2")
        a(f"s_and_b32 {s(sR)}, s2, 7")
        a(f"s_lshl_b32 {s(sR)}, {s(sR)}, 1")
        a(f"s_lshr_b32 {s(sTMP)}, s2, 7")
        a(f"s_add_u32 {s(sR)}, {s(sR)}, {s(sTMP)}")
        a(f"s_lshr_b32 {s(sC)}, s2, 3")
        a(f"s_and_b32 {s(sC)}, {s(sC)}, 15")
        a(f"s_getreg_b32 {s(sXCC)}, hwreg(HW_REG_XCC_ID)")
        a(f"s_and_b32 {s(sXCC)}, {s(sXCC)}, 15")
        a(f"s_mov_b32 {s(sONES)}, 0x3f803f80")
        a(f"s_cmp_ge_u32 {s(sC)}, 7")
        a(f"s_cselect_b32 {s(sTH)}, 1, 0")
        a(f"s_mul_i32 {s(sTMP)}, {s(sTH)}, 7")
        a(f"s_sub_u32 {s(sCT)}, {s(sC)}, {s(sTMP)}")
        a("s_waitcnt lgkmcnt(0)")
        self.srd(SX, 4, 2048*448*2)
        self.srd(SWQKV, 6, 448*1344*2)
        self.srd(SWO, 8, 448*448*2)
        self.srd(SW1, 12, 448*1792*2)
        self.srd(SW2, 14, 1792*448*2)
        self.srd(SOUT, 16, 2048*448*2)
        self.srd(SDBG, 18, 256)
        self.srd(SWS, 20, WS_SZ)
        a(f"s_mov_b32 {s(sHI)}, 0")
        a(f"s_mov_b32 {s(sHI+1)}, -1")
        a(f"s_cmp_lt_u32 {s(sC)}, 14")
        a(f"s_cselect_b32 {s(sBUSY)}, 1, 0")
        if self.prof: a(f"v_mov_b32 {v(vTS)}, 0")
        self.ts("start")
        lz = a.newlabel("NOZ")
        a(f"s_cmp_lg_u32 {s(sW)}, 0")
        a(f"s_cbranch_scc1 {lz}")
        a(f"s_lshl_b32 {s(sT0)}, {s(sR)}, 7")
        a(f"s_lshl_b32 {s(sT1)}, {s(sC)}, 2")
        a(f"s_add_u32 {s(sT0)}, {s(sT0)}, {s(sT1)}")
        a(f"s_add_u32 {s(sT0)}, {s(sT0)}, {FL_OFF}")
        a(f"v_lshlrev_b32 {v(T)}, 12, v1")
        a(f"v_add_u32 {v(T)}, {s(sT0)}, {v(T)}")
        a(f"v_mov_b32 {v(T2)}, 0")
        a(f"s_mov_b64 exec, 15")
        a(f"buffer_store_dword {v(T2)}, {v(T)}, {s(SWS,4)}, 0 offen sc1")
        a(f"s_mov_b64 exec, -1")
        a.label(lz)

    def masks(self):
        a = self.a
        a(f"v_and_b32 {v(T)}, 31, v1")
        a(f"v_lshrrev_b32 {v(T2)}, 5, v1")
        a(f"v_lshlrev_b32 {v(T2)}, 2, {v(T2)}")
        a(f"v_sub_u32 {v(T)}, {v(T)}, {v(T2)}")
        for rg in range(16):
            kk = 8 * (rg // 4) + (rg % 4)
            a(f"v_cmp_le_i32 {s(sMASK+2*rg,2)}, {kk}, {v(T)}")

    def p1(self):
        a = self.a
        PD = 3
        vX0, vX1 = 2, 3
        vWs = 4
        vXr = 7
        vWr = 11
        vCs = 12
        ACC = 16
        XB = 48
        ST = 64
        vSA = 72
        WB = R_B
        lpad, lp1end = a.newlabel("PADW"), a.newlabel("P1END")
        a(f"s_cmp_eq_u32 {s(sBUSY)}, 0")
        a(f"s_cbranch_scc1 {lpad}")
        a(f"s_mov_b32 {s(sKC)}, {s(sCT)}")
        for i in range(1, 7):
            a(f"s_add_u32 {s(sKC+i)}, {s(sKC+i-1)}, 1")
            a(f"s_cmp_eq_u32 {s(sKC+i)}, 7")
            a(f"s_cselect_b32 {s(sKC+i)}, 0, {s(sKC+i)}")
        a(f"v_lshrrev_b32 {v(T)}, 3, v1")
        a(f"s_lshl_b32 {s(sT0)}, {s(sW)}, 4")
        a(f"v_add_u32 {v(T)}, {s(sT0)}, {v(T)}")
        a(f"v_lshrrev_b32 {v(T2)}, 1, {v(T)}")
        a(f"v_xor_b32 {v(T2)}, {v(T2)}, v1")
        a(f"v_and_b32 {v(T2)}, 7, {v(T2)}")
        a(f"s_lshl_b32 {s(sT0)}, {s(sR)}, 7")
        a(f"v_add_u32 {v(T)}, {s(sT0)}, {v(T)}")
        a(f"v_mul_u32_u24 {v(T)}, 896, {v(T)}")
        a(f"v_lshl_add_u32 {v(vX0)}, {v(T2)}, 4, {v(T)}")
        a(f"v_xor_b32 {v(T2)}, 4, {v(T2)}")
        a(f"v_lshl_add_u32 {v(vX1)}, {v(T2)}, 4, {v(T)}")
        a(f"v_add_u32 {v(vX1)}, {8*896}, {v(vX1)}")
        a(f"s_lshl_b32 {s(sT0)}, {s(sT)}, 4")
        a(f"s_mul_i32 {s(sT1)}, {s(sC)}, 192")
        for m in range(3):
            a(f"v_add_u32 {v(T)}, {64*m}, v1")
            a(f"v_mul_u32_u24 {v(T2)}, 43691, {v(T)}")
            a(f"v_lshrrev_b32 {v(T2)}, 19, {v(T2)}")
            a(f"v_mul_u32_u24 {v(vWs+m)}, 12, {v(T2)}")
            a(f"v_sub_u32 {v(T)}, {v(T)}, {v(vWs+m)}")
            a(f"v_add_u32 {v(T2)}, {s(sT0)}, {v(T2)}")
            a(f"v_mul_u32_u24 {v(T2)}, 2688, {v(T2)}")
            a(f"v_lshl_add_u32 {v(T2)}, {v(T)}, 4, {v(T2)}")
            a(f"v_add_u32 {v(vWs+m)}, {s(sT1)}, {v(T2)}")
        sXm, sWm = sT4, sT5
        a(f"s_lshl_b32 {s(sXm)}, {s(sW)}, 11")
        a(f"s_mul_i32 {s(sWm)}, {s(sT)}, 3072")
        def xdma(i):
            a(f"s_lshl_b32 {s(sT0)}, {s(sKC+i)}, 7")
            self.dma(vX0, SX, sT0, (sXm, L_XS + (i % 4) * 16384))
            self.dma(vX1, SX, sT0, (sXm, L_XS + (i % 4) * 16384 + 1024))
        def wdma(i):
            a(f"s_mul_i32 {s(sT1)}, {s(sKC+i)}, {64*2688}")
            for m in range(3):
                self.dma(vWs+m, SWQKV, sT1, (sWm, L_WP + i * 12288 + m * 1024))
        def setup_rest(role):
            a(f"v_and_b32 {v(T)}, 31, v1")
            a(f"s_lshl_b32 {s(sT0)}, {s(sT)}, 5")
            a(f"v_add_u32 {v(T)}, {s(sT0)}, {v(T)}")
            a(f"v_lshrrev_b32 {v(T2)}, 1, {v(T)}")
            a(f"v_and_b32 {v(T2)}, 7, {v(T2)}")
            a(f"v_lshrrev_b32 {v(vXr)}, 5, v1")
            a(f"v_xor_b32 {v(T2)}, {v(T2)}, {v(vXr)}")
            a(f"v_lshlrev_b32 {v(T)}, 7, {v(T)}")
            for k in range(4):
                a(f"v_xor_b32 {v(vXr+k)}, {2*k}, {v(T2)}")
                a(f"v_lshl_add_u32 {v(vXr+k)}, {v(vXr+k)}, 4, {v(T)}")
            a(f"v_lshrrev_b32 {v(T)}, 5, v1")
            a(f"v_lshlrev_b32 {v(T)}, 3, {v(T)}")
            a(f"v_bfe_u32 {v(T2)}, v1, 2, 2")
            a(f"v_add_u32 {v(T)}, {v(T)}, {v(T2)}")
            a(f"v_mul_u32_u24 {v(T)}, 192, {v(T)}")
            a(f"v_bfe_u32 {v(T2)}, v1, 4, 1")
            a(f"v_lshl_add_u32 {v(T)}, {v(T2)}, 5, {v(T)}")
            a(f"v_and_b32 {v(T2)}, 3, v1")
            a(f"v_lshl_add_u32 {v(T)}, {v(T2)}, 3, {v(T)}")
            a(f"v_add_u32 {v(vWr)}, {L_WP + (128 if role else 0)}, {v(T)}")
            a(f"v_mov_b32 {v(vCs)}, 0")
            a(f"v_mov_b32 {v(vCs+1)}, 0")
            for k in range(4): a(f"v_mov_b32 {v(ST+k)}, 0")
            self.masks()
            tiles = [0, 1] if role == 0 else [2]
            for ti, tj in enumerate(tiles):
                a(f"s_mul_i32 {s(sT0)}, {s(sC)}, 3")
                a(f"s_add_u32 {s(sT0)}, {s(sT0)}, {tj}")
                a(f"s_cmp_ge_u32 {s(sT0)}, 14")
                a(f"s_cselect_b32 {s(sT1)}, 1, 0")
                a(f"s_cmp_ge_u32 {s(sT0)}, 28")
                a(f"s_cselect_b32 {s(sT1)}, 2, {s(sT1)}")
                a(f"s_mul_i32 {s(sT2)}, {s(sT1)}, 14")
                a(f"s_sub_u32 {s(sT0)}, {s(sT0)}, {s(sT2)}")
                a(f"s_lshl_b32 {s(sT0)}, {s(sT0)}, 3")
                a(f"s_lshl_b32 {s(sT2)}, {s(sR)}, 2")
                a(f"s_add_u32 {s(sT2)}, {s(sT2)}, {s(sT)}")
                a(f"s_cmp_eq_u32 {s(sT1)}, 0")
                a(f"s_cselect_b32 {s(sU0+ti)}, 1, 0")
                a(f"s_cselect_b32 {s(sT3)}, 11, 12")
                a(f"s_cselect_b32 {s(sT6)}, {Q_OFF}, 0")
                a(f"s_lshl_b32 {s(sT2)}, {s(sT2)}, {s(sT3)}")
                a(f"s_add_u32 {s(sT2)}, {s(sT2)}, {s(sT6)}")
                a(f"s_add_u32 {s(sT3)}, {s(sT3)}, 6")
                a(f"s_cmp_eq_u32 {s(sT1)}, 2")
                a(f"s_cselect_b32 {s(sT6)}, 2048, 0")
                a(f"s_add_u32 {s(sT2)}, {s(sT2)}, {s(sT6)}")
                a(f"s_lshr_b32 {s(sT6)}, {s(sT6)}, 9")
                for aa in range(4):
                    d = vSA + 4 * ti + aa
                    a(f"v_lshrrev_b32 {v(T)}, 5, v1")
                    a(f"v_add3_u32 {v(T)}, {v(T)}, {s(sT0)}, {2*aa}")
                    a(f"v_mul_u32_u24 {v(T2)}, 147, {v(T)}")
                    a(f"v_lshrrev_b32 {v(T2)}, 10, {v(T2)}")
                    a(f"v_mul_u32_u24 {v(d)}, 7, {v(T2)}")
                    a(f"v_sub_u32 {v(T)}, {v(T)}, {v(d)}")
                    a(f"v_lshlrev_b32 {v(T2)}, {s(sT3)}, {v(T2)}")
                    a(f"v_lshl_add_u32 {v(T2)}, {v(T)}, 8, {v(T2)}")
                    a(f"v_mad_u32_u24 {v(T)}, {v(T)}, {s(sT6)}, v1")
                    a(f"v_and_b32 {v(T)}, 31, {v(T)}")
                    a(f"v_lshl_add_u32 {v(T2)}, {v(T)}, 3, {v(T2)}")
                    a(f"v_add_u32 {v(d)}, {s(sT2)}, {v(T2)}")
        lr1, lrj = a.newlabel("P1R1"), a.newlabel("P1J")
        a(f"s_cmp_eq_u32 {s(sROLE)}, 1")
        a(f"s_cbranch_scc1 {lr1}")
        for role in (0, 1):
            if role == 1: a.label(lr1)
            ntile = 2 if role == 0 else 1
            ops = []
            def issue(i):
                xdma(i); ops.extend([i, i])
                if i % 2 == role:
                    wdma(i); ops.extend([i, i, i])
            for i in range(PD):
                issue(i)
                if i < PD - 1: a("s_barrier")
            setup_rest(role)
            for i in range(7):
                a.comment(f"---- P1 role{role} chunk {i}")
                last = max(k for k, c_ in enumerate(ops) if c_ == i)
                a(f"s_waitcnt vmcnt({len(ops)-1-last}) lgkmcnt(0)")
                a("s_barrier")
                if i == 0:
                    self.ts("p1 chunk0 landed")
                    if role == 0: self.announce()
                nrd = 0
                for k in range(4):
                    a(f"ds_read_b128 {v(XB+4*k,4)}, {v(vXr+k)} offset:{L_XS+(i%4)*16384}")
                    for tj in range(ntile):
                        b = WB + 16 * tj + 4 * k
                        a(f"ds_read_b64_tr_b16 {v(b,2)}, {v(vWr)} offset:{k*3072+tj*64}")
                        a(f"ds_read_b64_tr_b16 {v(b+2,2)}, {v(vWr)} offset:{k*3072+tj*64+768}")
                per = 1 + 2 * ntile
                if i < 6: a(f"v_add_u32 {v(vWr)}, 12288, {v(vWr)}")
                for k in range(4):
                    a(f"s_waitcnt lgkmcnt({min(15, per*(3-k))})")
                    for tj in range(ntile):
                        c_in = "0" if (i == 0 and k == 0) else v(ACC+16*tj, 16)
                        a(f"{MF} {v(ACC+16*tj,16)}, {v(WB+16*tj+4*k,4)}, {v(XB+4*k,4)}, {c_in}")
                    if role == 1:
                        for d in range(4):
                            x = XB + 4 * k + d
                            h_, l_ = ST + 4 + 2 * (d % 2), ST + 5 + 2 * (d % 2)
                            a(f"v_and_b32 {v(h_)}, 0xffff0000, {v(x)}")
                            a(f"v_lshlrev_b32 {v(l_)}, 16, {v(x)}")
                            a(f"v_add_f32 {v(ST)}, {v(ST)}, {v(h_)}")
                            a(f"v_fmac_f32 {v(ST+2)}, {v(h_)}, {v(h_)}")
                            a(f"v_add_f32 {v(ST+1)}, {v(ST+1)}, {v(l_)}")
                            a(f"v_fmac_f32 {v(ST+3)}, {v(l_)}, {v(l_)}")
                l3 = a.newlabel("CS")
                a(f"s_cmp_eq_u32 {s(sT)}, {i%4}")
                a(f"s_cbranch_scc0 {l3}")
                for tj in range(ntile):
                    for k in range(16): a(f"v_dot2c_f32_bf16 {v(vCs+tj)}, {s(sONES)}, {v(WB+16*tj+k)}")
                a.label(l3)
                if i + PD < 7: issue(i + PD)
            self.ts("p1 loop done")
            a(f"s_lshl_b32 {s(sT0)}, {s(sT)}, 8")
            a(f"v_lshl_add_u32 {v(T)}, v1, 2, {s(sT0)}")
            if role == 1:
                a(f"v_add_f32 {v(ST)}, {v(ST)}, {v(ST+1)}")
                a(f"v_add_f32 {v(ST+2)}, {v(ST+2)}, {v(ST+3)}")
                a(f"v_permlane32_swap_b32 {v(ST)}, {v(ST+2)}")
                a(f"v_add_f32 {v(ST)}, {v(ST)}, {v(ST+2)}")
                a(f"v_add_u32 {v(T)}, {L_SC}, {v(T)}")
                a(f"ds_write_b32 {v(T)}, {v(ST)}")
                a(f"ds_write_b32 {v(T)}, {v(vCs)} offset:{1024+2048}")
            else:
                a(f"v_add_u32 {v(T)}, {L_SC}, {v(T)}")
                a(f"ds_write_b32 {v(T)}, {v(vCs)} offset:1024")
                a(f"ds_write_b32 {v(T)}, {v(vCs+1)} offset:2048")
            a(f"v_and_b32 {v(T2)}, 31, v1")
            a(f"v_lshlrev_b32 {v(T2)}, 2, {v(T2)}")
            a(f"v_add_u32 {v(T2)}, {L_SC}, {v(T2)}")
            a(f"v_add_u32 {v(T)}, {s(sT0)}, {v(T2)}")
            a(f"v_add_u32 {v(T2)}, {1024 + (2048 if role else 0)}, {v(T2)}")
            a(f"v_add_u32 {v(vWr)}, 1024, {v(T2)}")
            a("s_waitcnt lgkmcnt(0)")
            a("s_barrier")
            self.ts("stat barrier")
            S0 = WB
            a(f"ds_read2_b32 {v(S0,2)}, {v(T)} offset0:0 offset1:32")
            for tj in range(ntile):
                ad = T2 if tj == 0 else vWr
                for k in range(4): a(f"ds_read2_b32 {v(S0+4+8*tj+2*k,2)}, {v(ad)} offset0:{64*k} offset1:{64*k+32}")
            a(f"s_waitcnt lgkmcnt({4*ntile})")
            vNM, vRS = ST, ST + 1
            self.stats_finish(S0, S0 + 1, vNM, vRS)
            BM, AM = XB, XB + 4
            self.mean_operand(BM, vNM, S0)
            a(f"v_mul_f32 {v(ST+2)}, {f32bits(28**-0.5*LOG2E):#x}, {v(vRS)}")
            a("s_waitcnt lgkmcnt(0)")
            for tj in range(ntile):
                c0 = S0 + 4 + 8 * tj
                for k in range(4): a(f"v_add_f32 {v(c0+2*k)}, {v(c0+2*k)}, {v(c0+2*k+1)}")
                a(f"v_add_f32 {v(c0)}, {v(c0)}, {v(c0+2)}")
                a(f"v_add_f32 {v(c0+4)}, {v(c0+4)}, {v(c0+6)}")
                a(f"v_add_f32 {v(c0)}, {v(c0)}, {v(c0+4)}")
                self.cs_operand(AM + 4 * tj, c0)
                a(f"{MF} {v(ACC+16*tj,16)}, {v(AM+4*tj,4)}, {v(BM,4)}, {v(ACC+16*tj,16)}")
            for tj in range(ntile):
                a(f"s_cmp_eq_u32 {s(sU0+tj)}, 1")
                a(f"s_cselect_b64 {s(sSAVE,2)}, -1, 0")
                a(f"v_cndmask_b32 {v(ST+3)}, {v(vRS)}, {v(ST+2)}, {s(sSAVE,2)}")
                PK = WB + 8 * tj
                A_ = ACC + 16 * tj
                for k in range(16): a(f"v_mul_f32 {v(A_+k)}, {v(A_+k)}, {v(ST+3)}")
                for k in range(8): a(f"v_cvt_pk_bf16_f32 {v(PK+k)}, {v(A_+2*k)}, {v(A_+2*k+1)}")
                for aa in range(4):
                    a(f"buffer_store_dwordx2 {v(PK+2*aa,2)}, {v(vSA+4*tj+aa)}, {s(SWS,4)}, 0 offen sc1")
            self.ts("qkv stores issued")
            if role == 0: a(f"s_branch {lrj}")
        a.label(lrj)
        self.publish(0, True)
        self.ts("QKV published")
        a(f"s_branch {lp1end}")
        a.label(lpad)
        a(f"v_lshrrev_b32 {v(T)}, 3, v0")
        a(f"v_lshrrev_b32 {v(T2)}, 2, {v(T)}")
        a(f"v_lshlrev_b32 {v(T2)}, 6, {v(T2)}")
        a(f"v_and_b32 {v(T)}, 3, {v(T)}")
        a(f"v_add_u32 {v(T)}, {v(T)}, {v(T2)}")
        a(f"s_lshl_b32 {s(sT0)}, {s(sR)}, 2")
        a(f"v_add_u32 {v(T)}, {s(sT0)}, {v(T)}")
        a(f"v_lshlrev_b32 {v(T)}, 12, {v(T)}")
        a(f"v_and_b32 {v(T2)}, 7, v0")
        a(f"v_lshl_add_u32 {v(T)}, {v(T2)}, 5, {v(T)}")
        a(f"s_cmp_eq_u32 {s(sC)}, 15")
        a(f"s_cselect_b32 {s(sT0)}, 2048, 0")
        a(f"s_cselect_b32 {s(sT1)}, 0x3f80, 0")
        a(f"s_add_u32 {s(sT0)}, {s(sT0)}, {7*256}")
        a(f"v_add_u32 {v(T)}, {s(sT0)}, {v(T)}")
        a(f"v_mov_b32 v16, {s(sT1)}")
        a(f"v_mov_b32 v17, 0")
        a(f"v_mov_b32 v18, {s(sT1)}")
        a(f"v_mov_b32 v19, 0")
        a(f"buffer_store_dwordx4 v[16:19], {v(T)}, {s(SWS,4)}, 0 offen sc1")
        a(f"buffer_store_dwordx4 v[16:19], {v(T)}, {s(SWS,4)}, 0 offen offset:16 sc1")
        self.masks()
        a("s_waitcnt vmcnt(0)")
        self.announce()
        self.publish(0, True)
        a.label(lp1end)

    def stage_rows128(self, srd, rowstride, scol, ldsbase, vsrc=2):
        a = self.a
        a(f"s_mul_i32 {s(sT0)}, {s(sW)}, 56")
        self.rows128_src(vsrc, rowstride, sT0, scol)
        a(f"s_mul_i32 {s(sT1)}, {s(sW)}, 7168")
        for j in range(7):
            a(f"s_mov_b32 {s(sT0)}, {8*j*rowstride}")
            self.dma(vsrc, srd, sT0, (sT1, ldsbase + 1024 * j))

    def move_frags(self, dst, vaddr, nsteps, perm, off0=0):
        a = self.a
        for k in range(nsteps):
            a(f"ds_read_b64_tr_b16 {v(dst+4*k,2)}, {v(vaddr)} offset:{off0+k*2048}")
            a(f"ds_read_b64_tr_b16 {v(dst+4*k+2,2)}, {v(vaddr)} offset:{off0+k*2048+(1024 if perm else 512)}")

    def busy_begin(self):
        a = self.a
        l = a.newlabel("NB")
        a(f"s_cmp_eq_u32 {s(sBUSY)}, 0")
        a(f"s_cbranch_scc1 {l}")
        return l

    def p2(self):
        a = self.a
        QF = 72
        SR = R_A
        OA = 16
        KB = 32
        vM = 12
        full = self.stop_after >= 3
        if full:
            lb = self.busy_begin()
            a(f"s_lshl_b32 {s(sT2)}, {s(sCT)}, 7")
            self.stage_rows128(SWO, 896, sT2, 0)
            a(f"s_lshl_b32 {s(sT0)}, {s(sR)}, 7")
            a(f"s_lshl_b32 {s(sT1)}, {s(sTH)}, 6")
            a(f"s_add_u32 {s(sT0)}, {s(sT0)}, {s(sT1)}")
            a(f"s_and_b32 {s(sT1)}, {s(sW)}, 2")
            a(f"s_lshl_b32 {s(sT1)}, {s(sT1)}, 4")
            a(f"s_add_u32 {s(sT0)}, {s(sT0)}, {s(sT1)}")
            a(f"v_and_b32 {v(T)}, 31, v1")
            a(f"v_add_u32 {v(T)}, {s(sT0)}, {v(T)}")
            a(f"v_mul_u32_u24 {v(T)}, 896, {v(T)}")
            a(f"s_lshl_b32 {s(sT0)}, {s(sCT)}, 7")
            a(f"s_and_b32 {s(sT1)}, {s(sW)}, 1")
            a(f"s_lshl_b32 {s(sT1)}, {s(sT1)}, 6")
            a(f"s_add_u32 {s(sT0)}, {s(sT0)}, {s(sT1)}")
            a(f"s_lshl_b32 {s(sT1)}, {s(sROLE)}, 5")
            a(f"s_add_u32 {s(sT0)}, {s(sT0)}, {s(sT1)}")
            a(f"v_lshrrev_b32 {v(T2)}, 5, v1")
            a(f"v_lshl_add_u32 {v(T)}, {v(T2)}, 3, {v(T)}")
            a(f"v_add_u32 {v(85)}, {s(sT0)}, {v(T)}")
            a(f"buffer_load_dwordx2 {v(vHRES,2)}, {v(85)}, {s(SX,4)}, 0 offen")
            a(f"buffer_load_dwordx2 {v(vHRES+2,2)}, {v(85)}, {s(SX,4)}, 0 offen offset:16")
            a(f"s_and_b32 {s(sU0)}, {s(sW)}, 1")
            a(f"s_lshl_b32 {s(sU0)}, {s(sU0)}, 6")
            a(f"s_mul_i32 {s(sT0)}, {s(sROLE)}, {14*2048}")
            self.tr128_addr(3, False, sT0)
            a("s_waitcnt vmcnt(0)")
            a("s_barrier")
            self.move_frags(R_C, 3, 14, False)
            a("s_waitcnt lgkmcnt(0)")
            a("s_barrier")
            self.ts("wo in regs")
            a(f"s_lshl_b32 {s(sT2)}, {s(sC)}, 8")
            self.stage_rows128(SW1, 3584, sT2, 0)
            a.label(lb)
        lw = a.newlabel("P2W")
        a(f"s_cmp_lg_u32 {s(sW)}, 0")
        a(f"s_cbranch_scc1 {lw}")
        a(f"v_lshrrev_b32 {v(T)}, 4, v1")
        a(f"v_sub_u32 {v(T)}, {s(sR)}, {v(T)}")
        a(f"v_max_i32 {v(T)}, 0, {v(T)}")
        a(f"v_and_b32 {v(T2)}, 15, v1")
        a(f"v_lshl_add_u32 {v(4)}, {v(T)}, 4, {v(T2)}")
        a(f"v_lshlrev_b32 {v(T)}, 7, {v(T)}")
        a(f"v_lshl_add_u32 {v(T)}, {v(T2)}, 2, {v(T)}")
        a(f"v_add_u32 {v(5)}, {FL_OFF}, {v(T)}")
        self.set_exec((1 << 48) - 1)
        a(f"s_mov_b32 {s(sSPIN)}, 200000")
        lab = a.loop_label(a.newlabel("ANN")); done = a.newlabel("ANND")
        a(f"buffer_load_ubyte {v(T2)}, {v(4)}, {s(SDBG,4)}, 0 offen sc1")
        a("s_waitcnt vmcnt(0)")
        a(f"v_cmp_gt_u32 vcc, 0x80, {v(T2)}")
        a(f"s_sub_u32 {s(sSPIN)}, {s(sSPIN)}, 1")
        a(f"s_cbranch_scc1 {done}")
        a("s_nop 2")
        a(f"s_cbranch_vccnz {lab}")
        a.label(done)
        self.set_exec(0xffff)
        a(f"s_or_b32 {s(sT0)}, {s(sXCC)}, 0x80")
        a(f"v_cmp_ne_u32 vcc, {s(sT0)}, {v(T2)}")
        a(f"s_mov_b64 exec, -1")
        a(f"s_cmp_eq_u64 vcc, 0")
        a(f"s_cselect_b32 {s(sT0)}, 1, 0")
        a(f"v_mov_b32 {v(T2)}, {s(sT0)}")
        a(f"v_mov_b32 {v(T)}, {L_FLAG}")
        a(f"ds_write_b32 {v(T)}, {v(T2)}")
        self.poll(5, T2, (1 << 48) - 1, "KV")
        a.label(lw)
        a("s_waitcnt lgkmcnt(0)")
        a("s_barrier")
        self.ts("QKV flags seen")
        a(f"v_mov_b32 {v(T)}, {L_FLAG}")
        a(f"ds_read_b32 {v(13)}, {v(T)}")
        a(f"s_lshl_b32 {s(sT0)}, {s(sC)}, 6")
        a(f"s_lshl_b32 {s(sT1)}, {s(sR)}, 2")
        a(f"s_add_u32 {s(sT0)}, {s(sT0)}, {s(sT1)}")
        a(f"s_add_u32 {s(sT2)}, {s(sT0)}, {s(sT)}")
        a(f"s_lshl_b32 {s(sT2)}, {s(sT2)}, 11")
        a(f"s_add_u32 {s(sT2)}, {s(sT2)}, {Q_OFF}")
        a(f"v_lshlrev_b32 {v(T2)}, 3, v1")
        for aa in range(4):
            a(f"buffer_load_dwordx2 {v(QF+2*aa,2)}, {v(T2)}, {s(SWS,4)}, {s(sT2)} offen offset:{512*aa} sc1")
        a(f"s_sub_u32 {s(sT0)}, {s(sT0)}, 8")
        a(f"s_lshl_b32 {s(sT0)}, {s(sT0)}, 12")
        a(f"s_mul_i32 {s(sT1)}, {s(sW)}, 6144")
        a(f"s_add_u32 {s(sT0)}, {s(sT0)}, {s(sT1)}")
        a(f"s_add_u32 {s(sT1)}, {s(sT1)}, {L_KV}")
        a(f"s_lshl_b32 {s(sT2)}, {s(sR)}, 4")
        a(f"s_mul_i32 {s(sT3)}, {s(sW)}, 6")
        a(f"s_add_u32 {s(sT2)}, {s(sT2)}, {s(sT3)}")
        a(f"v_lshlrev_b32 {v(T)}, 4, v1")
        for k in range(6):
            ls = a.newlabel("NOKV")
            a(f"s_cmp_lt_u32 {s(sT2)}, {32-k}")
            a(f"s_cbranch_scc1 {ls}")
            a(f"s_add_u32 {s(sT3)}, {s(sT0)}, {1024*k}")
            self.dma(T, SWS, sT3, (sT1, 1024 * k), sc1=True)
            a.label(ls)
        vK = 2; vV = 3
        sB = sT4
        a(f"s_lshl_b32 {s(sT0)}, {s(sROLE)}, 2")
        a(f"s_sub_u32 {s(sB)}, {s(sT)}, {s(sT0)}")
        a(f"s_add_u32 {s(sB)}, {s(sB)}, 4")
        a(f"s_lshl_b32 {s(sT0)}, {s(sB)}, 12")
        a(f"s_add_u32 {s(sT0)}, {s(sT0)}, {L_KV}")
        a(f"v_lshlrev_b32 {v(vK)}, 3, v1")
        a(f"v_add_u32 {v(vK)}, {s(sT0)}, {v(vK)}")
        a(f"v_bfe_u32 {v(T)}, v1, 4, 1")
        a(f"v_and_b32 {v(vV)}, 3, v1")
        a(f"v_lshl_add_u32 {v(T)}, {v(T)}, 2, {v(vV)}")
        a(f"v_lshrrev_b32 {v(vV)}, 5, v1")
        a(f"v_add_u32 {v(vV)}, {v(vV)}, {v(T)}")
        a(f"v_lshlrev_b32 {v(vV)}, 2, {v(vV)}")
        a(f"v_bfe_u32 {v(vV+1)}, v1, 2, 2")
        a(f"v_add_u32 {v(8)}, {v(vV)}, {v(vV+1)}")
        a(f"v_lshlrev_b32 {v(T)}, 8, {v(T)}")
        a(f"v_add_u32 {v(T)}, {s(sT0)}, {v(T)}")
        a(f"v_add_u32 {v(T)}, 2048, {v(T)}")
        for k in range(4):
            a(f"v_add_u32 {v(vV+k)}, {8*k}, {v(8)}")
            a(f"v_and_b32 {v(vV+k)}, 31, {v(vV+k)}")
            a(f"v_lshl_add_u32 {v(vV+k)}, {v(vV+k)}, 3, {v(T)}")
        sFV = sT5
        a(f"s_lshl_b32 {s(sT0)}, {s(sR)}, 2")
        a(f"s_sub_i32 {s(sFV)}, 8, {s(sT0)}")
        a(f"s_sub_i32 {s(sFV)}, {s(sFV)}, {s(sB)}")
        a("s_waitcnt lgkmcnt(0)")
        a(f"v_readfirstlane_b32 {s(sLOCAL)}, {v(13)}")
        a("s_waitcnt vmcnt(0)")
        a("s_barrier")
        self.ts("KV landed")
        a(f"v_cndmask_b32 {v(QF+6)}, {v(QF+6)}, 0, {s(sHI,2)}")
        a(f"v_cndmask_b32 {v(QF+7)}, {v(QF+7)}, 0, {s(sHI,2)}")
        NEG = f32bits(-1.0e30)
        def valid_branch(j, lab):
            if j == 4:
                a(f"s_cmp_eq_u32 {s(sROLE)}, 1")
                a(f"s_cbranch_scc1 {lab}")
            else:
                a(f"s_cmp_gt_i32 {s(sFV)}, {j}")
                a(f"s_cbranch_scc1 {lab}")
        for j in range(5):
            for k in range(4):
                a(f"ds_read_b64 {v(KB+8*j+2*k,2)}, {v(vK)} offset:{4096*j+512*k}")
        for j in range(5):
            lsk, lend = a.newlabel("QS"), a.newlabel("QE")
            a(f"s_waitcnt lgkmcnt({min(15,16-4*j)})")
            valid_branch(j, lsk)
            a(f"{MF} {v(SR+16*j,16)}, {v(KB+8*j,4)}, {v(QF,4)}, 0")
            a(f"{MF} {v(SR+16*j,16)}, {v(KB+8*j+4,4)}, {v(QF+4,4)}, {v(SR+16*j,16)}")
            a(f"s_branch {lend}")
            a.label(lsk)
            for k in range(16): a(f"v_mov_b32 {v(SR+16*j+k)}, {NEG:#x}")
            a.label(lend)
        a(f"v_mov_b32 {v(T)}, {NEG:#x}")
        lm, lm2 = a.newlabel("MK"), a.newlabel("MK")
        a(f"s_cmp_eq_u32 {s(sROLE)}, 0")
        a(f"s_cbranch_scc0 {lm}")
        for k in range(16): a(f"v_cndmask_b32 {v(SR+64+k)}, {v(T)}, {v(SR+64+k)}, {s(sMASK+2*k,2)}")
        a(f"s_branch {lm2}")
        a.label(lm)
        for k in range(16): a(f"v_cndmask_b32 {v(SR+k)}, {v(SR+k)}, {v(T)}, {s(sMASK+2*k,2)}")
        a.label(lm2)
        for j in range(5):
            for st in range(2):
                for rr in range(2):
                    a(f"ds_read_b64_tr_b16 {v(KB+8*j+4*st+2*rr,2)}, {v(vV+2*st+rr)} offset:{4096*j}")
        a(f"v_max3_f32 {v(vM)}, {v(SR)}, {v(SR+1)}, {v(SR+2)}")
        a(f"v_max3_f32 {v(T)}, {v(SR+3)}, {v(SR+4)}, {v(SR+5)}")
        k = 6; tog = 0
        while k < 80:
            d = vM if tog == 0 else T
            a(f"v_max3_f32 {v(d)}, {v(d)}, {v(SR+k)}, {v(SR+k+1)}")
            k += 2; tog ^= 1
        a(f"v_max_f32 {v(vM)}, {v(vM)}, {v(T)}")
        a(f"v_mov_b32 {v(T)}, {v(vM)}")
        a(f"v_permlane32_swap_b32 {v(T)}, {v(vM)}")
        a(f"v_max_f32 {v(vM)}, {v(vM)}, {v(T)}")
        for k in range(16): a(f"v_mov_b32 {v(OA+k)}, 0")
        a("s_waitcnt lgkmcnt(0)")
        for j in range(5):
            lsk = a.newlabel("PS")
            valid_branch(j, lsk)
            b = SR + 16 * j
            for k in range(16): a(f"v_sub_f32 {v(b+k)}, {v(b+k)}, {v(vM)}")
            for k in range(16): a(f"v_exp_f32 {v(b+k)}, {v(b+k)}")
            for k in range(8): a(f"v_cvt_pk_bf16_f32 {v(b+k)}, {v(b+2*k)}, {v(b+2*k+1)}")
            a(f"{MF} {v(OA,16)}, {v(KB+8*j,4)}, {v(b,4)}, {v(OA,16)}")
            a(f"{MF} {v(OA,16)}, {v(KB+8*j+4,4)}, {v(b+4,4)}, {v(OA,16)}")
            a.label(lsk)
        self.ts("attn partial done")
        vMA = 2
        a(f"s_mul_i32 {s(sT0)}, {s(sT)}, 4352")
        a(f"s_add_u32 {s(sT0)}, {s(sT0)}, {L_MRG}")
        a(f"v_lshlrev_b32 {v(vMA)}, 4, v1")
        a(f"v_add_u32 {v(vMA)}, {s(sT0)}, {v(vMA)}")
        a(f"v_lshlrev_b32 {v(3)}, 2, v1")
        a(f"v_add_u32 {v(3)}, {s(sT0)}, {v(3)}")
        l1 = a.newlabel("MG")
        a(f"s_cmp_eq_u32 {s(sROLE)}, 1")
        a(f"s_cbranch_scc0 {l1}")
        for k in range(4): a(f"ds_write_b128 {v(vMA)}, {v(OA+4*k,4)} offset:{1024*k}")
        a(f"ds_write_b32 {v(3)}, {v(vM)} offset:4096")
        a.label(l1)
        a("s_waitcnt lgkmcnt(0)")
        a("s_barrier")
        l2 = a.newlabel("MG")
        a(f"s_cmp_eq_u32 {s(sROLE)}, 0")
        a(f"s_cbranch_scc0 {l2}")
        O1 = 32
        for k in range(4): a(f"ds_read_b128 {v(O1+4*k,4)}, {v(vMA)} offset:{1024*k}")
        a(f"ds_read_b32 {v(T)}, {v(3)} offset:4096")
        a(f"s_lshl_b32 {s(sT0)}, {s(sR)}, 2")
        a(f"s_add_u32 {s(sT0)}, {s(sT0)}, {s(sT)}")
        a(f"s_mul_i32 {s(sT0)}, {s(sT0)}, 28672")
        a(f"s_add_u32 {s(sT0)}, {s(sT0)}, {O_OFF}")
        a(f"s_mul_i32 {s(sT1)}, {s(sC)}, 7")
        a(f"v_lshrrev_b32 {v(4)}, 5, v1")
        a(f"v_add_u32 {v(4)}, {s(sT1)}, {v(4)}")
        a(f"v_lshrrev_b32 {v(5)}, 1, {v(4)}")
        a(f"v_lshlrev_b32 {v(5)}, 9, {v(5)}")
        a(f"v_and_b32 {v(4)}, 1, {v(4)}")
        a(f"v_lshl_add_u32 {v(5)}, {v(4)}, 3, {v(5)}")
        a(f"v_and_b32 {v(4)}, 31, v1")
        a(f"v_lshl_add_u32 {v(5)}, {v(4)}, 4, {v(5)}")
        a(f"v_add_u32 {v(5)}, {s(sT0)}, {v(5)}")
        a("s_waitcnt lgkmcnt(0)")
        a(f"v_max_f32 {v(T2)}, {v(vM)}, {v(T)}")
        a(f"v_sub_f32 {v(vM)}, {v(vM)}, {v(T2)}")
        a(f"v_sub_f32 {v(T)}, {v(T)}, {v(T2)}")
        a(f"v_exp_f32 {v(vM)}, {v(vM)}")
        a(f"v_exp_f32 {v(T)}, {v(T)}")
        for k in range(16): a(f"v_mul_f32 {v(OA+k)}, {v(OA+k)}, {v(vM)}")
        for k in range(16): a(f"v_fmac_f32 {v(OA+k)}, {v(O1+k)}, {v(T)}")
        a(f"v_mov_b32 {v(T)}, {v(OA+12)}")
        a(f"v_mov_b32 {v(T2)}, {v(OA+12)}")
        a(f"v_permlane32_swap_b32 {v(T)}, {v(T2)}")
        a(f"v_rcp_f32 {v(T2)}, {v(T2)}")
        for k in range(16): a(f"v_mul_f32 {v(OA+k)}, {v(OA+k)}, {v(T2)}")
        for k in range(8): a(f"v_cvt_pk_bf16_f32 {v(O1+k)}, {v(OA+2*k)}, {v(OA+2*k+1)}")
        def ostores(sc):
            for aa in range(3):
                a(f"buffer_store_dwordx2 {v(O1+2*aa,2)}, {v(5)}, {s(SWS,4)}, 0 offen offset:{512*aa}{sc}")
            a(f"s_mov_b32 exec_hi, 0")
            a(f"buffer_store_dwordx2 {v(O1+6,2)}, {v(5)}, {s(SWS,4)}, 0 offen offset:{512*3}{sc}")
            a(f"s_mov_b64 exec, -1")
        self.two_path(ostores)
        a.label(l2)
        self.publish(1)
        self.ts("O published")

    def w1_move(self, dp, ldsbase):
        a = self.a
        l = a.newlabel("W1M")
        a(f"s_lshr_b32 {s(sT0)}, {s(sT)}, 1")
        a(f"s_cmp_lg_u32 {s(sT0)}, {dp}")
        a(f"s_cbranch_scc1 {l}")
        a(f"s_and_b32 {s(sU0)}, {s(sW)}, 1")
        a(f"s_lshl_b32 {s(sU0)}, {s(sU0)}, 6")
        a(f"s_mov_b32 {s(sT0)}, {ldsbase}")
        self.tr128_addr(3, True, sT0)
        self.move_frags(R_A, 3, 28, True)
        a.label(l)

    def p3(self):
        a = self.a
        ACC = 16; FB = 32
        a(f"s_cmp_eq_u32 {s(sBUSY)}, 0")
        a(f"s_cbranch_scc1 L_FIN")
        a(f"s_lshl_b32 {s(sT2)}, {s(sC)}, 8")
        a(f"s_add_u32 {s(sT2)}, {s(sT2)}, 128")
        self.stage_rows128(SW1, 3584, sT2, 65536)
        self.w1_move(0, 0)
        self.poll_group(1, 16, 7, "O")
        self.ts("O flags seen")
        a(f"s_lshl_b32 {s(sT0)}, {s(sR)}, 2")
        a(f"s_lshl_b32 {s(sT1)}, {s(sTH)}, 1")
        a(f"s_add_u32 {s(sT0)}, {s(sT0)}, {s(sT1)}")
        a(f"s_mul_i32 {s(sT0)}, {s(sT0)}, 28672")
        a(f"s_add_u32 {s(sT0)}, {s(sT0)}, {O_OFF}")
        a(f"s_bfe_u32 {s(sT1)}, {s(sW)}, 0x10001")
        a(f"s_mul_i32 {s(sT1)}, {s(sT1)}, 28672")
        a(f"s_mul_i32 {s(sT2)}, {s(sROLE)}, 14336")
        a(f"s_add_u32 {s(sT1)}, {s(sT1)}, {s(sT2)}")
        a(f"s_and_b32 {s(sT2)}, {s(sW)}, 1")
        a(f"s_lshl_b32 {s(sT3)}, {s(sT2)}, 12")
        a(f"s_add_u32 {s(sT3)}, {s(sT3)}, {s(sT1)}")
        a(f"s_mul_i32 {s(sT4)}, {s(sT2)}, 3072")
        a(f"s_add_u32 {s(sT4)}, {s(sT4)}, {s(sT1)}")
        a(f"s_add_u32 {s(sT4)}, {s(sT4)}, 8192")
        a(f"v_lshlrev_b32 {v(2)}, 4, v1")
        a(f"s_add_u32 {s(sT5)}, {s(sT0)}, {s(sT3)}")
        a(f"s_mov_b32 m0, {s(sT3)}")
        for k in range(4): self.dma(2, SWS, sT5, None, sc1=True, off=1024*k)
        a(f"s_add_u32 {s(sT5)}, {s(sT0)}, {s(sT4)}")
        a(f"s_mov_b32 m0, {s(sT4)}")
        for k in range(3): self.dma(2, SWS, sT5, None, sc1=True, off=1024*k)
        a(f"v_add_u32 {v(3)}, {s(sT1)}, {v(2)}")
        a(f"s_lshl_b32 {s(sT2)}, {s(sW)}, 11")
        a(f"s_add_u32 {s(sT2)}, {s(sT2)}, {L_RED3}")
        a(f"v_add_u32 {v(4)}, {s(sT2)}, {v(2)}")
        a(f"v_xor_b32 {v(5)}, 8192, {v(4)}") if (L_RED3 & 8192) == 0 else None
        assert L_RED3 % 16384 == 0
        a(f"s_lshl_b32 {s(sT0)}, {s(sR)}, 2")
        a(f"s_lshl_b32 {s(sT1)}, {s(sTH)}, 1")
        a(f"s_add_u32 {s(sT0)}, {s(sT0)}, {s(sT1)}")
        a(f"s_bfe_u32 {s(sT1)}, {s(sW)}, 0x10001")
        a(f"s_add_u32 {s(sT0)}, {s(sT0)}, {s(sT1)}")
        a(f"s_mul_i32 {s(sT0)}, {s(sT0)}, 28")
        a(f"s_lshl_b32 {s(sT1)}, {s(sCT)}, 2")
        a(f"s_add_u32 {s(sT0)}, {s(sT0)}, {s(sT1)}")
        a(f"s_and_b32 {s(sT1)}, {s(sW)}, 1")
        a(f"s_lshl_b32 {s(sT1)}, {s(sT1)}, 1")
        a(f"s_add_u32 {s(sT0)}, {s(sT0)}, {s(sT1)}")
        a(f"s_add_u32 {s(sT0)}, {s(sT0)}, {s(sROLE)}")
        a(f"s_lshl_b32 {s(sT1)}, {s(sT0)}, 10")
        a(f"s_add_u32 {s(sT1)}, {s(sT1)}, {H_OFF}")
        a(f"v_add_u32 {v(6)}, {s(sT1)}, {v(2)}")
        a(f"s_lshl_b32 {s(sT1)}, {s(sT0)}, 8")
        a(f"s_add_u32 {s(sT1)}, {s(sT1)}, {HS_OFF}")
        a(f"v_lshl_add_u32 {v(7)}, v1, 2, {s(sT1)}")
        XR = 64
        for k in range(4):
            a(f"v_lshlrev_b32 {v(XR+2*k)}, 16, {v(vHRES+k)}")
            a(f"v_and_b32 {v(XR+2*k+1)}, 0xffff0000, {v(vHRES+k)}")
        a("s_waitcnt vmcnt(3)")
        a("s_barrier")
        self.ts("O stage0 landed")
        for k in range(8): a(f"ds_read_b128 {v(FB+4*k,4)}, {v(3)} offset:{1024*k}")
        for k in range(8):
            a(f"s_waitcnt lgkmcnt({7-k})")
            a(f"{MF} {v(ACC,16)}, {v(R_C+4*k,4)}, {v(FB+4*k,4)}, {'0' if k==0 else v(ACC,16)}")
        a("s_waitcnt vmcnt(0)")
        a("s_barrier")
        for k in range(6): a(f"ds_read_b128 {v(FB+4*k,4)}, {v(3)} offset:{1024*(8+k)}")
        for k in range(6):
            a(f"s_waitcnt lgkmcnt({5-k})")
            a(f"{MF} {v(ACC,16)}, {v(R_C+4*(8+k),4)}, {v(FB+4*k,4)}, {v(ACC,16)}")
        self.ts("p3 mfma done")
        l1, l2 = a.newlabel("R3"), a.newlabel("R3")
        a(f"s_cmp_eq_u32 {s(sROLE)}, 0")
        a(f"s_cbranch_scc0 {l1}")
        a(f"ds_write_b128 {v(4)}, {v(ACC+8,4)}")
        a(f"ds_write_b128 {v(4)}, {v(ACC+12,4)} offset:1024")
        for k in range(8): a(f"v_add_f32 {v(XR+k)}, {v(XR+k)}, {v(ACC+k)}")
        a(f"s_branch {l2}")
        a.label(l1)
        a(f"ds_write_b128 {v(4)}, {v(ACC,4)}")
        a(f"ds_write_b128 {v(4)}, {v(ACC+4,4)} offset:1024")
        for k in range(8): a(f"v_add_f32 {v(XR+k)}, {v(XR+k)}, {v(ACC+8+k)}")
        a.label(l2)
        a("s_waitcnt lgkmcnt(0)")
        a("s_barrier")
        a(f"ds_read_b128 {v(FB,4)}, {v(5)}")
        a(f"ds_read_b128 {v(FB+4,4)}, {v(5)} offset:1024")
        a("s_waitcnt lgkmcnt(0)")
        for k in range(8): a(f"v_add_f32 {v(XR+k)}, {v(XR+k)}, {v(FB+k)}")
        for k in range(4): a(f"v_cvt_pk_bf16_f32 {v(vHRES+k)}, {v(XR+2*k)}, {v(XR+2*k+1)}")
        self.two_path(lambda sc: a(f"buffer_store_dwordx4 {v(vHRES,4)}, {v(6)}, {s(SWS,4)}, 0 offen{sc}"))
        a(f"v_add_f32 {v(FB)}, {v(XR)}, {v(XR+1)}")
        a(f"v_mul_f32 {v(FB+1)}, {v(XR)}, {v(XR)}")
        a(f"v_add_f32 {v(FB+2)}, {v(XR+2)}, {v(XR+3)}")
        a(f"v_mul_f32 {v(FB+3)}, {v(XR+1)}, {v(XR+1)}")
        a(f"v_add_f32 {v(FB+4)}, {v(XR+4)}, {v(XR+5)}")
        a(f"v_fmac_f32 {v(FB+1)}, {v(XR+2)}, {v(XR+2)}")
        a(f"v_add_f32 {v(FB+5)}, {v(XR+6)}, {v(XR+7)}")
        a(f"v_fmac_f32 {v(FB+3)}, {v(XR+3)}, {v(XR+3)}")
        a(f"v_add_f32 {v(FB)}, {v(FB)}, {v(FB+2)}")
        a(f"v_fmac_f32 {v(FB+1)}, {v(XR+4)}, {v(XR+4)}")
        a(f"v_add_f32 {v(FB+4)}, {v(FB+4)}, {v(FB+5)}")
        a(f"v_fmac_f32 {v(FB+3)}, {v(XR+5)}, {v(XR+5)}")
        a(f"v_add_f32 {v(FB)}, {v(FB)}, {v(FB+4)}")
        a(f"v_fmac_f32 {v(FB+1)}, {v(XR+6)}, {v(XR+6)}")
        a(f"v_fmac_f32 {v(FB+3)}, {v(XR+7)}, {v(XR+7)}")
        a(f"v_add_f32 {v(FB+1)}, {v(FB+1)}, {v(FB+3)}")
        a(f"v_permlane32_swap_b32 {v(FB)}, {v(FB+1)}")
        a(f"v_add_f32 {v(FB)}, {v(FB)}, {v(FB+1)}")
        self.two_path(lambda sc: a(f"buffer_store_dword {v(FB)}, {v(7)}, {s(SWS,4)}, 0 offen{sc}"))
        self.publish(2)
        self.ts("H published")

    def p4(self):
        a = self.a
        ACC = 16; FB = 48; BM = 72
        self.w1_move(1, 65536)
        sKQ = sT6
        a(f"s_and_b32 {s(sKQ)}, {s(sW)}, 2")
        a(f"s_add_u32 {s(sKQ)}, {s(sKQ)}, {s(sROLE)}")
        a(f"s_mul_i32 {s(sT0)}, {s(sKQ)}, 448")
        a(f"s_and_b32 {s(sT1)}, {s(sW)}, 1")
        a(f"s_lshl_b32 {s(sT2)}, {s(sT1)}, 4")
        a(f"s_add_u32 {s(sT0)}, {s(sT0)}, {s(sT2)}")
        a(f"s_lshl_b32 {s(sT2)}, {s(sCT)}, 7")
        vW2s, vW2r = 8, 9
        self.rows128_src(vW2s, 896, sT0, sT2)
        sW2m = sU1
        a(f"s_lshl_b32 {s(sW2m)}, {s(sKQ)}, 12")
        a(f"s_lshl_b32 {s(sT1)}, {s(sT1)}, 11")
        a(f"s_lshl_b32 {s(sT0)}, {s(sKQ)}, 12")
        a(f"s_add_u32 {s(sW2m)}, {s(sW2m)}, {s(sT1)}")
        a(f"s_and_b32 {s(sU0)}, {s(sW)}, 1")
        a(f"s_lshl_b32 {s(sU0)}, {s(sU0)}, 6")
        self.tr128_addr(vW2r, True, sT0)
        a(f"v_add_u32 {v(10)}, {L_HR}, {v(vW2r)}")
        def w2dma(p, ldsbase):
            for j in range(2):
                a(f"s_mov_b32 {s(sT0)}, {(32*p+8*j)*896}")
                self.dma(vW2s, SW2, sT0, (sW2m, ldsbase + 1024 * j))
        self.w2dma = w2dma
        a("s_waitcnt lgkmcnt(0)")
        a("s_barrier")
        for p in range(3): w2dma(p, L_HR + 16384 * p)
        a(f"v_mov_b32 {v(FB)}, 0")
        for k in range(112): a(f"v_dot2c_f32_bf16 {v(FB)}, {s(sONES)}, {v(R_A+k)}")
        a(f"v_mov_b32 {v(FB+1)}, {v(FB)}")
        a(f"v_permlane32_swap_b32 {v(FB)}, {v(FB+1)}")
        a(f"v_add_f32 {v(FB)}, {v(FB)}, {v(FB+1)}")
        self.cs_operand(vAM1, FB)
        self.ts("w1 ready")
        self.poll_group(2, 14, 7, "H")
        self.ts("H flags seen")
        a(f"s_lshl_b32 {s(sT0)}, {s(sR)}, 2")
        a(f"s_lshr_b32 {s(sT1)}, {s(sW)}, 1")
        a(f"s_add_u32 {s(sT0)}, {s(sT0)}, {s(sT1)}")
        a(f"s_mul_i32 {s(sT0)}, {s(sT0)}, 28672")
        a(f"s_and_b32 {s(sT1)}, {s(sW)}, 1")
        a(f"s_lshl_b32 {s(sT1)}, {s(sT1)}, 11")
        a(f"s_add_u32 {s(sT0)}, {s(sT0)}, {s(sT1)}")
        a(f"s_add_u32 {s(sT0)}, {s(sT0)}, {H_OFF}")
        a(f"v_lshlrev_b32 {v(2)}, 4, v1")
        a(f"v_add_u32 {v(3)}, {s(sT0)}, {v(2)}")
        sAm = sT5
        a(f"s_lshl_b32 {s(sAm)}, {s(sW)}, 11")
        def adma(i):
            a(f"s_mov_b32 {s(sT0)}, {4096*i}")
            self.dma(3, SWS, sT0, (sAm, (i % 6) * 16384), sc1=True)
            self.dma(3, SWS, sT0, None, sc1=True, off=1024)
        ops = ['p0','p0','p1','p1','p2','p2']
        adma(0); ops += ['A0','A0']
        adma(1); ops += ['A1','A1']
        SB = 32
        a(f"s_lshl_b32 {s(sT0)}, {s(sR)}, 2")
        a(f"s_add_u32 {s(sT0)}, {s(sT0)}, {s(sT)}")
        a(f"s_mul_i32 {s(sT0)}, {s(sT0)}, 28")
        a(f"s_mul_i32 {s(sT1)}, {s(sROLE)}, 14")
        a(f"s_add_u32 {s(sT0)}, {s(sT0)}, {s(sT1)}")
        a(f"s_lshl_b32 {s(sT0)}, {s(sT0)}, 8")
        a(f"s_add_u32 {s(sT0)}, {s(sT0)}, {HS_OFF}")
        a(f"v_lshlrev_b32 {v(4)}, 4, v1")
        STB = R_C + 40
        for j in range(4):
            a(f"buffer_load_dwordx4 {v(STB+4*j,4)}, {v(4)}, {s(SWS,4)}, {s(sT0)} offen offset:{1024*j} sc1")
            ops.append('S')
        for i in range(2, 6):
            adma(i); ops += [f'A{i}', f'A{i}']
        a(f"s_lshl_b32 {s(sT0)}, {s(sROLE)}, 13")
        a(f"v_add_u32 {v(5)}, {s(sT0)}, {v(2)}")
        a(f"v_add_u32 {v(6)}, 65536, {v(5)}")
        a(f"s_lshl_b32 {s(sT0)}, {s(sR)}, 2")
        a(f"s_lshl_b32 {s(sT1)}, {s(sROLE)}, 1")
        a(f"s_add_u32 {s(sT0)}, {s(sT0)}, {s(sT1)}")
        a(f"s_mul_i32 {s(sT0)}, {s(sT0)}, 112")
        a(f"s_lshl_b32 {s(sT1)}, {s(sC)}, 3")
        a(f"s_add_u32 {s(sT0)}, {s(sT0)}, {s(sT1)}")
        a(f"s_lshl_b32 {s(sT1)}, {s(sT)}, 1")
        a(f"s_add_u32 {s(sT0)}, {s(sT0)}, {s(sT1)}")
        a(f"s_lshl_b32 {s(sT0)}, {s(sT0)}, 10")
        a(f"s_add_u32 {s(sT0)}, {s(sT0)}, {H1_OFF}")
        a(f"v_add_u32 {v(7)}, {s(sT0)}, {v(2)}")
        a(f"v_add_u32 {v(11)}, {112*1024}, {v(7)}")
        qn = 7
        self.w2b_loc = {}
        for i in range(7):
            a.comment(f"---- P4 chunk {i}")
            needs = [f'A{i}', f'p{i}'] + (['S'] if i == 2 else [])
            last = max(k for k, o in enumerate(ops) if o in needs)
            a(f"s_waitcnt vmcnt({len(ops)-1-last}) lgkmcnt(0)")
            a("s_barrier")
            if i == 0: self.ts("H chunk0 landed")
            slot = (i % 6) * 16384
            va, so = (5, slot) if slot < 65536 else (6, slot - 65536)
            order = [(ks, tt) for ks in range(4) for tt in range(2)]
            def rd(n):
                ks, tt = order[n]
                a(f"ds_read_b128 {v(FB+4*(n%6),4)}, {v(va)} offset:{so+tt*4096+ks*1024}")
            for n in range(6): rd(n)
            for n in range(8):
                ks, tt = order[n]
                outstanding = min(8, n + 6) - n - 1 if n < 2 else 7 - n
                a(f"s_waitcnt lgkmcnt({5 if n < 2 else 7-n})")
                first = (i == 0 and ks == 0)
                a(f"{MF} {v(ACC+16*tt,16)}, {v(R_A+4*(4*i+ks),4)}, {v(FB+4*(n%6),4)}, {'0' if first else v(ACC+16*tt,16)}")
                if n < 2: rd(n + 6)
            if i == 2:
                for k in range(4): a(f"v_cndmask_b32 {v(STB+12+k)}, {v(STB+12+k)}, 0, {s(sHI,2)}")
                for k in range(4):
                    a(f"v_add_f32 {v(STB+k)}, {v(STB+k)}, {v(STB+4+k)}")
                    a(f"v_add_f32 {v(STB+8+k)}, {v(STB+8+k)}, {v(STB+12+k)}")
                for k in range(4): a(f"v_add_f32 {v(STB+k)}, {v(STB+k)}, {v(STB+8+k)}")
                a(f"v_lshlrev_b32 {v(T)}, 4, v0")
                a(f"v_add_u32 {v(T)}, {L_ST4}, {v(T)}")
                a(f"ds_write_b128 {v(T)}, {v(STB,4)}")
            self.move_frags(R_C + 8 * i, 10, 2, True, off0=(i % 3) * 16384)
            if i >= 1:
                if i == 1:
                    adma(6); ops += ['A6', 'A6']
                if i - 1 + 3 <= 6:
                    w2dma(i + 2, L_HR + 16384 * ((i - 1) % 3)); ops += [f'p{i+2}'] * 2
                else:
                    w2dma(qn, L_HR + 16384 * ((i - 1) % 3)); self.w2b_loc[qn] = L_HR + 16384 * ((i - 1) % 3); ops += ['q'] * 2; qn += 1
                if i >= 2:
                    w2dma(qn, 16384 * (i - 1)); self.w2b_loc[qn] = 16384 * (i - 1); ops += ['q'] * 2; qn += 1
        assert qn == 14, qn
        self.ts("p4 loop done")
        a(f"s_lshl_b32 {s(sT0)}, {s(sROLE)}, 11")
        a(f"s_add_u32 {s(sT0)}, {s(sT0)}, {L_ST4}")
        a(f"v_lshl_add_u32 {v(T)}, v1, 2, {s(sT0)}")
        for tt in range(2):
            for hf in range(2):
                b = FB + 8 * tt + 4 * hf
                o = (tt * 1024 + hf * 4096) // 256
                a(f"ds_read2st64_b32 {v(b,2)}, {v(T)} offset0:{o} offset1:{o+1}")
                a(f"ds_read2st64_b32 {v(b+2,2)}, {v(T)} offset0:{o+2} offset1:{o+3}")
        a(f"s_lshl_b32 {s(sT0)}, {s(sTH)}, 1")
        a(f"s_bfe_u32 {s(sT1)}, {s(sW)}, 0x10001")
        a(f"s_add_u32 {s(sT0)}, {s(sT0)}, {s(sT1)}")
        a(f"s_lshl_b32 {s(sT0)}, {s(sT0)}, 10")
        a(f"s_add_u32 {s(sT0)}, {s(sT0)}, {L_ST4}")
        a(f"v_lshl_add_u32 {v(T2)}, v1, 2, {s(sT0)}")
        for hf in range(2):
            b = FB + 16 + 4 * hf
            o = hf * 16
            a(f"ds_read2st64_b32 {v(b,2)}, {v(T2)} offset0:{o} offset1:{o+1}")
            a(f"ds_read2st64_b32 {v(b+2,2)}, {v(T2)} offset0:{o+2} offset1:{o+3}")
        a("s_waitcnt lgkmcnt(0)")
        for g_ in range(3):
            b = FB + 8 * g_
            for k in range(4): a(f"v_add_f32 {v(b+k)}, {v(b+k)}, {v(b+4+k)}")
        for g_ in range(3):
            b = FB + 8 * g_
            a(f"v_add_f32 {v(b)}, {v(b)}, {v(b+1)}")
            a(f"v_add_f32 {v(b+2)}, {v(b+2)}, {v(b+3)}")
        for g_ in range(3):
            b = FB + 8 * g_
            a(f"v_add_f32 {v(b)}, {v(b)}, {v(b+2)}")
        for tt in range(2):
            b = FB + 8 * tt
            a(f"v_mul_f32 {v(b)}, {f32bits(-1.0/448):#x}, {v(b)}")
            self.mean_operand(b + 4, b, b + 1)
            a(f"{MF} {v(ACC+16*tt,16)}, {v(vAM1,4)}, {v(b+4,4)}, {v(ACC+16*tt,16)}")
        b = FB + 16
        a(f"v_mov_b32 {v(b+1)}, {v(b)}")
        a(f"v_permlane32_swap_b32 {v(b)}, {v(b+1)}")
        self.stats_finish(b, b + 1, b + 2, vRSTD)
        PK = FB
        def h1st(sc):
            for tt in range(2):
                for sp in range(2):
                    a(f"buffer_store_dwordx4 {v(ACC+16*tt+4*sp,4)}, {v(7 if tt==0 else 11)}, {s(SWS,4)}, 0 offen offset:{1024*sp}{sc}")
        for tt in range(2):
            A_ = ACC + 16 * tt
            for k in range(8): a(f"v_cvt_pk_bf16_f32 {v(A_+k)}, {v(A_+2*k)}, {v(A_+2*k+1)}")
            for k in range(8): a(f"v_pk_max_i16 {v(A_+k)}, {v(A_+k)}, 0")
        self.two_path(h1st)
        self.publish(3)
        self.ts("H1 published")

    def p5(self):
        a = self.a
        ACC = 16; FB = 48
        vW2r = 9
        a(f"v_add_u32 {v(12)}, 65536, {v(vW2r)}")
        for p in range(7, 14):
            loc = self.w2b_loc[p]
            if loc >= L_HR: va, off = 10, loc - L_HR
            elif loc >= 65536: va, off = 12, loc - 65536
            else: va, off = vW2r, loc
            self.move_frags(R_A + 8 * (p - 7), va, 2, True, off0=off)
        self.poll_group(3, 14, 7, "H1")
        self.ts("H1 flags seen")
        sKQ = sT6
        a(f"s_lshl_b32 {s(sT0)}, {s(sR)}, 2")
        a(f"s_lshl_b32 {s(sT1)}, {s(sTH)}, 1")
        a(f"s_add_u32 {s(sT0)}, {s(sT0)}, {s(sT1)}")
        a(f"s_and_b32 {s(sT1)}, {s(sW)}, 1")
        a(f"s_add_u32 {s(sT0)}, {s(sT0)}, {s(sT1)}")
        a(f"s_mul_i32 {s(sT0)}, {s(sT0)}, 112")
        a(f"s_mul_i32 {s(sT2)}, {s(sKQ)}, 28")
        a(f"s_add_u32 {s(sT0)}, {s(sT0)}, {s(sT2)}")
        a(f"s_lshl_b32 {s(sT0)}, {s(sT0)}, 10")
        a(f"s_add_u32 {s(sT0)}, {s(sT0)}, {H1_OFF}")
        a(f"v_add_u32 {v(3)}, {s(sT0)}, {v(2)}")
        sAm = sT5
        a(f"s_lshl_b32 {s(sAm)}, {s(sKQ)}, 13")
        a(f"v_add_u32 {v(5)}, {s(sAm)}, {v(2)}")
        a(f"v_add_u32 {v(6)}, 65536, {v(5)}")
        a(f"v_add_u32 {v(7)}, 131072, {v(5)}")
        a(f"s_lshl_b32 {s(sT1)}, {s(sT1)}, 12")
        a(f"s_add_u32 {s(sAm)}, {s(sAm)}, {s(sT1)}")
        NS = 5; PD = 3
        def adma(i):
            a(f"s_mov_b32 {s(sT0)}, {4096*i}")
            self.dma(3, SWS, sT0, (sAm, (i % NS) * 32768), sc1=True)
            for k in range(1, 4): self.dma(3, SWS, sT0, None, sc1=True, off=1024*k)
        issued = 0
        for i in range(PD):
            adma(i); issued += 1
            if i < PD - 1: a("s_barrier")
        for i in range(7):
            a.comment(f"---- P5 chunk {i}")
            a(f"s_waitcnt vmcnt({4*(issued-1-i)}) lgkmcnt(0)")
            a("s_barrier")
            if i == 0: self.ts("H1 chunk0 landed")
            slot = (i % NS) * 32768
            va, so = 5 + slot // 65536, slot % 65536
            order = [(ks, tt) for ks in range(4) for tt in range(2)]
            def rd(n):
                ks, tt = order[n]
                a(f"ds_read_b128 {v(FB+4*(n%6),4)}, {v(va)} offset:{so+tt*4096+ks*1024}")
            for n in range(6): rd(n)
            for n in range(8):
                ks, tt = order[n]
                a(f"s_waitcnt lgkmcnt({5 if n < 2 else 7-n})")
                kk = 4 * i + ks
                wreg = R_C + 4 * kk if kk < 14 else R_A + 4 * (kk - 14)
                first = (i == 0 and ks == 0)
                a(f"{MF} {v(ACC+16*tt,16)}, {v(wreg,4)}, {v(FB+4*(n%6),4)}, {'0' if first else v(ACC+16*tt,16)}")
                if n < 2: rd(n + 6)
            if issued < 7:
                adma(issued); issued += 1
        self.ts("p5 loop done")
        a("s_waitcnt lgkmcnt(0)")
        a("s_barrier")
        a(f"s_and_b32 {s(sT1)}, {s(sW)}, 1")
        a(f"s_lshl_b32 {s(sT1)}, {s(sT1)}, 15")
        a(f"s_lshl_b32 {s(sT0)}, {s(sKQ)}, 11")
        a(f"s_add_u32 {s(sT0)}, {s(sT0)}, {s(sT1)}")
        a(f"v_add_u32 {v(5)}, {s(sT0)}, {v(2)}")
        a(f"s_lshl_b32 {s(sT0)}, {s(sKQ)}, 13")
        a(f"s_add_u32 {s(sT0)}, {s(sT0)}, {s(sT1)}")
        a(f"v_add_u32 {v(6)}, {s(sT0)}, {v(2)}")
        for d in range(4):
            a(f"ds_write_b128 {v(5)}, {v(ACC+8*d,4)} offset:{8192*d}")
            a(f"ds_write_b128 {v(5)}, {v(ACC+8*d+4,4)} offset:{8192*d+1024}")
        XR = 64
        for k in range(4):
            a(f"v_lshlrev_b32 {v(XR+2*k)}, 16, {v(vHRES+k)}")
            a(f"v_and_b32 {v(XR+2*k+1)}, 0xffff0000, {v(vHRES+k)}")
        a("s_waitcnt lgkmcnt(0)")
        a("s_barrier")
        for sidx in range(4):
            a(f"ds_read_b128 {v(ACC+8*sidx,4)}, {v(6)} offset:{2048*sidx}")
            a(f"ds_read_b128 {v(ACC+8*sidx+4,4)}, {v(6)} offset:{2048*sidx+1024}")
        a("s_waitcnt lgkmcnt(4)")
        for k in range(8): a(f"v_add_f32 {v(ACC+k)}, {v(ACC+k)}, {v(ACC+8+k)}")
        a("s_waitcnt lgkmcnt(0)")
        for k in range(8): a(f"v_add_f32 {v(ACC+16+k)}, {v(ACC+16+k)}, {v(ACC+24+k)}")
        for k in range(8): a(f"v_add_f32 {v(ACC+k)}, {v(ACC+k)}, {v(ACC+16+k)}")
        for k in range(8): a(f"v_fmac_f32 {v(XR+k)}, {v(ACC+k)}, {v(vRSTD)}")
        for k in range(4): a(f"v_cvt_pk_bf16_f32 {v(FB+k)}, {v(XR+2*k)}, {v(XR+2*k+1)}")
        a(f"v_lshrrev_b32 {v(T)}, 5, v1")
        a(f"v_lshl_add_u32 {v(T)}, {v(T)}, 3, {v(85)}")
        a(f"v_permlane32_swap_b32 {v(FB)}, {v(FB+2)}")
        a(f"v_permlane32_swap_b32 {v(FB+1)}, {v(FB+3)}")
        a(f"buffer_store_dwordx4 {v(FB,4)}, {v(T)}, {s(SOUT,4)}, 0 offen")

    def epilogue(self):
        a = self.a
        a.label("L_FIN")
        if self.prof:
            self.ts("end")
            a(f"s_lshl_b32 {s(sT0)}, s2, 3")
            a(f"s_add_u32 {s(sT0)}, {s(sT0)}, {s(sW)}")
            a(f"s_lshl_b32 {s(sT0)}, {s(sT0)}, 8")
            a(f"s_add_u32 {s(sT0)}, {s(sT0)}, {TS_OFF}")
            a(f"v_lshlrev_b32 v14, 2, v1")
            a(f"v_add_u32 v14, {s(sT0)}, v14")
            a(f"buffer_store_dword {v(vTS)}, v14, {s(SWS,4)}, 0 offen")
            a("s_waitcnt vmcnt(0)")
        a.label("L_END")
        a("s_endpgm")

    def build(self):
        self.prologue()
        self.p1()
        if self.stop_after >= 2: self.p2()
        if self.stop_after >= 3: self.p3()
        if self.stop_after >= 4: self.p4()
        if self.stop_after >= 5: self.p5()
        self.epilogue()
        head = f"""; Generated by dev/gen.py -- fused persistent kernel: LN1+QKV -> sliding attention -> WO+res -> LN2+FF1 -> FF2+res
; @launch grid=(256,1,1) block=(512,1,1) lds={LDS_TOTAL}
.amdgcn_target "amdgcn-amd-amdhsa--gfx950"
.text
.globl {NAME}_kernel
.p2align 8
.type {NAME}_kernel,@function
{NAME}_kernel:
"""
        tail = f"""
.section .rodata,"a"
.p2align 6
.amdhsa_kernel {NAME}_kernel
  .amdhsa_next_free_vgpr 256
  .amdhsa_next_free_sgpr 102
  .amdhsa_accum_offset 256
  .amdhsa_group_segment_fixed_size 0
  .amdhsa_kernarg_size 72
  .amdhsa_user_sgpr_count 2
  .amdhsa_user_sgpr_kernarg_segment_ptr 1
  .amdhsa_system_sgpr_workgroup_id_x 1
.end_amdhsa_kernel
"""
        return head + self.a.text() + tail

if __name__ == "__main__":
    import argparse
    ap = argparse.ArgumentParser()
    ap.add_argument("-o", default="k.s"); ap.add_argument("--stop", type=int, default=5)
    ap.add_argument("--prof", action="store_true"); ap.add_argument("--cyc", action="store_true")
    args = ap.parse_args()
    g = Gen(args.stop, args.prof, args.cyc)
    open(args.o, "w").write(g.build())
    print("instrs", g.a.ninstr, "nops", g.a.nnops, "ts", list(g.tsn.keys()))
```

```python
import sys, math, struct
from asmlib import Asm, v, s

NAME = "sequential_preLN__sliding_block__dense_activation_relu__prompt"
KV_OFF = 0
Q_OFF  = 4 << 20
O_OFF  = 6 << 20
H_OFF  = 8 << 20
HS_OFF = 10 << 20
H1_OFF = 16 << 20
FL_OFF = 32 << 20
TS_OFF = 33 << 20
FL0_OFF = (32 << 20) + 65536
XS_OFF = 11 << 20
WS_SZ  = 40 << 20
SX, SWQKV, SWO, SW1, SW2, SOUT, SDBG, SWS = 24, 28, 32, 36, 40, 44, 48, 52
sR, sC, sW, sT, sROLE, sXCC, sLOCAL, sTMP = 56, 57, 58, 59, 60, 61, 62, 63
sMASK = 64
sONES = 96
sTH, sCT = 97, 23
sT0, sT1, sT2, sT3, sT4, sT5, sT6 = 3, 4, 5, 6, 7, 8, 9
sKC = 10
sBUSY = 17
sSAVE = 18
sHI = 20
sSPIN = 22
sTS = 98
sU0, sU1 = 100, 101
sR1, sJ1 = 94, 95
L_XS = 0
L_WP = 65536
L_SC = 151552
L_STAT = L_SC
L_CS = L_SC + 2048
L_FLAG = 161024
L_WO = 65536
L_KV = 94208
L_MRG = 143360
L_W1B = 57344
L_RED3 = 147456
L_ST4 = 147456
L_HR = 98304
LDS_TOTAL = 163840
R_C, R_A, R_B = 88, 144, 200
vTS = 87
vHRES = 80
vRSTD = 84
vAM1 = 76
LOG2E = 1.4426950408889634
def f32bits(x): return struct.unpack('<I', struct.pack('<f', x))[0]
T, T2 = 14, 15
MF = "v_mfma_f32_32x32x16_bf16"

class Gen:
    def __init__(self, stop_after=5, prof=False, cyc=False, fine=False, tlb=0, p1local=False):
        self.fine = fine; self.PD1 = 3; self.tlb = tlb; self.p1local = p1local
        self.a = Asm(); self.stop_after = stop_after; self.prof = prof; self.cyc = cyc; self.tsn = {}

    def ts(self, name):
        if not self.prof: return
        a = self.a
        if name not in self.tsn: self.tsn[name] = len(self.tsn)
        n = self.tsn[name]
        a(f"{'s_memtime' if self.cyc else 's_memrealtime'} {s(sTS,2)}")
        a("s_waitcnt lgkmcnt(0)")
        a(f"v_writelane_b32 {v(vTS)}, {s(sTS)}, {n}")

    def srd(self, dst, ptr, size):
        a = self.a
        a(f"s_mov_b32 {s(dst)}, {s(ptr)}")
        a(f"s_and_b32 {s(dst+1)}, {s(ptr+1)}, 0xffff")
        a(f"s_mov_b32 {s(dst+2)}, {size}")
        a(f"s_mov_b32 {s(dst+3)}, 0x20000")

    def dma(self, vsrc, srd, soff, m0expr, sc1=False, off=0):
        a = self.a
        if m0expr is not None:
            if isinstance(m0expr, int): a(f"s_mov_b32 m0, {m0expr}")
            else: a(f"s_add_u32 m0, {s(m0expr[0])}, {m0expr[1]}")
        so = s(soff) if isinstance(soff, int) else soff
        a(f"buffer_load_dwordx4 {v(vsrc)}, {s(srd,4)}, {so} offen{f' offset:{off}' if off else ''}{' sc1' if sc1 else ''} lds")

    def set_exec(self, mask):
        a = self.a
        lo, hi = mask & 0xffffffff, mask >> 32
        a(f"s_mov_b32 exec_lo, {lo:#x}")
        a(f"s_mov_b32 exec_hi, {hi:#x}")

    def poll(self, vaddr, vdst, mask, tag, sleep=0, ann=False):
        a = self.a
        self.set_exec(mask)
        a(f"s_mov_b32 {s(sSPIN)}, 200000")
        lab = a.loop_label(a.newlabel("POLL"+tag)); done = a.newlabel("PDONE"+tag)
        if ann: a(f"buffer_load_ubyte {v(vdst)}, {v(vaddr)}, {s(SDBG,4)}, 0 offen sc1")
        else: a(f"buffer_load_dword {v(vdst)}, {v(vaddr)}, {s(SWS,4)}, 0 offen sc1")
        a("s_waitcnt vmcnt(0)")
        if ann: a(f"v_cmp_gt_u32 vcc, 0x80, {v(vdst)}")
        else: a(f"v_cmp_ne_u32 vcc, 1, {v(vdst)}")
        a(f"s_sub_u32 {s(sSPIN)}, {s(sSPIN)}, 1")
        a(f"s_cbranch_scc1 {done}")
        a("s_nop 2")
        a(f"s_cbranch_vccz {done}")
        if sleep: a(f"s_sleep {sleep}")
        a(f"s_branch {lab}")
        a.label(done)
        a("s_mov_b64 exec, -1")

    def poll_group(self, e, nmem, wave, tag):
        a = self.a
        l = a.newlabel("PG")
        a(f"s_cmp_lg_u32 {s(sW)}, {wave}")
        a(f"s_cbranch_scc1 {l}")
        a(f"s_lshl_b32 {s(sT0)}, {s(sR)}, 7")
        a(f"s_add_u32 {s(sT0)}, {s(sT0)}, {FL_OFF+e*4096}")
        a(f"v_lshlrev_b32 {v(T)}, 2, v1")
        a(f"v_add_u32 {v(T)}, {s(sT0)}, {v(T)}")
        self.poll(T, T2, (1 << nmem) - 1, tag)
        a.label(l)
        a("s_waitcnt lgkmcnt(0)")
        a("s_barrier")

    def two_path(self, fn):
        a = self.a
        l1, l2 = a.newlabel("SL"), a.newlabel("SL")
        a(f"s_cmp_eq_u32 {s(sLOCAL)}, 1")
        a(f"s_cbranch_scc0 {l1}")
        fn("")
        a(f"s_branch {l2}")
        a.label(l1)
        fn(" sc1")
        a.label(l2)

    def publish(self, e, always_sc1=False):
        a = self.a
        a("s_waitcnt vmcnt(0) lgkmcnt(0)")
        a("s_barrier")
        lf = a.newlabel("PUB")
        a(f"s_cmp_lg_u32 {s(sW)}, 0")
        a(f"s_cbranch_scc1 {lf}")
        a(f"s_lshl_b32 {s(sT1)}, {s(sR)}, {11 if e == 0 else 7}")
        a(f"s_lshl_b32 {s(sT2)}, {s(sC)}, {7 if e == 0 else 2}")
        a(f"s_add_u32 {s(sT1)}, {s(sT1)}, {s(sT2)}")
        a(f"s_add_u32 {s(sT1)}, {s(sT1)}, {FL0_OFF if e == 0 else FL_OFF+e*4096}")
        a(f"v_mov_b32 {v(T)}, {s(sT1)}")
        a(f"v_mov_b32 {v(T2)}, 1")
        a(f"s_mov_b64 exec, 1")
        st = lambda sc: a(f"buffer_store_dword {v(T2)}, {v(T)}, {s(SWS,4)}, 0 offen{sc}")
        if always_sc1: st(" sc1")
        else: self.two_path(st)
        a(f"s_mov_b64 exec, -1")
        a.label(lf)

    def announce(self):
        a = self.a
        la = a.newlabel("NOANN")
        a(f"s_cmp_lg_u32 {s(sW)}, 0")
        a(f"s_cbranch_scc1 {la}")
        a(f"s_lshl_b32 {s(sT0)}, {s(sR)}, 4")
        a(f"s_add_u32 {s(sT0)}, {s(sT0)}, {s(sC)}")
        a(f"s_or_b32 {s(sT1)}, {s(sXCC)}, 0x80")
        a(f"v_mov_b32 {v(T)}, {s(sT0)}")
        a(f"v_mov_b32 {v(T2)}, {s(sT1)}")
        a(f"s_mov_b64 exec, 1")
        a(f"buffer_store_byte {v(T2)}, {v(T)}, {s(SDBG,4)}, 0 offen sc1")
        a(f"s_mov_b64 exec, -1")
        a.label(la)

    def mean_operand(self, BM, vnm, tmp):
        a = self.a
        a(f"v_cvt_pk_bf16_f32 {v(BM)}, {v(vnm)}, {v(vnm)}")
        a(f"v_and_b32 {v(tmp)}, 0xffff0000, {v(BM)}")
        a(f"v_sub_f32 {v(tmp)}, {v(vnm)}, {v(tmp)}")
        a(f"v_cvt_pk_bf16_f32 {v(BM+1)}, {v(tmp)}, 0")
        a(f"v_mov_b32 {v(BM+2)}, 0")
        a(f"v_mov_b32 {v(BM+3)}, 0")

    def cs_operand(self, AM, vcs):
        a = self.a
        a(f"v_cndmask_b32 {v(vcs)}, {v(vcs)}, 0, {s(sHI,2)}")
        a(f"v_cvt_pk_bf16_f32 {v(AM+1)}, {v(vcs)}, 0")
        a(f"v_lshlrev_b32 {v(AM+2)}, 16, {v(AM+1)}")
        a(f"v_sub_f32 {v(AM+2)}, {v(vcs)}, {v(AM+2)}")
        a(f"v_cvt_pk_bf16_f32 {v(AM)}, {v(vcs)}, {v(AM+2)}")
        a(f"v_mov_b32 {v(AM+2)}, 0")
        a(f"v_mov_b32 {v(AM+3)}, 0")

    def stats_finish(self, vsum, vsq, vnm, vrs):
        a = self.a
        a(f"v_mul_f32 {v(vnm)}, {f32bits(-1.0/448):#x}, {v(vsum)}")
        a(f"v_mul_f32 {v(vsq)}, {f32bits(1.0/448):#x}, {v(vsq)}")
        a(f"v_fma_f32 {v(vsq)}, -{v(vnm)}, {v(vnm)}, {v(vsq)}")
        a(f"v_max_f32 {v(vsq)}, 0, {v(vsq)}")
        a(f"v_add_f32 {v(vsq)}, {f32bits(1e-5):#x}, {v(vsq)}")
        a(f"v_rsq_f32 {v(vrs)}, {v(vsq)}")

    def rows128_src(self, vd, rowstride, srow0, scol):
        a = self.a
        a(f"v_lshrrev_b32 {v(T)}, 3, v1")
        a(f"v_bfe_u32 {v(T2)}, v1, 4, 1")
        a(f"v_lshlrev_b32 {v(T2)}, 2, {v(T2)}")
        a(f"v_xor_b32 {v(T2)}, {v(T2)}, v1")
        a(f"v_and_b32 {v(T2)}, 7, {v(T2)}")
        a(f"v_add_u32 {v(T)}, {s(srow0)}, {v(T)}")
        a(f"v_mul_u32_u24 {v(T)}, {rowstride}, {v(T)}")
        a(f"v_lshl_add_u32 {v(T)}, {v(T2)}, 4, {v(T)}")
        a(f"v_add_u32 {v(vd)}, {s(scol)}, {v(T)}")

    def tr128_addr(self, vd, perm, sbase):
        a = self.a
        a(f"v_lshrrev_b32 {v(T)}, 5, v1")
        a(f"v_lshlrev_b32 {v(T)}, {9 if perm else 10}, {v(T)}")
        a(f"v_bfe_u32 {v(T2)}, v1, 2, 2")
        a(f"v_lshl_add_u32 {v(T)}, {v(T2)}, 7, {v(T)}")
        a(f"v_bfe_u32 {v(T2)}, v1, 4, 1")
        a(f"v_lshl_add_u32 {v(T)}, {v(T2)}, 5, {v(T)}")
        a(f"v_and_b32 {v(T2)}, 3, v1")
        a(f"v_lshl_add_u32 {v(T)}, {v(T2)}, 3, {v(T)}")
        a(f"v_bfe_u32 {v(T2)}, v1, 3, 1")
        a(f"v_lshlrev_b32 {v(T2)}, 6, {v(T2)}")
        a(f"v_xor_b32 {v(T2)}, {s(sU0)}, {v(T2)}")
        a(f"v_add_u32 {v(T)}, {v(T)}, {v(T2)}")
        a(f"v_add_u32 {v(vd)}, {s(sbase)}, {v(T)}")

    def prologue(self):
        a = self.a
        a(f"s_cmp_ge_u32 s2, 256")
        a(f"s_cbranch_scc1 L_END")
        a("s_load_dwordx16 s[4:19], s[0:1], 0")
        a("s_load_dwordx2 s[20:21], s[0:1], 64")
        a("v_and_b32 v1, 63, v0")
        a("v_lshrrev_b32 v2, 6, v0")
        a(f"v_readfirstlane_b32 {s(sW)}, v2")
        a(f"s_and_b32 {s(sT)}, {s(sW)}, 3")
        a(f"s_lshr_b32 {s(sROLE)}, {s(sW)}, 2")
        a(f"s_and_b32 {s(sR)}, s2, 7")
        a(f"s_lshl_b32 {s(sR)}, {s(sR)}, 1")
        a(f"s_lshr_b32 {s(sTMP)}, s2, 7")
        a(f"s_add_u32 {s(sR)}, {s(sR)}, {s(sTMP)}")
        a(f"s_lshr_b32 {s(sC)}, s2, 3")
        a(f"s_and_b32 {s(sC)}, {s(sC)}, 15")
        a(f"s_getreg_b32 {s(sXCC)}, hwreg(HW_REG_XCC_ID)")
        a(f"s_and_b32 {s(sXCC)}, {s(sXCC)}, 15")
        a(f"s_mov_b32 {s(sONES)}, 0x3f803f80")
        a(f"s_cmp_ge_u32 {s(sC)}, 7")
        a(f"s_cselect_b32 {s(sTH)}, 1, 0")
        a(f"s_mul_i32 {s(sTMP)}, {s(sTH)}, 7")
        a(f"s_sub_u32 {s(sCT)}, {s(sC)}, {s(sTMP)}")
        a("s_waitcnt lgkmcnt(0)")
        self.srd(SX, 4, 2048*448*2)
        self.srd(SWQKV, 6, 448*1344*2)
        self.srd(SWO, 8, 448*448*2)
        self.srd(SW1, 12, 448*1792*2)
        self.srd(SW2, 14, 1792*448*2)
        self.srd(SOUT, 16, 2048*448*2)
        self.srd(SDBG, 18, 256)
        self.srd(SWS, 20, WS_SZ)
        a(f"s_mov_b32 {s(sHI)}, 0")
        a(f"s_mov_b32 {s(sHI+1)}, -1")
        a(f"s_cmp_lt_u32 {s(sC)}, 14")
        a(f"s_cselect_b32 {s(sBUSY)}, 1, 0")
        if self.prof: a(f"v_mov_b32 {v(vTS)}, 0")
        self.ts("start")
        if self.tlb:
            lt = a.newlabel("TLB")
            a(f"s_cmp_lg_u32 {s(sW)}, 7")
            a(f"s_cbranch_scc1 {lt}")
            a(f"v_lshlrev_b32 {v(T)}, {self.tlb}, v1")
            for k in range((34 << 20) >> (self.tlb + 6)):
                a(f"s_mov_b32 {s(sT0)}, {k << (self.tlb + 6)}")
                a(f"buffer_load_dword {v(90)}, {v(T)}, {s(SWS,4)}, {s(sT0)} offen")
            a(f"v_lshlrev_b32 {v(T)}, 16, v1")
            for srd in (SWO, SW1, SW2, SOUT):
                a(f"buffer_load_dword {v(90)}, {v(T)}, {s(srd,4)}, 0 offen")
            a.label(lt)
        lz = a.newlabel("NOZ")
        a(f"s_cmp_lg_u32 {s(sW)}, 0")
        a(f"s_cbranch_scc1 {lz}")
        a(f"s_lshl_b32 {s(sT0)}, {s(sR)}, 7")
        a(f"s_lshl_b32 {s(sT1)}, {s(sC)}, 2")
        a(f"s_add_u32 {s(sT0)}, {s(sT0)}, {s(sT1)}")
        a(f"s_add_u32 {s(sT0)}, {s(sT0)}, {FL_OFF}")
        a(f"v_lshlrev_b32 {v(T)}, 12, v1")
        a(f"v_add_u32 {v(T)}, {s(sT0)}, {v(T)}")
        a(f"s_lshl_b32 {s(sT0)}, {s(sR)}, 11")
        a(f"s_lshl_b32 {s(sT1)}, {s(sC)}, 7")
        a(f"s_add_u32 {s(sT0)}, {s(sT0)}, {s(sT1)}")
        a(f"s_add_u32 {s(sT0)}, {s(sT0)}, {FL0_OFF}")
        a(f"v_writelane_b32 {v(T)}, {s(sT0)}, 0")
        a(f"v_mov_b32 {v(T2)}, 0")
        a(f"s_mov_b64 exec, 15")
        a(f"buffer_store_dword {v(T2)}, {v(T)}, {s(SWS,4)}, 0 offen sc1")
        a(f"s_mov_b64 exec, -1")
        a.label(lz)

    def masks(self):
        a = self.a
        a(f"v_and_b32 {v(T)}, 31, v1")
        a(f"v_lshrrev_b32 {v(T2)}, 5, v1")
        a(f"v_lshlrev_b32 {v(T2)}, 2, {v(T2)}")
        a(f"v_sub_u32 {v(T)}, {v(T)}, {v(T2)}")
        for rg in range(16):
            kk = 8 * (rg // 4) + (rg % 4)
            a(f"v_cmp_le_i32 {s(sMASK+2*rg,2)}, {kk}, {v(T)}")

    def p1(self):
        a = self.a
        PD = self.PD1
        full = self.stop_after >= 3
        vX0, vX1 = 2, 3
        vWs = 4
        vXr = 7
        vCs = 12
        ACC = 16
        XB = 48
        vWr = 64
        BM = 68
        vSA = 72
        vWo = 80; vXres = 81; vRS = 82
        vSt = 11
        WB = R_B
        lpad, lp1end = a.newlabel("PADW"), a.newlabel("P1END")
        a(f"s_cmp_eq_u32 {s(sBUSY)}, 0")
        a(f"s_cbranch_scc1 {lpad}")
        a(f"s_and_b32 {s(sR1)}, {s(sR)}, 12")
        a(f"s_and_b32 {s(sT0)}, {s(sR)}, 1")
        a(f"s_lshl_b32 {s(sT0)}, {s(sT0)}, 1")
        a(f"s_add_u32 {s(sT0)}, {s(sT0)}, {s(sTH)}")
        a(f"s_add_u32 {s(sR1)}, {s(sR1)}, {s(sT0)}")
        a(f"s_bfe_u32 {s(sJ1)}, {s(sR)}, 0x10001")
        a(f"s_mul_i32 {s(sJ1)}, {s(sJ1)}, 7")
        a(f"s_add_u32 {s(sJ1)}, {s(sJ1)}, {s(sCT)}")
        if self.p1local:
            a(f"s_mov_b32 {s(sR1)}, {s(sR)}")
            a(f"s_mov_b32 {s(sJ1)}, {s(sC)}")
        a(f"s_lshl_b32 {s(sT0)}, {s(sT0)}, 1")
        a(f"s_add_u32 {s(sKC)}, {s(sCT)}, {s(sT0)}")
        a(f"s_sub_u32 {s(sT0)}, {s(sKC)}, 7")
        a(f"s_cmp_ge_u32 {s(sKC)}, 7")
        a(f"s_cselect_b32 {s(sKC)}, {s(sT0)}, {s(sKC)}")
        a(f"v_lshrrev_b32 {v(T)}, 3, v1")
        a(f"s_lshl_b32 {s(sT0)}, {s(sW)}, 4")
        a(f"v_add_u32 {v(T)}, {s(sT0)}, {v(T)}")
        a(f"v_lshrrev_b32 {v(T2)}, 1, {v(T)}")
        a(f"v_xor_b32 {v(T2)}, {v(T2)}, v1")
        a(f"v_and_b32 {v(T2)}, 7, {v(T2)}")
        a(f"s_lshl_b32 {s(sT0)}, {s(sR1)}, 7")
        a(f"v_add_u32 {v(T)}, {s(sT0)}, {v(T)}")
        a(f"v_mul_u32_u24 {v(T)}, 896, {v(T)}")
        a(f"v_lshl_add_u32 {v(vX0)}, {v(T2)}, 4, {v(T)}")
        a(f"v_xor_b32 {v(T2)}, 4, {v(T2)}")
        a(f"v_lshl_add_u32 {v(vX1)}, {v(T2)}, 4, {v(T)}")
        a(f"v_add_u32 {v(vX1)}, {8*896}, {v(vX1)}")
        sXm, sWm = sT4, sT5
        a(f"s_lshl_b32 {s(sXm)}, {s(sW)}, 11")
        a(f"s_mul_i32 {s(sWm)}, {s(sT)}, 3072")
        def xdma(i):
            a(f"s_lshl_b32 {s(sT0)}, {s(sKC+i)}, 7")
            self.dma(vX0, SX, sT0, (sXm, L_XS + (i % 4) * 16384))
            self.dma(vX1, SX, sT0, (sXm, L_XS + (i % 4) * 16384 + 1024))
        def wdma(i):
            a(f"s_mul_i32 {s(sT1)}, {s(sKC+i)}, {64*2688}")
            for m in range(3):
                self.dma(vWs+m, SWQKV, sT1, (sWm, L_WP + i * 12288 + m * 1024))
        xdma(0)
        a(f"s_lshl_b32 {s(sT0)}, {s(sT)}, 4")
        a(f"s_mul_i32 {s(sT1)}, {s(sJ1)}, 192")
        for m in range(3):
            a(f"v_add_u32 {v(T)}, {64*m}, v1")
            a(f"v_mul_u32_u24 {v(T2)}, 43691, {v(T)}")
            a(f"v_lshrrev_b32 {v(T2)}, 19, {v(T2)}")
            a(f"v_mul_u32_u24 {v(vWs+m)}, 12, {v(T2)}")
            a(f"v_sub_u32 {v(T)}, {v(T)}, {v(vWs+m)}")
            a(f"v_add_u32 {v(T2)}, {s(sT0)}, {v(T2)}")
            a(f"v_mul_u32_u24 {v(T2)}, 2688, {v(T2)}")
            a(f"v_lshl_add_u32 {v(T2)}, {v(T)}, 4, {v(T2)}")
            a(f"v_add_u32 {v(vWs+m)}, {s(sT1)}, {v(T2)}")
        for i in range(1, 7):
            a(f"s_add_u32 {s(sKC+i)}, {s(sKC+i-1)}, 1")
            a(f"s_cmp_eq_u32 {s(sKC+i)}, 7")
            a(f"s_cselect_b32 {s(sKC+i)}, 0, {s(sKC+i)}")
        def setup_rd(role):
            a(f"v_and_b32 {v(T)}, 31, v1")
            a(f"s_lshl_b32 {s(sT0)}, {s(sT)}, 5")
            a(f"v_add_u32 {v(T)}, {s(sT0)}, {v(T)}")
            a(f"v_lshrrev_b32 {v(T2)}, 1, {v(T)}")
            a(f"v_and_b32 {v(T2)}, 7, {v(T2)}")
            a(f"v_lshrrev_b32 {v(vXr)}, 5, v1")
            a(f"v_xor_b32 {v(T2)}, {v(T2)}, {v(vXr)}")
            a(f"v_lshlrev_b32 {v(T)}, 7, {v(T)}")
            for n in range(4):
                a(f"s_add_u32 {s(sT0)}, {s(sT)}, {n}")
                a(f"s_and_b32 {s(sT0)}, {s(sT0)}, 3")
                a(f"s_lshl_b32 {s(sT0)}, {s(sT0)}, 1")
                a(f"v_xor_b32 {v(vXr+n)}, {s(sT0)}, {v(T2)}")
                a(f"v_lshl_add_u32 {v(vXr+n)}, {v(vXr+n)}, 4, {v(T)}")
            a(f"v_lshrrev_b32 {v(T)}, 5, v1")
            a(f"v_lshlrev_b32 {v(T)}, 3, {v(T)}")
            a(f"v_bfe_u32 {v(T2)}, v1, 2, 2")
            a(f"v_add_u32 {v(T)}, {v(T)}, {v(T2)}")
            a(f"v_mul_u32_u24 {v(T)}, 192, {v(T)}")
            a(f"v_bfe_u32 {v(T2)}, v1, 4, 1")
            a(f"v_lshl_add_u32 {v(T)}, {v(T2)}, 5, {v(T)}")
            a(f"v_and_b32 {v(T2)}, 3, v1")
            a(f"v_lshl_add_u32 {v(T)}, {v(T2)}, 3, {v(T)}")
            for n in range(4):
                a(f"s_add_u32 {s(sT0)}, {s(sT)}, {n}")
                a(f"s_and_b32 {s(sT0)}, {s(sT0)}, 3")
                a(f"s_mul_i32 {s(sT0)}, {s(sT0)}, 3072")
                a(f"s_add_u32 {s(sT0)}, {s(sT0)}, {L_WP + (128 if role else 0)}")
                a(f"v_add_u32 {v(vWr+n)}, {s(sT0)}, {v(T)}")
            a(f"v_mov_b32 {v(vCs)}, 0")
            a(f"v_mov_b32 {v(vCs+1)}, 0")
            a(f"v_mov_b32 {v(BM+2)}, 0")
            a(f"v_mov_b32 {v(BM+3)}, 0")
        def setup_st(ti, tj):
            a(f"s_mul_i32 {s(sT0)}, {s(sJ1)}, 3")
            a(f"s_add_u32 {s(sT0)}, {s(sT0)}, {tj}")
            a(f"s_cmp_ge_u32 {s(sT0)}, 14")
            a(f"s_cselect_b32 {s(sT1)}, 1, 0")
            a(f"s_cmp_ge_u32 {s(sT0)}, 28")
            a(f"s_cselect_b32 {s(sT1)}, 2, {s(sT1)}")
            a(f"s_mul_i32 {s(sT2)}, {s(sT1)}, 14")
            a(f"s_sub_u32 {s(sT0)}, {s(sT0)}, {s(sT2)}")
            a(f"s_lshl_b32 {s(sT0)}, {s(sT0)}, 3")
            a(f"s_lshl_b32 {s(sT2)}, {s(sR1)}, 2")
            a(f"s_add_u32 {s(sT2)}, {s(sT2)}, {s(sT)}")
            a(f"s_cmp_eq_u32 {s(sT1)}, 0")
            a(f"s_cselect_b32 {s(sU0+ti)}, 1, 0")
            a(f"s_cselect_b32 {s(sT3)}, 11, 12")
            a(f"s_cselect_b32 {s(sT6)}, {Q_OFF}, 0")
            a(f"s_lshl_b32 {s(sT2)}, {s(sT2)}, {s(sT3)}")
            a(f"s_add_u32 {s(sT2)}, {s(sT2)}, {s(sT6)}")
            a(f"s_add_u32 {s(sT3)}, {s(sT3)}, 6")
            a(f"s_cmp_eq_u32 {s(sT1)}, 2")
            a(f"s_cselect_b32 {s(sT6)}, 2048, 0")
            a(f"s_add_u32 {s(sT2)}, {s(sT2)}, {s(sT6)}")
            a(f"s_lshr_b32 {s(sT6)}, {s(sT6)}, 9")
            for aa in range(4):
                d = vSA + 4 * ti + aa
                a(f"v_lshrrev_b32 {v(T)}, 5, v1")
                a(f"v_add3_u32 {v(T)}, {v(T)}, {s(sT0)}, {2*aa}")
                a(f"v_mul_u32_u24 {v(T2)}, 147, {v(T)}")
                a(f"v_lshrrev_b32 {v(T2)}, 10, {v(T2)}")
                a(f"v_mul_u32_u24 {v(d)}, 7, {v(T2)}")
                a(f"v_sub_u32 {v(T)}, {v(T)}, {v(d)}")
                a(f"v_lshlrev_b32 {v(T2)}, {s(sT3)}, {v(T2)}")
                a(f"v_lshl_add_u32 {v(T2)}, {v(T)}, 8, {v(T2)}")
                a(f"v_mad_u32_u24 {v(T)}, {v(T)}, {s(sT6)}, v1")
                a(f"v_and_b32 {v(T)}, 31, {v(T)}")
                a(f"v_lshl_add_u32 {v(T2)}, {v(T)}, 3, {v(T2)}")
                a(f"v_add_u32 {v(d)}, {s(sT2)}, {v(T2)}")
        def setup_wo():
            a(f"s_lshl_b32 {s(sT0)}, {s(sW)}, 3")
            a(f"s_lshl_b32 {s(sT2)}, {s(sCT)}, 7")
            self.rows128_src(vWo, 896, sT0, sT2)
            a(f"s_lshl_b32 {s(sT0)}, {s(sR)}, 7")
            a(f"s_lshl_b32 {s(sT1)}, {s(sTH)}, 6")
            a(f"s_add_u32 {s(sT0)}, {s(sT0)}, {s(sT1)}")
            a(f"s_mul_i32 {s(sT0)}, {s(sT0)}, 896")
            a(f"v_add_u32 {v(vXres)}, {s(sT0)}, {v(vWo)}")
        def setup_misc(role):
            a(f"s_lshl_b32 {s(sT0)}, {s(sR1)}, 7")
            a(f"s_lshl_b32 {s(sT1)}, {s(sT)}, 5")
            a(f"s_add_u32 {s(sT0)}, {s(sT0)}, {s(sT1)}")
            a(f"s_lshl_b32 {s(sT0)}, {s(sT0)}, 4")
            a(f"s_add_u32 {s(sT0)}, {s(sT0)}, {XS_OFF}")
            a(f"v_and_b32 {v(T)}, 31, v1")
            a(f"v_lshl_add_u32 {v(vSt)}, {v(T)}, 4, {s(sT0)}")
        def wodma(j):
            a(f"s_mov_b32 {s(sT0)}, {64*j*896}")
            a(f"s_lshl_b32 {s(sT1)}, {s(sW)}, 10")
            self.dma(vWo, SWO, sT0, (sT1, L_WO + 8192 * j))
        lr1, lrj = a.newlabel("P1R1"), a.newlabel("P1J")
        a(f"s_cmp_eq_u32 {s(sROLE)}, 1")
        a(f"s_cbranch_scc1 {lr1}")
        for role in (0, 1):
            if role == 1: a.label(lr1)
            ntile = 2 if role == 0 else 1
            ops = [0, 0]
            def issue(i, x=True):
                if x: xdma(i); ops.extend([i, i])
                if i % 2 == role:
                    wdma(i); ops.extend([i, i, i])
            issue(0, x=False)
            issue(1)
            setup_rd(role)
            for i in range(2, PD): issue(i)
            later = [lambda: setup_st(0, 0 if role == 0 else 2)]
            if role == 0: later.append(lambda: setup_st(1, 1))
            later.append(lambda: (setup_wo() if full else None, setup_misc(role)))
            if self.fine: self.ts("setup done")
            for i in range(7):
                a.comment(f"---- P1 role{role} chunk {i}")
                last = max(k for k, c_ in enumerate(ops) if c_ == i)
                a(f"s_waitcnt vmcnt({len(ops)-1-last}) lgkmcnt(0)")
                a("s_barrier")
                if i == 0:
                    self.ts("p1 chunk0 landed")
                if self.fine: self.ts(f"c{i} barrier")
                woff = (i % 4) * 12288
                if i == 4:
                    for n in range(4): a(f"v_add_u32 {v(vWr+n)}, 49152, {v(vWr+n)}")
                for n in range(4):
                    a(f"ds_read_b128 {v(XB+4*n,4)}, {v(vXr+n)} offset:{L_XS+(i%4)*16384}")
                    for tj in range(ntile):
                        b = WB + 16 * tj + 4 * n
                        a(f"ds_read_b64_tr_b16 {v(b,2)}, {v(vWr+n)} offset:{woff+tj*64}")
                        a(f"ds_read_b64_tr_b16 {v(b+2,2)}, {v(vWr+n)} offset:{woff+tj*64+768}")
                if i == 6:
                    a(f"buffer_load_dwordx2 {v(BM,2)}, {v(vSt)}, {s(SWS,4)}, 0 offen sc1")
                    a(f"buffer_load_dwordx2 {v(vRS,2)}, {v(vSt)}, {s(SWS,4)}, 0 offen offset:8 sc1")
                    ops += ['st', 'st']
                    a(f"v_lshlrev_b32 {v(T)}, 2, v0")
                    a(f"v_add_u32 {v(T)}, {L_CS + (1024 if role else 0)}, {v(T)}")
                per = 1 + 2 * ntile
                for n in range(4):
                    a(f"s_waitcnt lgkmcnt({min(15, per*(3-n))})")
                    if n == 0:
                        for tj in range(ntile):
                            for k in range(4): a(f"v_dot2c_f32_bf16 {v(vCs+tj)}, {s(sONES)}, {v(WB+16*tj+k)}")
                    for tj in range(ntile):
                        c_in = "0" if (i == 0 and n == 0) else v(ACC+16*tj, 16)
                        a(f"{MF} {v(ACC+16*tj,16)}, {v(WB+16*tj+4*n,4)}, {v(XB+4*n,4)}, {c_in}")
                if i == 6:
                    for tj in range(ntile): a(f"ds_write_b32 {v(T)}, {v(vCs+tj)} offset:{1024*tj}")
                if self.fine: self.ts(f"c{i} mfma issued")
                if i == 0 and role == 0: self.announce()
                if i + PD < 7: issue(i + PD)
                if later: later.pop(0)()
                if full and i >= 4:
                    for j in ([0, 1, 2], [3, 4, 5], [])[i - 4]:
                        wodma(j); ops.append('wo')
                if i == 5 and role == 1:
                    lq = a.newlabel("STP")
                    a(f"s_cmp_lg_u32 {s(sW)}, 7")
                    a(f"s_cbranch_scc1 {lq}")
                    a(f"s_lshl_b32 {s(sT0)}, {s(sR1)}, 4")
                    a(f"s_add_u32 {s(sT0)}, {s(sT0)}, 14")
                    a(f"v_add_u32 {v(T)}, {s(sT0)}, v1")
                    self.poll(T, T2, 3, "SA", sleep=2, ann=True)
                    a(f"v_lshlrev_b32 {v(T)}, 7, {v(T)}")
                    a(f"v_add_u32 {v(T)}, {FL0_OFF}, {v(T)}")
                    self.poll(T, T2, 3, "SF", sleep=2)
                    a.label(lq)
                if self.fine: self.ts(f"c{i} dma issued")
            self.ts("p1 loop done")
            a(f"v_and_b32 {v(T2)}, 31, v1")
            a(f"v_lshlrev_b32 {v(T2)}, 2, {v(T2)}")
            a(f"v_add_u32 {v(T2)}, {L_CS + (2048 if role else 0)}, {v(T2)}")
            a(f"v_add_u32 {v(T)}, 1024, {v(T2)}")
            a("s_waitcnt lgkmcnt(0)")
            a("s_barrier")
            self.ts("stat barrier")
            S0 = WB
            for tj in range(ntile):
                ad = T2 if tj == 0 else T
                for k in range(4): a(f"ds_read2_b32 {v(S0+8*tj+2*k,2)}, {v(ad)} offset0:{64*k} offset1:{64*k+32}")
            if full:
                wodma(6)
                a(f"s_lshl_b32 {s(sT1)}, {s(sW)}, 10")
                self.dma(vXres, SX, "0", (sT1, L_XS + 3 * 16384))
            AM = XB
            for tj in range(ntile):
                c0 = S0 + 8 * tj
                a(f"s_waitcnt lgkmcnt({4*(ntile-1-tj)})")
                for k in range(4): a(f"v_add_f32 {v(c0+2*k)}, {v(c0+2*k)}, {v(c0+2*k+1)}")
                a(f"v_add_f32 {v(c0)}, {v(c0)}, {v(c0+2)}")
                a(f"v_add_f32 {v(c0+4)}, {v(c0+4)}, {v(c0+6)}")
                a(f"v_add_f32 {v(c0)}, {v(c0)}, {v(c0+4)}")
                self.cs_operand(AM + 4 * tj, c0)
                if tj == 0: a(f"s_waitcnt vmcnt({2 if full else 0})")
                a(f"{MF} {v(ACC+16*tj,16)}, {v(AM+4*tj,4)}, {v(BM,4)}, {v(ACC+16*tj,16)}")
            for tj in range(ntile):
                a(f"s_cmp_eq_u32 {s(sU0+tj)}, 1")
                a(f"s_cselect_b64 {s(sSAVE,2)}, -1, 0")
                a(f"v_cndmask_b32 {v(T)}, {v(vRS)}, {v(vRS+1)}, {s(sSAVE,2)}")
                PK = WB + 8 * tj
                A_ = ACC + 16 * tj
                for aa in range(4):
                    for k in range(4): a(f"v_mul_f32 {v(A_+4*aa+k)}, {v(A_+4*aa+k)}, {v(T)}")
                    for k in range(2): a(f"v_cvt_pk_bf16_f32 {v(PK+2*aa+k)}, {v(A_+4*aa+2*k)}, {v(A_+4*aa+2*k+1)}")
                    a(f"buffer_store_dwordx2 {v(PK+2*aa,2)}, {v(vSA+4*tj+aa)}, {s(SWS,4)}, 0 offen sc1")
            self.ts("qkv stores issued")
            if role == 0: a(f"s_branch {lrj}")
        a.label(lrj)
        self.publish(0, True)
        self.ts("QKV published")
        a(f"s_branch {lp1end}")
        a.label(lpad)
        a(f"s_lshl_b32 {s(sT0)}, {s(sR)}, 7")
        a(f"s_sub_u32 {s(sT1)}, {s(sC)}, 14")
        a(f"s_lshl_b32 {s(sT1)}, {s(sT1)}, 6")
        a(f"s_add_u32 {s(sT0)}, {s(sT0)}, {s(sT1)}")
        a(f"v_lshrrev_b32 {v(2)}, 3, v0")
        a(f"v_add_u32 {v(2)}, {s(sT0)}, {v(2)}")
        a(f"v_mul_u32_u24 {v(3)}, 896, {v(2)}")
        a(f"v_and_b32 {v(T)}, 7, v0")
        a(f"v_lshl_add_u32 {v(3)}, {v(T)}, 4, {v(3)}")
        for j in range(7): a(f"buffer_load_dwordx4 {v(32+4*j,4)}, {v(3)}, {s(SX,4)}, 0 offen offset:{128*j}")
        a(f"v_lshrrev_b32 {v(T)}, 3, v0")
        a(f"v_lshrrev_b32 {v(T2)}, 2, {v(T)}")
        a(f"v_lshlrev_b32 {v(T2)}, 6, {v(T2)}")
        a(f"v_and_b32 {v(T)}, 3, {v(T)}")
        a(f"v_add_u32 {v(T)}, {v(T)}, {v(T2)}")
        a(f"s_lshl_b32 {s(sT0)}, {s(sR)}, 2")
        a(f"v_add_u32 {v(T)}, {s(sT0)}, {v(T)}")
        a(f"v_lshlrev_b32 {v(T)}, 12, {v(T)}")
        a(f"v_and_b32 {v(T2)}, 7, v0")
        a(f"v_lshl_add_u32 {v(T)}, {v(T2)}, 5, {v(T)}")
        a(f"s_cmp_eq_u32 {s(sC)}, 15")
        a(f"s_cselect_b32 {s(sT0)}, 2048, 0")
        a(f"s_cselect_b32 {s(sT1)}, 0x3f80, 0")
        a(f"s_add_u32 {s(sT0)}, {s(sT0)}, {7*256}")
        a(f"v_add_u32 {v(T)}, {s(sT0)}, {v(T)}")
        a(f"v_mov_b32 v16, {s(sT1)}")
        a(f"v_mov_b32 v17, 0")
        a(f"v_mov_b32 v18, {s(sT1)}")
        a(f"v_mov_b32 v19, 0")
        a(f"buffer_store_dwordx4 v[16:19], {v(T)}, {s(SWS,4)}, 0 offen sc1")
        a(f"buffer_store_dwordx4 v[16:19], {v(T)}, {s(SWS,4)}, 0 offen offset:16 sc1")
        a(f"v_mov_b32 v4, 0")
        a(f"v_mov_b32 v5, 0")
        for j in range(7):
            a(f"s_waitcnt vmcnt({8-j})")
            if j == 0: self.announce()
            for k in range(4): a(f"v_dot2c_f32_bf16 v4, {s(sONES)}, {v(32+4*j+k)}")
            for k in range(4): a(f"v_dot2c_f32_bf16 v5, {v(32+4*j+k)}, {v(32+4*j+k)}")
        for ctl in ("quad_perm:[1,0,3,2]", "quad_perm:[2,3,0,1]", "row_half_mirror"):
            a(f"v_add_f32_dpp v4, v4, v4 {ctl} row_mask:0xf bank_mask:0xf")
            a(f"v_add_f32_dpp v5, v5, v5 {ctl} row_mask:0xf bank_mask:0xf")
        self.stats_finish(4, 5, 6, 7)
        self.mean_operand(20, 6, 8)
        a(f"v_mov_b32 v22, v7")
        a(f"v_mul_f32 v23, {f32bits(28**-0.5*LOG2E):#x}, v7")
        a(f"v_lshlrev_b32 v2, 4, v2")
        a(f"v_add_u32 v2, {XS_OFF}, v2")
        self.set_exec(0x0101010101010101)
        a(f"buffer_store_dwordx4 v[20:23], v2, {s(SWS,4)}, 0 offen sc1")
        a("s_mov_b64 exec, -1")
        self.publish(0, True)
        a("s_sleep 40")
        a.label(lp1end)

    def stage_rows128(self, srd, rowstride, scol, ldsbase, vsrc=2):
        a = self.a
        a(f"s_mul_i32 {s(sT0)}, {s(sW)}, 56")
        self.rows128_src(vsrc, rowstride, sT0, scol)
        a(f"s_mul_i32 {s(sT1)}, {s(sW)}, 7168")
        for j in range(7):
            a(f"s_mov_b32 {s(sT0)}, {8*j*rowstride}")
            self.dma(vsrc, srd, sT0, (sT1, ldsbase + 1024 * j))

    def move_frags(self, dst, vaddr, nsteps, perm, off0=0):
        a = self.a
        for k in range(nsteps):
            a(f"ds_read_b64_tr_b16 {v(dst+4*k,2)}, {v(vaddr)} offset:{off0+k*2048}")
            a(f"ds_read_b64_tr_b16 {v(dst+4*k+2,2)}, {v(vaddr)} offset:{off0+k*2048+(1024 if perm else 512)}")

    def busy_begin(self):
        a = self.a
        l = a.newlabel("NB")
        a(f"s_cmp_eq_u32 {s(sBUSY)}, 0")
        a(f"s_cbranch_scc1 {l}")
        return l

    def p2(self):
        a = self.a
        QF = 72
        SR = R_A
        OA = 16
        KB = 32
        vM = 12
        full = self.stop_after >= 3
        if full:
            lb = self.busy_begin()
            a(f"s_and_b32 {s(sU0)}, {s(sW)}, 1")
            a(f"s_lshl_b32 {s(sU0)}, {s(sU0)}, 6")
            a(f"s_mul_i32 {s(sT0)}, {s(sROLE)}, {14*2048}")
            a(f"s_add_u32 {s(sT0)}, {s(sT0)}, {L_WO}")
            self.tr128_addr(3, False, sT0)
            self.move_frags(R_C, 3, 14, False)
            a(f"s_and_b32 {s(sT1)}, {s(sW)}, 2")
            a(f"s_lshl_b32 {s(sT1)}, {s(sT1)}, 4")
            a(f"v_and_b32 {v(T)}, 31, v1")
            a(f"v_add_u32 {v(T)}, {s(sT1)}, {v(T)}")
            a(f"s_lshl_b32 {s(sT0)}, {s(sROLE)}, 5")
            a(f"s_add_u32 {s(sT0)}, {s(sT0)}, {s(sU0)}")
            a(f"v_lshrrev_b32 {v(T2)}, 5, v1")
            a(f"v_lshl_add_u32 {v(T2)}, {v(T2)}, 3, {s(sT0)}")
            a(f"v_bfe_u32 {v(4)}, v1, 1, 1")
            a(f"v_lshlrev_b32 {v(4)}, 6, {v(4)}")
            a(f"v_xor_b32 {v(4)}, {v(4)}, {v(T2)}")
            a(f"v_lshl_add_u32 {v(4)}, {v(T)}, 7, {v(4)}")
            a(f"ds_read_b64 {v(vHRES,2)}, {v(4)} offset:{L_XS+3*16384}")
            a(f"ds_read_b64 {v(vHRES+2,2)}, {v(4)} offset:{L_XS+3*16384+16}")
            a(f"s_lshl_b32 {s(sT0)}, {s(sR)}, 7")
            a(f"s_lshl_b32 {s(sT1)}, {s(sTH)}, 6")
            a(f"s_add_u32 {s(sT0)}, {s(sT0)}, {s(sT1)}")
            a(f"v_add_u32 {v(T)}, {s(sT0)}, {v(T)}")
            a(f"v_mul_u32_u24 {v(T)}, 896, {v(T)}")
            a(f"s_lshl_b32 {s(sT0)}, {s(sCT)}, 7")
            a(f"v_add3_u32 {v(85)}, {v(T)}, {v(T2)}, {s(sT0)}")
            a.label(lb)
        lw = a.newlabel("P2W")
        a(f"s_cmp_lg_u32 {s(sW)}, 0")
        a(f"s_cbranch_scc1 {lw}")
        a(f"v_lshrrev_b32 {v(T)}, 4, v1")
        a(f"v_sub_u32 {v(T)}, {s(sR)}, {v(T)}")
        a(f"v_max_i32 {v(T)}, 0, {v(T)}")
        a(f"v_and_b32 {v(T2)}, 15, v1")
        a(f"v_cmp_le_u32 vcc, 7, {v(T2)}")
        a(f"v_cndmask_b32 {v(6)}, 0, 1, vcc")
        a(f"v_and_b32 {v(4)}, 12, {v(T)}")
        a(f"v_lshl_add_u32 {v(4)}, {v(6)}, 1, {v(4)}")
        a(f"v_bfe_u32 {v(5)}, {v(T)}, 1, 1")
        a(f"v_add_u32 {v(4)}, {v(4)}, {v(5)}")
        a(f"v_and_b32 {v(5)}, 1, {v(T)}")
        a(f"v_sub_u32 {v(5)}, {v(5)}, {v(6)}")
        a(f"v_mad_i32_i24 {v(5)}, {v(5)}, 7, {v(T2)}")
        a(f"v_cmp_le_u32 vcc, {0 if self.p1local else 14}, {v(T2)}")
        a(f"v_cndmask_b32 {v(4)}, {v(4)}, {v(T)}, vcc")
        a(f"v_cndmask_b32 {v(5)}, {v(5)}, {v(T2)}, vcc")
        a(f"v_mov_b32 {v(6)}, {s(sR)}")
        a(f"v_cmp_le_u32 vcc, 48, v1")
        a(f"v_cndmask_b32 {v(4)}, {v(4)}, {v(6)}, vcc")
        a(f"v_cndmask_b32 {v(5)}, {v(5)}, {v(T2)}, vcc")
        a(f"v_lshl_add_u32 {v(4)}, {v(4)}, 4, {v(5)}")
        a(f"v_lshlrev_b32 {v(T)}, 7, {v(4)}")
        a(f"v_add_u32 {v(5)}, {FL0_OFF}, {v(T)}")
        self.poll(4, T2, (1 << 64) - 1, "ANN", sleep=4, ann=True)
        self.set_exec(0xffff << 48)
        a(f"s_or_b32 {s(sT0)}, {s(sXCC)}, 0x80")
        a(f"v_cmp_ne_u32 vcc, {s(sT0)}, {v(T2)}")
        a(f"s_mov_b64 exec, -1")
        a(f"s_cmp_eq_u64 vcc, 0")
        a(f"s_cselect_b32 {s(sT0)}, 1, 0")
        a(f"v_mov_b32 {v(T2)}, {s(sT0)}")
        a(f"v_mov_b32 {v(T)}, {L_FLAG}")
        a(f"ds_write_b32 {v(T)}, {v(T2)}")
        self.masks()
        self.poll(5, T2, (1 << 48) - 1, "KV", sleep=2)
        lw2 = a.newlabel("P2W")
        a(f"s_branch {lw2}")
        a.label(lw)
        self.masks()
        a.label(lw2)
        a("s_waitcnt lgkmcnt(0)")
        a("s_barrier")
        self.ts("QKV flags seen")
        a(f"v_mov_b32 {v(T)}, {L_FLAG}")
        a(f"ds_read_b32 {v(13)}, {v(T)}")
        a(f"s_lshl_b32 {s(sT0)}, {s(sC)}, 6")
        a(f"s_lshl_b32 {s(sT1)}, {s(sR)}, 2")
        a(f"s_add_u32 {s(sT0)}, {s(sT0)}, {s(sT1)}")
        a(f"s_add_u32 {s(sT2)}, {s(sT0)}, {s(sT)}")
        a(f"s_lshl_b32 {s(sT2)}, {s(sT2)}, 11")
        a(f"s_add_u32 {s(sT2)}, {s(sT2)}, {Q_OFF}")
        a(f"v_lshlrev_b32 {v(T2)}, 3, v1")
        for aa in range(4):
            a(f"buffer_load_dwordx2 {v(QF+2*aa,2)}, {v(T2)}, {s(SWS,4)}, {s(sT2)} offen offset:{512*aa} sc1")
        a(f"s_sub_u32 {s(sT0)}, {s(sT0)}, 8")
        a(f"s_lshl_b32 {s(sT0)}, {s(sT0)}, 12")
        a(f"s_mul_i32 {s(sT1)}, {s(sW)}, 6144")
        a(f"s_add_u32 {s(sT0)}, {s(sT0)}, {s(sT1)}")
        a(f"s_add_u32 {s(sT1)}, {s(sT1)}, {L_KV}")
        a(f"s_lshl_b32 {s(sT2)}, {s(sR)}, 4")
        a(f"s_mul_i32 {s(sT3)}, {s(sW)}, 6")
        a(f"s_add_u32 {s(sT2)}, {s(sT2)}, {s(sT3)}")
        a(f"v_lshlrev_b32 {v(T)}, 4, v1")
        for k in range(6):
            ls = a.newlabel("NOKV")
            a(f"s_cmp_lt_u32 {s(sT2)}, {32-k}")
            a(f"s_cbranch_scc1 {ls}")
            a(f"s_add_u32 {s(sT3)}, {s(sT0)}, {1024*k}")
            self.dma(T, SWS, sT3, (sT1, 1024 * k), sc1=True)
            a.label(ls)
        vK = 2; vV = 3
        sB = sT4
        a(f"s_lshl_b32 {s(sT0)}, {s(sROLE)}, 2")
        a(f"s_sub_u32 {s(sB)}, {s(sT)}, {s(sT0)}")
        a(f"s_add_u32 {s(sB)}, {s(sB)}, 4")
        a(f"s_lshl_b32 {s(sT0)}, {s(sB)}, 12")
        a(f"s_add_u32 {s(sT0)}, {s(sT0)}, {L_KV}")
        a(f"v_lshlrev_b32 {v(vK)}, 3, v1")
        a(f"v_add_u32 {v(vK)}, {s(sT0)}, {v(vK)}")
        a(f"v_bfe_u32 {v(T)}, v1, 4, 1")
        a(f"v_and_b32 {v(vV)}, 3, v1")
        a(f"v_lshl_add_u32 {v(T)}, {v(T)}, 2, {v(vV)}")
        a(f"v_lshrrev_b32 {v(vV)}, 5, v1")
        a(f"v_add_u32 {v(vV)}, {v(vV)}, {v(T)}")
        a(f"v_lshlrev_b32 {v(vV)}, 2, {v(vV)}")
        a(f"v_bfe_u32 {v(vV+1)}, v1, 2, 2")
        a(f"v_add_u32 {v(8)}, {v(vV)}, {v(vV+1)}")
        a(f"v_lshlrev_b32 {v(T)}, 8, {v(T)}")
        a(f"v_add_u32 {v(T)}, {s(sT0)}, {v(T)}")
        a(f"v_add_u32 {v(T)}, 2048, {v(T)}")
        for k in range(4):
            a(f"v_add_u32 {v(vV+k)}, {8*k}, {v(8)}")
            a(f"v_and_b32 {v(vV+k)}, 31, {v(vV+k)}")
            a(f"v_lshl_add_u32 {v(vV+k)}, {v(vV+k)}, 3, {v(T)}")
        sFV = sT5
        a(f"s_lshl_b32 {s(sT0)}, {s(sR)}, 2")
        a(f"s_sub_i32 {s(sFV)}, 8, {s(sT0)}")
        a(f"s_sub_i32 {s(sFV)}, {s(sFV)}, {s(sB)}")
        a(f"s_lshl_b32 {s(sT0)}, {s(sW)}, 3")
        a(f"s_lshl_b32 {s(sT2)}, {s(sC)}, 8")
        self.rows128_src(9, 3584, sT0, sT2)
        a(f"s_lshl_b32 {s(sT6)}, {s(sW)}, 10")
        def w1dma(js):
            if not full: return
            l = self.busy_begin()
            for j in js:
                jj, dp = (j, 0) if j < 7 else (j - 7, 1)
                a(f"s_mov_b32 {s(sT0)}, {64*jj*3584 + 128*dp}")
                self.dma(9, SW1, sT0, (sT6, L_W1B * dp + 8192 * jj))
            a.label(l)
        self.w1dma = w1dma
        a("s_waitcnt lgkmcnt(0)")
        a(f"v_readfirstlane_b32 {s(sLOCAL)}, {v(13)}")
        a("s_waitcnt vmcnt(0)")
        a("s_barrier")
        self.ts("KV landed")
        a(f"v_cndmask_b32 {v(QF+6)}, {v(QF+6)}, 0, {s(sHI,2)}")
        a(f"v_cndmask_b32 {v(QF+7)}, {v(QF+7)}, 0, {s(sHI,2)}")
        NEG = f32bits(-1.0e30)
        def valid_branch(j, lab):
            if j == 4:
                a(f"s_cmp_eq_u32 {s(sROLE)}, 1")
                a(f"s_cbranch_scc1 {lab}")
            else:
                a(f"s_cmp_gt_i32 {s(sFV)}, {j}")
                a(f"s_cbranch_scc1 {lab}")
        for j in range(5):
            for k in range(4):
                a(f"ds_read_b64 {v(KB+8*j+2*k,2)}, {v(vK)} offset:{4096*j+512*k}")
        for j in range(5):
            lsk, lend = a.newlabel("QS"), a.newlabel("QE")
            a(f"s_waitcnt lgkmcnt({min(15,16-4*j)})")
            valid_branch(j, lsk)
            a(f"{MF} {v(SR+16*j,16)}, {v(KB+8*j,4)}, {v(QF,4)}, 0")
            a(f"{MF} {v(SR+16*j,16)}, {v(KB+8*j+4,4)}, {v(QF+4,4)}, {v(SR+16*j,16)}")
            a(f"s_branch {lend}")
            a.label(lsk)
            for k in range(16): a(f"v_mov_b32 {v(SR+16*j+k)}, {NEG:#x}")
            a.label(lend)
        w1dma([0, 1, 2])
        a(f"v_mov_b32 {v(T)}, {NEG:#x}")
        lm, lm2 = a.newlabel("MK"), a.newlabel("MK")
        a(f"s_cmp_eq_u32 {s(sROLE)}, 0")
        a(f"s_cbranch_scc0 {lm}")
        for k in range(16): a(f"v_cndmask_b32 {v(SR+64+k)}, {v(T)}, {v(SR+64+k)}, {s(sMASK+2*k,2)}")
        a(f"s_branch {lm2}")
        a.label(lm)
        for k in range(16): a(f"v_cndmask_b32 {v(SR+k)}, {v(SR+k)}, {v(T)}, {s(sMASK+2*k,2)}")
        a.label(lm2)
        for j in range(5):
            for st in range(2):
                for rr in range(2):
                    a(f"ds_read_b64_tr_b16 {v(KB+8*j+4*st+2*rr,2)}, {v(vV+2*st+rr)} offset:{4096*j}")
        a(f"v_max3_f32 {v(vM)}, {v(SR)}, {v(SR+1)}, {v(SR+2)}")
        a(f"v_max3_f32 {v(T)}, {v(SR+3)}, {v(SR+4)}, {v(SR+5)}")
        k = 6; tog = 0
        while k < 80:
            d = vM if tog == 0 else T
            a(f"v_max3_f32 {v(d)}, {v(d)}, {v(SR+k)}, {v(SR+k+1)}")
            k += 2; tog ^= 1
        a(f"v_max_f32 {v(vM)}, {v(vM)}, {v(T)}")
        a(f"v_mov_b32 {v(T)}, {v(vM)}")
        a(f"v_permlane32_swap_b32 {v(T)}, {v(vM)}")
        a(f"v_max_f32 {v(vM)}, {v(vM)}, {v(T)}")
        for k in range(16): a(f"v_mov_b32 {v(OA+k)}, 0")
        a("s_waitcnt lgkmcnt(0)")
        for j in range(5):
            lsk = a.newlabel("PS")
            valid_branch(j, lsk)
            b = SR + 16 * j
            for k in range(16): a(f"v_sub_f32 {v(b+k)}, {v(b+k)}, {v(vM)}")
            for k in range(16): a(f"v_exp_f32 {v(b+k)}, {v(b+k)}")
            for k in range(8): a(f"v_cvt_pk_bf16_f32 {v(b+k)}, {v(b+2*k)}, {v(b+2*k+1)}")
            a(f"{MF} {v(OA,16)}, {v(KB+8*j,4)}, {v(b,4)}, {v(OA,16)}")
            a(f"{MF} {v(OA,16)}, {v(KB+8*j+4,4)}, {v(b+4,4)}, {v(OA,16)}")
            a.label(lsk)
            if j < 4: w1dma([3 + 2 * j, 4 + 2 * j])
        self.ts("attn partial done")
        vMA = 2
        a(f"s_mul_i32 {s(sT0)}, {s(sT)}, 4352")
        a(f"s_add_u32 {s(sT0)}, {s(sT0)}, {L_MRG}")
        a(f"v_lshlrev_b32 {v(vMA)}, 4, v1")
        a(f"v_add_u32 {v(vMA)}, {s(sT0)}, {v(vMA)}")
        a(f"v_lshlrev_b32 {v(3)}, 2, v1")
        a(f"v_add_u32 {v(3)}, {s(sT0)}, {v(3)}")
        l1 = a.newlabel("MG")
        a(f"s_cmp_eq_u32 {s(sROLE)}, 1")
        a(f"s_cbranch_scc0 {l1}")
        for k in range(4): a(f"ds_write_b128 {v(vMA)}, {v(OA+4*k,4)} offset:{1024*k}")
        a(f"ds_write_b32 {v(3)}, {v(vM)} offset:4096")
        a.label(l1)
        a("s_waitcnt lgkmcnt(0)")
        a("s_barrier")
        l2 = a.newlabel("MG")
        a(f"s_cmp_eq_u32 {s(sROLE)}, 0")
        a(f"s_cbranch_scc0 {l2}")
        O1 = 32
        for k in range(4): a(f"ds_read_b128 {v(O1+4*k,4)}, {v(vMA)} offset:{1024*k}")
        a(f"ds_read_b32 {v(T)}, {v(3)} offset:4096")
        a(f"s_lshl_b32 {s(sT0)}, {s(sR)}, 2")
        a(f"s_add_u32 {s(sT0)}, {s(sT0)}, {s(sT)}")
        a(f"s_mul_i32 {s(sT0)}, {s(sT0)}, 28672")
        a(f"s_add_u32 {s(sT0)}, {s(sT0)}, {O_OFF}")
        a(f"s_mul_i32 {s(sT1)}, {s(sC)}, 7")
        a(f"v_lshrrev_b32 {v(4)}, 5, v1")
        a(f"v_add_u32 {v(4)}, {s(sT1)}, {v(4)}")
        a(f"v_lshrrev_b32 {v(5)}, 1, {v(4)}")
        a(f"v_lshlrev_b32 {v(5)}, 9, {v(5)}")
        a(f"v_and_b32 {v(4)}, 1, {v(4)}")
        a(f"v_lshl_add_u32 {v(5)}, {v(4)}, 3, {v(5)}")
        a(f"v_and_b32 {v(4)}, 31, v1")
        a(f"v_lshl_add_u32 {v(5)}, {v(4)}, 4, {v(5)}")
        a(f"v_add_u32 {v(5)}, {s(sT0)}, {v(5)}")
        a("s_waitcnt lgkmcnt(0)")
        a(f"v_max_f32 {v(T2)}, {v(vM)}, {v(T)}")
        a(f"v_sub_f32 {v(vM)}, {v(vM)}, {v(T2)}")
        a(f"v_sub_f32 {v(T)}, {v(T)}, {v(T2)}")
        a(f"v_exp_f32 {v(vM)}, {v(vM)}")
        a(f"v_exp_f32 {v(T)}, {v(T)}")
        for k in range(16): a(f"v_mul_f32 {v(OA+k)}, {v(OA+k)}, {v(vM)}")
        for k in range(16): a(f"v_fmac_f32 {v(OA+k)}, {v(O1+k)}, {v(T)}")
        a(f"v_mov_b32 {v(T)}, {v(OA+12)}")
        a(f"v_mov_b32 {v(T2)}, {v(OA+12)}")
        a(f"v_permlane32_swap_b32 {v(T)}, {v(T2)}")
        a(f"v_rcp_f32 {v(T2)}, {v(T2)}")
        for k in range(16): a(f"v_mul_f32 {v(OA+k)}, {v(OA+k)}, {v(T2)}")
        for k in range(8): a(f"v_cvt_pk_bf16_f32 {v(O1+k)}, {v(OA+2*k)}, {v(OA+2*k+1)}")
        def ostores(sc):
            for aa in range(3):
                a(f"buffer_store_dwordx2 {v(O1+2*aa,2)}, {v(5)}, {s(SWS,4)}, 0 offen offset:{512*aa}{sc}")
            a(f"s_mov_b32 exec_hi, 0")
            a(f"buffer_store_dwordx2 {v(O1+6,2)}, {v(5)}, {s(SWS,4)}, 0 offen offset:{512*3}{sc}")
            a(f"s_mov_b64 exec, -1")
        ostores(" sc1")
        a.label(l2)
        self.publish(1)
        self.ts("O published")

    def w1_move(self, dp, ldsbase):
        a = self.a
        l = a.newlabel("W1M")
        a(f"s_lshr_b32 {s(sT0)}, {s(sT)}, 1")
        a(f"s_cmp_lg_u32 {s(sT0)}, {dp}")
        a(f"s_cbranch_scc1 {l}")
        a(f"s_and_b32 {s(sU0)}, {s(sW)}, 1")
        a(f"s_lshl_b32 {s(sU0)}, {s(sU0)}, 6")
        a(f"s_mov_b32 {s(sT0)}, {ldsbase}")
        self.tr128_addr(3, True, sT0)
        self.move_frags(R_A, 3, 28, True)
        a.label(l)

    def p3(self):
        a = self.a
        ACC = 16; FB = 32
        a(f"s_cmp_eq_u32 {s(sBUSY)}, 0")
        a(f"s_cbranch_scc1 L_FIN")
        self.w1dma([11, 12, 13])
        self.w1_move(0, 0)
        self.poll_group(1, 16, 7, "O")
        self.ts("O flags seen")
        a(f"s_lshl_b32 {s(sT0)}, {s(sR)}, 2")
        a(f"s_lshl_b32 {s(sT1)}, {s(sTH)}, 1")
        a(f"s_add_u32 {s(sT0)}, {s(sT0)}, {s(sT1)}")
        a(f"s_mul_i32 {s(sT0)}, {s(sT0)}, 28672")
        a(f"s_add_u32 {s(sT0)}, {s(sT0)}, {O_OFF}")
        a(f"s_bfe_u32 {s(sT1)}, {s(sW)}, 0x10001")
        a(f"s_mul_i32 {s(sT1)}, {s(sT1)}, 28672")
        a(f"s_mul_i32 {s(sT2)}, {s(sROLE)}, 14336")
        a(f"s_add_u32 {s(sT1)}, {s(sT1)}, {s(sT2)}")
        a(f"s_and_b32 {s(sT2)}, {s(sW)}, 1")
        a(f"s_lshl_b32 {s(sT3)}, {s(sT2)}, 12")
        a(f"s_add_u32 {s(sT3)}, {s(sT3)}, {s(sT1)}")
        a(f"s_mul_i32 {s(sT4)}, {s(sT2)}, 3072")
        a(f"s_add_u32 {s(sT4)}, {s(sT4)}, {s(sT1)}")
        a(f"s_add_u32 {s(sT4)}, {s(sT4)}, 8192")
        a(f"v_lshlrev_b32 {v(2)}, 4, v1")
        a(f"s_add_u32 {s(sT5)}, {s(sT0)}, {s(sT3)}")
        a(f"s_mov_b32 m0, {s(sT3)}")
        for k in range(4): self.dma(2, SWS, sT5, None, sc1=True, off=1024*k)
        a(f"s_add_u32 {s(sT5)}, {s(sT0)}, {s(sT4)}")
        a(f"s_mov_b32 m0, {s(sT4)}")
        for k in range(3): self.dma(2, SWS, sT5, None, sc1=True, off=1024*k)
        a(f"v_add_u32 {v(3)}, {s(sT1)}, {v(2)}")
        a(f"s_lshl_b32 {s(sT2)}, {s(sW)}, 11")
        a(f"s_add_u32 {s(sT2)}, {s(sT2)}, {L_RED3}")
        a(f"v_add_u32 {v(4)}, {s(sT2)}, {v(2)}")
        a(f"v_xor_b32 {v(5)}, 8192, {v(4)}") if (L_RED3 & 8192) == 0 else None
        assert L_RED3 % 16384 == 0
        a(f"s_lshl_b32 {s(sT0)}, {s(sR)}, 2")
        a(f"s_lshl_b32 {s(sT1)}, {s(sTH)}, 1")
        a(f"s_add_u32 {s(sT0)}, {s(sT0)}, {s(sT1)}")
        a(f"s_bfe_u32 {s(sT1)}, {s(sW)}, 0x10001")
        a(f"s_add_u32 {s(sT0)}, {s(sT0)}, {s(sT1)}")
        a(f"s_mul_i32 {s(sT0)}, {s(sT0)}, 28")
        a(f"s_lshl_b32 {s(sT1)}, {s(sCT)}, 2")
        a(f"s_add_u32 {s(sT0)}, {s(sT0)}, {s(sT1)}")
        a(f"s_and_b32 {s(sT1)}, {s(sW)}, 1")
        a(f"s_lshl_b32 {s(sT1)}, {s(sT1)}, 1")
        a(f"s_add_u32 {s(sT0)}, {s(sT0)}, {s(sT1)}")
        a(f"s_add_u32 {s(sT0)}, {s(sT0)}, {s(sROLE)}")
        a(f"s_lshl_b32 {s(sT1)}, {s(sT0)}, 10")
        a(f"s_add_u32 {s(sT1)}, {s(sT1)}, {H_OFF}")
        a(f"v_add_u32 {v(6)}, {s(sT1)}, {v(2)}")
        a(f"s_lshl_b32 {s(sT1)}, {s(sT0)}, 8")
        a(f"s_add_u32 {s(sT1)}, {s(sT1)}, {HS_OFF}")
        a(f"v_lshl_add_u32 {v(7)}, v1, 2, {s(sT1)}")
        XR = 64
        for k in range(4):
            a(f"v_lshlrev_b32 {v(XR+2*k)}, 16, {v(vHRES+k)}")
            a(f"v_and_b32 {v(XR+2*k+1)}, 0xffff0000, {v(vHRES+k)}")
        a("s_waitcnt vmcnt(3)")
        a("s_barrier")
        self.ts("O stage0 landed")
        for k in range(8): a(f"ds_read_b128 {v(FB+4*k,4)}, {v(3)} offset:{1024*k}")
        for k in range(8):
            a(f"s_waitcnt lgkmcnt({7-k})")
            a(f"{MF} {v(ACC,16)}, {v(R_C+4*k,4)}, {v(FB+4*k,4)}, {'0' if k==0 else v(ACC,16)}")
        a("s_waitcnt vmcnt(0)")
        a("s_barrier")
        for k in range(6): a(f"ds_read_b128 {v(FB+4*k,4)}, {v(3)} offset:{1024*(8+k)}")
        for k in range(6):
            a(f"s_waitcnt lgkmcnt({5-k})")
            a(f"{MF} {v(ACC,16)}, {v(R_C+4*(8+k),4)}, {v(FB+4*k,4)}, {v(ACC,16)}")
        self.ts("p3 mfma done")
        l1, l2 = a.newlabel("R3"), a.newlabel("R3")
        a(f"s_cmp_eq_u32 {s(sROLE)}, 0")
        a(f"s_cbranch_scc0 {l1}")
        a(f"ds_write_b128 {v(4)}, {v(ACC+8,4)}")
        a(f"ds_write_b128 {v(4)}, {v(ACC+12,4)} offset:1024")
        for k in range(8): a(f"v_add_f32 {v(XR+k)}, {v(XR+k)}, {v(ACC+k)}")
        a(f"s_branch {l2}")
        a.label(l1)
        a(f"ds_write_b128 {v(4)}, {v(ACC,4)}")
        a(f"ds_write_b128 {v(4)}, {v(ACC+4,4)} offset:1024")
        for k in range(8): a(f"v_add_f32 {v(XR+k)}, {v(XR+k)}, {v(ACC+8+k)}")
        a.label(l2)
        a("s_waitcnt lgkmcnt(0)")
        a("s_barrier")
        a(f"ds_read_b128 {v(FB,4)}, {v(5)}")
        a(f"ds_read_b128 {v(FB+4,4)}, {v(5)} offset:1024")
        a("s_waitcnt lgkmcnt(0)")
        for k in range(8): a(f"v_add_f32 {v(XR+k)}, {v(XR+k)}, {v(FB+k)}")
        for k in range(4): a(f"v_cvt_pk_bf16_f32 {v(vHRES+k)}, {v(XR+2*k)}, {v(XR+2*k+1)}")
        a(f"buffer_store_dwordx4 {v(vHRES,4)}, {v(6)}, {s(SWS,4)}, 0 offen sc1")
        a(f"v_add_f32 {v(FB)}, {v(XR)}, {v(XR+1)}")
        a(f"v_mul_f32 {v(FB+1)}, {v(XR)}, {v(XR)}")
        a(f"v_add_f32 {v(FB+2)}, {v(XR+2)}, {v(XR+3)}")
        a(f"v_mul_f32 {v(FB+3)}, {v(XR+1)}, {v(XR+1)}")
        a(f"v_add_f32 {v(FB+4)}, {v(XR+4)}, {v(XR+5)}")
        a(f"v_fmac_f32 {v(FB+1)}, {v(XR+2)}, {v(XR+2)}")
        a(f"v_add_f32 {v(FB+5)}, {v(XR+6)}, {v(XR+7)}")
        a(f"v_fmac_f32 {v(FB+3)}, {v(XR+3)}, {v(XR+3)}")
        a(f"v_add_f32 {v(FB)}, {v(FB)}, {v(FB+2)}")
        a(f"v_fmac_f32 {v(FB+1)}, {v(XR+4)}, {v(XR+4)}")
        a(f"v_add_f32 {v(FB+4)}, {v(FB+4)}, {v(FB+5)}")
        a(f"v_fmac_f32 {v(FB+3)}, {v(XR+5)}, {v(XR+5)}")
        a(f"v_add_f32 {v(FB)}, {v(FB)}, {v(FB+4)}")
        a(f"v_fmac_f32 {v(FB+1)}, {v(XR+6)}, {v(XR+6)}")
        a(f"v_fmac_f32 {v(FB+3)}, {v(XR+7)}, {v(XR+7)}")
        a(f"v_add_f32 {v(FB+1)}, {v(FB+1)}, {v(FB+3)}")
        a(f"v_permlane32_swap_b32 {v(FB)}, {v(FB+1)}")
        a(f"v_add_f32 {v(FB)}, {v(FB)}, {v(FB+1)}")
        a(f"buffer_store_dword {v(FB)}, {v(7)}, {s(SWS,4)}, 0 offen sc1")
        self.publish(2)
        self.ts("H published")

    def p4(self):
        a = self.a
        ACC = 16; FB = 48; BM = 72
        self.w1_move(1, L_W1B)
        sKQ = sT6
        a(f"s_and_b32 {s(sKQ)}, {s(sW)}, 2")
        a(f"s_add_u32 {s(sKQ)}, {s(sKQ)}, {s(sROLE)}")
        a(f"s_mul_i32 {s(sT0)}, {s(sKQ)}, 448")
        a(f"s_and_b32 {s(sT1)}, {s(sW)}, 1")
        a(f"s_lshl_b32 {s(sT2)}, {s(sT1)}, 4")
        a(f"s_add_u32 {s(sT0)}, {s(sT0)}, {s(sT2)}")
        a(f"s_lshl_b32 {s(sT2)}, {s(sCT)}, 7")
        vW2s, vW2r = 8, 9
        self.rows128_src(vW2s, 896, sT0, sT2)
        sW2m = sU1
        a(f"s_lshl_b32 {s(sW2m)}, {s(sKQ)}, 12")
        a(f"s_lshl_b32 {s(sT1)}, {s(sT1)}, 11")
        a(f"s_lshl_b32 {s(sT0)}, {s(sKQ)}, 12")
        a(f"s_add_u32 {s(sW2m)}, {s(sW2m)}, {s(sT1)}")
        a(f"s_and_b32 {s(sU0)}, {s(sW)}, 1")
        a(f"s_lshl_b32 {s(sU0)}, {s(sU0)}, 6")
        self.tr128_addr(vW2r, True, sT0)
        a(f"v_add_u32 {v(10)}, {L_HR}, {v(vW2r)}")
        def w2dma(p, ldsbase):
            for j in range(2):
                a(f"s_mov_b32 {s(sT0)}, {(32*p+8*j)*896}")
                self.dma(vW2s, SW2, sT0, (sW2m, ldsbase + 1024 * j))
        self.w2dma = w2dma
        a("s_waitcnt lgkmcnt(0)")
        a("s_barrier")
        for p in range(3): w2dma(p, L_HR + 16384 * p)
        a(f"v_mov_b32 {v(FB)}, 0")
        for k in range(112): a(f"v_dot2c_f32_bf16 {v(FB)}, {s(sONES)}, {v(R_A+k)}")
        a(f"v_mov_b32 {v(FB+1)}, {v(FB)}")
        a(f"v_permlane32_swap_b32 {v(FB)}, {v(FB+1)}")
        a(f"v_add_f32 {v(FB)}, {v(FB)}, {v(FB+1)}")
        self.cs_operand(vAM1, FB)
        self.ts("w1 ready")
        self.poll_group(2, 14, 7, "H")
        self.ts("H flags seen")
        a(f"s_lshl_b32 {s(sT0)}, {s(sR)}, 2")
        a(f"s_lshr_b32 {s(sT1)}, {s(sW)}, 1")
        a(f"s_add_u32 {s(sT0)}, {s(sT0)}, {s(sT1)}")
        a(f"s_mul_i32 {s(sT0)}, {s(sT0)}, 28672")
        a(f"s_and_b32 {s(sT1)}, {s(sW)}, 1")
        a(f"s_lshl_b32 {s(sT1)}, {s(sT1)}, 11")
        a(f"s_add_u32 {s(sT0)}, {s(sT0)}, {s(sT1)}")
        a(f"s_add_u32 {s(sT0)}, {s(sT0)}, {H_OFF}")
        a(f"v_lshlrev_b32 {v(2)}, 4, v1")
        a(f"v_add_u32 {v(3)}, {s(sT0)}, {v(2)}")
        sAm = sT5
        a(f"s_lshl_b32 {s(sAm)}, {s(sW)}, 11")
        def adma(i):
            a(f"s_mov_b32 {s(sT0)}, {4096*i}")
            self.dma(3, SWS, sT0, (sAm, (i % 6) * 16384), sc1=True)
            self.dma(3, SWS, sT0, None, sc1=True, off=1024)
        ops = ['p0','p0','p1','p1','p2','p2']
        adma(0); ops += ['A0','A0']
        adma(1); ops += ['A1','A1']
        SB = 32
        a(f"s_lshl_b32 {s(sT0)}, {s(sR)}, 2")
        a(f"s_add_u32 {s(sT0)}, {s(sT0)}, {s(sT)}")
        a(f"s_mul_i32 {s(sT0)}, {s(sT0)}, 28")
        a(f"s_mul_i32 {s(sT1)}, {s(sROLE)}, 14")
        a(f"s_add_u32 {s(sT0)}, {s(sT0)}, {s(sT1)}")
        a(f"s_lshl_b32 {s(sT0)}, {s(sT0)}, 8")
        a(f"s_add_u32 {s(sT0)}, {s(sT0)}, {HS_OFF}")
        a(f"v_lshlrev_b32 {v(4)}, 4, v1")
        STB = R_C + 40
        for j in range(4):
            a(f"buffer_load_dwordx4 {v(STB+4*j,4)}, {v(4)}, {s(SWS,4)}, {s(sT0)} offen offset:{1024*j} sc1")
            ops.append('S')
        adma(2); ops += ['A2', 'A2']
        a(f"s_lshl_b32 {s(sT0)}, {s(sROLE)}, 13")
        a(f"v_add_u32 {v(5)}, {s(sT0)}, {v(2)}")
        a(f"v_add_u32 {v(6)}, 65536, {v(5)}")
        a(f"s_lshl_b32 {s(sT0)}, {s(sR)}, 2")
        a(f"s_lshl_b32 {s(sT1)}, {s(sROLE)}, 1")
        a(f"s_add_u32 {s(sT0)}, {s(sT0)}, {s(sT1)}")
        a(f"s_mul_i32 {s(sT0)}, {s(sT0)}, 112")
        a(f"s_lshl_b32 {s(sT1)}, {s(sC)}, 3")
        a(f"s_add_u32 {s(sT0)}, {s(sT0)}, {s(sT1)}")
        a(f"s_lshl_b32 {s(sT1)}, {s(sT)}, 1")
        a(f"s_add_u32 {s(sT0)}, {s(sT0)}, {s(sT1)}")
        a(f"s_lshl_b32 {s(sT0)}, {s(sT0)}, 10")
        a(f"s_add_u32 {s(sT0)}, {s(sT0)}, {H1_OFF}")
        a(f"v_add_u32 {v(7)}, {s(sT0)}, {v(2)}")
        a(f"v_add_u32 {v(11)}, {112*1024}, {v(7)}")
        qn = 7
        self.w2b_loc = {}
        for i in range(7):
            a.comment(f"---- P4 chunk {i}")
            needs = [f'A{i}', f'p{i}'] + (['S'] if i == 2 else [])
            last = max(k for k, o in enumerate(ops) if o in needs)
            a(f"s_waitcnt vmcnt({len(ops)-1-last}) lgkmcnt(0)")
            a("s_barrier")
            if i == 0: self.ts("H chunk0 landed")
            slot = (i % 6) * 16384
            va, so = (5, slot) if slot < 65536 else (6, slot - 65536)
            order = [(ks, tt) for ks in range(4) for tt in range(2)]
            def rd(n):
                ks, tt = order[n]
                a(f"ds_read_b128 {v(FB+4*(n%6),4)}, {v(va)} offset:{so+tt*4096+ks*1024}")
            for n in range(6): rd(n)
            for n in range(8):
                ks, tt = order[n]
                outstanding = min(8, n + 6) - n - 1 if n < 2 else 7 - n
                a(f"s_waitcnt lgkmcnt({5 if n < 2 else 7-n})")
                first = (i == 0 and ks == 0)
                a(f"{MF} {v(ACC+16*tt,16)}, {v(R_A+4*(4*i+ks),4)}, {v(FB+4*(n%6),4)}, {'0' if first else v(ACC+16*tt,16)}")
                if n < 2: rd(n + 6)
            if i == 2:
                for k in range(4): a(f"v_cndmask_b32 {v(STB+12+k)}, {v(STB+12+k)}, 0, {s(sHI,2)}")
                for k in range(4):
                    a(f"v_add_f32 {v(STB+k)}, {v(STB+k)}, {v(STB+4+k)}")
                    a(f"v_add_f32 {v(STB+8+k)}, {v(STB+8+k)}, {v(STB+12+k)}")
                for k in range(4): a(f"v_add_f32 {v(STB+k)}, {v(STB+k)}, {v(STB+8+k)}")
                a(f"v_lshlrev_b32 {v(T)}, 4, v0")
                a(f"v_add_u32 {v(T)}, {L_ST4}, {v(T)}")
                a(f"ds_write_b128 {v(T)}, {v(STB,4)}")
            self.move_frags(R_C + 8 * i, 10, 2, True, off0=(i % 3) * 16384)
            if i + 3 <= 6:
                adma(i + 3); ops += [f'A{i+3}'] * 2
            if i >= 1:
                if i - 1 + 3 <= 6:
                    w2dma(i + 2, L_HR + 16384 * ((i - 1) % 3)); ops += [f'p{i+2}'] * 2
                else:
                    w2dma(qn, L_HR + 16384 * ((i - 1) % 3)); self.w2b_loc[qn] = L_HR + 16384 * ((i - 1) % 3); ops += ['q'] * 2; qn += 1
                if i >= 2:
                    w2dma(qn, 16384 * (i - 1)); self.w2b_loc[qn] = 16384 * (i - 1); ops += ['q'] * 2; qn += 1
        assert qn == 14, qn
        self.ts("p4 loop done")
        a(f"s_lshl_b32 {s(sT0)}, {s(sROLE)}, 11")
        a(f"s_add_u32 {s(sT0)}, {s(sT0)}, {L_ST4}")
        a(f"v_lshl_add_u32 {v(T)}, v1, 2, {s(sT0)}")
        for tt in range(2):
            for hf in range(2):
                b = FB + 8 * tt + 4 * hf
                o = (tt * 1024 + hf * 4096) // 256
                a(f"ds_read2st64_b32 {v(b,2)}, {v(T)} offset0:{o} offset1:{o+1}")
                a(f"ds_read2st64_b32 {v(b+2,2)}, {v(T)} offset0:{o+2} offset1:{o+3}")
        a(f"s_lshl_b32 {s(sT0)}, {s(sTH)}, 1")
        a(f"s_bfe_u32 {s(sT1)}, {s(sW)}, 0x10001")
        a(f"s_add_u32 {s(sT0)}, {s(sT0)}, {s(sT1)}")
        a(f"s_lshl_b32 {s(sT0)}, {s(sT0)}, 10")
        a(f"s_add_u32 {s(sT0)}, {s(sT0)}, {L_ST4}")
        a(f"v_lshl_add_u32 {v(T2)}, v1, 2, {s(sT0)}")
        for hf in range(2):
            b = FB + 16 + 4 * hf
            o = hf * 16
            a(f"ds_read2st64_b32 {v(b,2)}, {v(T2)} offset0:{o} offset1:{o+1}")
            a(f"ds_read2st64_b32 {v(b+2,2)}, {v(T2)} offset0:{o+2} offset1:{o+3}")
        a("s_waitcnt lgkmcnt(0)")
        for g_ in range(3):
            b = FB + 8 * g_
            for k in range(4): a(f"v_add_f32 {v(b+k)}, {v(b+k)}, {v(b+4+k)}")
        for g_ in range(3):
            b = FB + 8 * g_
            a(f"v_add_f32 {v(b)}, {v(b)}, {v(b+1)}")
            a(f"v_add_f32 {v(b+2)}, {v(b+2)}, {v(b+3)}")
        for g_ in range(3):
            b = FB + 8 * g_
            a(f"v_add_f32 {v(b)}, {v(b)}, {v(b+2)}")
        for tt in range(2):
            b = FB + 8 * tt
            a(f"v_mul_f32 {v(b)}, {f32bits(-1.0/448):#x}, {v(b)}")
            self.mean_operand(b + 4, b, b + 1)
            a(f"{MF} {v(ACC+16*tt,16)}, {v(vAM1,4)}, {v(b+4,4)}, {v(ACC+16*tt,16)}")
        b = FB + 16
        a(f"v_mov_b32 {v(b+1)}, {v(b)}")
        a(f"v_permlane32_swap_b32 {v(b)}, {v(b+1)}")
        self.stats_finish(b, b + 1, b + 2, vRSTD)
        PK = FB
        def h1st(sc):
            for tt in range(2):
                for sp in range(2):
                    a(f"buffer_store_dwordx4 {v(ACC+16*tt+4*sp,4)}, {v(7 if tt==0 else 11)}, {s(SWS,4)}, 0 offen offset:{1024*sp}{sc}")
        for tt in range(2):
            A_ = ACC + 16 * tt
            for k in range(8): a(f"v_cvt_pk_bf16_f32 {v(A_+k)}, {v(A_+2*k)}, {v(A_+2*k+1)}")
            for k in range(8): a(f"v_pk_max_i16 {v(A_+k)}, {v(A_+k)}, 0")
        h1st(" sc1")
        self.publish(3)
        self.ts("H1 published")

    def p5(self):
        a = self.a
        ACC = 16; FB = 48
        vW2r = 9
        a(f"v_add_u32 {v(12)}, 65536, {v(vW2r)}")
        for p in range(7, 14):
            loc = self.w2b_loc[p]
            if loc >= L_HR: va, off = 10, loc - L_HR
            elif loc >= 65536: va, off = 12, loc - 65536
            else: va, off = vW2r, loc
            self.move_frags(R_A + 8 * (p - 7), va, 2, True, off0=off)
        self.poll_group(3, 14, 7, "H1")
        self.ts("H1 flags seen")
        sKQ = sT6
        a(f"s_lshl_b32 {s(sT0)}, {s(sR)}, 2")
        a(f"s_lshl_b32 {s(sT1)}, {s(sTH)}, 1")
        a(f"s_add_u32 {s(sT0)}, {s(sT0)}, {s(sT1)}")
        a(f"s_and_b32 {s(sT1)}, {s(sW)}, 1")
        a(f"s_add_u32 {s(sT0)}, {s(sT0)}, {s(sT1)}")
        a(f"s_mul_i32 {s(sT0)}, {s(sT0)}, 112")
        a(f"s_mul_i32 {s(sT2)}, {s(sKQ)}, 28")
        a(f"s_add_u32 {s(sT0)}, {s(sT0)}, {s(sT2)}")
        a(f"s_lshl_b32 {s(sT0)}, {s(sT0)}, 10")
        a(f"s_add_u32 {s(sT0)}, {s(sT0)}, {H1_OFF}")
        a(f"v_add_u32 {v(3)}, {s(sT0)}, {v(2)}")
        sAm = sT5
        a(f"s_lshl_b32 {s(sAm)}, {s(sKQ)}, 13")
        a(f"v_add_u32 {v(5)}, {s(sAm)}, {v(2)}")
        a(f"v_add_u32 {v(6)}, 65536, {v(5)}")
        a(f"v_add_u32 {v(7)}, 131072, {v(5)}")
        a(f"s_lshl_b32 {s(sT1)}, {s(sT1)}, 12")
        a(f"s_add_u32 {s(sAm)}, {s(sAm)}, {s(sT1)}")
        NS = 5; PD = 2
        def adma(i):
            a(f"s_mov_b32 {s(sT0)}, {4096*i}")
            self.dma(3, SWS, sT0, (sAm, (i % NS) * 32768), sc1=True)
            for k in range(1, 4): self.dma(3, SWS, sT0, None, sc1=True, off=1024*k)
        issued = 0
        for i in range(PD):
            adma(i); issued += 1
            if i < PD - 1: a("s_barrier")
        for i in range(7):
            a.comment(f"---- P5 chunk {i}")
            a(f"s_waitcnt vmcnt({4*(issued-1-i)}) lgkmcnt(0)")
            a("s_barrier")
            if i == 0: self.ts("H1 chunk0 landed")
            slot = (i % NS) * 32768
            va, so = 5 + slot // 65536, slot % 65536
            order = [(ks, tt) for ks in range(4) for tt in range(2)]
            def rd(n):
                ks, tt = order[n]
                a(f"ds_read_b128 {v(FB+4*(n%6),4)}, {v(va)} offset:{so+tt*4096+ks*1024}")
            for n in range(6): rd(n)
            for n in range(8):
                ks, tt = order[n]
                a(f"s_waitcnt lgkmcnt({5 if n < 2 else 7-n})")
                kk = 4 * i + ks
                wreg = R_C + 4 * kk if kk < 14 else R_A + 4 * (kk - 14)
                first = (i == 0 and ks == 0)
                a(f"{MF} {v(ACC+16*tt,16)}, {v(wreg,4)}, {v(FB+4*(n%6),4)}, {'0' if first else v(ACC+16*tt,16)}")
                if n < 2: rd(n + 6)
            if issued < 7:
                adma(issued); issued += 1
        self.ts("p5 loop done")
        a("s_waitcnt lgkmcnt(0)")
        a("s_barrier")
        a(f"s_and_b32 {s(sT1)}, {s(sW)}, 1")
        a(f"s_lshl_b32 {s(sT1)}, {s(sT1)}, 15")
        a(f"s_lshl_b32 {s(sT0)}, {s(sKQ)}, 11")
        a(f"s_add_u32 {s(sT0)}, {s(sT0)}, {s(sT1)}")
        a(f"v_add_u32 {v(5)}, {s(sT0)}, {v(2)}")
        a(f"s_lshl_b32 {s(sT0)}, {s(sKQ)}, 13")
        a(f"s_add_u32 {s(sT0)}, {s(sT0)}, {s(sT1)}")
        a(f"v_add_u32 {v(6)}, {s(sT0)}, {v(2)}")
        for d in range(4):
            a(f"ds_write_b128 {v(5)}, {v(ACC+8*d,4)} offset:{8192*d}")
            a(f"ds_write_b128 {v(5)}, {v(ACC+8*d+4,4)} offset:{8192*d+1024}")
        XR = 64
        for k in range(4):
            a(f"v_lshlrev_b32 {v(XR+2*k)}, 16, {v(vHRES+k)}")
            a(f"v_and_b32 {v(XR+2*k+1)}, 0xffff0000, {v(vHRES+k)}")
        a("s_waitcnt lgkmcnt(0)")
        a("s_barrier")
        for sidx in range(4):
            a(f"ds_read_b128 {v(ACC+8*sidx,4)}, {v(6)} offset:{2048*sidx}")
            a(f"ds_read_b128 {v(ACC+8*sidx+4,4)}, {v(6)} offset:{2048*sidx+1024}")
        a("s_waitcnt lgkmcnt(4)")
        for k in range(8): a(f"v_add_f32 {v(ACC+k)}, {v(ACC+k)}, {v(ACC+8+k)}")
        a("s_waitcnt lgkmcnt(0)")
        for k in range(8): a(f"v_add_f32 {v(ACC+16+k)}, {v(ACC+16+k)}, {v(ACC+24+k)}")
        for k in range(8): a(f"v_add_f32 {v(ACC+k)}, {v(ACC+k)}, {v(ACC+16+k)}")
        for k in range(8): a(f"v_fmac_f32 {v(XR+k)}, {v(ACC+k)}, {v(vRSTD)}")
        for k in range(4): a(f"v_cvt_pk_bf16_f32 {v(FB+k)}, {v(XR+2*k)}, {v(XR+2*k+1)}")
        a(f"v_lshrrev_b32 {v(T)}, 5, v1")
        a(f"v_lshl_add_u32 {v(T)}, {v(T)}, 3, {v(85)}")
        a(f"v_permlane32_swap_b32 {v(FB)}, {v(FB+2)}")
        a(f"v_permlane32_swap_b32 {v(FB+1)}, {v(FB+3)}")
        a(f"buffer_store_dwordx4 {v(FB,4)}, {v(T)}, {s(SOUT,4)}, 0 offen")

    def epilogue(self):
        a = self.a
        a.label("L_FIN")
        if self.prof:
            self.ts("end")
            a(f"s_lshl_b32 {s(sT0)}, s2, 3")
            a(f"s_add_u32 {s(sT0)}, {s(sT0)}, {s(sW)}")
            a(f"s_lshl_b32 {s(sT0)}, {s(sT0)}, 8")
            a(f"s_add_u32 {s(sT0)}, {s(sT0)}, {TS_OFF}")
            a(f"v_lshlrev_b32 v14, 2, v1")
            a(f"v_add_u32 v14, {s(sT0)}, v14")
            a(f"buffer_store_dword {v(vTS)}, v14, {s(SWS,4)}, 0 offen")
            a("s_waitcnt vmcnt(0)")
        a.label("L_END")
        a("s_endpgm")

    def build(self):
        self.prologue()
        self.p1()
        if self.stop_after >= 2: self.p2()
        if self.stop_after >= 3: self.p3()
        if self.stop_after >= 4: self.p4()
        if self.stop_after >= 5: self.p5()
        self.epilogue()
        head = f"""; Generated by dev/gen.py -- fused persistent kernel: LN1+QKV -> sliding attention -> WO+res -> LN2+FF1 -> FF2+res
; @launch grid=(256,1,1) block=(512,1,1) lds={LDS_TOTAL}
.amdgcn_target "amdgcn-amd-amdhsa--gfx950"
.text
.globl {NAME}_kernel
.p2align 8
.type {NAME}_kernel,@function
{NAME}_kernel:
"""
        tail = f"""
.section .rodata,"a"
.p2align 6
.amdhsa_kernel {NAME}_kernel
  .amdhsa_next_free_vgpr 256
  .amdhsa_next_free_sgpr 102
  .amdhsa_accum_offset 256
  .amdhsa_group_segment_fixed_size 0
  .amdhsa_kernarg_size 72
  .amdhsa_user_sgpr_count 2
  .amdhsa_user_sgpr_kernarg_segment_ptr 1
  .amdhsa_system_sgpr_workgroup_id_x 1
.end_amdhsa_kernel
"""
        return head + self.a.text() + tail

if __name__ == "__main__":
    import argparse
    ap = argparse.ArgumentParser()
    ap.add_argument("-o", default="k.s"); ap.add_argument("--stop", type=int, default=5)
    ap.add_argument("--prof", action="store_true"); ap.add_argument("--cyc", action="store_true"); ap.add_argument("--fine", action="store_true"); ap.add_argument("--tlb", type=int, default=0); ap.add_argument("--p1local", action="store_true")
    args = ap.parse_args()
    g = Gen(args.stop, args.prof, args.cyc, args.fine, args.tlb, args.p1local)
    open(args.o, "w").write(g.build())
    print("instrs", g.a.ninstr, "nops", g.a.nnops, "ts", list(g.tsn.keys()))
```

```python
import sys, math, struct
from asmlib import Asm, v, s

NAME = "sequential_preLN__sliding_block__dense_activation_relu__prompt"
QKV_OFF = 0
O_OFF  = 6 << 20
H_OFF  = 8 << 20
HS_OFF = 10 << 20
H1_OFF = 16 << 20
FL_OFF = 32 << 20
TS_OFF = 33 << 20
FL0_OFF = (32 << 20) + 65536
XS_OFF = 11 << 20
WS_SZ  = 40 << 20
SX, SWQKV, SWO, SW1, SW2, SOUT, SDBG, SWS = 24, 28, 32, 36, 40, 44, 48, 52
sR, sC, sW, sT, sROLE, sXCC, sLOCAL, sTMP = 56, 57, 58, 59, 60, 61, 62, 63
sMASK = 64
sONES = 96
sTH, sCT = 97, 23
sT0, sT1, sT2, sT3, sT4, sT5, sT6 = 3, 4, 5, 6, 7, 8, 9
sKC = 10
sBUSY = 17
sSAVE = 18
sHI = 20
sSPIN = 22
sTS = 98
sU0, sU1 = 100, 101
sTOK = 0
sR1, sJ1 = 94, 95
L_XS = 0
L_WP = 65536
L_SC = 151552
L_STAT = L_SC
L_CS = L_SC + 2048
L_FLAG = 163328
L_TOK = 163344
L_XST = L_SC
L_WO = 0
L_XR = 57344
L_KV = 94208
L_MRG = 143360
L_W1B = 57344
L_RED3 = 147456
L_ST4 = 147456
L_HR = 98304
LDS_TOTAL = 163840
R_C, R_A, R_B = 88, 144, 200
vTS = 87
vHRES = 80
vRSTD = 84
vAM1 = 76
LOG2E = 1.4426950408889634
def FLG(e): return FL_OFF + e * 16384
def f32bits(x): return struct.unpack('<I', struct.pack('<f', x))[0]
T, T2 = 14, 15
MF = "v_mfma_f32_32x32x16_bf16"

class Gen:
    def __init__(self, stop_after=5, prof=False, cyc=False, fine=False, tlb=0, p1local=False, pd1=3, norot=False, tp=6, n1=5, m2='[(SW1,3)]', post='range(7)', npre=3, p5gap=1):
        self.fine = fine; self.PD1 = pd1; self.tp = tp; self.nin = npre; self.p5gap = p5gap; self.n1 = n1; self.m2 = eval(m2); self.post = eval(post); self.norot = norot; self.tlb = tlb; self.p1local = p1local
        self.a = Asm(); self.stop_after = stop_after; self.prof = prof; self.cyc = cyc; self.tsn = {}

    def ts(self, name):
        if not self.prof: return
        a = self.a
        if name not in self.tsn: self.tsn[name] = len(self.tsn)
        n = self.tsn[name]
        a(f"{'s_memtime' if self.cyc else 's_memrealtime'} {s(sTS,2)}")
        a("s_waitcnt lgkmcnt(0)")
        a(f"v_writelane_b32 {v(vTS)}, {s(sTS)}, {n}")

    def capture(self, fn):
        rec = []
        class R:
            def __call__(self_, t): rec.append(t)
        old = self.a; self.a = R()
        try: fn()
        finally: self.a = old
        return rec

    def srd(self, dst, ptr, size):
        a = self.a
        a(f"s_mov_b32 {s(dst)}, {s(ptr)}")
        a(f"s_and_b32 {s(dst+1)}, {s(ptr+1)}, 0xffff")
        a(f"s_mov_b32 {s(dst+2)}, {size}")
        a(f"s_mov_b32 {s(dst+3)}, 0x20000")

    def dma(self, vsrc, srd, soff, m0expr, sc1=False, off=0):
        a = self.a
        if m0expr is not None:
            if isinstance(m0expr, int): a(f"s_mov_b32 m0, {m0expr}")
            else: a(f"s_add_u32 m0, {s(m0expr[0])}, {m0expr[1]}")
        so = s(soff) if isinstance(soff, int) else soff
        a(f"buffer_load_dwordx4 {v(vsrc)}, {s(srd,4)}, {so} offen{f' offset:{off}' if off else ''}{' sc1' if sc1 else ''} lds")

    def set_exec(self, mask):
        a = self.a
        lo, hi = mask & 0xffffffff, mask >> 32
        a(f"s_mov_b32 exec_lo, {lo:#x}")
        a(f"s_mov_b32 exec_hi, {hi:#x}")

    def flag_check(self, vd, tmp):
        a = self.a
        a(f"v_xor_b32 {v(tmp)}, {s(sTOK+1)}, {v(vd+1)}")
        a(f"v_and_b32 {v(tmp)}, 0xfffffff, {v(tmp)}")
        a(f"v_xor_b32 {v(vd)}, {s(sTOK)}, {v(vd)}")
        a(f"v_or_b32 {v(tmp)}, {v(tmp)}, {v(vd)}")
        a(f"v_cmp_ne_u32 vcc, 0, {v(tmp)}")

    def poll(self, vaddr, vd, tmp, mask, tag, sleep=0):
        a = self.a
        self.set_exec(mask)
        a(f"s_mov_b32 {s(sSPIN)}, 200000")
        lab = a.loop_label(a.newlabel("POLL"+tag)); done = a.newlabel("PDONE"+tag)
        a(f"buffer_load_dwordx2 {v(vd,2)}, {v(vaddr)}, {s(SWS,4)}, 0 offen sc1")
        a("s_waitcnt vmcnt(0)")
        self.flag_check(vd, tmp)
        a(f"s_sub_u32 {s(sSPIN)}, {s(sSPIN)}, 1")
        a(f"s_cbranch_scc1 {done}")
        a("s_nop 2")
        a(f"s_cbranch_vccz {done}")
        if sleep: a(f"s_sleep {sleep}")
        a(f"s_branch {lab}")
        a.label(done)
        a("s_mov_b64 exec, -1")

    def token_load(self, vd):
        self.a(f"buffer_load_dwordx2 {v(vd,2)}, off, {s(SDBG,4)}, 0 sc1")

    def token_take(self, vd):
        a = self.a
        a(f"s_mov_b32 {s(sSPIN)}, 200000")
        lab = a.loop_label(a.newlabel("TOK")); done = a.newlabel("TOKD")
        a(f"v_readfirstlane_b32 {s(sTOK)}, {v(vd)}")
        a(f"v_readfirstlane_b32 {s(sTOK+1)}, {v(vd+1)}")
        a(f"s_cmp_lg_u32 {s(sTOK)}, 0")
        a(f"s_cbranch_scc1 {done}")
        a(f"s_sub_u32 {s(sSPIN)}, {s(sSPIN)}, 1")
        a(f"s_cbranch_scc1 {done}")
        a("s_sleep 4")
        self.token_load(vd)
        a("s_waitcnt vmcnt(0)")
        a(f"s_branch {lab}")
        a.label(done)

    def poll_group(self, e, nmem, wave, tag):
        a = self.a
        l = a.newlabel("PG")
        a(f"s_cmp_lg_u32 {s(sW)}, {wave}")
        a(f"s_cbranch_scc1 {l}")
        a(f"s_lshl_b32 {s(sT0)}, {s(sR)}, 7")
        if e == 1:
            a(f"s_lshl_b32 {s(sT0)}, {s(sR)}, 9")
            a(f"s_lshl_b32 {s(sT1)}, {s(sTH)}, 8")
            a(f"s_add_u32 {s(sT0)}, {s(sT0)}, {s(sT1)}")
        a(f"s_add_u32 {s(sT0)}, {s(sT0)}, {FLG(e)}")
        a(f"v_lshl_add_u32 {v(13)}, v1, 3, {s(sT0)}")
        self.poll(13, T, 12, (1 << nmem) - 1, tag)
        a.label(l)
        a("s_waitcnt lgkmcnt(0)")
        a("s_barrier")

    def two_path(self, fn):
        a = self.a
        l1, l2 = a.newlabel("SL"), a.newlabel("SL")
        a(f"s_cmp_eq_u32 {s(sLOCAL)}, 1")
        a(f"s_cbranch_scc0 {l1}")
        fn("")
        a(f"s_branch {l2}")
        a.label(l1)
        fn(" sc1")
        a.label(l2)

    def publish(self, e, always_sc1=False, nowait_role1=False, keep=0):
        a = self.a
        a(f"s_lshl_b32 {s(sT1)}, {s(sR)}, {11 if e == 0 else 7}")
        a(f"s_lshl_b32 {s(sT2)}, {s(sC)}, {7 if e == 0 else 3}")
        a(f"s_add_u32 {s(sT1)}, {s(sT1)}, {s(sT2)}")
        a(f"s_add_u32 {s(sT1)}, {s(sT1)}, {FL0_OFF if e == 0 else FLG(e)}")
        a(f"s_lshl_b32 {s(sT2)}, {s(sXCC)}, 28")
        a(f"s_or_b32 {s(sT2)}, {s(sT2)}, {s(sTOK+1)}")
        a(f"v_mov_b32 {v(13)}, {s(sT1)}")
        a(f"v_mov_b32 {v(T)}, {s(sTOK)}")
        a(f"v_mov_b32 {v(T2)}, {s(sT2)}")
        if nowait_role1:
            lw = a.newlabel("NW")
            a(f"s_cmp_eq_u32 {s(sROLE)}, 1")
            a(f"s_cbranch_scc1 {lw}")
            a("s_waitcnt vmcnt(0)")
            a.label(lw)
            a("s_waitcnt lgkmcnt(0)")
        else:
            a(f"s_waitcnt vmcnt({keep}) lgkmcnt(0)")
        a("s_barrier")
        lf = a.newlabel("PUB")
        a(f"s_cmp_lg_u32 {s(sW)}, 0")
        a(f"s_cbranch_scc1 {lf}")
        a(f"s_mov_b64 exec, 1")
        st = lambda sc: a(f"buffer_store_dwordx2 {v(T,2)}, {v(13)}, {s(SWS,4)}, 0 offen{sc}")
        if always_sc1: st(" sc1")
        else: self.two_path(st)
        a(f"s_mov_b64 exec, -1")
        a.label(lf)

    def mean_operand(self, BM, vnm, tmp):
        a = self.a
        a(f"v_cvt_pk_bf16_f32 {v(BM)}, {v(vnm)}, {v(vnm)}")
        a(f"v_and_b32 {v(tmp)}, 0xffff0000, {v(BM)}")
        a(f"v_sub_f32 {v(tmp)}, {v(vnm)}, {v(tmp)}")
        a(f"v_cvt_pk_bf16_f32 {v(BM+1)}, {v(tmp)}, 0")
        a(f"v_mov_b32 {v(BM+2)}, 0")
        a(f"v_mov_b32 {v(BM+3)}, 0")

    def cs_operand(self, AM, vcs):
        a = self.a
        a(f"v_cndmask_b32 {v(vcs)}, {v(vcs)}, 0, {s(sHI,2)}")
        a(f"v_cvt_pk_bf16_f32 {v(AM+1)}, {v(vcs)}, 0")
        a(f"v_lshlrev_b32 {v(AM+2)}, 16, {v(AM+1)}")
        a(f"v_sub_f32 {v(AM+2)}, {v(vcs)}, {v(AM+2)}")
        a(f"v_cvt_pk_bf16_f32 {v(AM)}, {v(vcs)}, {v(AM+2)}")
        a(f"v_mov_b32 {v(AM+2)}, 0")
        a(f"v_mov_b32 {v(AM+3)}, 0")

    def stats_finish(self, vsum, vsq, vnm, vrs):
        a = self.a
        a(f"v_mul_f32 {v(vnm)}, {f32bits(-1.0/448):#x}, {v(vsum)}")
        a(f"v_mul_f32 {v(vsq)}, {f32bits(1.0/448):#x}, {v(vsq)}")
        a(f"v_fma_f32 {v(vsq)}, -{v(vnm)}, {v(vnm)}, {v(vsq)}")
        a(f"v_max_f32 {v(vsq)}, 0, {v(vsq)}")
        a(f"v_add_f32 {v(vsq)}, {f32bits(1e-5):#x}, {v(vsq)}")
        a(f"v_rsq_f32 {v(vrs)}, {v(vsq)}")

    def rows128_src(self, vd, rowstride, srow0, scol):
        a = self.a
        a(f"v_lshrrev_b32 {v(T)}, 3, v1")
        a(f"v_bfe_u32 {v(T2)}, v1, 4, 1")
        a(f"v_lshlrev_b32 {v(T2)}, 2, {v(T2)}")
        a(f"v_xor_b32 {v(T2)}, {v(T2)}, v1")
        a(f"v_and_b32 {v(T2)}, 7, {v(T2)}")
        a(f"v_add_u32 {v(T)}, {s(srow0)}, {v(T)}")
        a(f"v_mul_u32_u24 {v(T)}, {rowstride}, {v(T)}")
        a(f"v_lshl_add_u32 {v(T)}, {v(T2)}, 4, {v(T)}")
        a(f"v_add_u32 {v(vd)}, {s(scol)}, {v(T)}")

    def tr128_addr(self, vd, perm, sbase):
        a = self.a
        a(f"v_lshrrev_b32 {v(T)}, 5, v1")
        a(f"v_lshlrev_b32 {v(T)}, {9 if perm else 10}, {v(T)}")
        a(f"v_bfe_u32 {v(T2)}, v1, 2, 2")
        a(f"v_lshl_add_u32 {v(T)}, {v(T2)}, 7, {v(T)}")
        a(f"v_bfe_u32 {v(T2)}, v1, 4, 1")
        a(f"v_lshl_add_u32 {v(T)}, {v(T2)}, 5, {v(T)}")
        a(f"v_and_b32 {v(T2)}, 3, v1")
        a(f"v_lshl_add_u32 {v(T)}, {v(T2)}, 3, {v(T)}")
        a(f"v_bfe_u32 {v(T2)}, v1, 3, 1")
        a(f"v_lshlrev_b32 {v(T2)}, 6, {v(T2)}")
        a(f"v_xor_b32 {v(T2)}, {s(sU0)}, {v(T2)}")
        a(f"v_add_u32 {v(T)}, {v(T)}, {v(T2)}")
        a(f"v_add_u32 {v(vd)}, {s(sbase)}, {v(T)}")

    def prologue(self):
        a = self.a
        a(f"s_cmp_ge_u32 s2, 256")
        a(f"s_cbranch_scc1 L_END")
        a("s_load_dwordx16 s[4:19], s[0:1], 0")
        a("s_load_dwordx2 s[20:21], s[0:1], 64")
        a("v_and_b32 v1, 63, v0")
        a("v_lshrrev_b32 v2, 6, v0")
        a(f"v_readfirstlane_b32 {s(sW)}, v2")
        a(f"s_and_b32 {s(sT)}, {s(sW)}, 3")
        a(f"s_lshr_b32 {s(sROLE)}, {s(sW)}, 2")
        a(f"s_and_b32 {s(sR)}, s2, 7")
        a(f"s_lshl_b32 {s(sR)}, {s(sR)}, 1")
        a(f"s_lshr_b32 {s(sTMP)}, s2, 7")
        a(f"s_add_u32 {s(sR)}, {s(sR)}, {s(sTMP)}")
        a(f"s_lshr_b32 {s(sC)}, s2, 3")
        a(f"s_and_b32 {s(sC)}, {s(sC)}, 15")
        a(f"s_getreg_b32 {s(sXCC)}, hwreg(HW_REG_XCC_ID)")
        a(f"s_and_b32 {s(sXCC)}, {s(sXCC)}, 15")
        a(f"s_mov_b32 {s(sONES)}, 0x3f803f80")
        a(f"s_cmp_ge_u32 {s(sC)}, 7")
        a(f"s_cselect_b32 {s(sTH)}, 1, 0")
        a(f"s_mul_i32 {s(sTMP)}, {s(sTH)}, 7")
        a(f"s_sub_u32 {s(sCT)}, {s(sC)}, {s(sTMP)}")
        a("s_waitcnt lgkmcnt(0)")
        self.srd(SX, 4, 2048*448*2)
        self.srd(SWQKV, 6, 448*1344*2)
        self.srd(SWO, 8, 448*448*2)
        self.srd(SW1, 12, 448*1792*2)
        self.srd(SW2, 14, 1792*448*2)
        self.srd(SOUT, 16, 2048*448*2)
        self.srd(SDBG, 18, 256)
        self.srd(SWS, 20, WS_SZ)
        a(f"s_mov_b32 {s(sHI)}, 0")
        a(f"s_mov_b32 {s(sHI+1)}, -1")
        a(f"s_cmp_lt_u32 {s(sC)}, 14")
        a(f"s_cselect_b32 {s(sBUSY)}, 1, 0")
        if self.prof: a(f"v_mov_b32 {v(vTS)}, 0")
        self.ts("start")
        if self.tlb:
            lt = a.newlabel("TLB")
            a(f"s_cmp_lg_u32 {s(sW)}, 7")
            a(f"s_cbranch_scc1 {lt}")
            a(f"v_lshlrev_b32 {v(T)}, {self.tlb}, v1")
            for k in range((34 << 20) >> (self.tlb + 6)):
                a(f"s_mov_b32 {s(sT0)}, {k << (self.tlb + 6)}")
                a(f"buffer_load_dword {v(90)}, {v(T)}, {s(SWS,4)}, {s(sT0)} offen")
            a(f"v_lshlrev_b32 {v(T)}, 16, v1")
            for srd in (SWO, SW1, SW2, SOUT):
                a(f"buffer_load_dword {v(90)}, {v(T)}, {s(srd,4)}, 0 offen")
            a.label(lt)
        lz = a.newlabel("NOTOK")
        a(f"s_cmp_lg_u32 s2, 112")
        a(f"s_cbranch_scc1 {lz}")
        a(f"s_cmp_lg_u32 {s(sW)}, 0")
        a(f"s_cbranch_scc1 {lz}")
        a(f"s_memrealtime {s(sTS,2)}")
        a("s_waitcnt lgkmcnt(0)")
        a(f"s_or_b32 {s(sT0)}, {s(sTS)}, 1")
        a(f"s_and_b32 {s(sT1)}, {s(sTS+1)}, 0xfffffff")
        a(f"v_mov_b32 {v(T)}, {s(sT0)}")
        a(f"v_mov_b32 {v(T2)}, {s(sT1)}")
        a(f"s_mov_b64 exec, 1")
        a(f"buffer_store_dwordx2 {v(T,2)}, off, {s(SDBG,4)}, 0 sc1")
        a(f"s_mov_b64 exec, -1")
        a.label(lz)

    def touch_p1(self):
        a = self.a
        a(f"s_lshr_b32 {s(sT0)}, s2, 3")
        a(f"s_and_b32 {s(sT1)}, {s(sR)}, 12")
        a(f"s_lshl_b32 {s(sT1)}, {s(sT1)}, 3")
        a(f"s_add_u32 {s(sT1)}, {s(sT0)}, {s(sT1)}")
        a(f"s_mul_i32 {s(sT1)}, {s(sT1)}, {16*896}")
        a(f"s_mul_i32 {s(sT2)}, {s(sT)}, {28*128}")
        a(f"s_add_u32 {s(sT1)}, {s(sT1)}, {s(sT2)}")
        a(f"v_lshlrev_b32 {v(T)}, 7, v1")
        self.set_exec((1 << 28) - 1)
        a(f"buffer_load_dword {v(86)}, {v(T)}, {s(SX,4)}, {s(sT1)} offen")
        a("s_mov_b64 exec, -1")
        a(f"s_mul_i32 {s(sT0)}, {s(sT0)}, {14*2688}")
        a(f"s_bfe_u32 {s(sT1)}, {s(sR)}, 0x10001")
        a(f"s_mul_i32 {s(sT1)}, {s(sT1)}, 1280")
        a(f"s_add_u32 {s(sT0)}, {s(sT0)}, {s(sT1)}")
        a(f"s_mul_i32 {s(sT1)}, {s(sT)}, 39")
        a(f"v_add_u32 {v(T)}, {s(sT1)}, v1")
        a(f"v_mul_u32_u24 {v(T2)}, 5958, {v(T)}")
        a(f"v_lshrrev_b32 {v(T2)}, 16, {v(T2)}")
        a(f"v_mul_u32_u24 {v(T2)}, {2688-11*128}, {v(T2)}")
        a(f"v_lshl_add_u32 {v(T2)}, {v(T)}, 7, {v(T2)}")
        self.set_exec((1 << 39) - 1)
        a(f"buffer_load_dword {v(86)}, {v(T2)}, {s(SWQKV,4)}, {s(sT0)} offen")
        a("s_mov_b64 exec, -1")

    def touch(self, srd, kexpr):
        a = self.a
        sg, mul, add = kexpr
        a(f"s_mul_i32 {s(sT0)}, {s(sg)}, {mul*262144}")
        a(f"s_lshr_b32 {s(sT1)}, s2, 3")
        a(f"s_lshl_b32 {s(sT1)}, {s(sT1)}, 13")
        a(f"s_add_u32 {s(sT0)}, {s(sT0)}, {s(sT1)}")
        if add: a(f"s_add_u32 {s(sT0)}, {s(sT0)}, {add*262144}")
        a(f"v_lshlrev_b32 {v(T)}, 7, v1")
        a(f"buffer_load_dword {v(86)}, {v(T)}, {s(srd,4)}, {s(sT0)} offen")

    def idle_touch_setup(self):
        a = self.a
        a(f"s_and_b32 {s(sT0)}, {s(sR)}, 1")
        a(f"s_lshl_b32 {s(sT0)}, {s(sT0)}, 1")
        a(f"s_add_u32 {s(sT0)}, {s(sT0)}, {s(sC)}")
        a(f"s_sub_u32 {s(sT0)}, {s(sT0)}, 14")
        a(f"s_lshl_b32 {s(sT1)}, {s(sT0)}, 2")
        a(f"s_add_u32 {s(sT1)}, {s(sT1)}, {s(sT)}")
        a(f"s_lshl_b32 {s(sT1)}, {s(sT1)}, 13")
        a(f"v_lshl_add_u32 {v(20)}, v1, 7, {s(sT1)}")
        a(f"s_lshl_b32 {s(sT1)}, {s(sT0)}, 3")
        a(f"s_add_u32 {s(sT1)}, {s(sT1)}, {s(sW)}")
        a(f"s_lshl_b32 {s(sT1)}, {s(sT1)}, 13")
        a(f"v_lshl_add_u32 {v(21)}, v1, 7, {s(sT1)}")

    def flag_pretouch(self):
        a = self.a
        a(f"s_lshl_b32 {s(sT0)}, {s(sR)}, 9")
        a(f"s_add_u32 {s(sT0)}, {s(sT0)}, {FLG(1)}")
        a(f"v_lshl_add_u32 {v(T)}, v1, 7, {s(sT0)}")
        a(f"s_lshl_b32 {s(sT0)}, {s(sR)}, 7")
        a(f"s_add_u32 {s(sT1)}, {s(sT0)}, {FLG(2)}")
        a(f"v_writelane_b32 {v(T)}, {s(sT1)}, 4")
        a(f"s_add_u32 {s(sT1)}, {s(sT0)}, {FLG(3)}")
        a(f"v_writelane_b32 {v(T)}, {s(sT1)}, 5")
        a(f"s_mov_b64 exec, 63")
        a(f"buffer_load_dword {v(86)}, {v(T)}, {s(SWS,4)}, 0 offen sc1")
        a(f"s_mov_b64 exec, -1")

    def masks(self):
        a = self.a
        a(f"v_and_b32 {v(T)}, 31, v1")
        a(f"v_lshrrev_b32 {v(T2)}, 5, v1")
        a(f"v_lshlrev_b32 {v(T2)}, 2, {v(T2)}")
        a(f"v_sub_u32 {v(T)}, {v(T)}, {v(T2)}")
        for rg in range(16):
            kk = 8 * (rg // 4) + (rg % 4)
            a(f"v_cmp_le_i32 {s(sMASK+2*rg,2)}, {kk}, {v(T)}")

    def p1(self):
        a = self.a
        PD = self.PD1
        full = self.stop_after >= 3
        vXs = 2
        vWs = 6
        vSt = 11
        vCs = 12
        ACC = 16
        AM = 48
        vXr = 56
        vWr = 60
        SCL = 64
        BM = 68
        vSA = 72
        vWo = 80; vXres = 81; vRS = 82
        vTok = 84; vFl = 88; vFa = 90
        WB = R_B + 40
        lpad, lp1end = a.newlabel("PADW"), a.newlabel("P1END")
        a(f"s_cmp_eq_u32 {s(sBUSY)}, 0")
        a(f"s_cbranch_scc1 {lpad}")
        a(f"s_and_b32 {s(sR1)}, {s(sR)}, 12")
        a(f"s_and_b32 {s(sT0)}, {s(sR)}, 1")
        a(f"s_lshl_b32 {s(sT0)}, {s(sT0)}, 1")
        a(f"s_add_u32 {s(sT0)}, {s(sT0)}, {s(sTH)}")
        a(f"s_add_u32 {s(sR1)}, {s(sR1)}, {s(sT0)}")
        a(f"s_bfe_u32 {s(sJ1)}, {s(sR)}, 0x10001")
        a(f"s_mul_i32 {s(sJ1)}, {s(sJ1)}, 7")
        a(f"s_add_u32 {s(sJ1)}, {s(sJ1)}, {s(sCT)}")
        sXm, sWm = sT4, sT5
        def setup_xsrc():
            a(f"s_lshl_b32 {s(sT0)}, {s(sR1)}, 7")
            a(f"s_lshl_b32 {s(sT1)}, {s(sT)}, 5")
            a(f"s_add_u32 {s(sT0)}, {s(sT0)}, {s(sT1)}")
            a(f"v_lshrrev_b32 {v(T)}, 3, v1")
            a(f"v_add_u32 {v(T)}, {s(sT0)}, {v(T)}")
            a(f"v_mul_u32_u24 {v(T)}, 896, {v(T)}")
            a(f"v_lshrrev_b32 {v(T2)}, 4, v1")
            a(f"v_xor_b32 {v(T2)}, {v(T2)}, v1")
            a(f"v_and_b32 {v(T2)}, 7, {v(T2)}")
            a(f"v_lshl_add_u32 {v(vXs)}, {v(T2)}, 4, {v(T)}")
            a(f"v_xor_b32 {v(T2)}, 4, {v(T2)}")
            a(f"v_lshl_add_u32 {v(vXs+1)}, {v(T2)}, 4, {v(T)}")
            a(f"v_add_u32 {v(vXs+2)}, {2*(7168-1024)}, {v(vXs)}")
            a(f"v_add_u32 {v(vXs+3)}, {3*(7168-1024)}, {v(vXs+1)}")
            a(f"v_add_u32 {v(vXs+1)}, {7168-1024}, {v(vXs+1)}")
            a(f"s_lshl_b32 {s(sXm)}, {s(sT)}, 12")
        def setup_wsrc():
            a(f"s_mul_i32 {s(sT0)}, {s(sT)}, {16*2688}")
            a(f"s_mul_i32 {s(sT1)}, {s(sJ1)}, 192")
            a(f"s_add_u32 {s(sT0)}, {s(sT0)}, {s(sT1)}")
            for m in range(3):
                a(f"v_add_u32 {v(T)}, {64*m}, v1")
                a(f"v_mul_u32_u24 {v(T2)}, 43691, {v(T)}")
                a(f"v_lshrrev_b32 {v(T2)}, 19, {v(T2)}")
                a(f"v_mul_u32_u24 {v(T2)}, 2496, {v(T2)}")
                a(f"v_lshl_add_u32 {v(T2)}, v1, 4, {v(T2)}")
                a(f"v_add_u32 {v(vWs+m)}, {s(sT0)}, {v(T2)}")
            a(f"s_mul_i32 {s(sWm)}, {s(sT)}, 3072")
        def rot_setup():
            a(f"s_and_b32 {s(sT0)}, {s(sR1)}, 3")
            a(f"s_lshl_b32 {s(sT0)}, {s(sT0)}, 1")
            a(f"s_add_u32 {s(sT0)}, {s(sT0)}, {s(sCT)}")
            a(f"s_sub_u32 {s(sT1)}, {s(sT0)}, 7")
            a(f"s_cmp_ge_u32 {s(sT0)}, 7")
            a(f"s_cselect_b32 {s(sT0)}, {s(sT1)}, {s(sT0)}")
            if self.norot: a(f"s_mov_b32 {s(sT0)}, 0")
            a(f"s_lshl_b32 {s(64)}, {s(sT0)}, 7")
        def rot_next(i):
            a(f"s_add_u32 {s(64+i)}, {s(63+i)}, 128")
            a(f"s_cmp_eq_u32 {s(64+i)}, 896")
            a(f"s_cselect_b32 {s(64+i)}, 0, {s(64+i)}")
        def xdma(i):
            sT0 = 64 + i
            for j in range(4):
                self.dma(vXs+j, SX, sT0, (sXm, L_XS + (i % 4) * 16384) if j == 0 else None, off=1024*j)
        def wdma(i):
            a(f"s_mul_i32 {s(sT1)}, {s(64+i)}, {64*2688//128}")
            for m in range(3):
                self.dma(vWs+m, SWQKV, sT1, (sWm, L_WP + i * 12288) if m == 0 else None, off=1024*m)
        def setup_rd(role):
            a(f"v_and_b32 {v(T)}, 31, v1")
            a(f"v_bfe_u32 {v(T2)}, v1, 1, 3")
            a(f"v_lshrrev_b32 {v(vXr)}, 5, v1")
            a(f"v_xor_b32 {v(T2)}, {v(T2)}, {v(vXr)}")
            a(f"s_lshl_b32 {s(sT1)}, {s(sT)}, 12")
            a(f"v_lshl_add_u32 {v(T)}, {v(T)}, 7, {s(sT1)}")
            for n in range(4):
                a(f"s_add_u32 {s(sT0)}, {s(sT)}, {n}")
                a(f"s_and_b32 {s(sT0)}, {s(sT0)}, 3")
                a(f"s_lshl_b32 {s(sT1)}, {s(sT0)}, 1")
                a(f"s_mul_i32 {s(sKC+n)}, {s(sT0)}, 3072")
                a(f"v_xor_b32 {v(vXr+n)}, {s(sT1)}, {v(T2)}")
                a(f"v_lshl_add_u32 {v(vXr+n)}, {v(vXr+n)}, 4, {v(T)}")
            a(f"v_lshrrev_b32 {v(T)}, 5, v1")
            a(f"v_bfe_u32 {v(T2)}, v1, 2, 2")
            a(f"v_lshl_add_u32 {v(T)}, {v(T)}, 3, {v(T2)}")
            a(f"v_mul_u32_u24 {v(T)}, 192, {v(T)}")
            a(f"v_bfe_u32 {v(T2)}, v1, 4, 1")
            a(f"v_lshl_add_u32 {v(T)}, {v(T2)}, 5, {v(T)}")
            a(f"v_and_b32 {v(T2)}, 3, v1")
            a(f"v_lshl_add_u32 {v(T)}, {v(T2)}, 3, {v(T)}")
            a(f"v_add_u32 {v(T)}, {L_WP + (128 if role else 0)}, {v(T)}")
            for n in range(4): a(f"v_add_u32 {v(vWr+n)}, {s(sKC+n)}, {v(T)}")
            a(f"v_mov_b32 {v(vCs)}, 0")
            a(f"v_mov_b32 {v(vCs+1)}, 0")
            a(f"v_mov_b32 {v(BM+2)}, 0")
            a(f"v_mov_b32 {v(BM+3)}, 0")
        def setup_st(ti, tj):
            a(f"s_mul_i32 {s(sT0)}, {s(sJ1)}, 3")
            a(f"s_add_u32 {s(sT0)}, {s(sT0)}, {tj}")
            a(f"s_mul_i32 {s(sT1)}, {s(sT0)}, 74")
            a(f"s_lshr_b32 {s(sT1)}, {s(sT1)}, 10")
            a(f"s_mul_i32 {s(sT2)}, {s(sT1)}, 14")
            a(f"s_sub_u32 {s(sT0)}, {s(sT0)}, {s(sT2)}")
            a(f"s_lshl_b32 {s(sT0)}, {s(sT0)}, 3")
            a(f"s_mul_i32 {s(sT2)}, {s(sT0)}, 147")
            a(f"s_lshr_b32 {s(sT2)}, {s(sT2)}, 10")
            a(f"s_mul_i32 {s(sT3)}, {s(sT2)}, 7")
            a(f"s_sub_u32 {s(sT0)}, {s(sT0)}, {s(sT3)}")
            a(f"s_lshl_b32 {s(sT2)}, {s(sT2)}, 6")
            a(f"s_lshl_b32 {s(sT3)}, {s(sR1)}, 2")
            a(f"s_add_u32 {s(sT2)}, {s(sT2)}, {s(sT3)}")
            a(f"s_add_u32 {s(sT2)}, {s(sT2)}, {s(sT)}")
            a(f"s_mul_i32 {s(sT2)}, {s(sT2)}, 6144")
            a(f"s_lshl_b32 {s(sT3)}, {s(sT1)}, 11")
            a(f"s_add_u32 {s(sT2)}, {s(sT2)}, {s(sT3)}")
            a(f"s_lshl_b32 {s(sT3)}, {s(sT0)}, 8")
            a(f"s_add_u32 {s(sT2)}, {s(sT2)}, {s(sT3)}")
            a(f"s_cmp_eq_u32 {s(sT1)}, 0")
            a(f"s_cselect_b32 {s(sU0+ti)}, 1, 0")
            a(f"v_lshl_add_u32 {v(T)}, v1, 3, {s(sT2)}")
            a(f"v_add_u32 {v(T2)}, {64*6144-1792}, {v(T)}")
            a(f"v_lshrrev_b32 {v(9)}, 5, v1")
            a(f"v_add_u32 {v(9)}, {s(sT0)}, {v(9)}")
            for aa in range(4):
                a(f"v_cmp_le_u32 vcc, {7-2*aa}, {v(9)}")
                a(f"v_cndmask_b32 {v(vSA+4*ti+aa)}, {v(T)}, {v(T2)}, vcc")
        def setup_wo():
            a(f"s_lshl_b32 {s(sT0)}, {s(sW)}, 3")
            a(f"s_lshl_b32 {s(sT2)}, {s(sCT)}, 7")
            self.rows128_src(vWo, 896, sT0, sT2)
            a(f"s_lshl_b32 {s(sT0)}, {s(sR)}, 7")
            a(f"s_lshl_b32 {s(sT1)}, {s(sTH)}, 6")
            a(f"s_add_u32 {s(sT0)}, {s(sT0)}, {s(sT1)}")
            a(f"s_mul_i32 {s(sT0)}, {s(sT0)}, 896")
            a(f"v_add_u32 {v(vXres)}, {s(sT0)}, {v(vWo)}")
        def setup_misc(role):
            a(f"s_lshl_b32 {s(sT0)}, {s(sT)}, 9")
            a(f"s_add_u32 {s(sT0)}, {s(sT0)}, {L_XST}")
            a(f"v_mov_b32 {v(94)}, {L_TOK}")
            if role == 0:
                a(f"s_lshl_b32 {s(sT1)}, {s(sR1)}, 11")
                a(f"s_add_u32 {s(sT1)}, {s(sT1)}, {FL0_OFF + 14*128}")
                a(f"v_lshl_add_u32 {v(vFa)}, v1, 7, {s(sT1)}")
            a(f"v_and_b32 {v(T)}, 31, v1")
            a(f"v_lshl_add_u32 {v(vSt)}, {v(T)}, 4, {s(sT0)}")
            a(f"v_lshlrev_b32 {v(91)}, 2, v0")
            a(f"v_add_u32 {v(91)}, {L_CS + (1024 if role else 0)}, {v(91)}")
            a(f"v_lshlrev_b32 {v(92)}, 2, {v(T)}")
            a(f"v_add_u32 {v(92)}, {L_CS + (2048 if role else 0)}, {v(92)}")
            a(f"v_add_u32 {v(93)}, 1024, {v(92)}")
        lr1, lrj = a.newlabel("P1R1"), a.newlabel("P1J")
        a(f"s_cmp_eq_u32 {s(sROLE)}, 1")
        a(f"s_cbranch_scc1 {lr1}")
        for role in (0, 1):
            if role == 1: a.label(lr1)
            ntile = 2 if role == 0 else 1
            SET = [R_A, R_A + 48]
            ops = []
            def issue(i):
                xdma(i); wdma(i); ops.extend([i] * 7)
            if role == 0:
                rot_setup(); setup_wsrc(); wdma(0)
                setup_rd(0)
                rot_next(1); wdma(1); ops += [0] * 3 + [1] * 3
                setup_st(0, 0)
                if self.tp & 1:
                    self.touch_p1(); ops += ['t', 't']
                setup_st(1, 1)
                if full: setup_wo()
                setup_misc(0)
                later = []
            else:
                rot_setup(); setup_xsrc(); xdma(0)
                if self.fine: self.ts("first dma issued")
                rot_next(1); xdma(1); ops += [0] * 4 + [1] * 4
                if self.fine: self.ts("second dma issued")
                setup_rd(1)
                setup_wsrc()
                for i in range(2, 7): rot_next(i)
                later = [lambda: setup_st(0, 2), lambda: (setup_wo() if full else None), lambda: setup_misc(1)]
            if self.fine: self.ts("setup done")
            for i in range(8):
                a.comment(f"---- P1 role{role} iter {i}")
                rds, mfs, css = [], [], []
                if i < 7:
                    idx = [k for k, c_ in enumerate(ops) if c_ == i]
                    if idx: a(f"s_waitcnt vmcnt({len(ops)-1-max(idx)}) lgkmcnt(0)")
                    else: a("s_waitcnt lgkmcnt(0)")
                    if self.fine and i < 3: self.ts(f"c{i} own wait done")
                    if i == 6 and role == 0:
                        l = a.newlabel("SW")
                        a(f"s_cmp_lg_u32 {s(sW)}, 3")
                        a(f"s_cbranch_scc1 {l}")
                        a("s_waitcnt vmcnt(0)")
                        a.label(l)
                    a("s_barrier")
                    if i == 0: self.ts("p1 chunk0 landed")
                    if self.fine: self.ts(f"c{i} barrier")
                    woff = (i % 4) * 12288
                    if i == 4:
                        for n in range(4): a(f"v_add_u32 {v(vWr+n)}, 49152, {v(vWr+n)}")
                    S_ = SET[i % 2]
                    for n in range(4):
                        rds.append(f"ds_read_b128 {v(S_+4*n,4)}, {v(vXr+n)} offset:{L_XS+(i%4)*16384}")
                        for tj in range(ntile):
                            b = S_ + 16 + 16 * tj + 4 * n
                            rds.append(f"ds_read_b64_tr_b16 {v(b,2)}, {v(vWr+n)} offset:{woff+tj*64}")
                            rds.append(f"ds_read_b64_tr_b16 {v(b+2,2)}, {v(vWr+n)} offset:{woff+tj*64+768}")
                    if i == 6:
                        rds.append(f"ds_read_b64 {v(BM,2)}, {v(vSt)}")
                        rds.append(f"ds_read_b64 {v(vRS,2)}, {v(vSt)} offset:8")
                        rds.append(f"ds_read_b64 {v(vTok,2)}, {v(94)}")
                else:
                    a("s_waitcnt lgkmcnt(0)")
                    a(f"v_readfirstlane_b32 {s(sTOK)}, {v(vTok)}")
                    a(f"v_readfirstlane_b32 {s(sTOK+1)}, {v(vTok+1)}")
                def extras():
                    only = lambda w_: (a(f"s_cmp_lg_u32 {s(sW)}, {w_}"), a.newlabel("ON"))[1]
                    if role == 1 and i == 0:
                        for k in range(2, PD): issue(k)
                    if role == 1 and i + PD < 7: issue(i + PD)
                    if role == 0:
                        if i in (1, 3, 4):
                            l = only(3); a(f"s_cbranch_scc1 {l}")
                            if i == 1:
                                self.token_load(vTok)
                            if i == 3:
                                a("s_waitcnt vmcnt(0)")
                                self.token_take(vTok)
                                a(f"v_mov_b32 {v(T)}, {L_TOK}")
                                a(f"ds_write_b64 {v(T)}, {v(vTok,2)}")
                                self.set_exec(3)
                                a(f"buffer_load_dwordx2 {v(vFl,2)}, {v(vFa)}, {s(SWS,4)}, 0 offen sc1")
                                a("s_mov_b64 exec, -1")
                            if i == 4:
                                lq = a.newlabel("STP")
                                a("s_waitcnt vmcnt(0)")
                                self.set_exec(3)
                                self.flag_check(vFl, T)
                                a("s_mov_b64 exec, -1")
                                a("s_nop 3")
                                a(f"s_cbranch_vccz {lq}")
                                self.poll(vFa, vFl, T, 3, "SF", sleep=2)
                                a.label(lq)
                                a(f"s_lshl_b32 {s(sT0)}, {s(sR1)}, 11")
                                a(f"s_add_u32 {s(sT0)}, {s(sT0)}, {XS_OFF}")
                                a(f"v_lshlrev_b32 {v(T)}, 4, v1")
                                self.dma(T, SWS, sT0, L_XST, sc1=True)
                                self.dma(T, SWS, sT0, None, sc1=True, off=1024)
                            a.label(l)
                        if (self.tp & 8) and i in (1, 2, 3, 4):
                            l = a.newlabel("TW")
                            a(f"s_sub_u32 {s(sT2)}, {s(sW)}, 1")
                            a(f"s_cmp_gt_u32 {s(sT2)}, 1")
                            a(f"s_cbranch_scc1 {l}")
                            self.touch(SW1, (sT2, 1, 2 * (i - 1)))
                            a.label(l)
                    if later and i < 7: later.pop(0)()
                if role == 1:
                    for o in rds: a(o)
                    rds = []
                    extras()
                if i > 0:
                    P_ = SET[(i - 1) % 2]
                    for n in range(4):
                        for tj in range(ntile):
                            c_in = "0" if (i == 1 and n == 0) else v(ACC+16*tj, 16)
                            mfs.append(f"{MF} {v(ACC+16*tj,16)}, {v(P_+16+16*tj+4*n,4)}, {v(P_+4*n,4)}, {c_in}")
                    for tj in range(ntile):
                        for d in range(4): a(f"v_dot2c_f32_bf16 {v(vCs+tj)}, {s(sONES)}, {v(P_+16+16*tj+d)}")
                if i == 7:
                    a(mfs.pop(0)); a(mfs.pop(0))
                    for tj in range(ntile): a(f"ds_write_b32 {v(91)}, {v(vCs+tj)} offset:{1024*tj}")
                nm = max(1, len(mfs))
                for g_ in range(nm):
                    if mfs: a(mfs[g_])
                    for o in rds[g_*len(rds)//nm:(g_+1)*len(rds)//nm]: a(o)
                if role == 0: extras()
                if self.fine and i < 7: self.ts(f"c{i} end")
            self.ts("p1 loop done")
            a("s_waitcnt lgkmcnt(0)")
            a("s_barrier")
            self.ts("stat barrier")
            S0 = WB
            for tj in range(ntile):
                for k in range(4): a(f"ds_read2_b32 {v(S0+8*tj+2*k,2)}, {v(92+tj)} offset0:{64*k} offset1:{64*k+32}")
            for tj in range(ntile):
                a(f"s_cmp_eq_u32 {s(sU0+tj)}, 1")
                a(f"s_cselect_b64 {s(sSAVE,2)}, -1, 0")
                a(f"v_cndmask_b32 {v(SCL+2*tj)}, {v(vRS)}, {v(vRS+1)}, {s(sSAVE,2)}")
                a(f"v_cndmask_b32 {v(SCL+2*tj+1)}, {v(vRS)}, {v(vRS+1)}, {s(sSAVE,2)}")
            for tj in range(ntile):
                c0 = S0 + 8 * tj
                a(f"s_waitcnt lgkmcnt({4*(ntile-1-tj)})")
                a(f"v_pk_add_f32 {v(c0,2)}, {v(c0,2)}, {v(c0+2,2)}")
                a(f"v_pk_add_f32 {v(c0+4,2)}, {v(c0+4,2)}, {v(c0+6,2)}")
                a(f"v_pk_add_f32 {v(c0,2)}, {v(c0,2)}, {v(c0+4,2)}")
                a(f"v_add_f32 {v(c0)}, {v(c0)}, {v(c0+1)}")
                self.cs_operand(AM + 4 * tj, c0)
                a(f"{MF} {v(ACC+16*tj,16)}, {v(AM+4*tj,4)}, {v(BM,4)}, {v(ACC+16*tj,16)}")
            for tj in range(ntile):
                PK = WB + 8 * tj
                A_ = ACC + 16 * tj
                for aa in range(4):
                    for k in range(2): a(f"v_pk_mul_f32 {v(A_+4*aa+2*k,2)}, {v(A_+4*aa+2*k,2)}, {v(SCL+2*tj,2)}")
                    for k in range(2): a(f"v_cvt_pk_bf16_f32 {v(PK+2*aa+k)}, {v(A_+4*aa+2*k)}, {v(A_+4*aa+2*k+1)}")
                    a(f"buffer_store_dwordx2 {v(PK+2*aa,2)}, {v(vSA+4*tj+aa)}, {s(SWS,4)}, 0 offen offset:{512*aa} sc1")
            self.ts("qkv stores issued")
            if role == 0: a(f"s_branch {lrj}")
        a.label(lrj)
        self.publish(0, True)
        self.ts("QKV published")
        if full:
            a(f"s_lshl_b32 {s(sT1)}, {s(sW)}, 10")
            for j in range(7):
                a(f"s_mov_b32 {s(sT0)}, {64*j*896}")
                self.dma(vWo, SWO, sT0, (sT1, L_WO + 8192 * j))
            self.dma(vXres, SX, "0", (sT1, L_XR))
        a(f"s_branch {lp1end}")
        a.label(lpad)
        a(f"s_lshl_b32 {s(sT0)}, {s(sR)}, 7")
        a(f"s_sub_u32 {s(sT1)}, {s(sC)}, 14")
        a(f"s_lshl_b32 {s(sT1)}, {s(sT1)}, 6")
        a(f"s_add_u32 {s(sT0)}, {s(sT0)}, {s(sT1)}")
        a(f"v_lshrrev_b32 {v(2)}, 3, v0")
        a(f"v_add_u32 {v(2)}, {s(sT0)}, {v(2)}")
        a(f"v_mul_u32_u24 {v(3)}, 896, {v(2)}")
        a(f"v_and_b32 {v(T)}, 7, v0")
        a(f"v_lshl_add_u32 {v(3)}, {v(T)}, 4, {v(3)}")
        for j in range(7): a(f"buffer_load_dwordx4 {v(32+4*j,4)}, {v(3)}, {s(SX,4)}, 0 offen offset:{128*j}")
        self.flag_pretouch()
        self.idle_extra = 0
        a(f"v_lshrrev_b32 {v(T)}, 3, v0")
        a(f"v_lshrrev_b32 {v(T2)}, 2, {v(T)}")
        a(f"v_lshlrev_b32 {v(T2)}, 6, {v(T2)}")
        a(f"v_and_b32 {v(T)}, 3, {v(T)}")
        a(f"v_add_u32 {v(T)}, {v(T)}, {v(T2)}")
        a(f"s_lshl_b32 {s(sT0)}, {s(sR)}, 2")
        a(f"v_add_u32 {v(T)}, {s(sT0)}, {v(T)}")
        a(f"v_mul_u32_u24 {v(T)}, 6144, {v(T)}")
        a(f"v_and_b32 {v(T2)}, 7, v0")
        a(f"v_lshl_add_u32 {v(T)}, {v(T2)}, 5, {v(T)}")
        a(f"s_cmp_eq_u32 {s(sC)}, 15")
        a(f"s_cselect_b32 {s(sT0)}, 2048, 0")
        a(f"s_cselect_b32 {s(sT1)}, 0x3f80, 0")
        a(f"s_add_u32 {s(sT0)}, {s(sT0)}, {2048+7*256}")
        a(f"v_add_u32 {v(T)}, {s(sT0)}, {v(T)}")
        a(f"v_mov_b32 v16, {s(sT1)}")
        a(f"v_mov_b32 v17, 0")
        a(f"v_mov_b32 v18, {s(sT1)}")
        a(f"v_mov_b32 v19, 0")
        a(f"buffer_store_dwordx4 v[16:19], {v(T)}, {s(SWS,4)}, 0 offen sc1")
        a(f"buffer_store_dwordx4 v[16:19], {v(T)}, {s(SWS,4)}, 0 offen offset:16 sc1")
        a(f"v_mov_b32 v4, 0")
        a(f"v_mov_b32 v5, 0")
        for j in range(7):
            a(f"s_waitcnt vmcnt({9-j})")
            for k in range(4): a(f"v_dot2c_f32_bf16 v4, {s(sONES)}, {v(32+4*j+k)}")
            for k in range(4): a(f"v_dot2c_f32_bf16 v5, {v(32+4*j+k)}, {v(32+4*j+k)}")
        for ctl in ("quad_perm:[1,0,3,2]", "quad_perm:[2,3,0,1]", "row_half_mirror"):
            a(f"v_add_f32_dpp v4, v4, v4 {ctl} row_mask:0xf bank_mask:0xf")
            a(f"v_add_f32_dpp v5, v5, v5 {ctl} row_mask:0xf bank_mask:0xf")
        self.stats_finish(4, 5, 6, 7)
        self.mean_operand(20, 6, 8)
        a(f"v_mov_b32 v22, v7")
        a(f"v_mul_f32 v23, {f32bits(28**-0.5*LOG2E):#x}, v7")
        a(f"v_lshlrev_b32 v2, 4, v2")
        a(f"v_add_u32 v2, {XS_OFF}, v2")
        self.set_exec(0x0101010101010101)
        a(f"buffer_store_dwordx4 v[20:23], v2, {s(SWS,4)}, 0 offen sc1")
        a("s_mov_b64 exec, -1")
        self.token_load(24)
        a("s_waitcnt vmcnt(0)")
        self.token_take(24)
        self.publish(0, True)
        self.idle_touch_setup()
        a.label(lp1end)

    def stage_rows128(self, srd, rowstride, scol, ldsbase, vsrc=2):
        a = self.a
        a(f"s_mul_i32 {s(sT0)}, {s(sW)}, 56")
        self.rows128_src(vsrc, rowstride, sT0, scol)
        a(f"s_mul_i32 {s(sT1)}, {s(sW)}, 7168")
        for j in range(7):
            a(f"s_mov_b32 {s(sT0)}, {8*j*rowstride}")
            self.dma(vsrc, srd, sT0, (sT1, ldsbase + 1024 * j))

    def move_frags(self, dst, vaddr, nsteps, perm, off0=0):
        a = self.a
        for k in range(nsteps):
            a(f"ds_read_b64_tr_b16 {v(dst+4*k,2)}, {v(vaddr)} offset:{off0+k*2048}")
            a(f"ds_read_b64_tr_b16 {v(dst+4*k+2,2)}, {v(vaddr)} offset:{off0+k*2048+(1024 if perm else 512)}")

    def busy_begin(self):
        a = self.a
        l = a.newlabel("NB")
        a(f"s_cmp_eq_u32 {s(sBUSY)}, 0")
        a(f"s_cbranch_scc1 {l}")
        return l

    def p2(self):
        a = self.a
        QF = 72
        SR = R_A
        OA = 16
        KB = 32
        vM = 12
        AO = R_A + 80
        BN = R_A + 84
        full = self.stop_after >= 3
        lw = a.newlabel("P2W"); lw0 = a.newlabel("P2W")
        self.masks()
        a(f"v_lshrrev_b32 {v(T)}, 4, v1")
        a(f"v_sub_u32 {v(T)}, {s(sR)}, {v(T)}")
        a(f"v_max_i32 {v(T)}, 0, {v(T)}")
        a(f"v_and_b32 {v(T2)}, 15, v1")
        a(f"v_cmp_le_u32 vcc, 7, {v(T2)}")
        a(f"v_cndmask_b32 {v(6)}, 0, 1, vcc")
        a(f"v_and_b32 {v(4)}, 12, {v(T)}")
        a(f"v_lshl_add_u32 {v(4)}, {v(6)}, 1, {v(4)}")
        a(f"v_bfe_u32 {v(5)}, {v(T)}, 1, 1")
        a(f"v_add_u32 {v(4)}, {v(4)}, {v(5)}")
        a(f"v_and_b32 {v(5)}, 1, {v(T)}")
        a(f"v_sub_u32 {v(5)}, {v(5)}, {v(6)}")
        a(f"v_mad_i32_i24 {v(5)}, {v(5)}, 7, {v(T2)}")
        a(f"v_cmp_le_u32 vcc, 14, {v(T2)}")
        a(f"v_cndmask_b32 {v(4)}, {v(4)}, {v(T)}, vcc")
        a(f"v_cndmask_b32 {v(5)}, {v(5)}, {v(T2)}, vcc")
        a(f"v_mov_b32 {v(6)}, {s(sR)}")
        a(f"v_cmp_le_u32 vcc, 48, v1")
        a(f"v_cndmask_b32 {v(4)}, {v(4)}, {v(6)}, vcc")
        a(f"v_cndmask_b32 {v(5)}, {v(5)}, {v(T2)}, vcc")
        a(f"v_lshl_add_u32 {v(4)}, {v(4)}, 4, {v(5)}")
        a(f"v_lshlrev_b32 {v(T)}, 7, {v(4)}")
        a(f"v_add_u32 {v(5)}, {FL0_OFF}, {v(T)}")
        a.label(lw0)
        if self.tp & 2:
            lI = a.newlabel("IDL")
            a(f"s_cmp_eq_u32 {s(sBUSY)}, 1")
            a(f"s_cbranch_scc1 {lI}")
            rounds = [(SWO, h) for h in range(3)] + [(SW1, h) for h in range(self.n1)]
            a(f"v_mov_b32 {v(22)}, {L_FLAG}")
            for srd, h in rounds:
                l1_, l2_ = a.newlabel("IR"), a.newlabel("IR")
                a(f"s_cmp_eq_u32 {s(sROLE)}, 0")
                a(f"s_cbranch_scc1 {l1_}")
                a(f"s_mov_b32 {s(sT0)}, {h*131072}")
                a(f"buffer_load_dword {v(86)}, {v(20)}, {s(srd,4)}, {s(sT0)} offen")
                a("s_waitcnt vmcnt(0)")
                a.label(l1_)
                a(f"s_cmp_lg_u32 {s(sW)}, 0")
                a(f"s_cbranch_scc1 {l2_}")
                a(f"buffer_load_dwordx2 {v(6,2)}, {v(5)}, {s(SWS,4)}, 0 offen sc1")
                a("s_waitcnt vmcnt(0)")
                self.flag_check(6, 8)
                a(f"s_bcnt1_i32_b64 {s(sT0)}, vcc")
                a(f"v_mov_b32 {v(23)}, {s(sT0)}")
                a(f"ds_write_b32 {v(22)}, {v(23)}")
                a.label(l2_)
                a("s_waitcnt lgkmcnt(0)")
                a("s_barrier")
                a(f"ds_read_b32 {v(23)}, {v(22)}")
                a("s_waitcnt lgkmcnt(0)")
                a(f"v_readfirstlane_b32 {s(sT0)}, {v(23)}")
                a("s_barrier")
                a(f"s_cmp_lt_u32 {s(sT0)}, 50")
                a(f"s_cbranch_scc1 {lI}")
            a.label(lI)
        a(f"s_cmp_lg_u32 {s(sW)}, 0")
        a(f"s_cbranch_scc1 {lw}")
        self.poll(5, 6, 8, (1 << 64) - 1, "KV", sleep=1)
        self.set_exec(0xffff << 48)
        a(f"v_lshrrev_b32 {v(7)}, 28, {v(7)}")
        a(f"v_cmp_ne_u32 vcc, {s(sXCC)}, {v(7)}")
        a(f"s_mov_b64 exec, -1")
        a(f"s_cmp_eq_u64 vcc, 0")
        a(f"s_cselect_b32 {s(sT0)}, 1, 0")
        a(f"v_mov_b32 {v(T2)}, {s(sT0)}")
        a(f"v_mov_b32 {v(T)}, {L_FLAG}")
        a(f"ds_write_b32 {v(T)}, {v(T2)}")
        a.label(lw)
        a(f"s_lshl_b32 {s(sT0)}, {s(sC)}, 6")
        a(f"s_lshl_b32 {s(sT1)}, {s(sR)}, 2")
        a(f"s_add_u32 {s(sT0)}, {s(sT0)}, {s(sT1)}")
        a(f"s_add_u32 {s(sT2)}, {s(sT0)}, {s(sT)}")
        a(f"s_mul_i32 {s(sT2)}, {s(sT2)}, 6144")
        a(f"v_lshlrev_b32 {v(10)}, 3, v1")
        a(f"s_mul_i32 {s(sT3)}, {s(sROLE)}, 6")
        a(f"s_add_u32 {s(sT0)}, {s(sT0)}, {s(sT3)}")
        a(f"s_sub_u32 {s(sT0)}, {s(sT0)}, 8")
        a(f"s_mul_i32 {s(sT0)}, {s(sT0)}, 6144")
        a(f"s_lshl_b32 {s(sT4)}, {s(sT)}, 10")
        a(f"s_add_u32 {s(sT0)}, {s(sT0)}, {s(sT4)}")
        a(f"s_add_u32 {s(sT0)}, {s(sT0)}, 2048")
        a(f"s_add_u32 {s(sT1)}, {s(sT1)}, {s(sT3)}")
        a(f"s_lshl_b32 {s(sT3)}, {s(sT3)}, 12")
        a(f"s_add_u32 {s(sT4)}, {s(sT4)}, {s(sT3)}")
        a(f"s_lshr_b32 {s(sT5)}, {s(sT)}, 1")
        a(f"s_and_b32 {s(sT6)}, {s(sT)}, 1")
        a(f"s_lshl_b32 {s(sT6)}, {s(sT6)}, 2")
        a(f"v_lshrrev_b32 {v(T)}, 4, v1")
        a(f"v_add_u32 {v(T2)}, {s(sT6)}, {v(T)}")
        a(f"v_mul_u32_u24 {v(T2)}, {s(sT5)}, {v(T2)}")
        a(f"v_lshlrev_b32 {v(T2)}, 1, {v(T2)}")
        a(f"v_sub_u32 {v(T2)}, v1, {v(T2)}")
        a(f"v_and_b32 {v(T2)}, 15, {v(T2)}")
        a(f"v_lshlrev_b32 {v(T)}, 8, {v(T)}")
        a(f"v_lshl_add_u32 {v(11)}, {v(T2)}, 4, {v(T)}")
        a("s_waitcnt vmcnt(0) lgkmcnt(0)")
        a("s_barrier")
        self.ts("QKV flags seen")
        for aa in range(4):
            a(f"buffer_load_dwordx2 {v(QF+2*aa,2)}, {v(10)}, {s(SWS,4)}, {s(sT2)} offen offset:{512*aa} sc1")
        for k in range(6):
            ls = a.newlabel("NOKV")
            a(f"s_cmp_lt_u32 {s(sT1)}, {8-k}")
            a(f"s_cbranch_scc1 {ls}")
            a(f"s_add_u32 {s(sT3)}, {s(sT0)}, {6144*k}")
            self.dma(11, SWS, sT3, (sT4, L_KV + 4096 * k), sc1=True)
            a.label(ls)
        a(f"v_mov_b32 {v(T)}, {L_FLAG}")
        a(f"ds_read_b32 {v(13)}, {v(T)}")
        if full:
            lb = self.busy_begin()
            a(f"s_and_b32 {s(sU0)}, {s(sW)}, 1")
            a(f"s_lshl_b32 {s(sU0)}, {s(sU0)}, 6")
            a(f"s_mul_i32 {s(sT0)}, {s(sROLE)}, {14*2048}")
            self.tr128_addr(3, False, sT0)
            self.move_frags(R_C, 3, 14, False, off0=L_WO)
            a(f"s_and_b32 {s(sT1)}, {s(sW)}, 2")
            a(f"s_lshl_b32 {s(sT1)}, {s(sT1)}, 4")
            a(f"v_and_b32 {v(T)}, 31, v1")
            a(f"v_add_u32 {v(T)}, {s(sT1)}, {v(T)}")
            a(f"s_lshl_b32 {s(sT0)}, {s(sROLE)}, 5")
            a(f"s_add_u32 {s(sT0)}, {s(sT0)}, {s(sU0)}")
            a(f"v_lshrrev_b32 {v(T2)}, 5, v1")
            a(f"v_lshl_add_u32 {v(T2)}, {v(T2)}, 3, {s(sT0)}")
            a(f"v_bfe_u32 {v(4)}, v1, 1, 1")
            a(f"v_lshlrev_b32 {v(4)}, 6, {v(4)}")
            a(f"v_xor_b32 {v(4)}, {v(4)}, {v(T2)}")
            a(f"v_lshl_add_u32 {v(4)}, {v(T)}, 7, {v(4)}")
            a(f"ds_read_b64 {v(vHRES,2)}, {v(4)} offset:{L_XR}")
            a(f"ds_read_b64 {v(vHRES+2,2)}, {v(4)} offset:{L_XR+16}")
            a(f"s_lshl_b32 {s(sT0)}, {s(sR)}, 7")
            a(f"s_lshl_b32 {s(sT1)}, {s(sTH)}, 6")
            a(f"s_add_u32 {s(sT0)}, {s(sT0)}, {s(sT1)}")
            a(f"v_add_u32 {v(T)}, {s(sT0)}, {v(T)}")
            a(f"v_mul_u32_u24 {v(T)}, 896, {v(T)}")
            a(f"s_lshl_b32 {s(sT0)}, {s(sCT)}, 7")
            a(f"v_add3_u32 {v(85)}, {v(T)}, {v(T2)}, {s(sT0)}")
            a.label(lb)
        vK = 2; vV = 3
        sB = sT4
        a(f"s_lshl_b32 {s(sT0)}, {s(sROLE)}, 2")
        a(f"s_sub_u32 {s(sB)}, {s(sT)}, {s(sT0)}")
        a(f"s_add_u32 {s(sB)}, {s(sB)}, 4")
        a(f"s_lshl_b32 {s(sT0)}, {s(sB)}, 12")
        a(f"s_add_u32 {s(sT0)}, {s(sT0)}, {L_KV}")
        a(f"v_lshl_add_u32 {v(vK)}, v1, 3, {s(sT0)}")
        a(f"v_bfe_u32 {v(T)}, v1, 4, 1")
        a(f"v_and_b32 {v(vV)}, 3, v1")
        a(f"v_lshl_add_u32 {v(T)}, {v(T)}, 2, {v(vV)}")
        a(f"v_lshrrev_b32 {v(vV)}, 5, v1")
        a(f"v_add_u32 {v(vV)}, {v(vV)}, {v(T)}")
        a(f"v_lshlrev_b32 {v(vV)}, 2, {v(vV)}")
        a(f"v_bfe_u32 {v(vV+1)}, v1, 2, 2")
        a(f"v_add_u32 {v(8)}, {v(vV)}, {v(vV+1)}")
        a(f"v_lshl_add_u32 {v(T)}, {v(T)}, 8, {s(sT0)}")
        a(f"v_add_u32 {v(T)}, 2048, {v(T)}")
        for k in range(4):
            a(f"v_add_u32 {v(vV+k)}, {8*k}, {v(8)}")
            a(f"v_and_b32 {v(vV+k)}, 31, {v(vV+k)}")
            a(f"v_lshl_add_u32 {v(vV+k)}, {v(vV+k)}, 3, {v(T)}")
        sFV = sT5
        a(f"s_lshl_b32 {s(sT0)}, {s(sR)}, 2")
        a(f"s_sub_i32 {s(sFV)}, 8, {s(sT0)}")
        a(f"s_sub_i32 {s(sFV)}, {s(sFV)}, {s(sB)}")
        a(f"s_mov_b32 {s(sT0)}, 0")
        a(f"s_lshl_b32 {s(sT2)}, {s(sC)}, 8")
        self.rows128_src(9, 3584, sT0, sT2)
        sWs8, sWl8, sWs4, sWl4 = sKC, sKC + 1, sKC + 2, sKC + 3
        a(f"s_mul_i32 {s(sWs8)}, {s(sW)}, {8*3584}")
        a(f"s_lshl_b32 {s(sWl8)}, {s(sW)}, 10")
        a(f"s_mul_i32 {s(sWs4)}, {s(sT)}, {8*3584}")
        a(f"s_lshl_b32 {s(sWl4)}, {s(sT)}, 10")
        def w1dma(items, four):
            if not full: return
            l = self.busy_begin()
            for dp, q0 in items:
                a(f"s_add_u32 {s(sT0)}, {s(sWs4 if four else sWs8)}, {q0*8*3584 + 128*dp}")
                self.dma(9, SW1, sT0, (sWl4 if four else sWl8, L_W1B * dp + 1024 * q0))
            a.label(l)
        vMA, vMX, vOS = 7, 8, 10
        a(f"s_mul_i32 {s(sT0)}, {s(sT)}, 4608")
        a(f"s_add_u32 {s(sT0)}, {s(sT0)}, {L_MRG}")
        a(f"v_lshl_add_u32 {v(vMA)}, v1, 4, {s(sT0)}")
        a(f"s_lshl_b32 {s(sT1)}, {s(sROLE)}, 8")
        a(f"s_add_u32 {s(sT0)}, {s(sT0)}, {s(sT1)}")
        a(f"s_add_u32 {s(sT0)}, {s(sT0)}, 4096")
        a(f"v_lshl_add_u32 {v(vMX)}, v1, 2, {s(sT0)}")
        a(f"v_xor_b32 {v(11)}, 256, {v(vMX)}")
        assert (L_MRG + 4096) % 512 == 0 and 4608 % 512 == 0
        a(f"s_lshl_b32 {s(sT0)}, {s(sR)}, 2")
        a(f"s_add_u32 {s(sT0)}, {s(sT0)}, {s(sT)}")
        a(f"s_mul_i32 {s(sT0)}, {s(sT0)}, 28672")
        a(f"s_add_u32 {s(sT0)}, {s(sT0)}, {O_OFF}")
        a(f"s_mul_i32 {s(sT1)}, {s(sC)}, 7")
        a(f"v_lshrrev_b32 {v(T)}, 5, v1")
        a(f"v_add_u32 {v(T)}, {s(sT1)}, {v(T)}")
        a(f"v_lshrrev_b32 {v(T2)}, 1, {v(T)}")
        a(f"v_lshl_add_u32 {v(T2)}, {v(T2)}, 9, {s(sT0)}")
        a(f"v_and_b32 {v(T)}, 1, {v(T)}")
        a(f"v_lshl_add_u32 {v(T2)}, {v(T)}, 3, {v(T2)}")
        a(f"v_and_b32 {v(T)}, 31, v1")
        a(f"v_lshl_add_u32 {v(vOS)}, {v(T)}, 4, {v(T2)}")
        a(f"v_mov_b32 {v(T)}, {s(sONES)}")
        a(f"v_cndmask_b32 {v(AO)}, {v(T)}, 0, {s(sHI,2)}")
        for k in range(1, 4): a(f"v_mov_b32 {v(AO+k)}, 0")
        for k in range(1, 4): a(f"v_mov_b32 {v(BN+k)}, 0")
        for k in range(16): a(f"v_mov_b32 {v(OA+k)}, 0")
        a("s_waitcnt lgkmcnt(0)")
        a(f"v_readfirstlane_b32 {s(sLOCAL)}, {v(13)}")
        a("s_waitcnt vmcnt(0)")
        a("s_barrier")
        self.ts("KV landed")
        NEG = f32bits(-1.0e30)
        def valid_branch(j, lab):
            if j == 4:
                a(f"s_cmp_eq_u32 {s(sROLE)}, 1")
                a(f"s_cbranch_scc1 {lab}")
            else:
                a(f"s_cmp_gt_i32 {s(sFV)}, {j}")
                a(f"s_cbranch_scc1 {lab}")
        for j in range(5):
            for k in range(4):
                a(f"ds_read_b64 {v(KB+8*j+2*k,2)}, {v(vK)} offset:{4096*j+512*k}")
        a(f"v_cndmask_b32 {v(QF+6)}, {v(QF+6)}, 0, {s(sHI,2)}")
        a(f"v_cndmask_b32 {v(QF+7)}, {v(QF+7)}, 0, {s(sHI,2)}")
        a(f"v_mov_b32 {v(vM)}, {NEG:#x}")
        a(f"v_mov_b32 {v(13)}, {NEG:#x}")
        for j in range(5):
            lsk = a.newlabel("QS")
            a(f"s_waitcnt lgkmcnt({min(15,16-4*j)})")
            valid_branch(j, lsk)
            a(f"{MF} {v(SR+16*j,16)}, {v(KB+8*j,4)}, {v(QF,4)}, 0")
            a(f"{MF} {v(SR+16*j,16)}, {v(KB+8*j+4,4)}, {v(QF+4,4)}, {v(SR+16*j,16)}")
            a.label(lsk)
        w1dma([(0, 0), (0, 8), (0, 16)], False)
        if self.tp & 4:
            l = a.newlabel("M2")
            a(f"s_cmp_eq_u32 {s(sROLE)}, 0")
            a(f"s_cbranch_scc1 {l}")
            for srd, k0 in self.m2: self.touch(srd, (sT, 1, k0))
            a.label(l)
        for j in range(5):
            for st in range(2):
                for rr in range(2):
                    a(f"ds_read_b64_tr_b16 {v(KB+8*j+4*st+2*rr,2)}, {v(vV+2*st+rr)} offset:{4096*j}")
        a(f"v_mov_b32 {v(T)}, {NEG:#x}")
        for j in range(5):
            lsk = a.newlabel("MX")
            valid_branch(j, lsk)
            b = SR + 16 * j
            if j == 4:
                for k in range(16): a(f"v_cndmask_b32 {v(b+k)}, {v(T)}, {v(b+k)}, {s(sMASK+2*k,2)}")
            if j == 0:
                lm = a.newlabel("MK")
                a(f"s_cmp_eq_u32 {s(sROLE)}, 0")
                a(f"s_cbranch_scc1 {lm}")
                for k in range(16): a(f"v_cndmask_b32 {v(b+k)}, {v(b+k)}, {v(T)}, {s(sMASK+2*k,2)}")
                a.label(lm)
            for k in range(8):
                d = vM if k % 2 == 0 else 13
                a(f"v_max3_f32 {v(d)}, {v(d)}, {v(b+2*k)}, {v(b+2*k+1)}")
            a.label(lsk)
        a(f"v_max_f32 {v(vM)}, {v(vM)}, {v(13)}")
        a(f"v_mov_b32 {v(T)}, {v(vM)}")
        a(f"v_permlane32_swap_b32 {v(T)}, {v(vM)}")
        a(f"v_max_f32 {v(vM)}, {v(vM)}, {v(T)}")
        a(f"ds_write_b32 {v(vMX)}, {v(vM)}")
        a("s_waitcnt lgkmcnt(0)")
        a("s_barrier")
        a(f"ds_read_b32 {v(T)}, {v(11)}")
        a("s_waitcnt lgkmcnt(0)")
        a(f"v_max_f32 {v(vM)}, {v(vM)}, {v(T)}")
        a(f"v_cvt_pk_bf16_f32 {v(T)}, -{v(vM)}, 0")
        a(f"v_lshlrev_b32 {v(T)}, 16, {v(T)}")
        a(f"v_sub_f32 {v(T)}, -{v(vM)}, {v(T)}")
        a(f"v_cvt_pk_bf16_f32 {v(BN)}, -{v(vM)}, {v(T)}")
        self.ts("max done")
        for j in range(5):
            lsk = a.newlabel("SB")
            valid_branch(j, lsk)
            a(f"{MF} {v(SR+16*j,16)}, {v(AO,4)}, {v(BN,4)}, {v(SR+16*j,16)}")
            a.label(lsk)
        for j in range(5):
            lsk = a.newlabel("PS")
            valid_branch(j, lsk)
            b = SR + 16 * j
            for h_ in range(2):
                for k in range(8): a(f"v_exp_f32 {v(b+8*h_+k)}, {v(b+8*h_+k)}")
                for k in range(4): a(f"v_cvt_pk_bf16_f32 {v(b+8*h_+k)}, {v(b+8*h_+2*k)}, {v(b+8*h_+2*k+1)}")
            a(f"{MF} {v(OA,16)}, {v(KB+8*j,4)}, {v(b,4)}, {v(OA,16)}")
            a(f"{MF} {v(OA,16)}, {v(KB+8*j+4,4)}, {v(b+8,4)}, {v(OA,16)}")
            a.label(lsk)
            if j < 4:
                l = a.newlabel("R1D")
                a(f"s_cmp_eq_u32 {s(sROLE)}, 0")
                a(f"s_cbranch_scc1 {l}")
                w1dma([(0, 24 + 8 * j), (0, 28 + 8 * j)], True)
                a.label(l)
        self.ts("attn partial done")
        l1 = a.newlabel("MG")
        a(f"s_cmp_eq_u32 {s(sROLE)}, 1")
        a(f"s_cbranch_scc0 {l1}")
        for k in range(4): a(f"ds_write_b128 {v(vMA)}, {v(OA+4*k,4)} offset:{1024*k}")
        a.label(l1)
        a(f"s_lshl_b32 {s(sT1)}, {s(sR)}, 9")
        a(f"s_lshl_b32 {s(sT2)}, {s(sT)}, 7")
        a(f"s_add_u32 {s(sT1)}, {s(sT1)}, {s(sT2)}")
        a(f"s_lshl_b32 {s(sT2)}, {s(sC)}, 3")
        a(f"s_add_u32 {s(sT1)}, {s(sT1)}, {s(sT2)}")
        a(f"s_add_u32 {s(sT1)}, {s(sT1)}, {FLG(1)}")
        a(f"s_lshl_b32 {s(sT2)}, {s(sXCC)}, 28")
        a(f"s_or_b32 {s(sT2)}, {s(sT2)}, {s(sTOK+1)}")
        a(f"v_mov_b32 {v(13)}, {s(sT1)}")
        a(f"v_mov_b32 {v(4)}, {s(sTOK)}")
        a(f"v_mov_b32 {v(5)}, {s(sT2)}")
        a("s_waitcnt lgkmcnt(0)")
        a("s_barrier")
        l2, l3 = a.newlabel("MG"), a.newlabel("MG")
        a(f"s_cmp_eq_u32 {s(sROLE)}, 0")
        a(f"s_cbranch_scc0 {l2}")
        O1 = 32
        for k in (3, 0, 1, 2): a(f"ds_read_b128 {v(O1+4*k,4)}, {v(vMA)} offset:{1024*k}")
        a("s_waitcnt lgkmcnt(3)")
        a(f"v_add_f32 {v(T)}, {v(OA+12)}, {v(O1+12)}")
        a(f"v_mov_b32 {v(T2)}, {v(T)}")
        a(f"v_pk_add_f32 {v(OA+12,2)}, {v(OA+12,2)}, {v(O1+12,2)}")
        a(f"v_pk_add_f32 {v(OA+14,2)}, {v(OA+14,2)}, {v(O1+14,2)}")
        a(f"v_permlane32_swap_b32 {v(T)}, {v(T2)}")
        a(f"v_rcp_f32 {v(T2)}, {v(T2)}")
        a("s_waitcnt lgkmcnt(0)")
        for k in range(6): a(f"v_pk_add_f32 {v(OA+2*k,2)}, {v(OA+2*k,2)}, {v(O1+2*k,2)}")
        a(f"v_mov_b32 {v(T)}, {v(T2)}")
        for aa in range(4):
            for k in range(2): a(f"v_pk_mul_f32 {v(OA+4*aa+2*k,2)}, {v(OA+4*aa+2*k,2)}, {v(T,2)}")
            for k in range(2): a(f"v_cvt_pk_bf16_f32 {v(O1+2*aa+k)}, {v(OA+4*aa+2*k)}, {v(OA+4*aa+2*k+1)}")
            if aa == 3: a(f"s_mov_b32 exec_hi, 0")
            a(f"buffer_store_dwordx2 {v(O1+2*aa,2)}, {v(vOS)}, {s(SWS,4)}, 0 offen offset:{512*aa} sc1")
        a(f"s_mov_b64 exec, 1")
        a("s_waitcnt vmcnt(0)")
        self.two_path(lambda sc: a(f"buffer_store_dwordx2 {v(4,2)}, {v(13)}, {s(SWS,4)}, 0 offen{sc}"))
        a(f"s_mov_b64 exec, -1")
        a("s_barrier")
        a(f"s_branch {l3}")
        a.label(l2)
        a("s_waitcnt vmcnt(0)")
        a("s_barrier")
        w1dma([(1, 4 * k) for k in range(14)], True)
        a.label(l3)
        self.ts("O published")

    def w1_move(self, dp, ldsbase):
        a = self.a
        l = a.newlabel("W1M")
        a(f"s_lshr_b32 {s(sT0)}, {s(sT)}, 1")
        a(f"s_cmp_lg_u32 {s(sT0)}, {dp}")
        a(f"s_cbranch_scc1 {l}")
        a(f"s_and_b32 {s(sU0)}, {s(sW)}, 1")
        a(f"s_lshl_b32 {s(sU0)}, {s(sU0)}, 6")
        a(f"s_mov_b32 {s(sT0)}, {ldsbase}")
        self.tr128_addr(3, True, sT0)
        self.move_frags(R_A, 3, 28, True)
        a.label(l)

    def p3(self):
        a = self.a
        ACC = 16; FB = 32; XR = 64
        lb_ = a.newlabel("BZ")
        a(f"s_cmp_eq_u32 {s(sBUSY)}, 1")
        a(f"s_cbranch_scc1 {lb_}")
        if self.tp & 2:
            a(f"s_and_b32 {s(sT0)}, {s(sR)}, 1")
            a(f"s_lshl_b32 {s(sT0)}, {s(sT0)}, 1")
            a(f"s_add_u32 {s(sT0)}, {s(sT0)}, {s(sC)}")
            a(f"s_sub_u32 {s(sT0)}, {s(sT0)}, 14")
            a(f"s_mul_i32 {s(sT0)}, {s(sT0)}, {448*896}")
            a(f"s_mul_i32 {s(sT1)}, {s(sW)}, {56*128}")
            a(f"s_add_u32 {s(sT0)}, {s(sT0)}, {s(sT1)}")
            a(f"v_lshl_add_u32 {v(21)}, v1, 7, {s(sT0)}")
            self.set_exec((1 << 56) - 1)
            for k in self.post:
                a(f"s_mov_b32 {s(sT0)}, {k*64*896}")
                a(f"buffer_load_dword {v(86)}, {v(21)}, {s(SW2,4)}, {s(sT0)} offen")
            a("s_mov_b64 exec, -1")
        a(f"s_branch L_FIN")
        a.label(lb_)
        self.w1_move(0, 0)
        z = lambda k: 64 + k
        sN, sUu, sTile2 = z(0), z(1), z(2)
        a(f"s_and_b32 {s(sN)}, {s(sW)}, 1")
        a(f"s_bfe_u32 {s(sUu)}, {s(sW)}, 0x10001")
        a(f"s_lshl_b32 {s(sTile2)}, {s(sR)}, 2")
        a(f"s_lshl_b32 {s(sT1)}, {s(sTH)}, 1")
        a(f"s_add_u32 {s(sTile2)}, {s(sTile2)}, {s(sT1)}")
        a(f"s_mul_i32 {s(sT0)}, {s(sTile2)}, 28672")
        a(f"s_add_u32 {s(sT0)}, {s(sT0)}, {O_OFF}")
        a(f"s_mul_i32 {s(sT1)}, {s(sUu)}, 28672")
        a(f"s_mul_i32 {s(sT2)}, {s(sROLE)}, 14336")
        a(f"s_add_u32 {s(sT1)}, {s(sT1)}, {s(sT2)}")
        a(f"s_lshl_b32 {s(z(3))}, {s(sN)}, 12")
        a(f"s_add_u32 {s(z(3))}, {s(z(3))}, {s(sT1)}")
        a(f"s_mul_i32 {s(z(4))}, {s(sN)}, 3072")
        a(f"s_add_u32 {s(z(4))}, {s(z(4))}, {s(sT1)}")
        a(f"s_add_u32 {s(z(4))}, {s(z(4))}, 8192")
        a(f"s_add_u32 {s(z(5))}, {s(sT0)}, {s(z(3))}")
        a(f"s_add_u32 {s(z(6))}, {s(sT0)}, {s(z(4))}")
        a(f"v_lshlrev_b32 {v(2)}, 4, v1")
        a(f"v_add_u32 {v(8)}, {s(sT1)}, {v(2)}")
        a(f"s_lshl_b32 {s(sT2)}, {s(sW)}, 11")
        a(f"s_add_u32 {s(sT2)}, {s(sT2)}, {L_RED3}")
        a(f"v_add_u32 {v(4)}, {s(sT2)}, {v(2)}")
        a(f"v_xor_b32 {v(5)}, 8192, {v(4)}")
        a(f"s_add_u32 {s(sT0)}, {s(sTile2)}, {s(sUu)}")
        a(f"s_mul_i32 {s(sT0)}, {s(sT0)}, 28")
        a(f"s_lshl_b32 {s(sT1)}, {s(sCT)}, 2")
        a(f"s_add_u32 {s(sT0)}, {s(sT0)}, {s(sT1)}")
        a(f"s_lshl_b32 {s(sT1)}, {s(sN)}, 1")
        a(f"s_add_u32 {s(sT0)}, {s(sT0)}, {s(sT1)}")
        a(f"s_add_u32 {s(sT0)}, {s(sT0)}, {s(sROLE)}")
        a(f"s_lshl_b32 {s(sT1)}, {s(sT0)}, 10")
        a(f"s_add_u32 {s(sT1)}, {s(sT1)}, {H_OFF}")
        a(f"v_add_u32 {v(6)}, {s(sT1)}, {v(2)}")
        a(f"s_lshl_b32 {s(sT1)}, {s(sT0)}, 8")
        a(f"s_add_u32 {s(sT1)}, {s(sT1)}, {HS_OFF}")
        a(f"v_lshl_add_u32 {v(7)}, v1, 2, {s(sT1)}")
        for k in range(4):
            a(f"v_lshlrev_b32 {v(XR+2*k)}, 16, {v(vHRES+k)}")
            a(f"v_and_b32 {v(XR+2*k+1)}, 0xffff0000, {v(vHRES+k)}")
        self.poll_group(1, 32, 2, "O")
        self.ts("O flags seen")
        a(f"s_mov_b32 m0, {s(z(3))}")
        for k in range(4): self.dma(2, SWS, z(5), None, sc1=True, off=1024*k)
        a(f"s_mov_b32 m0, {s(z(4))}")
        for k in range(3): self.dma(2, SWS, z(6), None, sc1=True, off=1024*k)
        a("s_waitcnt vmcnt(3)")
        a("s_barrier")
        self.ts("O stage0 landed")
        for k in range(8): a(f"ds_read_b128 {v(FB+4*k,4)}, {v(8)} offset:{1024*k}")
        for k in range(8):
            a(f"s_waitcnt lgkmcnt({7-k})")
            a(f"{MF} {v(ACC,16)}, {v(R_C+4*k,4)}, {v(FB+4*k,4)}, {'0' if k==0 else v(ACC,16)}")
            if k == 3:
                a("s_waitcnt vmcnt(0)")
        a("s_barrier")
        for k in range(6): a(f"ds_read_b128 {v(FB+4*k,4)}, {v(8)} offset:{1024*(8+k)}")
        for k in range(6):
            a(f"s_waitcnt lgkmcnt({5-k})")
            a(f"{MF} {v(ACC,16)}, {v(R_C+4*(8+k),4)}, {v(FB+4*k,4)}, {v(ACC,16)}")
        self.ts("p3 mfma done")
        l1, l2 = a.newlabel("R3"), a.newlabel("R3")
        a(f"s_cmp_eq_u32 {s(sROLE)}, 0")
        a(f"s_cbranch_scc0 {l1}")
        a(f"ds_write_b128 {v(4)}, {v(ACC+8,4)}")
        a(f"ds_write_b128 {v(4)}, {v(ACC+12,4)} offset:1024")
        for k in range(4): a(f"v_pk_add_f32 {v(XR+2*k,2)}, {v(XR+2*k,2)}, {v(ACC+2*k,2)}")
        a(f"s_branch {l2}")
        a.label(l1)
        a(f"ds_write_b128 {v(4)}, {v(ACC,4)}")
        a(f"ds_write_b128 {v(4)}, {v(ACC+4,4)} offset:1024")
        for k in range(4): a(f"v_pk_add_f32 {v(XR+2*k,2)}, {v(XR+2*k,2)}, {v(ACC+8+2*k,2)}")
        a.label(l2)
        a("s_waitcnt lgkmcnt(0)")
        a("s_barrier")
        a(f"ds_read_b128 {v(FB,4)}, {v(5)}")
        a(f"ds_read_b128 {v(FB+4,4)}, {v(5)} offset:1024")
        a("s_waitcnt lgkmcnt(0)")
        for k in range(4): a(f"v_pk_add_f32 {v(XR+2*k,2)}, {v(XR+2*k,2)}, {v(FB+2*k,2)}")
        for k in range(4): a(f"v_cvt_pk_bf16_f32 {v(vHRES+k)}, {v(XR+2*k)}, {v(XR+2*k+1)}")
        a(f"buffer_store_dwordx4 {v(vHRES,4)}, {v(6)}, {s(SWS,4)}, 0 offen sc1")
        a(f"v_pk_add_f32 {v(FB,2)}, {v(XR,2)}, {v(XR+2,2)}")
        a(f"v_pk_mul_f32 {v(FB+2,2)}, {v(XR,2)}, {v(XR,2)}")
        a(f"v_pk_add_f32 {v(FB+4,2)}, {v(XR+4,2)}, {v(XR+6,2)}")
        a(f"v_pk_fma_f32 {v(FB+2,2)}, {v(XR+2,2)}, {v(XR+2,2)}, {v(FB+2,2)}")
        a(f"v_pk_add_f32 {v(FB,2)}, {v(FB,2)}, {v(FB+4,2)}")
        a(f"v_pk_fma_f32 {v(FB+2,2)}, {v(XR+4,2)}, {v(XR+4,2)}, {v(FB+2,2)}")
        a(f"v_add_f32 {v(FB)}, {v(FB)}, {v(FB+1)}")
        a(f"v_pk_fma_f32 {v(FB+2,2)}, {v(XR+6,2)}, {v(XR+6,2)}, {v(FB+2,2)}")
        a(f"v_add_f32 {v(FB+1)}, {v(FB+2)}, {v(FB+3)}")
        a(f"v_permlane32_swap_b32 {v(FB)}, {v(FB+1)}")
        a(f"v_add_f32 {v(FB)}, {v(FB)}, {v(FB+1)}")
        a(f"buffer_store_dword {v(FB)}, {v(7)}, {s(SWS,4)}, 0 offen sc1")
        self.ts("H stores issued")
        if self.stop_after >= 4: self.p4_setup()
        self.publish(2)
        self.ts("H published")

    def p4_setup(self):
        a = self.a
        z = lambda k: 64 + k
        sN, sUu, sTile2 = z(0), z(1), z(2)
        self.w1_move(1, L_W1B)
        sKQ = z(7); self.sKQ = sKQ
        a(f"s_and_b32 {s(sKQ)}, {s(sW)}, 2")
        a(f"s_add_u32 {s(sKQ)}, {s(sKQ)}, {s(sROLE)}")
        a(f"s_mul_i32 {s(sT0)}, {s(sKQ)}, 448")
        a(f"s_lshl_b32 {s(sT2)}, {s(sN)}, 4")
        a(f"s_add_u32 {s(sT0)}, {s(sT0)}, {s(sT2)}")
        a(f"s_lshl_b32 {s(sT2)}, {s(sCT)}, 7")
        self.rows128_src(8, 896, sT0, sT2)
        a(f"v_add_u32 {v(4)}, {8*896-1024}, {v(8)}")
        sW2m = z(8); self.sW2m = sW2m
        a(f"s_lshl_b32 {s(sT0)}, {s(sKQ)}, 12")
        a(f"s_lshl_b32 {s(sT1)}, {s(sN)}, 11")
        a(f"s_add_u32 {s(sW2m)}, {s(sT0)}, {s(sT1)}")
        a(f"s_lshl_b32 {s(sU0)}, {s(sN)}, 6")
        self.tr128_addr(9, True, sT0)
        a(f"v_add_u32 {v(10)}, {L_HR}, {v(9)}")
        a(f"s_lshl_b32 {s(sT0)}, {s(sR)}, 2")
        a(f"s_lshr_b32 {s(sT1)}, {s(sW)}, 1")
        a(f"s_add_u32 {s(sT0)}, {s(sT0)}, {s(sT1)}")
        a(f"s_mul_i32 {s(sT0)}, {s(sT0)}, 28672")
        a(f"s_lshl_b32 {s(sT1)}, {s(sN)}, 11")
        a(f"s_add_u32 {s(sT0)}, {s(sT0)}, {s(sT1)}")
        a(f"s_add_u32 {s(sT0)}, {s(sT0)}, {H_OFF}")
        a(f"v_add_u32 {v(3)}, {s(sT0)}, {v(2)}")
        a(f"s_lshl_b32 {s(z(9))}, {s(sW)}, 11")
        a(f"s_lshl_b32 {s(sT0)}, {s(sR)}, 2")
        a(f"s_add_u32 {s(sT0)}, {s(sT0)}, {s(sT)}")
        a(f"s_mul_i32 {s(sT0)}, {s(sT0)}, 28")
        a(f"s_mul_i32 {s(sT1)}, {s(sROLE)}, 14")
        a(f"s_add_u32 {s(sT0)}, {s(sT0)}, {s(sT1)}")
        a(f"s_lshl_b32 {s(sT0)}, {s(sT0)}, 8")
        a(f"s_add_u32 {s(z(10))}, {s(sT0)}, {HS_OFF}")
        a(f"s_lshl_b32 {s(sT0)}, {s(sROLE)}, 13")
        a(f"v_add_u32 {v(5)}, {s(sT0)}, {v(2)}")
        a(f"v_add_u32 {v(6)}, 65536, {v(5)}")
        a(f"s_lshl_b32 {s(sT0)}, {s(sR)}, 2")
        a(f"s_lshl_b32 {s(sT1)}, {s(sROLE)}, 1")
        a(f"s_add_u32 {s(sT0)}, {s(sT0)}, {s(sT1)}")
        a(f"s_mul_i32 {s(sT0)}, {s(sT0)}, 112")
        a(f"s_lshl_b32 {s(sT1)}, {s(sC)}, 3")
        a(f"s_add_u32 {s(sT0)}, {s(sT0)}, {s(sT1)}")
        a(f"s_lshl_b32 {s(sT1)}, {s(sT)}, 1")
        a(f"s_add_u32 {s(sT0)}, {s(sT0)}, {s(sT1)}")
        a(f"s_lshl_b32 {s(sT0)}, {s(sT0)}, 10")
        a(f"s_add_u32 {s(sT0)}, {s(sT0)}, {H1_OFF}")
        a(f"v_add_u32 {v(7)}, {s(sT0)}, {v(2)}")
        a(f"v_add_u32 {v(11)}, {112*1024}, {v(7)}")

    def stream_gemm(self, nchunks, rd_text, mf_text, pre_barrier, hooks, FB, NB=6):
        a = self.a
        q = []
        def lds(text, tag=None):
            a(text); q.append(tag)
        def wait_for(tag):
            idx = max(k for k, t in enumerate(q) if t == tag)
            a(f"s_waitcnt lgkmcnt({min(15, len(q)-1-idx)})")
        self.lds_wait = wait_for
        N = nchunks * 8
        def rd(f):
            if f % 8 == 0: pre_barrier(f // 8)
            lds(rd_text(f, FB + 4 * (f % NB)), ('f', f))
        for f in range(NB): rd(f)
        for f in range(N):
            wait_for(('f', f))
            a(mf_text(f, FB + 4 * (f % NB)))
            if f + NB < N: rd(f + NB)
            if f in hooks: hooks[f](lds)

    def p4(self):
        a = self.a
        z = lambda k: 64 + k
        sUu = z(1)
        ACC = 16; FB = 48; BMS = 72
        sW2m, sAm = self.sW2m, z(9)
        def w2dma(p, ldsbase, half=None):
            if half in (None, 0):
                a(f"s_mov_b32 {s(sT1)}, {32*p*896}")
                self.dma(8, SW2, sT1, (sW2m, ldsbase))
            if half == 1: a(f"s_add_u32 m0, {s(sW2m)}, {ldsbase}")
            if half in (None, 1): self.dma(4, SW2, sT1, None, off=1024)
        for p in range(3): w2dma(p, L_HR + 16384 * p)
        vCS = 86
        a(f"v_mov_b32 {v(vCS)}, 0")
        lc1, lc2 = a.newlabel("C1"), a.newlabel("C1")
        a(f"s_cmp_eq_u32 {s(sROLE)}, 0")
        a(f"s_cbranch_scc0 {lc1}")
        for k in range(56): a(f"v_dot2c_f32_bf16 {v(vCS)}, {s(sONES)}, {v(R_A+k)}")
        a(f"s_branch {lc2}")
        a.label(lc1)
        for k in range(56): a(f"v_dot2c_f32_bf16 {v(vCS)}, {s(sONES)}, {v(R_A+56+k)}")
        a.label(lc2)
        a(f"v_lshlrev_b32 {v(T)}, 2, v0")
        a(f"v_add_u32 {v(T)}, {L_ST4+8192}, {v(T)}")
        a(f"ds_write_b32 {v(T)}, {v(vCS)}")
        a(f"v_xor_b32 {v(vAM1)}, 1024, {v(T)}")
        self.poll_group(2, 14, 1, "H")
        self.ts("H flags seen")
        def adma(i, half=None):
            if half in (None, 0):
                a(f"s_movk_i32 {s(sT0)}, {4096*i}")
                self.dma(3, SWS, sT0, (sAm, (i % 6) * 16384), sc1=True)
            if half == 1: a(f"s_add_u32 m0, {s(sAm)}, {(i % 6) * 16384}")
            if half in (None, 1): self.dma(3, SWS, sT0, None, sc1=True, off=1024)
        ops = ['p0','p0','p1','p1','p2','p2']
        for i in range(2):
            adma(i); ops += [f'A{i}'] * 2
        a(f"ds_read_b32 {v(vAM1+1)}, {v(vAM1)}")
        a(f"s_lshl_b32 {s(sT0)}, {s(sROLE)}, 11")
        a(f"s_add_u32 {s(sT0)}, {s(sT0)}, {L_ST4}")
        a(f"v_lshl_add_u32 {v(12)}, v1, 2, {s(sT0)}")
        a(f"s_lshl_b32 {s(sT0)}, {s(sTH)}, 1")
        a(f"s_add_u32 {s(sT0)}, {s(sT0)}, {s(sUu)}")
        a(f"s_lshl_b32 {s(sT0)}, {s(sT0)}, 10")
        a(f"s_add_u32 {s(sT0)}, {s(sT0)}, {L_ST4}")
        a(f"v_lshl_add_u32 {v(13)}, v1, 2, {s(sT0)}")
        a("s_waitcnt lgkmcnt(0)")
        a(f"v_add_f32 {v(vCS)}, {v(vCS)}, {v(vAM1+1)}")
        a(f"v_mov_b32 {v(T)}, {v(vCS)}")
        a(f"v_permlane32_swap_b32 {v(T)}, {v(vCS)}")
        a(f"v_add_f32 {v(vCS)}, {v(vCS)}, {v(T)}")
        self.cs_operand(vAM1, vCS)
        STB = R_C + 40
        def pre_barrier(i):
            needs = [f'A{i}', f'p{i-1}']
            last = max(k for k, o in enumerate(ops) if o in needs)
            a(f"s_waitcnt vmcnt({len(ops)-1-last})")
            if i == 4: self.lds_wait('stw')
            a("s_barrier")
            if i == 0: self.ts("H chunk0 landed")
        def rd_text(f, reg):
            i, n = divmod(f, 8); ks, tt = divmod(n, 2)
            slot = (i % 6) * 16384
            va, so = (5, slot) if slot < 65536 else (6, slot - 65536)
            return f"ds_read_b128 {v(reg,4)}, {v(va)} offset:{so+tt*4096+ks*1024}"
        def mf_text(f, reg):
            i, n = divmod(f, 8); ks, tt = divmod(n, 2)
            return f"{MF} {v(ACC+16*tt,16)}, {v(R_A+4*(4*i+ks),4)}, {v(reg,4)}, {'0' if f < 2 else v(ACC+16*tt,16)}"
        hooks = {}
        def H(f, fn):
            prev = hooks.get(f)
            hooks[f] = (lambda lds, p=prev, g=fn: (p(lds) if p else None, g(lds)))
        def op(tag): ops.append(tag)
        for i in range(7):
            b0 = 8 * i
            for k in range(2):
                def mvh(lds, i=i, k=k):
                    off = (i % 3) * 16384 + k * 2048
                    lds(f"ds_read_b64_tr_b16 {v(R_C+8*i+4*k,2)}, {v(10)} offset:{off}", None)
                    lds(f"ds_read_b64_tr_b16 {v(R_C+8*i+4*k+2,2)}, {v(10)} offset:{off+1024}", ('mv', i) if k == 1 else None)
                if i < 6: H(b0 + 3 + k, mvh)
            if i + 3 <= 6:
                H(b0 + 3, lambda lds, i=i: (adma(i + 3, 0), op(f'A{i+3}')))
                H(b0 + 4, lambda lds, i=i: (adma(i + 3, 1), op(f'A{i+3}')))
            if 1 <= i <= 4:
                H(b0 + 5, lambda lds, i=i: (w2dma(i + 2, L_HR + 16384 * ((i - 1) % 3), 0), op(f'p{i+2}')))
                H(b0 + 6, lambda lds, i=i: (w2dma(i + 2, L_HR + 16384 * ((i - 1) % 3), 1), op(f'p{i+2}')))
        H(0, lambda lds: (adma(2, 0), op('A2')))
        H(1, lambda lds: (adma(2, 1), op('A2')))
        self.w2b_loc = {7: 16384, 8: 32768, 9: 49152, 10: 65536, 11: 81920, 12: L_HR + 16384, 13: L_HR + 32768}
        for k in range(self.nin):
            f0 = 8 * (k + 2) + 7
            H(f0, lambda lds, k=k: (w2dma(7 + k, self.w2b_loc[7 + k], 0), op('q')))
            H(f0 + 1, lambda lds, k=k: (w2dma(7 + k, self.w2b_loc[7 + k], 1), op('q')))
        for j in range(4):
            H(5 + j, lambda lds, j=j: (a(f"buffer_load_dwordx4 {v(STB+4*j,4)}, {v(2)}, {s(SWS,4)}, {s(z(10))} offen offset:{1024*j} sc1"), op('S')))
        def st_reduce(lds):
            last = max(k for k, o in enumerate(ops) if o == 'S')
            a(f"s_waitcnt vmcnt({len(ops)-1-last})")
            for k in range(4): a(f"v_cndmask_b32 {v(STB+12+k)}, {v(STB+12+k)}, 0, {s(sHI,2)}")
            for k in range(2):
                a(f"v_pk_add_f32 {v(STB+2*k,2)}, {v(STB+2*k,2)}, {v(STB+4+2*k,2)}")
                a(f"v_pk_add_f32 {v(STB+8+2*k,2)}, {v(STB+8+2*k,2)}, {v(STB+12+2*k,2)}")
            for k in range(2): a(f"v_pk_add_f32 {v(STB+2*k,2)}, {v(STB+2*k,2)}, {v(STB+8+2*k,2)}")
            a(f"v_lshlrev_b32 {v(T)}, 4, v0")
            a(f"v_add_u32 {v(T)}, {L_ST4}, {v(T)}")
            lds(f"ds_write_b128 {v(T)}, {v(STB,4)}", 'stw')
        H(23, st_reduce)
        def st_gather(lds):
            for tt in range(2):
                for hf in range(2):
                    b = STB + 8 * tt + 4 * hf
                    o = (tt * 1024 + hf * 4096) // 256
                    lds(f"ds_read2st64_b32 {v(b,2)}, {v(12)} offset0:{o} offset1:{o+1}", None)
                    lds(f"ds_read2st64_b32 {v(b+2,2)}, {v(12)} offset0:{o+2} offset1:{o+3}", 'g1')
        H(27, st_gather)
        def st_mean(lds):
            self.lds_wait('g1')
            for tt in range(2):
                b = STB + 8 * tt
                a(f"v_pk_add_f32 {v(b,2)}, {v(b,2)}, {v(b+2,2)}")
                a(f"v_pk_add_f32 {v(b+4,2)}, {v(b+4,2)}, {v(b+6,2)}")
            for tt in range(2): a(f"v_pk_add_f32 {v(STB+8*tt,2)}, {v(STB+8*tt,2)}, {v(STB+8*tt+4,2)}")
            for tt in range(2): a(f"v_add_f32 {v(STB+8*tt)}, {v(STB+8*tt)}, {v(STB+8*tt+1)}")
            for tt in range(2): a(f"v_mul_f32 {v(STB+8*tt)}, {f32bits(-1.0/448):#x}, {v(STB+8*tt)}")
        H(31, st_mean)
        def st_mean2(lds):
            for tt in range(2):
                b = STB + 8 * tt
                a(f"v_cvt_pk_bf16_f32 {v(BMS+2*tt)}, {v(b)}, {v(b)}")
                a(f"v_and_b32 {v(b+1)}, 0xffff0000, {v(BMS+2*tt)}")
                a(f"v_sub_f32 {v(b+1)}, {v(b)}, {v(b+1)}")
                a(f"v_cvt_pk_bf16_f32 {v(BMS+2*tt+1)}, {v(b+1)}, 0")
            b = STB + 8
            for hf in range(2):
                lds(f"ds_read2st64_b32 {v(b+4*hf,2)}, {v(13)} offset0:{16*hf} offset1:{16*hf+1}", None)
                lds(f"ds_read2st64_b32 {v(b+4*hf+2,2)}, {v(13)} offset0:{16*hf+2} offset1:{16*hf+3}", 'g2')
        H(35, st_mean2)
        def st_rstd(lds):
            self.lds_wait('g2')
            b = STB + 8
            a(f"v_pk_add_f32 {v(b,2)}, {v(b,2)}, {v(b+2,2)}")
            a(f"v_pk_add_f32 {v(b+4,2)}, {v(b+4,2)}, {v(b+6,2)}")
            a(f"v_pk_add_f32 {v(b,2)}, {v(b,2)}, {v(b+4,2)}")
            a(f"v_add_f32 {v(b)}, {v(b)}, {v(b+1)}")
            a(f"v_mov_b32 {v(b+1)}, {v(b)}")
            a(f"v_permlane32_swap_b32 {v(b)}, {v(b+1)}")
            self.stats_finish(b, b + 1, b + 2, vRSTD)
        H(43, st_rstd)
        def bm_build(lds):
            for tt in range(2):
                b = FB + 4 * ((50 + tt) % 6)
                a(f"v_mov_b32 {v(b)}, {v(BMS+2*tt)}")
                a(f"v_mov_b32 {v(b+1)}, {v(BMS+2*tt+1)}")
                a(f"v_mov_b32 {v(b+2)}, 0")
                a(f"v_mov_b32 {v(b+3)}, 0")
        H(53, bm_build)
        self.stream_gemm(7, rd_text, mf_text, pre_barrier, hooks, FB)
        self.ts("p4 loop done")
        for tt in range(2):
            a(f"{MF} {v(ACC+16*tt,16)}, {v(vAM1,4)}, {v(FB+4*((50+tt)%6),4)}, {v(ACC+16*tt,16)}")
        for tt in range(2):
            A_ = ACC + 16 * tt
            for sp in range(2):
                for k in range(4): a(f"v_cvt_pk_bf16_f32 {v(A_+8*sp+k)}, {v(A_+8*sp+2*k)}, {v(A_+8*sp+2*k+1)}")
                for k in range(4): a(f"v_pk_max_i16 {v(A_+8*sp+k)}, {v(A_+8*sp+k)}, 0")
                a(f"buffer_store_dwordx4 {v(A_+8*sp,4)}, {v(7 if tt==0 else 11)}, {s(SWS,4)}, 0 offen offset:{1024*sp} sc1")
        self.ts("H1 stores issued")
        if self.stop_after >= 5: self.p5_setup()
        self.publish(3)
        for p in range(7 + self.nin, 14): w2dma(p, self.w2b_loc[p])
        self.ts("H1 published")

    def p5_setup(self):
        a = self.a
        z = lambda k: 64 + k
        sN, sTile2, sKQ = z(0), z(2), self.sKQ
        a(f"s_add_u32 {s(sT0)}, {s(sTile2)}, {s(sN)}")
        a(f"s_mul_i32 {s(sT0)}, {s(sT0)}, 112")
        a(f"s_mul_i32 {s(sT2)}, {s(sKQ)}, 28")
        a(f"s_add_u32 {s(sT0)}, {s(sT0)}, {s(sT2)}")
        a(f"s_lshl_b32 {s(sT0)}, {s(sT0)}, 10")
        a(f"s_add_u32 {s(sT0)}, {s(sT0)}, {H1_OFF}")
        a(f"v_add_u32 {v(3)}, {s(sT0)}, {v(2)}")
        a(f"s_lshl_b32 {s(z(9))}, {s(sKQ)}, 13")
        a(f"v_add_u32 {v(5)}, {s(z(9))}, {v(2)}")
        a(f"v_add_u32 {v(6)}, 65536, {v(5)}")
        a(f"v_add_u32 {v(72)}, 131072, {v(5)}")
        a(f"s_lshl_b32 {s(sT1)}, {s(sN)}, 12")
        a(f"s_add_u32 {s(z(9))}, {s(z(9))}, {s(sT1)}")
        a(f"v_add_u32 {v(73)}, 65536, {v(9)}")
        a(f"s_lshl_b32 {s(sT1)}, {s(sN)}, 15")
        a(f"s_add_u32 {s(sT1)}, {s(sT1)}, 65536")
        a(f"s_lshl_b32 {s(sT0)}, {s(sKQ)}, 11")
        a(f"s_add_u32 {s(sT0)}, {s(sT0)}, {s(sT1)}")
        a(f"v_add_u32 {v(74)}, {s(sT0)}, {v(2)}")
        a(f"s_lshl_b32 {s(sT0)}, {s(sKQ)}, 13")
        a(f"s_add_u32 {s(sT0)}, {s(sT0)}, {s(sT1)}")
        a(f"v_add_u32 {v(75)}, {s(sT0)}, {v(2)}")
        a(f"v_lshrrev_b32 {v(T)}, 5, v1")
        a(f"v_lshl_add_u32 {v(85)}, {v(T)}, 3, {v(85)}")

    def p5(self):
        a = self.a
        z = lambda k: 64 + k
        ACC = 16; FB = 48
        a("s_waitcnt vmcnt(0)")
        a("s_barrier")
        self.move_frags(R_C + 48, 10, 2, True, off0=0)
        for p in range(7, 14):
            loc = self.w2b_loc[p]
            if loc >= L_HR: va, off = 10, loc - L_HR
            elif loc >= 65536: va, off = 73, loc - 65536
            else: va, off = 9, loc
            self.move_frags(R_A + 8 * (p - 7), va, 2, True, off0=off)
        self.ts("w2 ready")
        self.poll_group(3, 14, 7, "H1")
        self.ts("H1 flags seen")
        sAm = z(9)
        NS = 5
        ops = []
        def adma(i, k):
            if k == 0: a(f"s_movk_i32 {s(sT0)}, {4096*i}")
            self.dma(3, SWS, sT0, (sAm, 32768 * (i % NS)) if k == 0 else None, sc1=True, off=1024*k)
            ops.append(i)
        for i in range(2):
            for k in range(4): adma(i, k)
        def pre_barrier(i):
            last = max(k for k, o in enumerate(ops) if o == i)
            a(f"s_waitcnt vmcnt({len(ops)-1-last})")
            a("s_barrier")
            if i == 0: self.ts("H1 chunk0 landed")
        def rd_text(f, reg):
            i, n = divmod(f, 8); ks, tt = divmod(n, 2)
            slot = 32768 * (i % NS)
            va, so = (5, 6, 72)[slot // 65536], slot % 65536
            return f"ds_read_b128 {v(reg,4)}, {v(va)} offset:{so+tt*4096+ks*1024}"
        def mf_text(f, reg):
            i, n = divmod(f, 8); ks, tt = divmod(n, 2)
            kk = 4 * i + ks
            wreg = R_C + 4 * kk if kk < 14 else R_A + 4 * (kk - 14)
            return f"{MF} {v(ACC+16*tt,16)}, {v(wreg,4)}, {v(reg,4)}, {'0' if f < 2 else v(ACC+16*tt,16)}"
        hooks = {}
        f = 0
        for c_ in range(2, 7):
            f = max(f, {5: 11, 6: 19}.get(c_, 0))
            for k in range(4):
                hooks[f] = (lambda lds, c_=c_, k=k: adma(c_, k)); f += self.p5gap
        XR = 64 + 12
        self.stream_gemm(7, rd_text, mf_text, pre_barrier, hooks, FB)
        self.ts("p5 loop done")
        XR = R_C
        for k in range(4):
            a(f"v_lshlrev_b32 {v(XR+2*k)}, 16, {v(vHRES+k)}")
            a(f"v_and_b32 {v(XR+2*k+1)}, 0xffff0000, {v(vHRES+k)}")
        a(f"v_mov_b32 {v(T)}, {v(vRSTD)}")
        a(f"v_mov_b32 {v(T2)}, {v(vRSTD)}")
        for d in range(4):
            a(f"ds_write_b128 {v(74)}, {v(ACC+8*d,4)} offset:{8192*d}")
            a(f"ds_write_b128 {v(74)}, {v(ACC+8*d+4,4)} offset:{8192*d+1024}")
        a("s_waitcnt lgkmcnt(0)")
        a("s_barrier")
        for sidx in range(4):
            a(f"ds_read_b128 {v(ACC+8*sidx,4)}, {v(75)} offset:{2048*sidx}")
            a(f"ds_read_b128 {v(ACC+8*sidx+4,4)}, {v(75)} offset:{2048*sidx+1024}")
        a("s_waitcnt lgkmcnt(4)")
        for k in range(4): a(f"v_pk_add_f32 {v(ACC+2*k,2)}, {v(ACC+2*k,2)}, {v(ACC+8+2*k,2)}")
        a("s_waitcnt lgkmcnt(0)")
        for k in range(4): a(f"v_pk_add_f32 {v(ACC+16+2*k,2)}, {v(ACC+16+2*k,2)}, {v(ACC+24+2*k,2)}")
        for k in range(4): a(f"v_pk_add_f32 {v(ACC+2*k,2)}, {v(ACC+2*k,2)}, {v(ACC+16+2*k,2)}")
        for k in range(4): a(f"v_pk_fma_f32 {v(XR+2*k,2)}, {v(ACC+2*k,2)}, {v(T,2)}, {v(XR+2*k,2)}")
        for k in range(4): a(f"v_cvt_pk_bf16_f32 {v(FB+k)}, {v(XR+2*k)}, {v(XR+2*k+1)}")
        a(f"v_permlane32_swap_b32 {v(FB)}, {v(FB+2)}")
        a(f"v_permlane32_swap_b32 {v(FB+1)}, {v(FB+3)}")
        a(f"buffer_store_dwordx4 {v(FB,4)}, {v(85)}, {s(SOUT,4)}, 0 offen")

    def epilogue(self):
        a = self.a
        a.label("L_FIN")
        if self.prof:
            self.ts("end")
            a(f"s_lshl_b32 {s(sT0)}, s2, 3")
            a(f"s_add_u32 {s(sT0)}, {s(sT0)}, {s(sW)}")
            a(f"s_lshl_b32 {s(sT0)}, {s(sT0)}, 8")
            a(f"s_add_u32 {s(sT0)}, {s(sT0)}, {TS_OFF}")
            a(f"v_lshlrev_b32 v14, 2, v1")
            a(f"v_add_u32 v14, {s(sT0)}, v14")
            a(f"buffer_store_dword {v(vTS)}, v14, {s(SWS,4)}, 0 offen")
            a("s_waitcnt vmcnt(0)")
        a.label("L_END")
        a("s_endpgm")

    def build(self):
        self.prologue()
        self.p1()
        if self.stop_after >= 2: self.p2()
        if self.stop_after >= 3: self.p3()
        if self.stop_after >= 4: self.p4()
        if self.stop_after >= 5: self.p5()
        self.epilogue()
        head = f"""; Generated by dev/gen.py -- fused persistent kernel: LN1+QKV -> sliding attention -> WO+res -> LN2+FF1 -> FF2+res
; @launch grid=(256,1,1) block=(512,1,1) lds={LDS_TOTAL}
.amdgcn_target "amdgcn-amd-amdhsa--gfx950"
.text
.globl {NAME}_kernel
.p2align 8
.type {NAME}_kernel,@function
{NAME}_kernel:
"""
        tail = f"""
.section .rodata,"a"
.p2align 6
.amdhsa_kernel {NAME}_kernel
  .amdhsa_next_free_vgpr 256
  .amdhsa_next_free_sgpr 102
  .amdhsa_accum_offset 256
  .amdhsa_group_segment_fixed_size 0
  .amdhsa_kernarg_size 72
  .amdhsa_user_sgpr_count 2
  .amdhsa_user_sgpr_kernarg_segment_ptr 1
  .amdhsa_system_sgpr_workgroup_id_x 1
.end_amdhsa_kernel
"""
        return head + self.a.text() + tail

if __name__ == "__main__":
    import argparse
    ap = argparse.ArgumentParser()
    ap.add_argument("-o", default="k.s"); ap.add_argument("--stop", type=int, default=5)
    ap.add_argument("--prof", action="store_true"); ap.add_argument("--cyc", action="store_true"); ap.add_argument("--fine", action="store_true"); ap.add_argument("--tlb", type=int, default=0); ap.add_argument("--p1local", action="store_true"); ap.add_argument("--pd1", type=int, default=3); ap.add_argument("--norot", action="store_true"); ap.add_argument("--tp", type=int, default=6); ap.add_argument("--n1", type=int, default=5); ap.add_argument("--m2", default="[(SW1,3)]"); ap.add_argument("--post", default="range(7)"); ap.add_argument("--npre", type=int, default=3); ap.add_argument("--p5gap", type=int, default=1)
    args = ap.parse_args()
    g = Gen(args.stop, args.prof, args.cyc, args.fine, args.tlb, args.p1local, args.pd1, args.norot, args.tp, args.n1, args.m2, args.post, args.npre, args.p5gap)
    open(args.o, "w").write(g.build())
    print("instrs", g.a.ninstr, "nops", g.a.nnops, "ts", list(g.tsn.keys()))
```

```python
import sys, math, struct
from asmlib import Asm, v, s

NAME = "sequential_preLN__sliding_block__dense_activation_relu__prompt"
QKV_OFF = 0
O_OFF  = 6 << 20
H_OFF  = 8 << 20
HS_OFF = 10 << 20
H1_OFF = 16 << 20
FL_OFF = 32 << 20
TS_OFF = 33 << 20
FL0_OFF = (32 << 20) + 131072
XS_OFF = 11 << 20
WS_SZ  = 40 << 20
SX, SWQKV, SWO, SW1, SW2, SOUT, SDBG, SWS = 24, 28, 32, 36, 40, 44, 48, 52
sR, sC, sW, sT, sROLE, sXCC, sLOCAL, sTMP = 56, 57, 58, 59, 60, 61, 62, 63
sMASK = 64
sONES = 96
sTH, sCT = 97, 23
sT0, sT1, sT2, sT3, sT4, sT5, sT6 = 3, 4, 5, 6, 7, 8, 9
sKC = 10
sBUSY = 17
sSAVE = 18
sHI = 20
sSPIN = 22
sTS = 98
sU0, sU1 = 100, 101
sTOK = 0
sR1, sJ1 = 94, 95
L_XS = 0
L_WP = 65536
L_SC = 151552
L_STAT = L_SC
L_CS = L_SC + 2048
L_FLAG = 163328
L_TOK = 163344
L_XST = L_SC
L_WO = 65536
L_XR = 122880
L_K = 90112
L_V = 114688
L_MRG = 139264
L_ONES = L_MRG + 1024
L_W1B = 57344
L_A3 = 0
L_RED3 = 147456
L_ST4 = 147456
L_HR = 32768
A4SLOT = [0, 16384, 114688, 131072]
LDS_TOTAL = 163840
R_C, R_A, R_B = 88, 144, 200
vTS = 87
vHRES = 80
vRSTD = 84
vAM1 = 76
LOG2E = 1.4426950408889634
def FLG(e): return FL_OFF + e * 16384
def f32bits(x): return struct.unpack('<I', struct.pack('<f', x))[0]
T, T2 = 14, 15
MF = "v_mfma_f32_32x32x16_bf16"

class Gen:
    def __init__(self, stop_after=5, prof=False, cyc=False, fine=False, tlb=0, p1local=False, pd1=2, norot=False, tp=2, n1=9, m2='[(SW1,3)]', post='range(7)', npre=3, p5gap=2, oplain=1, pre0=1, t1it=6, nex=2, exp=0, fflag=50, cB=5, rotg=4, kvsc='sc1', kvst='sc1', kvsleep=1, w1sched='([1,1,1,1,1],4,[3,2,0,0,0])'):
        self.fine = fine; self.PD1 = pd1; self.tp = tp; self.kvsc = ' ' + kvsc.replace('_',' '); self.kvst = ' ' + kvst.replace('_',' '); self.kvsleep = kvsleep; self.rotg = rotg; self.fine2 = (exp & 4); self.fflag = fflag; self.cB = cB; self.exp = exp; self.nex = nex; self.t1it = t1it; self.pre0 = pre0; self.w1sched = eval(w1sched); self.oplain = oplain; self.nin = npre; self.p5gap = p5gap; self.n1 = n1; self.m2 = eval(m2); self.post = eval(post); self.norot = norot; self.tlb = tlb; self.p1local = p1local
        self.a = Asm(); self.stop_after = stop_after; self.prof = prof; self.cyc = cyc; self.tsn = {}

    def ts(self, name):
        if not self.prof: return
        a = self.a
        if name not in self.tsn: self.tsn[name] = len(self.tsn)
        n = self.tsn[name]
        a(f"{'s_memtime' if self.cyc else 's_memrealtime'} {s(sTS,2)}")
        a("s_waitcnt lgkmcnt(0)")
        a(f"v_writelane_b32 {v(vTS)}, {s(sTS)}, {n}")

    def capture(self, fn):
        rec = []
        class R:
            def __call__(self_, t): rec.append(t)
        old = self.a; self.a = R()
        try: fn()
        finally: self.a = old
        return rec

    def srd(self, dst, ptr, size):
        a = self.a
        a(f"s_mov_b32 {s(dst)}, {s(ptr)}")
        a(f"s_and_b32 {s(dst+1)}, {s(ptr+1)}, 0xffff")
        a(f"s_mov_b32 {s(dst+2)}, {size}")
        a(f"s_mov_b32 {s(dst+3)}, 0x20000")

    def dma(self, vsrc, srd, soff, m0expr, sc1=False, off=0):
        a = self.a
        if m0expr is not None:
            if isinstance(m0expr, int): a(f"s_mov_b32 m0, {m0expr}")
            else: a(f"s_add_u32 m0, {s(m0expr[0])}, {m0expr[1]}")
        so = s(soff) if isinstance(soff, int) else soff
        a(f"buffer_load_dwordx4 {v(vsrc)}, {s(srd,4)}, {so} offen{f' offset:{off}' if off else ''}{' sc1' if sc1 else ''} lds")

    def set_exec(self, mask):
        a = self.a
        lo, hi = mask & 0xffffffff, mask >> 32
        a(f"s_mov_b32 exec_lo, {lo:#x}")
        a(f"s_mov_b32 exec_hi, {hi:#x}")

    def flag_check(self, vd, tmp):
        a = self.a
        a(f"v_xor_b32 {v(tmp)}, {s(sTOK+1)}, {v(vd+1)}")
        a(f"v_and_b32 {v(tmp)}, 0xfffffff, {v(tmp)}")
        a(f"v_xor_b32 {v(vd)}, {s(sTOK)}, {v(vd)}")
        a(f"v_or_b32 {v(tmp)}, {v(tmp)}, {v(vd)}")
        a(f"v_cmp_ne_u32 vcc, 0, {v(tmp)}")

    def poll(self, vaddr, vd, tmp, mask, tag, sleep=0, sc=" sc1"):
        a = self.a
        self.set_exec(mask)
        a(f"s_mov_b32 {s(sSPIN)}, 200000")
        lab = a.loop_label(a.newlabel("POLL"+tag)); done = a.newlabel("PDONE"+tag)
        a(f"buffer_load_dwordx2 {v(vd,2)}, {v(vaddr)}, {s(SWS,4)}, 0 offen{sc}")
        a("s_waitcnt vmcnt(0)")
        self.flag_check(vd, tmp)
        a(f"s_sub_u32 {s(sSPIN)}, {s(sSPIN)}, 1")
        a(f"s_cbranch_scc1 {done}")
        a("s_nop 2")
        a(f"s_cbranch_vccz {done}")
        a("s_mov_b64 exec, vcc")
        if sleep: a(f"s_sleep {sleep}")
        a(f"s_branch {lab}")
        a.label(done)
        a("s_mov_b64 exec, -1")

    def token_load(self, vd):
        self.a(f"buffer_load_dwordx2 {v(vd,2)}, off, {s(SDBG,4)}, 0 sc1")

    def token_take(self, vd):
        a = self.a
        a(f"s_mov_b32 {s(sSPIN)}, 200000")
        lab = a.loop_label(a.newlabel("TOK")); done = a.newlabel("TOKD")
        a(f"v_readfirstlane_b32 {s(sTOK)}, {v(vd)}")
        a(f"v_readfirstlane_b32 {s(sTOK+1)}, {v(vd+1)}")
        a(f"s_cmp_lg_u32 {s(sTOK)}, 0")
        a(f"s_cbranch_scc1 {done}")
        a(f"s_sub_u32 {s(sSPIN)}, {s(sSPIN)}, 1")
        a(f"s_cbranch_scc1 {done}")
        a("s_sleep 4")
        self.token_load(vd)
        a("s_waitcnt vmcnt(0)")
        a(f"s_branch {lab}")
        a.label(done)

    def poll_group(self, e, nmem, wave, tag):
        a = self.a
        l = a.newlabel("PG")
        a(f"s_cmp_lg_u32 {s(sW)}, {wave}")
        a(f"s_cbranch_scc1 {l}")
        a(f"s_lshl_b32 {s(sT0)}, {s(sR)}, 7")
        if e == 1:
            a(f"s_lshl_b32 {s(sT0)}, {s(sR)}, 9")
            a(f"s_lshl_b32 {s(sT1)}, {s(sTH)}, 8")
            a(f"s_add_u32 {s(sT0)}, {s(sT0)}, {s(sT1)}")
        a(f"s_add_u32 {s(sT0)}, {s(sT0)}, {FLG(e)}")
        a(f"v_lshl_add_u32 {v(13)}, v1, 3, {s(sT0)}")
        self.poll(13, T, 12, (1 << nmem) - 1, tag)
        a.label(l)
        a("s_waitcnt lgkmcnt(0)")
        a("s_barrier")

    def two_path(self, fn):
        a = self.a
        l1, l2 = a.newlabel("SL"), a.newlabel("SL")
        a(f"s_cmp_eq_u32 {s(sLOCAL)}, 1")
        a(f"s_cbranch_scc0 {l1}")
        fn("")
        a(f"s_branch {l2}")
        a.label(l1)
        fn(" sc1")
        a.label(l2)

    def publish(self, e, always_sc1=False, nowait_role1=False, keep=0):
        a = self.a
        a(f"s_lshl_b32 {s(sT1)}, {s(sR)}, {11 if e == 0 else 7}")
        a(f"s_lshl_b32 {s(sT2)}, {s(sC)}, {7 if e == 0 else 3}")
        a(f"s_add_u32 {s(sT1)}, {s(sT1)}, {s(sT2)}")
        a(f"s_add_u32 {s(sT1)}, {s(sT1)}, {FL0_OFF if e == 0 else FLG(e)}")
        a(f"s_lshl_b32 {s(sT2)}, {s(sXCC)}, 28")
        a(f"s_or_b32 {s(sT2)}, {s(sT2)}, {s(sTOK+1)}")
        a(f"v_mov_b32 {v(13)}, {s(sT1)}")
        a(f"v_mov_b32 {v(T)}, {s(sTOK)}")
        a(f"v_mov_b32 {v(T2)}, {s(sT2)}")
        if nowait_role1:
            lw = a.newlabel("NW")
            a(f"s_cmp_eq_u32 {s(sROLE)}, 1")
            a(f"s_cbranch_scc1 {lw}")
            a("s_waitcnt vmcnt(0)")
            a.label(lw)
            a("s_waitcnt lgkmcnt(0)")
        else:
            a(f"s_waitcnt vmcnt({keep}) lgkmcnt(0)")
        a("s_barrier")
        lf = a.newlabel("PUB")
        a(f"s_cmp_lg_u32 {s(sW)}, 0")
        a(f"s_cbranch_scc1 {lf}")
        a(f"s_mov_b64 exec, 1")
        st = lambda sc: a(f"buffer_store_dwordx2 {v(T,2)}, {v(13)}, {s(SWS,4)}, 0 offen{sc}")
        if always_sc1: st(self.kvst)
        else: self.two_path(st)
        a(f"s_mov_b64 exec, -1")
        a.label(lf)

    def mean_operand(self, BM, vnm, tmp):
        a = self.a
        a(f"v_cvt_pk_bf16_f32 {v(BM)}, {v(vnm)}, {v(vnm)}")
        a(f"v_and_b32 {v(tmp)}, 0xffff0000, {v(BM)}")
        a(f"v_sub_f32 {v(tmp)}, {v(vnm)}, {v(tmp)}")
        a(f"v_cvt_pk_bf16_f32 {v(BM+1)}, {v(tmp)}, 0")
        a(f"v_mov_b32 {v(BM+2)}, 0")
        a(f"v_mov_b32 {v(BM+3)}, 0")

    def cs_operand(self, AM, vcs):
        a = self.a
        a(f"v_cndmask_b32 {v(vcs)}, {v(vcs)}, 0, {s(sHI,2)}")
        a(f"v_cvt_pk_bf16_f32 {v(AM+1)}, {v(vcs)}, 0")
        a(f"v_lshlrev_b32 {v(AM+2)}, 16, {v(AM+1)}")
        a(f"v_sub_f32 {v(AM+2)}, {v(vcs)}, {v(AM+2)}")
        a(f"v_cvt_pk_bf16_f32 {v(AM)}, {v(vcs)}, {v(AM+2)}")
        a(f"v_mov_b32 {v(AM+2)}, 0")
        a(f"v_mov_b32 {v(AM+3)}, 0")

    def stats_finish(self, vsum, vsq, vnm, vrs):
        a = self.a
        a(f"v_mul_f32 {v(vnm)}, {f32bits(-1.0/448):#x}, {v(vsum)}")
        a(f"v_mul_f32 {v(vsq)}, {f32bits(1.0/448):#x}, {v(vsq)}")
        a(f"v_fma_f32 {v(vsq)}, -{v(vnm)}, {v(vnm)}, {v(vsq)}")
        a(f"v_max_f32 {v(vsq)}, 0, {v(vsq)}")
        a(f"v_add_f32 {v(vsq)}, {f32bits(1e-5):#x}, {v(vsq)}")
        a(f"v_rsq_f32 {v(vrs)}, {v(vsq)}")

    def rows128_src(self, vd, rowstride, srow0, scol):
        a = self.a
        a(f"v_lshrrev_b32 {v(T)}, 3, v1")
        a(f"v_bfe_u32 {v(T2)}, v1, 4, 1")
        a(f"v_lshlrev_b32 {v(T2)}, 2, {v(T2)}")
        a(f"v_xor_b32 {v(T2)}, {v(T2)}, v1")
        a(f"v_and_b32 {v(T2)}, 7, {v(T2)}")
        a(f"v_add_u32 {v(T)}, {s(srow0)}, {v(T)}")
        a(f"v_mul_u32_u24 {v(T)}, {rowstride}, {v(T)}")
        a(f"v_lshl_add_u32 {v(T)}, {v(T2)}, 4, {v(T)}")
        a(f"v_add_u32 {v(vd)}, {s(scol)}, {v(T)}")

    def tr128_addr(self, vd, perm, sbase):
        a = self.a
        a(f"v_lshrrev_b32 {v(T)}, 5, v1")
        a(f"v_lshlrev_b32 {v(T)}, {9 if perm else 10}, {v(T)}")
        a(f"v_bfe_u32 {v(T2)}, v1, 2, 2")
        a(f"v_lshl_add_u32 {v(T)}, {v(T2)}, 7, {v(T)}")
        a(f"v_bfe_u32 {v(T2)}, v1, 4, 1")
        a(f"v_lshl_add_u32 {v(T)}, {v(T2)}, 5, {v(T)}")
        a(f"v_and_b32 {v(T2)}, 3, v1")
        a(f"v_lshl_add_u32 {v(T)}, {v(T2)}, 3, {v(T)}")
        a(f"v_bfe_u32 {v(T2)}, v1, 3, 1")
        a(f"v_lshlrev_b32 {v(T2)}, 6, {v(T2)}")
        a(f"v_xor_b32 {v(T2)}, {s(sU0)}, {v(T2)}")
        a(f"v_add_u32 {v(T)}, {v(T)}, {v(T2)}")
        a(f"v_add_u32 {v(vd)}, {s(sbase)}, {v(T)}")

    def prologue(self):
        a = self.a
        a(f"s_cmp_ge_u32 s2, 256")
        a(f"s_cbranch_scc1 L_END")
        a("s_load_dwordx16 s[4:19], s[0:1], 0")
        a("s_load_dwordx2 s[20:21], s[0:1], 64")
        a("v_and_b32 v1, 63, v0")
        a("v_lshrrev_b32 v2, 6, v0")
        a(f"v_readfirstlane_b32 {s(sW)}, v2")
        a(f"s_and_b32 {s(sT)}, {s(sW)}, 3")
        a(f"s_lshr_b32 {s(sROLE)}, {s(sW)}, 2")
        a(f"s_and_b32 {s(sR)}, s2, 7")
        a(f"s_lshl_b32 {s(sR)}, {s(sR)}, 1")
        a(f"s_lshr_b32 {s(sTMP)}, s2, 7")
        a(f"s_add_u32 {s(sR)}, {s(sR)}, {s(sTMP)}")
        a(f"s_lshr_b32 {s(sC)}, s2, 3")
        a(f"s_and_b32 {s(sC)}, {s(sC)}, 15")
        a(f"s_getreg_b32 {s(sXCC)}, hwreg(HW_REG_XCC_ID)")
        a(f"s_and_b32 {s(sXCC)}, {s(sXCC)}, 15")
        a(f"s_mov_b32 {s(sONES)}, 0x3f803f80")
        a(f"s_cmp_ge_u32 {s(sC)}, 7")
        a(f"s_cselect_b32 {s(sTH)}, 1, 0")
        a(f"s_mul_i32 {s(sTMP)}, {s(sTH)}, 7")
        a(f"s_sub_u32 {s(sCT)}, {s(sC)}, {s(sTMP)}")
        a("s_waitcnt lgkmcnt(0)")
        self.srd(SX, 4, 2048*448*2)
        self.srd(SWQKV, 6, 448*1344*2)
        self.srd(SWO, 8, 448*448*2)
        self.srd(SW1, 12, 448*1792*2)
        self.srd(SW2, 14, 1792*448*2)
        self.srd(SOUT, 16, 2048*448*2)
        self.srd(SDBG, 18, 256)
        self.srd(SWS, 20, WS_SZ)
        a(f"s_mov_b32 {s(sHI)}, 0")
        a(f"s_mov_b32 {s(sHI+1)}, -1")
        a(f"s_cmp_lt_u32 {s(sC)}, 14")
        a(f"s_cselect_b32 {s(sBUSY)}, 1, 0")
        a("v_mov_b32 v84, 0")
        a("v_mov_b32 v85, 0")
        if self.prof: a(f"v_mov_b32 {v(vTS)}, 0")
        self.ts("start")
        if self.tlb:
            lt = a.newlabel("TLB")
            a(f"s_cmp_lg_u32 {s(sW)}, 7")
            a(f"s_cbranch_scc1 {lt}")
            a(f"v_lshlrev_b32 {v(T)}, {self.tlb}, v1")
            for k in range((34 << 20) >> (self.tlb + 6)):
                a(f"s_mov_b32 {s(sT0)}, {k << (self.tlb + 6)}")
                a(f"buffer_load_dword {v(90)}, {v(T)}, {s(SWS,4)}, {s(sT0)} offen")
            a(f"v_lshlrev_b32 {v(T)}, 16, v1")
            for srd in (SWO, SW1, SW2, SOUT):
                a(f"buffer_load_dword {v(90)}, {v(T)}, {s(srd,4)}, 0 offen")
            a.label(lt)
        lz = a.newlabel("NOTOK")
        a(f"s_cmp_lg_u32 s2, 112")
        a(f"s_cbranch_scc1 {lz}")
        a(f"s_cmp_lg_u32 {s(sW)}, 0")
        a(f"s_cbranch_scc1 {lz}")
        a(f"s_memrealtime {s(sTS,2)}")
        a("s_waitcnt lgkmcnt(0)")
        a(f"s_or_b32 {s(sT0)}, {s(sTS)}, 1")
        a(f"s_and_b32 {s(sT1)}, {s(sTS+1)}, 0xfffffff")
        a(f"v_mov_b32 {v(T)}, {s(sT0)}")
        a(f"v_mov_b32 {v(T2)}, {s(sT1)}")
        a(f"s_mov_b64 exec, 1")
        a(f"buffer_store_dwordx2 {v(T,2)}, off, {s(SDBG,4)}, 0 sc1")
        a(f"s_mov_b64 exec, -1")
        a.label(lz)

    def touch_p1(self):
        a = self.a
        a(f"s_lshr_b32 {s(sT0)}, s2, 3")
        a(f"s_and_b32 {s(sT1)}, {s(sR)}, 12")
        a(f"s_lshl_b32 {s(sT1)}, {s(sT1)}, 3")
        a(f"s_add_u32 {s(sT1)}, {s(sT0)}, {s(sT1)}")
        a(f"s_mul_i32 {s(sT1)}, {s(sT1)}, {16*896}")
        a(f"s_mul_i32 {s(sT2)}, {s(sT)}, {28*128}")
        a(f"s_add_u32 {s(sT1)}, {s(sT1)}, {s(sT2)}")
        a(f"v_lshlrev_b32 {v(T)}, 7, v1")
        self.set_exec((1 << 28) - 1)
        a(f"buffer_load_dword {v(86)}, {v(T)}, {s(SX,4)}, {s(sT1)} offen")
        a("s_mov_b64 exec, -1")
        a(f"s_mul_i32 {s(sT0)}, {s(sT0)}, {14*2688}")
        a(f"s_bfe_u32 {s(sT1)}, {s(sR)}, 0x10001")
        a(f"s_mul_i32 {s(sT1)}, {s(sT1)}, 1280")
        a(f"s_add_u32 {s(sT0)}, {s(sT0)}, {s(sT1)}")
        a(f"s_mul_i32 {s(sT1)}, {s(sT)}, 39")
        a(f"v_add_u32 {v(T)}, {s(sT1)}, v1")
        a(f"v_mul_u32_u24 {v(T2)}, 5958, {v(T)}")
        a(f"v_lshrrev_b32 {v(T2)}, 16, {v(T2)}")
        a(f"v_mul_u32_u24 {v(T2)}, {2688-11*128}, {v(T2)}")
        a(f"v_lshl_add_u32 {v(T2)}, {v(T)}, 7, {v(T2)}")
        self.set_exec((1 << 39) - 1)
        a(f"buffer_load_dword {v(86)}, {v(T2)}, {s(SWQKV,4)}, {s(sT0)} offen")
        a("s_mov_b64 exec, -1")

    def touch(self, srd, kexpr):
        a = self.a
        sg, mul, add = kexpr
        a(f"s_mul_i32 {s(sT0)}, {s(sg)}, {mul*262144}")
        a(f"s_lshr_b32 {s(sT1)}, s2, 3")
        a(f"s_lshl_b32 {s(sT1)}, {s(sT1)}, 13")
        a(f"s_add_u32 {s(sT0)}, {s(sT0)}, {s(sT1)}")
        if add > 0: a(f"s_add_u32 {s(sT0)}, {s(sT0)}, {add*262144}")
        if add < 0: a(f"s_sub_u32 {s(sT0)}, {s(sT0)}, {-add*262144}")
        a(f"v_lshlrev_b32 {v(T)}, 7, v1")
        a(f"buffer_load_dword {v(86)}, {v(T)}, {s(srd,4)}, {s(sT0)} offen")

    def idle_touch_setup(self):
        a = self.a
        a(f"s_and_b32 {s(sT0)}, {s(sR)}, 1")
        a(f"s_lshl_b32 {s(sT0)}, {s(sT0)}, 1")
        a(f"s_add_u32 {s(sT0)}, {s(sT0)}, {s(sC)}")
        a(f"s_sub_u32 {s(sT0)}, {s(sT0)}, 14")
        a(f"s_lshl_b32 {s(sT1)}, {s(sT0)}, 2")
        a(f"s_add_u32 {s(sT1)}, {s(sT1)}, {s(sT)}")
        a(f"s_lshl_b32 {s(sT1)}, {s(sT1)}, 13")
        a(f"v_lshl_add_u32 {v(56)}, v1, 7, {s(sT1)}")

    def flag_pretouch(self):
        a = self.a
        a(f"s_lshl_b32 {s(sT0)}, {s(sR)}, 9")
        a(f"s_add_u32 {s(sT0)}, {s(sT0)}, {FLG(1)}")
        a(f"v_lshl_add_u32 {v(T)}, v1, 7, {s(sT0)}")
        a(f"s_lshl_b32 {s(sT0)}, {s(sR)}, 7")
        a(f"s_add_u32 {s(sT1)}, {s(sT0)}, {FLG(2)}")
        a(f"v_writelane_b32 {v(T)}, {s(sT1)}, 4")
        a(f"s_lshl_b32 {s(sT0)}, {s(sR)}, 11")
        a(f"s_add_u32 {s(sT0)}, {s(sT0)}, {FLG(3) - 16*128}")
        a(f"v_lshl_add_u32 {v(T2)}, v1, 7, {s(sT0)}")
        a(f"v_cmp_le_u32 vcc, 16, v1")
        a(f"v_cndmask_b32 {v(T)}, {v(T)}, {v(T2)}, vcc")
        self.set_exec(0xffff001f)
        a(f"buffer_load_dword {v(86)}, {v(T)}, {s(SWS,4)}, 0 offen sc1")
        a(f"s_mov_b64 exec, -1")

    def masks(self):
        a = self.a
        a(f"v_and_b32 {v(T)}, 31, v1")
        a(f"v_lshrrev_b32 {v(T2)}, 5, v1")
        a(f"v_lshlrev_b32 {v(T2)}, 2, {v(T2)}")
        a(f"v_sub_u32 {v(T)}, {v(T)}, {v(T2)}")
        for rg in range(16):
            kk = 8 * (rg // 4) + (rg % 4)
            a(f"v_cmp_le_i32 {s(sMASK+2*rg,2)}, {kk}, {v(T)}")

    def p1(self):
        a = self.a
        PD = self.PD1
        full = self.stop_after >= 3
        vXs = 100; vWs = 104; vSt = 107; vCs = 108
        ACC = 16
        AM = 112; vXr = 120; vWr = 124; SCL = 128; BM = 132; vSA = 136
        vWo = 138; vXres = 139; vRS = 140
        vTok = 142; vFl = 96
        WB = R_B + 40
        lpad, lp1end = a.newlabel("PADW"), a.newlabel("P1END")
        a(f"s_cmp_eq_u32 {s(sBUSY)}, 0")
        a(f"s_cbranch_scc1 {lpad}")
        a(f"s_and_b32 {s(sR1)}, {s(sR)}, 12")
        a(f"s_and_b32 {s(sT0)}, {s(sR)}, 1")
        a(f"s_lshl_b32 {s(sT0)}, {s(sT0)}, 1")
        a(f"s_add_u32 {s(sT0)}, {s(sT0)}, {s(sTH)}")
        a(f"s_add_u32 {s(sR1)}, {s(sR1)}, {s(sT0)}")
        a(f"s_bfe_u32 {s(sJ1)}, {s(sR)}, 0x10001")
        a(f"s_mul_i32 {s(sJ1)}, {s(sJ1)}, 7")
        a(f"s_add_u32 {s(sJ1)}, {s(sJ1)}, {s(sCT)}")
        sXm, sWm = sT4, sT5
        def setup_xsrc():
            a(f"s_lshl_b32 {s(sT0)}, {s(sR1)}, 7")
            a(f"s_lshl_b32 {s(sT1)}, {s(sT)}, 5")
            a(f"s_add_u32 {s(sT0)}, {s(sT0)}, {s(sT1)}")
            a(f"v_lshrrev_b32 {v(T)}, 3, v1")
            a(f"v_add_u32 {v(T)}, {s(sT0)}, {v(T)}")
            a(f"v_mul_u32_u24 {v(T)}, 896, {v(T)}")
            a(f"v_lshrrev_b32 {v(T2)}, 4, v1")
            a(f"v_xor_b32 {v(T2)}, {v(T2)}, v1")
            a(f"v_and_b32 {v(T2)}, 7, {v(T2)}")
            a(f"v_lshl_add_u32 {v(vXs)}, {v(T2)}, 4, {v(T)}")
            a(f"v_xor_b32 {v(T2)}, 4, {v(T2)}")
            a(f"v_lshl_add_u32 {v(vXs+1)}, {v(T2)}, 4, {v(T)}")
            a(f"v_add_u32 {v(vXs+2)}, {2*(7168-1024)}, {v(vXs)}")
            a(f"v_add_u32 {v(vXs+3)}, {3*(7168-1024)}, {v(vXs+1)}")
            a(f"v_add_u32 {v(vXs+1)}, {7168-1024}, {v(vXs+1)}")
            a(f"s_lshl_b32 {s(sXm)}, {s(sT)}, 12")
        def setup_wsrc():
            a(f"s_mul_i32 {s(sT0)}, {s(sT)}, {16*2688}")
            a(f"s_mul_i32 {s(sT1)}, {s(sJ1)}, 192")
            a(f"s_add_u32 {s(sT0)}, {s(sT0)}, {s(sT1)}")
            for m in range(3):
                a(f"v_add_u32 {v(T)}, {64*m}, v1")
                a(f"v_mul_u32_u24 {v(T2)}, 43691, {v(T)}")
                a(f"v_lshrrev_b32 {v(T2)}, 19, {v(T2)}")
                a(f"v_mul_u32_u24 {v(T2)}, 2496, {v(T2)}")
                a(f"v_lshl_add_u32 {v(T2)}, v1, 4, {v(T2)}")
                a(f"v_add_u32 {v(vWs+m)}, {s(sT0)}, {v(T2)}")
            a(f"s_mul_i32 {s(sWm)}, {s(sT)}, 3072")
        def rot_setup():
            a(f"s_and_b32 {s(sT0)}, {s(sR1)}, 3")
            a(f"s_lshl_b32 {s(sT0)}, {s(sT0)}, 1")
            a(f"s_add_u32 {s(sT0)}, {s(sT0)}, {s(sCT)}")
            a(f"s_sub_u32 {s(sT1)}, {s(sT0)}, 7")
            a(f"s_cmp_ge_u32 {s(sT0)}, 7")
            a(f"s_cselect_b32 {s(sT0)}, {s(sT1)}, {s(sT0)}")
            if self.norot: a(f"s_mov_b32 {s(sT0)}, 0")
            G_ = self.rotg
            if G_ < 7:
                a(f"s_mul_i32 {s(sT1)}, {s(sT0)}, {(256 + G_ - 1) // G_}")
                a(f"s_lshr_b32 {s(sT1)}, {s(sT1)}, 8")
                a(f"s_mul_i32 {s(sT1)}, {s(sT1)}, {G_}")
                a(f"s_sub_u32 {s(sT0)}, {s(sT0)}, {s(sT1)}")
            a(f"s_lshl_b32 {s(64)}, {s(sT0)}, 7")
        def rot_next(i):
            G_ = self.rotg
            g0 = (i // G_) * G_; g1 = min(g0 + G_, 7)
            if i % G_ == 0:
                if g1 - g0 == G_: a(f"s_add_u32 {s(64+i)}, {s(64)}, {128*g0}")
                else:
                    if g1 - g0 == 1: a(f"s_mov_b32 {s(64+i)}, {128*g0}")
                    else:
                        a(f"s_add_u32 {s(64+i)}, {s(64)}, {128*g0}")
                        a(f"s_cmp_ge_u32 {s(64+i)}, {128*g1}")
                        a(f"s_cselect_b32 {s(64+i)}, {128*g0}, {s(64+i)}")
                return
            a(f"s_add_u32 {s(64+i)}, {s(63+i)}, 128")
            a(f"s_cmp_eq_u32 {s(64+i)}, {128*g1}")
            a(f"s_cselect_b32 {s(64+i)}, {128*g0}, {s(64+i)}")
        def xdma(i):
            sT0 = 64 + i
            for j in range(4):
                self.dma(vXs+j, SX, sT0, (sXm, L_XS + (i % 4) * 16384) if j == 0 else None, off=1024*j)
        def wdma(i):
            a(f"s_mul_i32 {s(sT1)}, {s(64+i)}, {64*2688//128}")
            for m in range(3):
                self.dma(vWs+m, SWQKV, sT1, (sWm, L_WP + i * 12288) if m == 0 else None, off=1024*m)
        def setup_rd(role):
            a(f"v_and_b32 {v(T)}, 31, v1")
            a(f"v_bfe_u32 {v(T2)}, v1, 1, 3")
            a(f"v_lshrrev_b32 {v(vXr)}, 5, v1")
            a(f"v_xor_b32 {v(T2)}, {v(T2)}, {v(vXr)}")
            a(f"s_lshl_b32 {s(sT1)}, {s(sT)}, 12")
            a(f"v_lshl_add_u32 {v(T)}, {v(T)}, 7, {s(sT1)}")
            for n in range(4):
                a(f"s_add_u32 {s(sT0)}, {s(sT)}, {n}")
                a(f"s_and_b32 {s(sT0)}, {s(sT0)}, 3")
                a(f"s_lshl_b32 {s(sT1)}, {s(sT0)}, 1")
                a(f"s_mul_i32 {s(sKC+n)}, {s(sT0)}, 3072")
                a(f"v_xor_b32 {v(vXr+n)}, {s(sT1)}, {v(T2)}")
                a(f"v_lshl_add_u32 {v(vXr+n)}, {v(vXr+n)}, 4, {v(T)}")
            a(f"v_lshrrev_b32 {v(T)}, 5, v1")
            a(f"v_bfe_u32 {v(T2)}, v1, 2, 2")
            a(f"v_lshl_add_u32 {v(T)}, {v(T)}, 3, {v(T2)}")
            a(f"v_mul_u32_u24 {v(T)}, 192, {v(T)}")
            a(f"v_bfe_u32 {v(T2)}, v1, 4, 1")
            a(f"v_lshl_add_u32 {v(T)}, {v(T2)}, 5, {v(T)}")
            a(f"v_and_b32 {v(T2)}, 3, v1")
            a(f"v_lshl_add_u32 {v(T)}, {v(T2)}, 3, {v(T)}")
            a(f"v_add_u32 {v(T)}, {L_WP + (128 if role else 0)}, {v(T)}")
            for n in range(4): a(f"v_add_u32 {v(vWr+n)}, {s(sKC+n)}, {v(T)}")
            a(f"v_mov_b32 {v(vCs)}, 0")
            a(f"v_mov_b32 {v(vCs+1)}, 0")
            a(f"v_mov_b32 {v(BM+2)}, 0")
            a(f"v_mov_b32 {v(BM+3)}, 0")
        def setup_st(ti, tj):
            a(f"s_mul_i32 {s(sT0)}, {s(sJ1)}, 3")
            a(f"s_add_u32 {s(sT0)}, {s(sT0)}, {tj}")
            a(f"s_cmp_lt_u32 {s(sT0)}, 14")
            a(f"s_cselect_b32 {s(sU0+ti)}, 1, 0")
            a(f"s_lshl_b32 {s(sT0)}, {s(sT0)}, 6")
            a(f"s_lshl_b32 {s(sT1)}, {s(sR1)}, 2")
            a(f"s_add_u32 {s(sT0)}, {s(sT0)}, {s(sT1)}")
            a(f"s_add_u32 {s(sT0)}, {s(sT0)}, {s(sT)}")
            a(f"s_lshl_b32 {s(sT0)}, {s(sT0)}, 11")
            a(f"v_lshl_add_u32 {v(vSA+ti)}, v1, 4, {s(sT0)}")
        def setup_wo():
            a(f"s_lshl_b32 {s(sT0)}, {s(sT)}, 3")
            a(f"s_lshl_b32 {s(sT2)}, {s(sCT)}, 7")
            self.rows128_src(vWo, 896, sT0, sT2)
            a(f"s_lshl_b32 {s(sT0)}, {s(sR)}, 7")
            a(f"s_lshl_b32 {s(sT1)}, {s(sTH)}, 6")
            a(f"s_add_u32 {s(sT0)}, {s(sT0)}, {s(sT1)}")
            a(f"s_mul_i32 {s(sT0)}, {s(sT0)}, 896")
            a(f"v_add_u32 {v(vXres)}, {s(sT0)}, {v(vWo)}")
            a(f"s_lshl_b32 {s(sT6)}, {s(sT)}, 10")
        def wodma(j):
            a(f"s_mov_b32 {s(sT0)}, {32*j*896}")
            self.dma(vWo, SWO, sT0, (sT6, L_WO + 4096 * j))
        def xrdma(j):
            a(f"s_mov_b32 {s(sT0)}, {32*j*896}")
            self.dma(vXres, SX, sT0, (sT6, L_XR + 4096 * j))
        def setup_misc(role):
            a(f"s_lshl_b32 {s(sT0)}, {s(sT)}, 9")
            a(f"s_lshl_b32 {s(sT1)}, {s(sR1)}, 11")
            a(f"s_add_u32 {s(sT0)}, {s(sT0)}, {s(sT1)}")
            a(f"s_add_u32 {s(sT0)}, {s(sT0)}, {XS_OFF}")
            a(f"v_mov_b32 {v(94)}, {L_TOK}")
            a(f"v_and_b32 {v(T)}, 31, v1")
            a(f"v_lshl_add_u32 {v(vSt)}, {v(T)}, 4, {s(sT0)}")
            a(f"v_lshlrev_b32 {v(91)}, 2, v0")
            a(f"v_add_u32 {v(91)}, {L_CS + (1024 if role else 0)}, {v(91)}")
            a(f"v_lshlrev_b32 {v(92)}, 2, {v(T)}")
            a(f"v_add_u32 {v(92)}, {L_CS + (2048 if role else 0)}, {v(92)}")
            a(f"v_add_u32 {v(93)}, 1024, {v(92)}")
        lr1, lrj = a.newlabel("P1R1"), a.newlabel("P1J")
        a(f"s_cmp_eq_u32 {s(sROLE)}, 1")
        a(f"s_cbranch_scc1 {lr1}")
        for role in (0, 1):
            if role == 1: a.label(lr1)
            ntile = 2 if role == 0 else 1
            SET = [R_A, R_A + 48]
            ops = []
            def issue(i):
                xdma(i); wdma(i); ops.extend([i] * 7)
            if role == 0:
                rot_setup(); setup_wsrc(); wdma(0)
                setup_rd(0)
                rot_next(1); wdma(1); ops += [0] * 3 + [1] * 3
                if full: self.wo_addr()
                if self.stop_after >= 2: self.p2_pre()
                setup_st(0, 0)
                if self.tp & 1:
                    self.touch_p1(); ops += ['t', 't']
                setup_st(1, 1)
                setup_misc(0)
                later = []
            else:
                rot_setup(); setup_xsrc(); xdma(0)
                if self.fine: self.ts("first dma issued")
                rot_next(1); xdma(1); ops += [0] * 4 + [1] * 4
                if self.fine: self.ts("second dma issued")
                setup_rd(1)
                setup_wsrc()
                for i in range(2, 7): rot_next(i)
                if full: self.wo_addr()
                if self.stop_after >= 2: self.p2_pre()
                setup_st(0, 2)
                if full: setup_wo()
                setup_misc(1)
                later = []
            if self.fine: self.ts("setup done")
            for i in range(8):
                a.comment(f"---- P1 role{role} iter {i}")
                rds, mfs, css = [], [], []
                if i < 7:
                    idx = [k for k, c_ in enumerate(ops) if c_ == i]
                    if idx: a(f"s_waitcnt vmcnt({len(ops)-1-max(idx)}) lgkmcnt(0)")
                    else: a("s_waitcnt lgkmcnt(0)")
                    if self.fine and i < 3: self.ts(f"c{i} own wait done")
                    a("s_barrier")
                    if i == 0: self.ts("p1 chunk0 landed")
                    if self.fine: self.ts(f"c{i} barrier")
                    woff = (i % 4) * 12288
                    if i == 4:
                        for n in range(4): a(f"v_add_u32 {v(vWr+n)}, 49152, {v(vWr+n)}")
                    S_ = SET[i % 2]
                    for n in range(4):
                        rds.append(f"ds_read_b128 {v(S_+4*n,4)}, {v(vXr+n)} offset:{L_XS+(i%4)*16384}")
                        for tj in range(ntile):
                            b = S_ + 16 + 16 * tj + 4 * n
                            rds.append(f"ds_read_b64_tr_b16 {v(b,2)}, {v(vWr+n)} offset:{woff+tj*64}")
                            rds.append(f"ds_read_b64_tr_b16 {v(b+2,2)}, {v(vWr+n)} offset:{woff+tj*64+768}")
                    if i == 6:
                        rds.append(f"ds_read_b64 {v(vTok,2)}, {v(94)}")
                else:
                    a("s_waitcnt lgkmcnt(0)")
                    a(f"v_readfirstlane_b32 {s(sTOK)}, {v(vTok)}")
                    a(f"v_readfirstlane_b32 {s(sTOK+1)}, {v(vTok+1)}")
                def extras():
                    only = lambda w_: (a(f"s_cmp_lg_u32 {s(sW)}, {w_}"), a.newlabel("ON"))[1]
                    if role == 1 and i == 0:
                        for k in range(2, PD): issue(k)
                    if role == 1 and i + PD < 7: issue(i + PD)
                    if role == 1 and full and i in (5, 6):
                        for j in (range(0, 8) if i == 5 else range(8, 14)): wodma(j); ops.append('wo')
                        if i == 6:
                            for j in range(2): xrdma(j); ops.append('wo')
                    if role == 0:
                        if i in (1, 3):
                            l = only(3); a(f"s_cbranch_scc1 {l}")
                            if i == 1:
                                self.token_load(vTok)
                            if i == 3:
                                a("s_waitcnt vmcnt(0)")
                                self.token_take(vTok)
                                a(f"v_mov_b32 {v(T)}, {L_TOK}")
                                a(f"ds_write_b64 {v(T)}, {v(vTok,2)}")
                            a.label(l)
                    if i == 4:
                        a(f"buffer_load_dwordx4 {v(vFl,4)}, {v(vSt)}, {s(SWS,4)}, 0 offen sc1"); ops.append('st')
                    if role == 0:
                        if (self.tp & 8) and i == self.t1it:
                            self.touch(SW1, (sT, 1, 3))
                    if later and i < 7: later.pop(0)()
                if role == 1:
                    for o in rds: a(o)
                    rds = []
                    extras()
                if i > 0:
                    P_ = SET[(i - 1) % 2]
                    for n in range(4):
                        for tj in range(ntile):
                            c_in = "0" if (i == 1 and n == 0) else v(ACC+16*tj, 16)
                            mfs.append(f"{MF} {v(ACC+16*tj,16)}, {v(P_+16+16*tj+4*n,4)}, {v(P_+4*n,4)}, {c_in}")
                    for tj in range(ntile):
                        for d in range(4): a(f"v_dot2c_f32_bf16 {v(vCs+tj)}, {s(sONES)}, {v(P_+16+16*tj+d)}")
                if i == 7:
                    a(mfs.pop(0)); a(mfs.pop(0))
                    for tj in range(ntile): a(f"ds_write_b32 {v(91)}, {v(vCs+tj)} offset:{1024*tj}")
                nm = max(1, len(mfs))
                for g_ in range(nm):
                    if mfs: a(mfs[g_])
                    for o in rds[g_*len(rds)//nm:(g_+1)*len(rds)//nm]: a(o)
                if role == 0: extras()
                if self.fine and i < 7: self.ts(f"c{i} end")
            self.ts("p1 loop done")
            nafter = len(ops) - 1 - max(k for k, o in enumerate(ops) if o == 'st') + (1 if (role == 0 and (self.tp & 8)) else 0)
            a(f"s_waitcnt vmcnt({nafter})")
            a(f"s_mov_b32 {s(sSPIN)}, 200000")
            a(f"s_and_b32 {s(sT2)}, {s(sTOK+1)}, 0xffff")
            lab = a.loop_label(a.newlabel("SVL")); done = a.newlabel("SVD")
            a(f"v_lshrrev_b32 {v(T)}, 16, {v(vFl+1)}")
            a(f"v_xor_b32 {v(T)}, {s(sT2)}, {v(T)}")
            a(f"v_xor_b32 {v(T2)}, {s(sTOK)}, {v(vFl+3)}")
            a(f"v_or_b32 {v(T)}, {v(T)}, {v(T2)}")
            a(f"v_cmp_ne_u32 vcc, 0, {v(T)}")
            a(f"s_sub_u32 {s(sSPIN)}, {s(sSPIN)}, 1")
            a(f"s_cbranch_scc1 {done}")
            a("s_nop 2")
            a(f"s_cbranch_vccz {done}")
            a("s_sleep 2")
            a(f"buffer_load_dwordx4 {v(vFl,4)}, {v(vSt)}, {s(SWS,4)}, 0 offen sc1")
            a("s_waitcnt vmcnt(0)")
            a(f"s_branch {lab}")
            a.label(done)
            a(f"v_mov_b32 {v(BM)}, {v(vFl)}")
            a(f"v_and_b32 {v(BM+1)}, 0xffff, {v(vFl+1)}")
            a(f"v_mov_b32 {v(vRS)}, {v(vFl+2)}")
            a(f"v_mul_f32 {v(vRS+1)}, {f32bits(28**-0.5*LOG2E):#x}, {v(vFl+2)}")
            a("s_waitcnt lgkmcnt(0)")
            a("s_barrier")
            self.ts("stat barrier")
            S0 = WB
            for tj in range(ntile):
                for k in range(4): a(f"ds_read2_b32 {v(S0+8*tj+2*k,2)}, {v(92+tj)} offset0:{64*k} offset1:{64*k+32}")
            for tj in range(ntile):
                a(f"s_cmp_eq_u32 {s(sU0+tj)}, 1")
                a(f"s_cselect_b64 {s(sSAVE,2)}, -1, 0")
                a(f"v_cndmask_b32 {v(SCL+2*tj)}, {v(vRS)}, {v(vRS+1)}, {s(sSAVE,2)}")
                a(f"v_cndmask_b32 {v(SCL+2*tj+1)}, {v(vRS)}, {v(vRS+1)}, {s(sSAVE,2)}")
            for tj in range(ntile):
                c0 = S0 + 8 * tj
                a(f"s_waitcnt lgkmcnt({4*(ntile-1-tj)})")
                a(f"v_pk_add_f32 {v(c0,2)}, {v(c0,2)}, {v(c0+2,2)}")
                a(f"v_pk_add_f32 {v(c0+4,2)}, {v(c0+4,2)}, {v(c0+6,2)}")
                a(f"v_pk_add_f32 {v(c0,2)}, {v(c0,2)}, {v(c0+4,2)}")
                a(f"v_add_f32 {v(c0)}, {v(c0)}, {v(c0+1)}")
                self.cs_operand(AM + 4 * tj, c0)
                a(f"{MF} {v(ACC+16*tj,16)}, {v(AM+4*tj,4)}, {v(BM,4)}, {v(ACC+16*tj,16)}")
            for tj in range(ntile):
                PK = WB + 8 * tj
                A_ = ACC + 16 * tj
                for h_ in range(2):
                    for k in range(4): a(f"v_pk_mul_f32 {v(A_+8*h_+2*k,2)}, {v(A_+8*h_+2*k,2)}, {v(SCL+2*tj,2)}")
                    for k in range(4): a(f"v_cvt_pk_bf16_f32 {v(PK+4*h_+k)}, {v(A_+8*h_+2*k)}, {v(A_+8*h_+2*k+1)}")
                for h_ in range(2):
                    a(f"v_permlane32_swap_b32 {v(PK+4*h_)}, {v(PK+4*h_+2)}")
                    a(f"v_permlane32_swap_b32 {v(PK+4*h_+1)}, {v(PK+4*h_+3)}")
                    a(f"buffer_store_dwordx4 {v(PK+4*h_,4)}, {v(vSA+tj)}, {s(SWS,4)}, 0 offen offset:{1024*h_} sc1")
            self.ts("qkv stores issued")
            if role == 0: a(f"s_branch {lrj}")
        a.label(lrj)
        if self.stop_after >= 2: self.p2_copy()
        self.publish(0, True)
        self.ts("QKV published")
        if full: self.wo_read()
        self.lpad = lpad


    def stage_rows128(self, srd, rowstride, scol, ldsbase, vsrc=2):
        a = self.a
        a(f"s_mul_i32 {s(sT0)}, {s(sW)}, 56")
        self.rows128_src(vsrc, rowstride, sT0, scol)
        a(f"s_mul_i32 {s(sT1)}, {s(sW)}, 7168")
        for j in range(7):
            a(f"s_mov_b32 {s(sT0)}, {8*j*rowstride}")
            self.dma(vsrc, srd, sT0, (sT1, ldsbase + 1024 * j))

    def move_frags(self, dst, vaddr, nsteps, perm, off0=0):
        a = self.a
        for k in range(nsteps):
            a(f"ds_read_b64_tr_b16 {v(dst+4*k,2)}, {v(vaddr)} offset:{off0+k*2048}")
            a(f"ds_read_b64_tr_b16 {v(dst+4*k+2,2)}, {v(vaddr)} offset:{off0+k*2048+(1024 if perm else 512)}")

    def busy_begin(self):
        a = self.a
        l = a.newlabel("NB")
        a(f"s_cmp_eq_u32 {s(sBUSY)}, 0")
        a(f"s_cbranch_scc1 {l}")
        return l

    def idle_path(self):
        main = self.a
        side = Asm(); side.nlabel = 100000
        self.a = a = side
        lpad = self.lpad
        a("s_nop 15") if False else None
        a.label(lpad)
        a(f"s_lshl_b32 {s(sT0)}, {s(sR)}, 7")
        a(f"s_sub_u32 {s(sT1)}, {s(sC)}, 14")
        a(f"s_lshl_b32 {s(sT1)}, {s(sT1)}, 6")
        a(f"s_add_u32 {s(sT0)}, {s(sT0)}, {s(sT1)}")
        a(f"v_lshrrev_b32 {v(2)}, 3, v0")
        a(f"v_add_u32 {v(2)}, {s(sT0)}, {v(2)}")
        a(f"v_mul_u32_u24 {v(3)}, 896, {v(2)}")
        a(f"v_and_b32 {v(T)}, 7, v0")
        a(f"v_lshl_add_u32 {v(3)}, {v(T)}, 4, {v(3)}")
        for j in range(7): a(f"buffer_load_dwordx4 {v(32+4*j,4)}, {v(3)}, {s(SX,4)}, 0 offen offset:{128*j}")
        self.flag_pretouch()
        self.idle_extra = 0
        a(f"v_mov_b32 v4, 0")
        a(f"v_mov_b32 v5, 0")
        for j in range(7):
            a(f"s_waitcnt vmcnt({7-j})")
            if j == 3: self.token_load(24)
            if j == 6: a("s_waitcnt vmcnt(0)")
            for k in range(4): a(f"v_dot2c_f32_bf16 v4, {s(sONES)}, {v(32+4*j+k)}")
            for k in range(4): a(f"v_dot2c_f32_bf16 v5, {v(32+4*j+k)}, {v(32+4*j+k)}")
        for ctl in ("quad_perm:[1,0,3,2]", "quad_perm:[2,3,0,1]", "row_half_mirror"):
            a(f"v_add_f32_dpp v4, v4, v4 {ctl} row_mask:0xf bank_mask:0xf")
            a(f"v_add_f32_dpp v5, v5, v5 {ctl} row_mask:0xf bank_mask:0xf")
        self.stats_finish(4, 5, 6, 7)
        self.mean_operand(20, 6, 8)
        a(f"v_mov_b32 v22, v7")
        self.token_take(24)
        a(f"s_lshl_b32 {s(sT0)}, {s(sTOK+1)}, 16")
        a(f"v_or_b32 v21, {s(sT0)}, v21")
        a(f"v_mov_b32 v23, {s(sTOK)}")
        a(f"v_lshlrev_b32 v2, 4, v2")
        a(f"v_add_u32 v2, {XS_OFF}, v2")
        self.set_exec(0x0101010101010101)
        a(f"buffer_store_dwordx4 v[20:23], v2, {s(SWS,4)}, 0 offen sc1")
        a("s_mov_b64 exec, -1")
        self.ts("stats stored")
        a(f"s_sub_u32 {s(sT0)}, {s(sC)}, 14")
        a(f"s_lshl_b32 {s(sT0)}, {s(sT0)}, 3")
        a(f"s_add_u32 {s(sT0)}, {s(sT0)}, {s(sW)}")
        a(f"s_lshl_b32 {s(sT0)}, {s(sT0)}, 6")
        a(f"s_lshl_b32 {s(sT1)}, {s(sR)}, 2")
        a(f"s_add_u32 {s(sT0)}, {s(sT0)}, {s(sT1)}")
        a(f"s_lshl_b32 {s(sT0)}, {s(sT0)}, 11")
        a(f"s_add_u32 {s(sT0)}, {s(sT0)}, {O_OFF}")
        a(f"v_lshlrev_b32 {v(T)}, 7, v1")
        a(f"buffer_load_dword {v(86)}, {v(T)}, {s(SWS,4)}, {s(sT0)} offen sc1")
        if self.stop_after >= 2:
            self.p2_pre(); self.p2_copy()
        self.publish(0, True)
        if self.tp & 12:
            l = a.newlabel("M3")
            a(f"s_cmp_eq_u32 {s(sROLE)}, 0")
            a(f"s_cbranch_scc1 {l}")
            self.touch(SW1, (sT, 1, 3))
            a.label(l)
        self.idle_touch_setup()
        if self.tp & 2:
            lI = "L_P2POLL"
            rounds = [(SWO, h) for h in range(3)] + [(SW1, h) for h in range(self.n1)]
            a(f"v_mov_b32 {v(58)}, {L_FLAG}")
            for srd, h in rounds:
                l1_, l2_ = a.newlabel("IR"), a.newlabel("IR")
                a(f"s_cmp_eq_u32 {s(sROLE)}, 0")
                a(f"s_cbranch_scc1 {l1_}")
                a(f"s_mov_b32 {s(sT0)}, {h*131072}")
                a(f"buffer_load_dword {v(86)}, {v(56)}, {s(srd,4)}, {s(sT0)} offen")
                a("s_waitcnt vmcnt(0)")
                a.label(l1_)
                a(f"s_cmp_lg_u32 {s(sW)}, 0")
                a(f"s_cbranch_scc1 {l2_}")
                a(f"buffer_load_dwordx2 {v(62,2)}, {v(61)}, {s(SWS,4)}, 0 offen{self.kvsc}")
                a("s_waitcnt vmcnt(0)")
                self.flag_check(62, 64)
                a(f"s_bcnt1_i32_b64 {s(sT0)}, vcc")
                a(f"v_mov_b32 {v(59)}, {s(sT0)}")
                a(f"ds_write_b32 {v(58)}, {v(59)}")
                a.label(l2_)
                a("s_waitcnt lgkmcnt(0)")
                a("s_barrier")
                a(f"ds_read_b32 {v(59)}, {v(58)}")
                a("s_waitcnt lgkmcnt(0)")
                a(f"v_readfirstlane_b32 {s(sT0)}, {v(59)}")
                a("s_barrier")
                a(f"s_cmp_lt_u32 {s(sT0)}, 50")
                a(f"s_cbranch_scc1 {lI}")
        a("s_nop 7")
        a("s_branch L_P2POLL")
        self.a = main
        self.side = side

    def wo_addr(self):
        a = self.a
        if True:
            a(f"s_and_b32 {s(sU0)}, {s(sW)}, 1")
            a(f"s_lshl_b32 {s(sU0)}, {s(sU0)}, 6")
            a(f"s_mul_i32 {s(sT0)}, {s(sROLE)}, {224*128}")
            a(f"s_add_u32 {s(sT0)}, {s(sT0)}, {L_WO}")
            self.tr128_addr(58, False, sT0)
            a(f"s_and_b32 {s(sT1)}, {s(sW)}, 2")
            a(f"s_lshl_b32 {s(sT1)}, {s(sT1)}, 4")
            a(f"v_and_b32 {v(T)}, 31, v1")
            a(f"v_add_u32 {v(T)}, {s(sT1)}, {v(T)}")
            a(f"s_lshl_b32 {s(sT0)}, {s(sROLE)}, 5")
            a(f"s_add_u32 {s(sT0)}, {s(sT0)}, {s(sU0)}")
            a(f"v_lshrrev_b32 {v(T2)}, 5, v1")
            a(f"v_lshl_add_u32 {v(T2)}, {v(T2)}, 3, {s(sT0)}")
            a(f"v_bfe_u32 {v(59)}, v1, 1, 1")
            a(f"v_lshlrev_b32 {v(59)}, 6, {v(59)}")
            a(f"v_xor_b32 {v(59)}, {v(59)}, {v(T2)}")
            a(f"v_lshl_add_u32 {v(59)}, {v(T)}, 7, {v(59)}")
            a(f"v_add_u32 {v(59)}, {L_XR}, {v(59)}")
            a(f"s_lshl_b32 {s(sT0)}, {s(sR)}, 7")
            a(f"s_lshl_b32 {s(sT1)}, {s(sTH)}, 6")
            a(f"s_add_u32 {s(sT0)}, {s(sT0)}, {s(sT1)}")
            a(f"v_add_u32 {v(T)}, {s(sT0)}, {v(T)}")
            a(f"v_mul_u32_u24 {v(T)}, 896, {v(T)}")
            a(f"s_lshl_b32 {s(sT0)}, {s(sCT)}, 7")
            a(f"v_add3_u32 {v(85)}, {v(T)}, {v(T2)}, {s(sT0)}")

    def wo_read(self):
        a = self.a
        if True:
            for k in range(16):
                d = R_C + 4 * k if k < 14 else 232 + 4 * (k - 14)
                off = (28 * (k // 2) + 16 * (k % 2) - 4 * ((k // 2) & 1)) * 128
                a(f"ds_read_b64_tr_b16 {v(d,2)}, {v(58)} offset:{off}")
                a(f"ds_read_b64_tr_b16 {v(d+2,2)}, {v(58)} offset:{off+512}")
            a(f"ds_read_b64 {v(vHRES,2)}, {v(59)}")
            a(f"ds_read_b64 {v(vHRES+2,2)}, {v(59)} offset:16")

    def p2_pre(self):
        a = self.a
        QF = 72; SR = R_A; OA = 16; KB = 32; vM = 12
        AO = R_A + 80; BN = R_A + 84
        a(f"s_mul_i32 {s(sT0)}, {s(sC)}, 7")
        a(f"s_lshr_b32 {s(sT0)}, {s(sT0)}, 1")
        a(f"v_lshrrev_b32 {v(T)}, 5, v1")
        a(f"v_and_b32 {v(69)}, 31, v1")
        for p_ in range(2):
            a(f"v_add3_u32 {v(T2)}, {v(T)}, {s(sT0)}, {2*p_}")
            a(f"v_lshrrev_b32 {v(65+p_)}, 2, {v(T2)}")
            a(f"v_lshlrev_b32 {v(65+p_)}, 17, {v(65+p_)}")
            a(f"v_and_b32 {v(T2)}, 3, {v(T2)}")
            a(f"v_lshl_add_u32 {v(65+p_)}, {v(T2)}, 9, {v(65+p_)}")
        a(f"s_and_b32 {s(82)}, {s(sW)}, 1")
        a(f"s_cmp_eq_u32 {s(82)}, 1")
        a(f"s_cselect_b64 {s(sSAVE,2)}, -1, 0")
        a(f"v_cndmask_b32 {v(68)}, {v(65)}, {v(66)}, {s(sSAVE,2)}")
        a(f"v_lshl_add_u32 {v(67)}, {v(69)}, 4, {v(68)}")
        a(f"s_lshl_b32 {s(sT1)}, {s(82)}, 1")
        a(f"v_add_u32 {v(T2)}, {s(sT1)}, {v(T)}")
        a(f"v_lshlrev_b32 {v(T2)}, 2, {v(T2)}")
        a(f"v_sub_u32 {v(T2)}, {v(69)}, {v(T2)}")
        a(f"v_and_b32 {v(T2)}, 31, {v(T2)}")
        a(f"v_lshl_add_u32 {v(68)}, {v(T2)}, 4, {v(68)}")
        a(f"v_lshl_add_u32 {v(65)}, {v(69)}, 4, {v(65)}")
        a(f"v_lshl_add_u32 {v(66)}, {v(69)}, 4, {v(66)}")
        a(f"s_lshl_b32 {s(sT1)}, {s(sR)}, 2")
        a(f"s_add_u32 {s(sT2)}, {s(sT1)}, {s(sT)}")
        a(f"s_lshl_b32 {s(72)}, {s(sT2)}, 11")
        a(f"s_lshl_b32 {s(sT3)}, {s(sC)}, 17")
        a(f"s_add_u32 {s(73)}, {s(72)}, {s(sT3)}")
        a(f"s_add_u32 {s(73)}, {s(73)}, {O_OFF}")
        a(f"s_lshr_b32 {s(sT3)}, {s(sW)}, 1")
        a(f"s_mul_i32 {s(sT3)}, {s(sT3)}, 3")
        a(f"s_add_u32 {s(sT1)}, {s(sT1)}, {s(sT3)}")
        a(f"s_add_u32 {s(sT1)}, {s(sT1)}, {14*64-8}")
        a(f"s_lshl_b32 {s(74)}, {s(sT1)}, 11")
        a(f"s_lshl_b32 {s(sT3)}, {s(sT3)}, 11")
        a(f"s_lshl_b32 {s(75)}, {s(82)}, 10")
        a(f"s_add_u32 {s(75)}, {s(75)}, {s(sT3)}")
        vK = 2; vV = 3
        sB = sT4
        a(f"s_lshl_b32 {s(sT0)}, {s(sROLE)}, 2")
        a(f"s_sub_u32 {s(76)}, {s(sT)}, {s(sT0)}")
        a(f"s_add_u32 {s(76)}, {s(76)}, 4")
        a(f"s_lshl_b32 {s(sT0)}, {s(76)}, 11")
        a(f"s_add_u32 {s(sT0)}, {s(sT0)}, {L_K}")
        a(f"v_lshl_add_u32 {v(vK)}, v1, 4, {s(sT0)}")
        a(f"v_bfe_u32 {v(T)}, v1, 4, 1")
        a(f"v_and_b32 {v(vV)}, 3, v1")
        a(f"v_lshl_add_u32 {v(T)}, {v(T)}, 2, {v(vV)}")
        a(f"v_lshrrev_b32 {v(T2)}, 1, {v(T)}")
        a(f"v_lshrrev_b32 {v(vV)}, 5, v1")
        a(f"v_add_u32 {v(vV)}, {v(vV)}, {v(T2)}")
        a(f"v_bfe_u32 {v(vV+1)}, v1, 2, 2")
        a(f"v_lshl_add_u32 {v(8)}, {v(vV)}, 2, {v(vV+1)}")
        a(f"v_lshl_add_u32 {v(T2)}, {v(T2)}, 9, {s(sT0)}")
        a(f"v_and_b32 {v(vV)}, 1, v1")
        a(f"v_lshl_add_u32 {v(T2)}, {v(vV)}, 3, {v(T2)}")
        a(f"v_add_u32 {v(T2)}, {L_V-L_K}, {v(T2)}")
        a(f"s_and_b32 {s(sT1)}, {s(sC)}, 1")
        a(f"s_mul_i32 {s(sT1)}, {s(sT1)}, 7")
        a(f"s_sub_u32 {s(sT1)}, 7, {s(sT1)}")
        a(f"v_cmp_eq_u32 {s(sSAVE,2)}, {s(sT1)}, {v(T)}")
        a(f"v_mov_b32 {v(T)}, {L_ONES}")
        for k in range(4):
            a(f"v_add_u32 {v(vV+k)}, {8*k}, {v(8)}")
            a(f"v_and_b32 {v(vV+k)}, 31, {v(vV+k)}")
            a(f"v_lshl_add_u32 {v(vV+k)}, {v(vV+k)}, 4, {v(T2)}")
            a(f"v_cndmask_b32 {v(vV+k)}, {v(vV+k)}, {v(T)}, {s(sSAVE,2)}")
        sFV = sT5
        a(f"s_lshl_b32 {s(sT0)}, {s(sR)}, 2")
        a(f"s_sub_i32 {s(77)}, 8, {s(sT0)}")
        a(f"s_sub_i32 {s(77)}, {s(77)}, {s(76)}")
        a(f"s_mov_b32 {s(sT0)}, 0")
        a(f"s_lshl_b32 {s(sT2)}, {s(sC)}, 8")
        self.rows128_src(9, 3584, sT0, sT2)
        sWs8, sWl8, sWs4, sWl4 = sKC, sKC + 1, sKC + 2, sKC + 3
        a(f"s_mul_i32 {s(78)}, {s(sW)}, {8*3584}")
        a(f"s_lshl_b32 {s(79)}, {s(sW)}, 10")
        a(f"s_mul_i32 {s(80)}, {s(sT)}, {8*3584}")
        a(f"s_lshl_b32 {s(81)}, {s(sT)}, 10")
        vMA, vMX, vOS = 7, 8, 10
        a(f"s_mul_i32 {s(sT0)}, {s(sT)}, 4608")
        a(f"s_add_u32 {s(sT0)}, {s(sT0)}, {L_MRG}")
        a(f"v_lshl_add_u32 {v(vMA)}, v1, 4, {s(sT0)}")
        a(f"s_lshl_b32 {s(sT1)}, {s(sROLE)}, 8")
        a(f"s_add_u32 {s(sT0)}, {s(sT0)}, {s(sT1)}")
        a(f"s_add_u32 {s(sT0)}, {s(sT0)}, 4096")
        a(f"v_lshl_add_u32 {v(vMX)}, v1, 2, {s(sT0)}")
        a(f"v_xor_b32 {v(11)}, 256, {v(vMX)}")
        assert (L_MRG + 4096) % 512 == 0 and 4608 % 512 == 0
        a(f"v_lshl_add_u32 {v(vOS)}, v1, 4, {s(73)}")
        a(f"v_lshrrev_b32 {v(T)}, 4, v1")
        a(f"v_sub_u32 {v(T)}, {s(sR)}, {v(T)}")
        a(f"v_max_i32 {v(T)}, 0, {v(T)}")
        a(f"v_and_b32 {v(T2)}, 15, v1")
        a(f"v_cmp_le_u32 vcc, 7, {v(T2)}")
        a(f"v_cndmask_b32 {v(62)}, 0, 1, vcc")
        a(f"v_and_b32 {v(60)}, 12, {v(T)}")
        a(f"v_lshl_add_u32 {v(60)}, {v(62)}, 1, {v(60)}")
        a(f"v_bfe_u32 {v(61)}, {v(T)}, 1, 1")
        a(f"v_add_u32 {v(60)}, {v(60)}, {v(61)}")
        a(f"v_and_b32 {v(61)}, 1, {v(T)}")
        a(f"v_sub_u32 {v(61)}, {v(61)}, {v(62)}")
        a(f"v_mad_i32_i24 {v(61)}, {v(61)}, 7, {v(T2)}")
        a(f"v_cmp_le_u32 vcc, 14, {v(T2)}")
        a(f"v_cndmask_b32 {v(60)}, {v(60)}, {v(T)}, vcc")
        a(f"v_cndmask_b32 {v(61)}, {v(61)}, {v(T2)}, vcc")
        a(f"v_mov_b32 {v(62)}, {s(sR)}")
        a(f"v_cmp_le_u32 vcc, 48, v1")
        a(f"v_cndmask_b32 {v(60)}, {v(60)}, {v(62)}, vcc")
        a(f"v_cndmask_b32 {v(61)}, {v(61)}, {v(T2)}, vcc")
        a(f"v_lshl_add_u32 {v(60)}, {v(60)}, 4, {v(61)}")
        a(f"v_lshlrev_b32 {v(T)}, 7, {v(60)}")
        a(f"v_add_u32 {v(61)}, {FL0_OFF}, {v(T)}")

    def p2_copy(self):
        a = self.a
        for d, src in ((sKC+6, 72), (sU1, 73), (sKC+4, 74), (sKC+5, 75), (sT4, 76), (sT5, 77), (sKC, 78), (sKC+1, 79)):
            a(f"s_mov_b32 {s(d)}, {s(src)}")
        a(f"v_mov_b32 {v(T)}, {L_ONES}")
        a(f"v_lshl_add_u32 {v(T)}, v1, 11, {v(T)}")
        a(f"v_mov_b32 {v(70)}, 0x3f80")
        a(f"v_mov_b32 {v(71)}, 0")
        a("s_mov_b64 exec, 31")
        a(f"ds_write_b64 {v(T)}, {v(70,2)}")
        a("s_mov_b64 exec, -1")

    def p2_late(self):
        a = self.a
        OA = 16; AO = R_A + 80; BN = R_A + 84
        a(f"v_mov_b32 {v(T)}, {s(sONES)}")
        a(f"v_cndmask_b32 {v(AO)}, {v(T)}, 0, {s(sHI,2)}")
        for k in range(1, 4): a(f"v_mov_b32 {v(AO+k)}, 0")
        for k in range(1, 4): a(f"v_mov_b32 {v(BN+k)}, 0")
        for k in range(16): a(f"v_mov_b32 {v(OA+k)}, 0")
        self.masks()

    def p2(self):
        a = self.a
        QF = 72
        SR = R_A
        OA = 16
        KB = 32
        vM = 12
        AO = R_A + 80
        BN = R_A + 84
        full = self.stop_after >= 3
        vK = 2; vV = 3; sB = sT4; sFV = sT5
        sWs8, sWl8, sWs4, sWl4 = sKC, sKC + 1, sKC + 2, sKC + 3
        vMA, vMX, vOS = 7, 8, 10
        lw = a.newlabel("P2W"); lw0 = a.newlabel("P2W")
        def w1dma(items, four):
            if not full: return
            l = self.busy_begin()
            for dp, q0 in items:
                a(f"s_add_u32 {s(sT0)}, {s(sWs4 if four else sWs8)}, {q0*8*3584 + 128*dp}")
                self.dma(9, SW1, sT0, (sWl4 if four else sWl8, L_W1B * dp + 1024 * q0))
            a.label(l)
        self.idle_path()
        a.label("L_P2POLL")
        self.ts("pre poll")
        a(f"s_cmp_lg_u32 {s(sW)}, 0")
        a(f"s_cbranch_scc1 {lw}")
        self.poll(61, 62, 64, (1 << 64) - 1, "KV", sleep=self.kvsleep, sc=self.kvsc)
        self.ts("poll done")
        self.set_exec(0xffff << 48)
        a(f"v_lshrrev_b32 {v(63)}, 28, {v(63)}")
        a(f"v_cmp_ne_u32 vcc, {s(sXCC)}, {v(63)}")
        a(f"s_mov_b64 exec, -1")
        a(f"s_cmp_eq_u64 vcc, 0")
        a(f"s_cselect_b32 {s(sT0)}, 1, 0")
        a(f"v_mov_b32 {v(T2)}, {s(sT0)}")
        a(f"v_mov_b32 {v(T)}, {L_FLAG}")
        a(f"ds_write_b32 {v(T)}, {v(T2)}")
        a.label(lw)
        a("s_waitcnt lgkmcnt(0)")
        self.ts("own wait done")
        a("s_barrier")
        self.ts("QKV flags seen")
        for k in range(3):
            a(f"s_add_u32 {s(sT3)}, {s(sKC+4)}, {2048*k}")
            self.dma(67, SWS, sT3, (sKC+5, L_K + 2048 * k), sc1=True)
        for p_ in range(2):
            a(f"buffer_load_dwordx4 {v(QF+4*p_,4)}, {v(65+p_)}, {s(SWS,4)}, {s(sKC+6)} offen sc1")
        a(f"v_mov_b32 {v(T)}, {L_FLAG}")
        a(f"ds_read_b32 {v(13)}, {v(T)}")
        self.p2_late()
        a("s_waitcnt lgkmcnt(0)")
        a(f"v_readfirstlane_b32 {s(sLOCAL)}, {v(13)}")
        a("s_waitcnt vmcnt(0)")
        a("s_barrier")
        self.ts("K landed")
        for k in range(3):
            a(f"s_add_u32 {s(sT3)}, {s(sKC+4)}, {2048*k+14*64*2048}")
            self.dma(68, SWS, sT3, (sKC+5, L_V + 2048 * k), sc1=True)
        NEG = f32bits(-1.0e30)
        def valid_branch(j, lab):
            if j == 4:
                a(f"s_cmp_eq_u32 {s(sROLE)}, 1")
                a(f"s_cbranch_scc1 {lab}")
            else:
                a(f"s_cmp_gt_i32 {s(sFV)}, {j}")
                a(f"s_cbranch_scc1 {lab}")
        for j in range(5):
            for k in range(2):
                a(f"ds_read_b128 {v(KB+8*j+4*k,4)}, {v(vK)} offset:{2048*j+1024*k}")
        def zero_foreign(base):
            lz1, lz2 = a.newlabel("ZF"), a.newlabel("ZF")
            a(f"s_bitcmp1_b32 {s(sC)}, 0")
            a(f"s_cbranch_scc1 {lz1}")
            a(f"v_cndmask_b32 {v(base+6)}, {v(base+6)}, 0, {s(sHI,2)}")
            a(f"v_cndmask_b32 {v(base+7)}, {v(base+7)}, 0, {s(sHI,2)}")
            a(f"s_branch {lz2}")
            a.label(lz1)
            a(f"v_cndmask_b32 {v(base)}, 0, {v(base)}, {s(sHI,2)}")
            a(f"v_cndmask_b32 {v(base+1)}, 0, {v(base+1)}, {s(sHI,2)}")
            a.label(lz2)
        zero_foreign(QF)
        a(f"v_mov_b32 {v(vM)}, {NEG:#x}")
        a(f"v_mov_b32 {v(13)}, {NEG:#x}")
        for j in range(5):
            lsk = a.newlabel("QS")
            a(f"s_waitcnt lgkmcnt({8-2*j})")
            valid_branch(j, lsk)
            a(f"{MF} {v(SR+16*j,16)}, {v(KB+8*j,4)}, {v(QF,4)}, 0")
            a(f"{MF} {v(SR+16*j,16)}, {v(KB+8*j+4,4)}, {v(QF+4,4)}, {v(SR+16*j,16)}")
            a.label(lsk)
        sched = self.w1sched
        rounds = [(0, 8 * k) for k in range(7)] + [(1, 8 * k) for k in range(7)]
        def w1next(n):
            it = [rounds.pop(0) for _ in range(min(n, len(rounds)))]
            if it: w1dma(it, False)
            return len(it)
        npre_max = 0
        a(f"v_mov_b32 {v(T)}, {NEG:#x}")
        for j in range(5):
            lsk = a.newlabel("MX")
            valid_branch(j, lsk)
            b = SR + 16 * j
            if j == 4:
                for k in range(16): a(f"v_cndmask_b32 {v(b+k)}, {v(T)}, {v(b+k)}, {s(sMASK+2*k,2)}")
            if j == 0:
                lm = a.newlabel("MK")
                a(f"s_cmp_eq_u32 {s(sROLE)}, 0")
                a(f"s_cbranch_scc1 {lm}")
                for k in range(16): a(f"v_cndmask_b32 {v(b+k)}, {v(b+k)}, {v(T)}, {s(sMASK+2*k,2)}")
                a.label(lm)
            for k in range(8):
                d = vM if k % 2 == 0 else 13
                a(f"v_max3_f32 {v(d)}, {v(d)}, {v(b+2*k)}, {v(b+2*k+1)}")
            a.label(lsk)
            npre_max += w1next(sched[0][j])
        a(f"v_max_f32 {v(vM)}, {v(vM)}, {v(13)}")
        a(f"v_mov_b32 {v(T)}, {v(vM)}")
        a(f"v_permlane32_swap_b32 {v(T)}, {v(vM)}")
        a(f"v_max_f32 {v(vM)}, {v(vM)}, {v(T)}")
        a(f"ds_write_b32 {v(vMX)}, {v(vM)}")
        assert npre_max <= 11
        lv1, lv2 = a.newlabel("VW"), a.newlabel("VW")
        a(f"s_cmp_eq_u32 {s(sBUSY)}, 1")
        a(f"s_cbranch_scc1 {lv1}")
        a("s_waitcnt vmcnt(0)")
        a.label(lv1)
        a(f"s_waitcnt vmcnt({npre_max if full else 0}) lgkmcnt(0)")
        a("s_barrier")
        a(f"ds_read_b32 {v(T)}, {v(11)}")
        for j in range(5):
            for st in range(2):
                for rr in range(2):
                    a(f"ds_read_b64_tr_b16 {v(KB+8*j+4*st+2*rr,2)}, {v(vV+2*st+rr)} offset:{2048*j}")
        a("s_waitcnt lgkmcnt(15)")
        a(f"v_max_f32 {v(vM)}, {v(vM)}, {v(T)}")
        a(f"v_cvt_pk_bf16_f32 {v(T)}, -{v(vM)}, 0")
        a(f"v_lshlrev_b32 {v(T)}, 16, {v(T)}")
        a(f"v_sub_f32 {v(T)}, -{v(vM)}, {v(T)}")
        a(f"v_cvt_pk_bf16_f32 {v(BN)}, -{v(vM)}, {v(T)}")
        self.ts("max done")
        for j in range(5):
            lsk = a.newlabel("SB")
            valid_branch(j, lsk)
            a(f"{MF} {v(SR+16*j,16)}, {v(AO,4)}, {v(BN,4)}, {v(SR+16*j,16)}")
            a.label(lsk)
        w1next(sched[1])
        a("s_waitcnt lgkmcnt(0)")
        for j in range(5):
            lsk = a.newlabel("PS")
            valid_branch(j, lsk)
            b = SR + 16 * j
            for h_ in range(2):
                for k in range(8): a(f"v_exp_f32 {v(b+8*h_+k)}, {v(b+8*h_+k)}")
                for k in range(4): a(f"v_cvt_pk_bf16_f32 {v(b+8*h_+k)}, {v(b+8*h_+2*k)}, {v(b+8*h_+2*k+1)}")
            a(f"{MF} {v(OA,16)}, {v(KB+8*j,4)}, {v(b,4)}, {v(OA,16)}")
            a(f"{MF} {v(OA,16)}, {v(KB+8*j+4,4)}, {v(b+8,4)}, {v(OA,16)}")
            a.label(lsk)
            w1next(sched[2][j])
        assert not rounds
        self.ts("attn partial done")
        l1 = a.newlabel("MG")
        a(f"s_cmp_eq_u32 {s(sROLE)}, 1")
        a(f"s_cbranch_scc0 {l1}")
        for k in range(4): a(f"ds_write_b128 {v(vMA)}, {v(OA+4*k,4)} offset:{1024*k}")
        a.label(l1)
        a(f"s_lshl_b32 {s(sT1)}, {s(sR)}, 9")
        a(f"s_lshl_b32 {s(sT2)}, {s(sT)}, 7")
        a(f"s_add_u32 {s(sT1)}, {s(sT1)}, {s(sT2)}")
        a(f"s_lshl_b32 {s(sT2)}, {s(sC)}, 3")
        a(f"s_add_u32 {s(sT1)}, {s(sT1)}, {s(sT2)}")
        a(f"s_add_u32 {s(sT1)}, {s(sT1)}, {FLG(1)}")
        a(f"s_lshl_b32 {s(sT2)}, {s(sXCC)}, 28")
        a(f"s_or_b32 {s(sT2)}, {s(sT2)}, {s(sTOK+1)}")
        a(f"v_mov_b32 {v(13)}, {s(sT1)}")
        a(f"v_mov_b32 {v(60)}, {s(sTOK)}")
        a(f"v_mov_b32 {v(61)}, {s(sT2)}")
        a("s_waitcnt vmcnt(0) lgkmcnt(0)")
        a("s_barrier")
        self.ts("merge barrier")
        l2, l3 = a.newlabel("MG"), a.newlabel("MG")
        a(f"s_cmp_eq_u32 {s(sROLE)}, 0")
        a(f"s_cbranch_scc0 {l2}")
        O1 = 32
        for k in (3, 0, 1, 2): a(f"ds_read_b128 {v(O1+4*k,4)}, {v(vMA)} offset:{1024*k}")
        a(f"s_bitcmp1_b32 {s(sC)}, 0")
        a(f"s_cselect_b64 {s(sSAVE,2)}, -1, 0")
        a("s_waitcnt lgkmcnt(2)")
        for k in (6, 7, 0, 1): a(f"v_pk_add_f32 {v(OA+2*k,2)}, {v(OA+2*k,2)}, {v(O1+2*k,2)}")
        a(f"v_cndmask_b32 {v(T)}, {v(OA)}, {v(OA+12)}, {s(sHI,2)}")
        a(f"v_mov_b32 {v(T2)}, {v(T)}")
        a(f"v_permlane32_swap_b32 {v(T)}, {v(T2)}")
        a(f"v_cndmask_b32 {v(T2)}, {v(T2)}, {v(T)}, {s(sSAVE,2)}")
        a(f"v_rcp_f32 {v(T2)}, {v(T2)}")
        a("s_waitcnt lgkmcnt(0)")
        for k in (2, 3, 4, 5): a(f"v_pk_add_f32 {v(OA+2*k,2)}, {v(OA+2*k,2)}, {v(O1+2*k,2)}")
        a(f"v_mov_b32 {v(T)}, {v(T2)}")
        for aa in range(4):
            for k in range(2): a(f"v_pk_mul_f32 {v(OA+4*aa+2*k,2)}, {v(OA+4*aa+2*k,2)}, {v(T,2)}")
            for k in range(2): a(f"v_cvt_pk_bf16_f32 {v(O1+2*aa+k)}, {v(OA+4*aa+2*k)}, {v(OA+4*aa+2*k+1)}")
        zero_foreign(O1)
        for h_ in range(2):
            a(f"v_permlane32_swap_b32 {v(O1+4*h_)}, {v(O1+4*h_+2)}")
            a(f"v_permlane32_swap_b32 {v(O1+4*h_+1)}, {v(O1+4*h_+3)}")
        def ost(sc):
            for h_ in range(2):
                a(f"buffer_store_dwordx4 {v(O1+4*h_,4)}, {v(vOS)}, {s(SWS,4)}, 0 offen offset:{1024*h_}{sc}")
        if self.oplain: self.two_path(ost)
        else: ost(" sc1")
        if full: self.p3_addrA()
        a(f"s_mov_b64 exec, 1")
        a("s_waitcnt vmcnt(0)")
        self.two_path(lambda sc: a(f"buffer_store_dwordx2 {v(60,2)}, {v(13)}, {s(SWS,4)}, 0 offen{sc}"))
        a(f"s_mov_b64 exec, -1")
        self.ts("O flag stored")
        a(f"s_branch {l3}")
        a.label(l2)
        if full:
            self.p3_addrA()
            self.p3_moves()
        self.w1dma = w1dma
        a.label(l3)
        self.ts("O published")

    def w1_move(self, dp, ldsbase):
        a = self.a
        l = a.newlabel("W1M")
        a(f"s_lshr_b32 {s(sT0)}, {s(sT)}, 1")
        a(f"s_cmp_lg_u32 {s(sT0)}, {dp}")
        a(f"s_cbranch_scc1 {l}")
        a(f"s_and_b32 {s(sU0)}, {s(sW)}, 1")
        a(f"s_lshl_b32 {s(sU0)}, {s(sU0)}, 6")
        a(f"s_mov_b32 {s(sT0)}, {ldsbase}")
        self.tr128_addr(3, True, sT0)
        self.move_frags(R_A, 3, 28, True)
        a.label(l)

    def p3_addrA(self):
        a = self.a
        z = lambda k: 64 + k
        sN, sUu, sTile2 = z(0), z(1), z(2)
        a(f"s_and_b32 {s(sN)}, {s(sW)}, 1")
        a(f"s_bfe_u32 {s(sUu)}, {s(sW)}, 0x10001")
        a(f"s_lshl_b32 {s(sTile2)}, {s(sR)}, 2")
        a(f"s_lshl_b32 {s(sT1)}, {s(sTH)}, 1")
        a(f"s_add_u32 {s(sTile2)}, {s(sTile2)}, {s(sT1)}")
        a(f"s_lshl_b32 {s(sT0)}, {s(sROLE)}, 3")
        a(f"s_add_u32 {s(sT0)}, {s(sT0)}, {s(sN)}")
        a(f"s_lshl_b32 {s(sT1)}, {s(sT0)}, 6")
        a(f"s_add_u32 {s(sT1)}, {s(sT1)}, {s(sTile2)}")
        a(f"s_add_u32 {s(sT1)}, {s(sT1)}, {s(sUu)}")
        a(f"s_lshl_b32 {s(z(5))}, {s(sT1)}, 11")
        a(f"s_add_u32 {s(z(5))}, {s(z(5))}, {O_OFF}")
        a(f"s_lshl_b32 {s(sT1)}, {s(sUu)}, 14")
        a(f"s_lshl_b32 {s(sT2)}, {s(sROLE)}, 13")
        a(f"s_add_u32 {s(z(4))}, {s(sT1)}, {s(sT2)}")
        a(f"s_lshl_b32 {s(z(3))}, {s(sN)}, 11")
        a(f"s_add_u32 {s(z(3))}, {s(z(3))}, {s(z(4))}")

    def p3_moves(self):
        a = self.a
        lb = self.busy_begin()
        for k in range(8): a(f"v_mov_b32 {v(72+k)}, {v(232+k)}")
        a(f"s_and_b32 {s(sU0)}, {s(sW)}, 1")
        a(f"s_lshl_b32 {s(sU0)}, {s(sU0)}, 6")
        a(f"s_lshr_b32 {s(sT0)}, {s(sT)}, 1")
        a(f"s_mul_i32 {s(sT0)}, {s(sT0)}, {L_W1B}")
        self.tr128_addr(3, True, sT0)
        self.move_frags(R_A, 3, 28, True)
        a.label(lb)

    def p3_rest(self):
        a = self.a
        XR = 64
        z = lambda k: 64 + k
        sN, sUu, sTile2 = z(0), z(1), z(2)
        a(f"v_add_u32 {v(8)}, {s(z(4))}, {v(2)}")
        a(f"v_add_u32 {v(12)}, {114688}, {v(8)}")
        a(f"s_lshl_b32 {s(sT2)}, {s(sW)}, 11")
        a(f"s_add_u32 {s(sT2)}, {s(sT2)}, {L_RED3}")
        a(f"v_add_u32 {v(4)}, {s(sT2)}, {v(2)}")
        a(f"v_xor_b32 {v(5)}, 8192, {v(4)}")
        a(f"s_add_u32 {s(sT0)}, {s(sTile2)}, {s(sUu)}")
        a(f"s_mul_i32 {s(sT0)}, {s(sT0)}, 28")
        a(f"s_lshl_b32 {s(sT1)}, {s(sCT)}, 2")
        a(f"s_add_u32 {s(sT0)}, {s(sT0)}, {s(sT1)}")
        a(f"s_lshl_b32 {s(sT1)}, {s(sN)}, 1")
        a(f"s_add_u32 {s(sT0)}, {s(sT0)}, {s(sT1)}")
        a(f"s_add_u32 {s(sT0)}, {s(sT0)}, {s(sROLE)}")
        a(f"s_lshl_b32 {s(sT1)}, {s(sT0)}, 10")
        a(f"s_add_u32 {s(sT1)}, {s(sT1)}, {H_OFF}")
        a(f"v_add_u32 {v(6)}, {s(sT1)}, {v(2)}")
        a(f"s_lshl_b32 {s(sT1)}, {s(sT0)}, 8")
        a(f"s_add_u32 {s(sT1)}, {s(sT1)}, {HS_OFF}")
        a(f"v_lshl_add_u32 {v(7)}, v1, 2, {s(sT1)}")
        for k in range(4):
            a(f"v_lshlrev_b32 {v(XR+2*k)}, 16, {v(vHRES+k)}")
            a(f"v_and_b32 {v(XR+2*k+1)}, 0xffff0000, {v(vHRES+k)}")
        sKQ = z(7); self.sKQ = sKQ
        a(f"s_and_b32 {s(sKQ)}, {s(sW)}, 2")
        a(f"s_add_u32 {s(sKQ)}, {s(sKQ)}, {s(sROLE)}")
        a(f"s_mul_i32 {s(sT0)}, {s(sKQ)}, 448")
        a(f"s_lshl_b32 {s(sT2)}, {s(sN)}, 4")
        a(f"s_add_u32 {s(sT0)}, {s(sT0)}, {s(sT2)}")
        a(f"s_lshl_b32 {s(sT2)}, {s(sCT)}, 7")
        self.rows128_src(84, 896, sT0, sT2)
        a(f"v_add_u32 {v(11)}, {8*896-1024}, {v(84)}")
        sW2m = z(8); self.sW2m = sW2m
        a(f"s_lshl_b32 {s(sT0)}, {s(sKQ)}, 12")
        a(f"s_lshl_b32 {s(sT1)}, {s(sN)}, 11")
        a(f"s_add_u32 {s(sW2m)}, {s(sT0)}, {s(sT1)}")
        def w2d(p, ldsbase):
            a(f"s_mov_b32 {s(sT1)}, {32*p*896}")
            self.dma(84, SW2, sT1, (sW2m, ldsbase))
            self.dma(11, SW2, sT1, None, off=1024)
        self.w2dma = w2d

    def cs1(self, role):
        a = self.a
        a(f"v_mov_b32 {v(86)}, 0")
        a("s_waitcnt lgkmcnt(0)")
        for k in range(56): a(f"v_dot2c_f32_bf16 {v(86)}, {s(sONES)}, {v(R_A+56*role+k)}")

    def p3(self):
        a = self.a
        ACC = 16; FB = 32; XR = 64
        lb_ = a.newlabel("BZ")
        a(f"s_cmp_eq_u32 {s(sBUSY)}, 1")
        a(f"s_cbranch_scc1 {lb_}")
        if self.tp & 2:
            a(f"s_and_b32 {s(sT0)}, {s(sR)}, 1")
            a(f"s_lshl_b32 {s(sT0)}, {s(sT0)}, 1")
            a(f"s_add_u32 {s(sT0)}, {s(sT0)}, {s(sC)}")
            a(f"s_sub_u32 {s(sT0)}, {s(sT0)}, 14")
            a(f"s_mul_i32 {s(sT0)}, {s(sT0)}, {448*896}")
            a(f"s_mul_i32 {s(sT1)}, {s(sW)}, {56*128}")
            a(f"s_add_u32 {s(sT0)}, {s(sT0)}, {s(sT1)}")
            a(f"v_lshl_add_u32 {v(21)}, v1, 7, {s(sT0)}")
            a("s_waitcnt vmcnt(0)")
            a("s_barrier")
            self.set_exec((1 << 56) - 1)
            for k in self.post:
                a(f"s_mov_b32 {s(sT0)}, {k*64*896}")
                a(f"buffer_load_dword {v(86)}, {v(21)}, {s(SW2,4)}, {s(sT0)} offen")
            a("s_mov_b64 exec, -1")
        a(f"s_branch L_FIN")
        a.label(lb_)
        z = lambda k: 64 + k
        sN, sUu, sTile2 = z(0), z(1), z(2)
        a(f"v_lshlrev_b32 {v(2)}, 4, v1")
        self.poll_group(1, 32, 6, "O")
        self.ts("O flags seen")
        def adma3(st, base):
            for j in range(2):
                a(f"s_add_u32 {s(sT0)}, {s(z(5))}, {(4*st+2*j)*64*2048}")
                self.dma(2, SWS, sT0, (z(3), base + 4096 * j), sc1=True)
                self.dma(2, SWS, sT0, None, sc1=True, off=1024)
        adma3(0, 114688)
        wf = lambda k: R_C + 4 * k if k < 14 else 72 + 4 * (k - 14)
        lcs, lcs2 = a.newlabel("CS0"), a.newlabel("CS0")
        a(f"s_cmp_eq_u32 {s(sROLE)}, 1")
        a(f"s_cbranch_scc1 {lcs}")
        self.p3_moves()
        a(f"s_branch {lcs2}")
        a.label(lcs)
        self.cs1(1)
        a.label(lcs2)
        self.p3_rest()
        a("s_waitcnt vmcnt(0) lgkmcnt(0)")
        a("s_barrier")
        self.ts("O stage0 landed")
        adma3(1, 0)
        for k in range(8): a(f"ds_read_b128 {v(FB+4*k,4)}, {v(12)} offset:{1024*k}")
        for k in range(8):
            a(f"s_waitcnt lgkmcnt({7-k})")
            a(f"{MF} {v(ACC,16)}, {v(wf(k),4)}, {v(FB+4*k,4)}, {'0' if k==0 else v(ACC,16)}")
        a("s_waitcnt vmcnt(0)")
        a("s_barrier")
        for k in range(8): a(f"ds_read_b128 {v(FB+4*k,4)}, {v(8)} offset:{1024*k}")
        p3w2 = [(0, L_HR), (1, L_HR + 16384), (2, L_HR + 32768), (7, 81920), (8, 98304)][:3 + self.nex]
        for k in range(8):
            a(f"s_waitcnt lgkmcnt({7-k})")
            a(f"{MF} {v(ACC,16)}, {v(wf(8+k),4)}, {v(FB+4*k,4)}, {v(ACC,16)}")
            if k < len(p3w2) and self.stop_after >= 4 and not (self.exp & 2): self.w2dma(*p3w2[k])
        self.ts("p3 mfma done")
        l1, l2 = a.newlabel("R3"), a.newlabel("R3")
        a(f"s_cmp_eq_u32 {s(sROLE)}, 0")
        a(f"s_cbranch_scc0 {l1}")
        a(f"ds_write_b128 {v(4)}, {v(ACC+8,4)}")
        a(f"ds_write_b128 {v(4)}, {v(ACC+12,4)} offset:1024")
        for k in range(4): a(f"v_pk_add_f32 {v(XR+2*k,2)}, {v(XR+2*k,2)}, {v(ACC+2*k,2)}")
        a(f"s_branch {l2}")
        a.label(l1)
        a(f"ds_write_b128 {v(4)}, {v(ACC,4)}")
        a(f"ds_write_b128 {v(4)}, {v(ACC+4,4)} offset:1024")
        for k in range(4): a(f"v_pk_add_f32 {v(XR+2*k,2)}, {v(XR+2*k,2)}, {v(ACC+8+2*k,2)}")
        a.label(l2)
        a("s_waitcnt lgkmcnt(0)")
        a("s_barrier")
        a(f"ds_read_b128 {v(FB,4)}, {v(5)}")
        a(f"ds_read_b128 {v(FB+4,4)}, {v(5)} offset:1024")
        a("s_waitcnt lgkmcnt(0)")
        for k in range(4): a(f"v_pk_add_f32 {v(XR+2*k,2)}, {v(XR+2*k,2)}, {v(FB+2*k,2)}")
        for k in range(4): a(f"v_cvt_pk_bf16_f32 {v(vHRES+k)}, {v(XR+2*k)}, {v(XR+2*k+1)}")
        a(f"buffer_store_dwordx4 {v(vHRES,4)}, {v(6)}, {s(SWS,4)}, 0 offen sc1")
        a(f"v_pk_add_f32 {v(FB,2)}, {v(XR,2)}, {v(XR+2,2)}")
        a(f"v_pk_mul_f32 {v(FB+2,2)}, {v(XR,2)}, {v(XR,2)}")
        a(f"v_pk_add_f32 {v(FB+4,2)}, {v(XR+4,2)}, {v(XR+6,2)}")
        a(f"v_pk_fma_f32 {v(FB+2,2)}, {v(XR+2,2)}, {v(XR+2,2)}, {v(FB+2,2)}")
        a(f"v_pk_add_f32 {v(FB,2)}, {v(FB,2)}, {v(FB+4,2)}")
        a(f"v_pk_fma_f32 {v(FB+2,2)}, {v(XR+4,2)}, {v(XR+4,2)}, {v(FB+2,2)}")
        a(f"v_add_f32 {v(FB)}, {v(FB)}, {v(FB+1)}")
        a(f"v_pk_fma_f32 {v(FB+2,2)}, {v(XR+6,2)}, {v(XR+6,2)}, {v(FB+2,2)}")
        a(f"v_add_f32 {v(FB+1)}, {v(FB+2)}, {v(FB+3)}")
        a(f"v_permlane32_swap_b32 {v(FB)}, {v(FB+1)}")
        a(f"v_add_f32 {v(FB)}, {v(FB)}, {v(FB+1)}")
        a(f"buffer_store_dword {v(FB)}, {v(7)}, {s(SWS,4)}, 0 offen sc1")
        self.ts("H stores issued")
        if self.stop_after >= 4: self.p4_setup()
        self.publish(2)
        self.ts("H published")

    def p4_setup(self):
        a = self.a
        z = lambda k: 64 + k
        sN, sUu, sTile2, sKQ = z(0), z(1), z(2), self.sKQ
        a(f"v_mov_b32 {v(8)}, {v(84)}")
        a(f"v_mov_b32 {v(4)}, {v(11)}")
        a(f"s_lshl_b32 {s(sT0)}, {s(sKQ)}, 12")
        a(f"s_lshl_b32 {s(sU0)}, {s(sN)}, 6")
        self.tr128_addr(9, True, sT0)
        a(f"v_add_u32 {v(10)}, 65536, {v(9)}")
        lcs = a.newlabel("CS0")
        a(f"s_cmp_eq_u32 {s(sROLE)}, 1")
        a(f"s_cbranch_scc1 {lcs}")
        self.cs1(0)
        a.label(lcs)
        a(f"s_lshl_b32 {s(sT0)}, {s(sR)}, 2")
        a(f"s_lshl_b32 {s(sT1)}, {s(sROLE)}, 1")
        a(f"s_add_u32 {s(sT0)}, {s(sT0)}, {s(sT1)}")
        a(f"s_mul_i32 {s(sT2)}, {s(sT0)}, 28672")
        a(f"s_lshl_b32 {s(sT1)}, {s(sT)}, 11")
        a(f"s_add_u32 {s(sT2)}, {s(sT2)}, {s(sT1)}")
        a(f"s_add_u32 {s(sT2)}, {s(sT2)}, {H_OFF}")
        a(f"v_add_u32 {v(3)}, {s(sT2)}, {v(2)}")
        a(f"s_lshl_b32 {s(z(9))}, {s(sW)}, 11")
        a(f"s_mul_i32 {s(sT0)}, {s(sT0)}, 112")
        a(f"s_lshl_b32 {s(sT1)}, {s(sC)}, 3")
        a(f"s_add_u32 {s(sT0)}, {s(sT0)}, {s(sT1)}")
        a(f"s_lshl_b32 {s(sT1)}, {s(sT)}, 1")
        a(f"s_add_u32 {s(sT0)}, {s(sT0)}, {s(sT1)}")
        a(f"s_lshl_b32 {s(sT0)}, {s(sT0)}, 10")
        a(f"s_add_u32 {s(sT0)}, {s(sT0)}, {H1_OFF}")
        a(f"v_add_u32 {v(7)}, {s(sT0)}, {v(2)}")
        a(f"v_add_u32 {v(11)}, {112*1024}, {v(7)}")
        a(f"s_lshl_b32 {s(sT0)}, {s(sR)}, 2")
        a(f"s_add_u32 {s(sT0)}, {s(sT0)}, {s(sT)}")
        a(f"s_mul_i32 {s(sT0)}, {s(sT0)}, 28")
        a(f"s_mul_i32 {s(sT1)}, {s(sROLE)}, 14")
        a(f"s_add_u32 {s(sT0)}, {s(sT0)}, {s(sT1)}")
        a(f"s_lshl_b32 {s(sT0)}, {s(sT0)}, 8")
        a(f"s_add_u32 {s(z(10))}, {s(sT0)}, {HS_OFF}")
        a(f"s_lshl_b32 {s(sT0)}, {s(sROLE)}, 13")
        a(f"v_add_u32 {v(5)}, {s(sT0)}, {v(2)}")
        a(f"v_add_u32 {v(6)}, 114688, {v(5)}")
        a(f"s_lshl_b32 {s(sT0)}, {s(sR)}, 11")
        a(f"s_add_u32 {s(sT0)}, {s(sT0)}, {FLG(3)}")
        a(f"s_lshl_b32 {s(sT1)}, {s(sTH)}, 9")
        a(f"s_add_u32 {s(z(12))}, {s(sT0)}, {s(sT1)}")
        a(f"s_lshl_b32 {s(sT1)}, {s(sROLE)}, 9")
        a(f"s_add_u32 {s(sT0)}, {s(sT0)}, {s(sT1)}")
        a(f"s_lshl_b32 {s(sT1)}, {s(sC)}, 5")
        a(f"s_add_u32 {s(sT0)}, {s(sT0)}, {s(sT1)}")
        a(f"s_lshl_b32 {s(sT1)}, {s(sT)}, 3")
        a(f"s_add_u32 {s(z(11))}, {s(sT0)}, {s(sT1)}")
        a(f"s_lshl_b32 {s(z(13))}, {s(sXCC)}, 28")
        a(f"s_or_b32 {s(z(13))}, {s(z(13))}, {s(sTOK+1)}")
        a(f"s_mul_i32 {s(sT0)}, {s(sTile2)}, 112")
        a(f"s_mul_i32 {s(sT2)}, {s(sKQ)}, 28")
        a(f"s_add_u32 {s(sT0)}, {s(sT0)}, {s(sT2)}")
        a(f"s_lshl_b32 {s(sT1)}, {s(sN)}, 1")
        a(f"s_add_u32 {s(sT0)}, {s(sT0)}, {s(sT1)}")
        a(f"s_lshl_b32 {s(sT0)}, {s(sT0)}, 10")
        a(f"s_add_u32 {s(z(14))}, {s(sT0)}, {H1_OFF}")
        a(f"v_lshrrev_b32 {v(T)}, 5, v1")
        a(f"v_lshl_add_u32 {v(85)}, {v(T)}, 3, {v(85)}")

    def stream_gemm(self, N, CH, rd_text, mf_text, pre_barrier, hooks, FB, NB=6):
        a = self.a
        q = []
        def lds(text, tag=None):
            a(text); q.append(tag)
        def wait_for(tag):
            idx = max(k for k, t in enumerate(q) if t == tag)
            a(f"s_waitcnt lgkmcnt({min(15, len(q)-1-idx)})")
        self.lds_wait = wait_for
        def rd(f):
            if f % CH == 0: pre_barrier(f // CH)
            lds(rd_text(f, FB + 4 * (f % NB)), ('f', f))
        for f in range(NB): rd(f)
        for f in range(N):
            wait_for(('f', f))
            a(mf_text(f, FB + 4 * (f % NB)))
            if f + NB < N: rd(f + NB)
            if f in hooks: hooks[f](lds)

    def wave_flag(self, soff_addr, off):
        a = self.a
        a(f"v_mov_b32 {v(T)}, {s(sTOK)}")
        a(f"v_mov_b32 {v(T2)}, {s(64+13)}")
        a(f"s_mov_b64 exec, 1")
        self.two_path(lambda sc: a(f"buffer_store_dwordx2 {v(T,2)}, off, {s(SWS,4)}, {s(soff_addr)} offset:{off}{sc}"))
        a(f"s_mov_b64 exec, -1")

    def w2addr(self, loc):
        return (9, loc) if loc < 65536 else ((10, loc - 65536) if loc < 131072 - 8192 else (73, loc - 131072))

    def p4(self):
        a = self.a
        z = lambda k: 64 + k
        sUu = z(1)
        ACC = 16; FB = 48; BMS = 72
        sW2m, sAm = self.sW2m, z(9)
        S = lambda k: 16384 * k
        def w2dma(p, ldsbase, half=None):
            if half in (None, 0):
                a(f"s_mov_b32 {s(sT1)}, {32*p*896}")
                self.dma(8, SW2, sT1, (sW2m, ldsbase))
            if half == 1: a(f"s_add_u32 m0, {s(sW2m)}, {ldsbase}")
            if half in (None, 1): self.dma(4, SW2, sT1, None, off=1024)
        self.w2dma = w2dma
        vCS = 86
        a(f"v_lshlrev_b32 {v(T)}, 2, v0")
        a(f"v_add_u32 {v(T)}, {L_ST4+8192}, {v(T)}")
        a(f"ds_write_b32 {v(T)}, {v(vCS)}")
        a(f"v_xor_b32 {v(vAM1)}, 1024, {v(T)}")
        self.poll_group(2, 14, 1, "H")
        self.ts("H flags seen")
        def adma(i, half=None):
            if half in (None, 0):
                a(f"s_mov_b32 {s(sT0)}, {8192*i}")
                self.dma(3, SWS, sT0, (sAm, A4SLOT[i % 4]), sc1=True)
            if half == 1: a(f"s_add_u32 m0, {s(sAm)}, {A4SLOT[i % 4]}")
            if half in (None, 1): self.dma(3, SWS, sT0, None, sc1=True, off=1024)
        ops = []
        STB = R_C + 40
        for i in range(2):
            adma(i); ops += [f'A{i}'] * 2
        a(f"ds_read_b32 {v(vAM1+1)}, {v(vAM1)}")
        a(f"s_lshl_b32 {s(sT0)}, {s(sROLE)}, 11")
        a(f"s_add_u32 {s(sT0)}, {s(sT0)}, {L_ST4}")
        a(f"v_lshl_add_u32 {v(12)}, v1, 2, {s(sT0)}")
        a(f"s_lshl_b32 {s(sT0)}, {s(sTH)}, 1")
        a(f"s_add_u32 {s(sT0)}, {s(sT0)}, {s(sUu)}")
        a(f"s_lshl_b32 {s(sT0)}, {s(sT0)}, 10")
        a(f"s_add_u32 {s(sT0)}, {s(sT0)}, {L_ST4}")
        a(f"v_lshl_add_u32 {v(13)}, v1, 2, {s(sT0)}")
        a("s_waitcnt lgkmcnt(0)")
        a(f"v_add_f32 {v(vCS)}, {v(vCS)}, {v(vAM1+1)}")
        a(f"v_mov_b32 {v(T)}, {v(vCS)}")
        a(f"v_permlane32_swap_b32 {v(T)}, {v(vCS)}")
        a(f"v_add_f32 {v(vCS)}, {v(vCS)}, {v(T)}")
        self.cs_operand(vAM1, vCS)
        def vwait(tags):
            last = max(k for k, o in enumerate(ops) if o in tags)
            a(f"s_waitcnt vmcnt({len(ops)-1-last})")
        def pre_barrier(i):
            a.comment(f"---- P4 chunk {i} barrier")
            vwait([f'A{i}', f'p{i-1}'])
            if i == 3: self.lds_wait('stw')
            a("s_barrier")
            if i == 0: self.ts("H chunk0 landed")
            elif self.fine2: self.ts(f"p4 b{i}")
        def rd_text(f, reg):
            i, n = divmod(f, 8)
            slot = A4SLOT[i % 4]
            va, so = (5, slot) if slot < 65536 else (6, slot - 114688)
            return f"ds_read_b128 {v(reg,4)}, {v(va)} offset:{so+n*1024}"
        def mf_text(f, reg):
            tt, ks = divmod(f, 28)
            return f"{MF} {v(ACC+16*tt,16)}, {v(R_A+4*ks,4)}, {v(reg,4)}, {'0' if ks == 0 else v(ACC+16*tt,16)}"
        hooks = {}
        def H(f, fn):
            prev = hooks.get(f)
            hooks[f] = (lambda lds, p=prev, g=fn: (p(lds) if p else None, g(lds)))
        def op(tag): ops.append(tag)
        for j in range(4):
            H(j // 2, lambda lds, j=j: (a(f"buffer_load_dwordx4 {v(STB+4*j,4)}, {v(2)}, {s(SWS,4)}, {s(z(10))} offen offset:{1024*j} sc1"), op('S')))
        H(2, lambda lds: (adma(2), op('A2'), op('A2')))
        for i in range(7):
            b0 = 8 * i
            if i <= 5:
                for k in range(2):
                    def mvh(lds, j=i, k=k):
                        va, off = self.w2addr(L_HR + (j % 3) * 16384 + k * 2048)
                        lds(f"ds_read_b64_tr_b16 {v(R_C+8*j+4*k,2)}, {v(va)} offset:{off}", None)
                        lds(f"ds_read_b64_tr_b16 {v(R_C+8*j+4*k+2,2)}, {v(va)} offset:{off+1024}", None)
                    H(b0 + 3 + k, mvh)
            if i + 3 <= 6:
                H(b0 + 3, lambda lds, i=i: (adma(i + 3, 0), op(f'A{i+3}')))
                H(b0 + 4, lambda lds, i=i: (adma(i + 3, 1), op(f'A{i+3}')))
            if 1 <= i <= 4:
                H(b0 + 5, lambda lds, i=i: (w2dma(i + 2, L_HR + 16384 * ((i - 1) % 3), 0), op(f'p{i+2}')))
                H(b0 + 6, lambda lds, i=i: (w2dma(i + 2, L_HR + 16384 * ((i - 1) % 3), 1), op(f'p{i+2}')))
        self.w2b_loc = {6: S(2), 7: S(5), 8: S(6), 9: S(8), 10: S(0), 11: S(3), 12: S(0), 13: S(3)}
        when = {7: 5, 8: 7, 9: 39, 10: 43, 11: 45}
        for p in range(7 + self.nex, 12):
            f0 = when[p]
            H(f0, lambda lds, p=p: (w2dma(p, self.w2b_loc[p], 0), op('q')))
            H(f0 + 1, lambda lds, p=p: (w2dma(p, self.w2b_loc[p], 1), op('q')))
        def st_reduce(lds):
            vwait(['S'])
            for k in range(4): a(f"v_cndmask_b32 {v(STB+12+k)}, {v(STB+12+k)}, 0, {s(sHI,2)}")
            for k in range(2):
                a(f"v_pk_add_f32 {v(STB+2*k,2)}, {v(STB+2*k,2)}, {v(STB+4+2*k,2)}")
                a(f"v_pk_add_f32 {v(STB+8+2*k,2)}, {v(STB+8+2*k,2)}, {v(STB+12+2*k,2)}")
            for k in range(2): a(f"v_pk_add_f32 {v(STB+2*k,2)}, {v(STB+2*k,2)}, {v(STB+8+2*k,2)}")
            a(f"v_lshlrev_b32 {v(T)}, 4, v0")
            a(f"v_add_u32 {v(T)}, {L_ST4}, {v(T)}")
            lds(f"ds_write_b128 {v(T)}, {v(STB,4)}", 'stw')
        H(15, st_reduce)
        def st_gather(lds):
            for tt in range(2):
                for hf in range(2):
                    b = STB + 8 * tt + 4 * hf
                    o = (tt * 1024 + hf * 4096) // 256
                    lds(f"ds_read2st64_b32 {v(b,2)}, {v(12)} offset0:{o} offset1:{o+1}", None)
                    lds(f"ds_read2st64_b32 {v(b+2,2)}, {v(12)} offset0:{o+2} offset1:{o+3}", 'g1')
        H(18, st_gather)
        def st_mean(lds):
            self.lds_wait('g1')
            for tt in range(2):
                b = STB + 8 * tt
                a(f"v_pk_add_f32 {v(b,2)}, {v(b,2)}, {v(b+2,2)}")
                a(f"v_pk_add_f32 {v(b+4,2)}, {v(b+4,2)}, {v(b+6,2)}")
            for tt in range(2): a(f"v_pk_add_f32 {v(STB+8*tt,2)}, {v(STB+8*tt,2)}, {v(STB+8*tt+4,2)}")
            for tt in range(2): a(f"v_add_f32 {v(STB+8*tt)}, {v(STB+8*tt)}, {v(STB+8*tt+1)}")
            for tt in range(2): a(f"v_mul_f32 {v(STB+8*tt)}, {f32bits(-1.0/448):#x}, {v(STB+8*tt)}")
        H(23, st_mean)
        def st_mean2(lds):
            for tt, bm in ((0, BMS), (1, STB + 12)):
                b = STB + 8 * tt
                a(f"v_cvt_pk_bf16_f32 {v(bm)}, {v(b)}, {v(b)}")
                a(f"v_and_b32 {v(b+1)}, 0xffff0000, {v(bm)}")
                a(f"v_sub_f32 {v(b+1)}, {v(b)}, {v(b+1)}")
                a(f"v_cvt_pk_bf16_f32 {v(bm+1)}, {v(b+1)}, 0")
                a(f"v_mov_b32 {v(bm+2)}, 0")
                a(f"v_mov_b32 {v(bm+3)}, 0")
            b = STB
            for hf in range(2):
                lds(f"ds_read2st64_b32 {v(b+4*hf,2)}, {v(13)} offset0:{16*hf} offset1:{16*hf+1}", None)
                lds(f"ds_read2st64_b32 {v(b+4*hf+2,2)}, {v(13)} offset0:{16*hf+2} offset1:{16*hf+3}", 'g2')
        H(25, st_mean2)
        H(27, lambda lds: a(f"{MF} {v(ACC,16)}, {v(vAM1,4)}, {v(BMS,4)}, {v(ACC,16)}"))
        def epi(tt, sp):
            A_ = ACC + 16 * tt
            for k in range(4): a(f"v_cvt_pk_bf16_f32 {v(A_+8*sp+k)}, {v(A_+8*sp+2*k)}, {v(A_+8*sp+2*k+1)}")
            for k in range(4): a(f"v_pk_max_i16 {v(A_+8*sp+k)}, {v(A_+8*sp+k)}, 0")
            a(f"buffer_store_dwordx4 {v(A_+8*sp,4)}, {v(7 if tt==0 else 11)}, {s(SWS,4)}, 0 offen offset:{1024*sp} sc1")
            op(f'st{tt}')
        H(31, lambda lds: epi(0, 0))
        H(32, lambda lds: epi(0, 1))
        def st_rstd(lds):
            self.lds_wait('g2')
            b = STB
            a(f"v_pk_add_f32 {v(b,2)}, {v(b,2)}, {v(b+2,2)}")
            a(f"v_pk_add_f32 {v(b+4,2)}, {v(b+4,2)}, {v(b+6,2)}")
            a(f"v_pk_add_f32 {v(b,2)}, {v(b,2)}, {v(b+4,2)}")
            a(f"v_add_f32 {v(b)}, {v(b)}, {v(b+1)}")
            a(f"v_mov_b32 {v(b+1)}, {v(b)}")
            a(f"v_permlane32_swap_b32 {v(b)}, {v(b+1)}")
            self.stats_finish(b, b + 1, b + 2, vRSTD)
        H(33, st_rstd)
        H(self.fflag, lambda lds: (self.ts("preflag") if self.fine2 else None, vwait(['st0']), self.wave_flag(z(11), 0), op('fl'), self.ts("postflag") if self.fine2 else None))
        self.stream_gemm(56, 8, rd_text, mf_text, pre_barrier, hooks, FB)
        self.ts("p4 loop done")
        a(f"{MF} {v(ACC+16,16)}, {v(vAM1,4)}, {v(STB+12,4)}, {v(ACC+16,16)}")
        a(f"s_lshl_b32 {s(sT0)}, {s(self.sKQ)}, 12")
        a(f"v_add_u32 {v(5)}, {s(sT0)}, {v(2)}")
        a(f"v_add_u32 {v(6)}, 65536, {v(5)}")
        a(f"v_add_u32 {v(72)}, 131072, {v(5)}")
        a(f"v_add_u32 {v(73)}, 131072, {v(9)}")
        a(f"v_lshl_add_u32 {v(13)}, v1, 3, {s(z(12))}")
        epi(1, 0); epi(1, 1)
        self.ts("H1 stores issued")
        self.ops4 = ops

    def p5(self):
        a = self.a
        z = lambda k: 64 + k
        sN, sUu, sKQ = z(0), z(1), self.sKQ
        ACC = 16; FB = 48
        S = lambda k: 16384 * k
        ops = self.ops4
        def vwait(tags):
            last = max(k for k, o in enumerate(ops) if o in tags)
            a(f"s_waitcnt vmcnt({len(ops)-1-last})")
        lp = a.newlabel("PA")
        a(f"s_cmp_lg_u32 {s(sW)}, 0")
        a(f"s_cbranch_scc1 {lp}")
        self.poll(13, T, 12, (1 << 56) - 1, "HA")
        a.label(lp)
        vwait(['q', 'p6'])
        a("s_waitcnt lgkmcnt(0)")
        a("s_barrier")
        self.ts("H1A flags seen")
        sAm = self.sW2m
        cslot = [S(4), S(1), S(7), S(9), S(2), S(5), S(6), S(8), S(4), S(1), S(7), S(9), S(2), S(5)]
        def adma(c_, half=None):
            src = (c_ % 7) * 4096 + (c_ // 7) * 112 * 1024
            if half in (None, 0):
                a(f"s_add_u32 {s(sT0)}, {s(z(14))}, {src}")
                self.dma(2, SWS, sT0, (sAm, cslot[c_]), sc1=True); ops.append(f'C{c_}')
            if half == 1: a(f"s_add_u32 m0, {s(sAm)}, {cslot[c_]}")
            if half in (None, 1):
                self.dma(2, SWS, sT0, None, sc1=True, off=1024); ops.append(f'C{c_}')
        for c_ in range(3): adma(c_)
        for p in range(6, 12):
            va, off = self.w2addr(self.w2b_loc[p])
            self.move_frags(R_C + 48 if p == 6 else R_A + 8 * (p - 7), va, 2, True, off0=off)
        adma(3)
        vwait(['st1'])
        self.wave_flag(z(11), 1024); ops.append('fl')
        a(f"s_mul_i32 {s(sT1)}, {s(sN)}, {S(8)-S(6)}")
        a(f"s_add_u32 {s(sT1)}, {s(sT1)}, {S(6)}")
        a(f"s_lshl_b32 {s(sT0)}, {s(sKQ)}, 11")
        a(f"s_add_u32 {s(sT0)}, {s(sT0)}, {s(sT1)}")
        a(f"v_add_u32 {v(74)}, {s(sT0)}, {v(2)}")
        a(f"s_lshl_b32 {s(sT0)}, {s(sROLE)}, 13")
        a(f"s_add_u32 {s(sT0)}, {s(sT0)}, {s(sT1)}")
        a(f"v_add_u32 {v(75)}, {s(sT0)}, {v(2)}")
        a(f"v_add_u32 {v(13)}, 1024, {v(13)}")
        a("s_waitcnt lgkmcnt(0)")
        def pre_barrier(i):
            a.comment(f"---- P5 chunk {i} barrier")
            tags = [f'C{i}'] + (['q2'] if i == 5 else [])
            vwait(tags)
            if i == self.cB:
                l = a.newlabel("PB")
                a(f"s_cmp_lg_u32 {s(sW)}, 0")
                a(f"s_cbranch_scc1 {l}")
                self.poll(13, T, 12, (1 << 56) - 1, "HB")
                a.label(l)
            if i == 11: self.lds_wait('rw')
            a("s_barrier")
            if i == 0: self.ts("H1 chunk0 landed")
            elif self.fine2: self.ts(f"p5 b{i}")
        def rd_text(f, reg):
            i, n = divmod(f, 4)
            slot = cslot[i]
            va, so = (5, 6, 72)[slot // 65536], slot % 65536
            return f"ds_read_b128 {v(reg,4)}, {v(va)} offset:{so+n*1024}"
        def mf_text(f, reg):
            tt, kk = divmod(f, 28)
            wreg = R_C + 4 * kk if kk < 14 else R_A + 4 * (kk - 14)
            return f"{MF} {v(ACC+16*tt,16)}, {v(wreg,4)}, {v(reg,4)}, {'0' if kk == 0 else v(ACC+16*tt,16)}"
        hooks = {}
        def H(f, fn):
            prev = hooks.get(f)
            hooks[f] = (lambda lds, p=prev, g=fn: (p(lds) if p else None, g(lds)))
        fB = 4 * self.cB - 6
        sched = [(0, ('c', 4)), (2, ('w', 12)), (4, ('c', 5)), (6, ('w', 13)), (8, ('c', 6))]
        f = max(10, fB)
        for c_ in range(7, 14):
            if c_ >= 8: f = max(f, 4 * (c_ - 8 + 3) - 6)
            sched.append((f, ('c', c_))); f += self.p5gap
        for f0, (kind, x) in sched:
            if kind == 'c':
                H(f0, lambda lds, x=x: adma(x, 0)); H(f0 + 1, lambda lds, x=x: adma(x, 1))
            else:
                H(f0, lambda lds, x=x: (self.w2dma(x, self.w2b_loc[x], 0), ops.append('q2')))
                H(f0 + 1, lambda lds, x=x: (self.w2dma(x, self.w2b_loc[x], 1), ops.append('q2')))
        for p in (12, 13):
            def mv(lds, p=p):
                va, off = self.w2addr(self.w2b_loc[p])
                for k in range(2):
                    lds(f"ds_read_b64_tr_b16 {v(R_A+8*(p-7)+4*k,2)}, {v(va)} offset:{off+k*2048}", None)
                    lds(f"ds_read_b64_tr_b16 {v(R_A+8*(p-7)+4*k+2,2)}, {v(va)} offset:{off+k*2048+1024}", None)
            H(3 + p, mv)
        XR = R_B
        RB = R_B + 8
        def red_write(lds, tt, tag):
            for d in range(2):
                lds(f"ds_write_b128 {v(74)}, {v(ACC+16*tt+8*d,4)} offset:{8192*d}", None)
                lds(f"ds_write_b128 {v(74)}, {v(ACC+16*tt+8*d+4,4)} offset:{8192*d+1024}", tag if d == 1 else None)
        def fin(tt, lds=None):
            l = a.newlabel("FN")
            a(f"s_cmp_lg_u32 {s(sUu)}, {tt}")
            a(f"s_cbranch_scc1 {l}")
            for sidx in range(4):
                a(f"ds_read_b128 {v(RB+8*sidx,4)}, {v(75)} offset:{2048*sidx}")
                a(f"ds_read_b128 {v(RB+8*sidx+4,4)}, {v(75)} offset:{2048*sidx+1024}")
            a("s_waitcnt lgkmcnt(4)")
            for k in range(4): a(f"v_pk_add_f32 {v(RB+2*k,2)}, {v(RB+2*k,2)}, {v(RB+8+2*k,2)}")
            a("s_waitcnt lgkmcnt(0)")
            for k in range(4): a(f"v_pk_add_f32 {v(RB+16+2*k,2)}, {v(RB+16+2*k,2)}, {v(RB+24+2*k,2)}")
            for k in range(4): a(f"v_pk_add_f32 {v(RB+2*k,2)}, {v(RB+2*k,2)}, {v(RB+16+2*k,2)}")
            for k in range(4): a(f"v_pk_fma_f32 {v(XR+2*k,2)}, {v(RB+2*k,2)}, {v(76,2)}, {v(XR+2*k,2)}")
            for k in range(4): a(f"v_cvt_pk_bf16_f32 {v(RB+k)}, {v(XR+2*k)}, {v(XR+2*k+1)}")
            a(f"v_permlane32_swap_b32 {v(RB)}, {v(RB+2)}")
            a(f"v_permlane32_swap_b32 {v(RB+1)}, {v(RB+3)}")
            a(f"buffer_store_dwordx4 {v(RB,4)}, {v(85)}, {s(SOUT,4)}, 0 offen")
            a.label(l)
        def prep(lds):
            for k in range(4):
                a(f"v_lshlrev_b32 {v(XR+2*k)}, 16, {v(vHRES+k)}")
                a(f"v_and_b32 {v(XR+2*k+1)}, 0xffff0000, {v(vHRES+k)}")
            a(f"v_mov_b32 {v(76)}, {v(vRSTD)}")
            a(f"v_mov_b32 {v(77)}, {v(vRSTD)}")
        H(20, prep)
        H(35, lambda lds: red_write(lds, 0, 'rw'))
        H(47, lambda lds: fin(0))
        self.stream_gemm(56, 4, rd_text, mf_text, pre_barrier, hooks, FB)
        self.ts("p5 loop done")
        a(f"v_subrev_u32 {v(74)}, {S(6)}, {v(74)}")
        a(f"v_subrev_u32 {v(75)}, {S(6)}, {v(75)}")
        a(f"s_mul_i32 {s(sT0)}, {s(sN)}, {S(3)-S(2)}")
        a(f"v_add_u32 {v(74)}, {s(sT0)}, {v(74)}")
        a(f"v_add_u32 {v(75)}, {s(sT0)}, {v(75)}")
        red_write(lambda t, g=None: a(t), 1, None)
        a("s_waitcnt lgkmcnt(0)")
        a("s_barrier")
        fin(1)

    def epilogue(self):
        a = self.a
        a.label("L_FIN")
        if self.prof:
            self.ts("end")
            a(f"s_lshl_b32 {s(sT0)}, s2, 3")
            a(f"s_add_u32 {s(sT0)}, {s(sT0)}, {s(sW)}")
            a(f"s_lshl_b32 {s(sT0)}, {s(sT0)}, 8")
            a(f"s_add_u32 {s(sT0)}, {s(sT0)}, {TS_OFF}")
            a(f"v_lshlrev_b32 v14, 2, v1")
            a(f"v_add_u32 v14, {s(sT0)}, v14")
            a(f"buffer_store_dword {v(vTS)}, v14, {s(SWS,4)}, 0 offen")
            a("s_waitcnt vmcnt(0)")
        a.label("L_END")
        a("s_endpgm")

    def build(self):
        self.prologue()
        self.p1()
        if self.stop_after >= 2: self.p2()
        if self.stop_after >= 3: self.p3()
        if self.stop_after >= 4: self.p4()
        if self.stop_after >= 5: self.p5()
        self.epilogue()
        head = f"""; Generated by dev/gen.py -- fused persistent kernel: LN1+QKV -> sliding attention -> WO+res -> LN2+FF1 -> FF2+res
; @launch grid=(256,1,1) block=(512,1,1) lds={LDS_TOTAL}
.amdgcn_target "amdgcn-amd-amdhsa--gfx950"
.text
.globl {NAME}_kernel
.p2align 8
.type {NAME}_kernel,@function
{NAME}_kernel:
"""
        tail = f"""
.section .rodata,"a"
.p2align 6
.amdhsa_kernel {NAME}_kernel
  .amdhsa_next_free_vgpr 256
  .amdhsa_next_free_sgpr 102
  .amdhsa_accum_offset 256
  .amdhsa_group_segment_fixed_size 0
  .amdhsa_kernarg_size 72
  .amdhsa_user_sgpr_count 2
  .amdhsa_user_sgpr_kernarg_segment_ptr 1
  .amdhsa_system_sgpr_workgroup_id_x 1
.end_amdhsa_kernel
"""
        return head + self.a.text() + (self.side.text() if hasattr(self,'side') else '') + tail

if __name__ == "__main__":
    import argparse
    ap = argparse.ArgumentParser()
    ap.add_argument("-o", default="k.s"); ap.add_argument("--stop", type=int, default=5)
    ap.add_argument("--prof", action="store_true"); ap.add_argument("--cyc", action="store_true"); ap.add_argument("--fine", action="store_true"); ap.add_argument("--tlb", type=int, default=0); ap.add_argument("--p1local", action="store_true"); ap.add_argument("--pd1", type=int, default=2); ap.add_argument("--norot", action="store_true"); ap.add_argument("--tp", type=int, default=2); ap.add_argument("--n1", type=int, default=9); ap.add_argument("--m2", default="[(SW1,3)]"); ap.add_argument("--post", default="range(7)"); ap.add_argument("--npre", type=int, default=3); ap.add_argument("--p5gap", type=int, default=2); ap.add_argument("--oplain", type=int, default=1); ap.add_argument("--pre0", type=int, default=1); ap.add_argument("--t1it", type=int, default=6); ap.add_argument("--nex", type=int, default=2); ap.add_argument("--exp", type=int, default=0); ap.add_argument("--fflag", type=int, default=50); ap.add_argument("--cB", type=int, default=5); ap.add_argument("--rotg", type=int, default=4); ap.add_argument("--kvsc", default="sc1"); ap.add_argument("--kvst", default="sc1"); ap.add_argument("--kvsleep", type=int, default=1); ap.add_argument("--w1sched", default="([1,1,1,1,1],4,[3,2,0,0,0])")
    args = ap.parse_args()
    g = Gen(args.stop, args.prof, args.cyc, args.fine, args.tlb, args.p1local, args.pd1, args.norot, args.tp, args.n1, args.m2, args.post, args.npre, args.p5gap, args.oplain, args.pre0, args.t1it, args.nex, args.exp, args.fflag, args.cB, args.rotg, args.kvsc, args.kvst, args.kvsleep, args.w1sched)
    open(args.o, "w").write(g.build())
    print("instrs", g.a.ninstr, "nops", g.a.nnops, "ts", list(g.tsn.keys()))
```

```python
import sys, math, struct
from asmlib import Asm, v, s

NAME = "sequential_preLN__sliding_block__dense_activation_relu__prompt"
QKV_OFF = 0
O_OFF  = 6 << 20
H_OFF  = 8 << 20
HS_OFF = 10 << 20
H1_OFF = 16 << 20
FL_OFF = 32 << 20
TS_OFF = 33 << 20
FL0_OFF = (32 << 20) + 131072
XS_OFF = 11 << 20
WS_SZ  = 40 << 20
SX, SWQKV, SWO, SW1, SW2, SOUT, SDBG, SWS = 24, 28, 32, 36, 40, 44, 48, 52
sR, sC, sW, sT, sROLE, sXCC, sLOCAL, sTMP = 56, 57, 58, 59, 60, 61, 62, 63
sMASK = 64
sONES = 96
sTH, sCT = 97, 23
sT0, sT1, sT2, sT3, sT4, sT5, sT6 = 3, 4, 5, 6, 7, 8, 9
sKC = 10
sBUSY = 17
sSAVE = 18
sHI = 20
sSPIN = 22
sTS = 98
sU0, sU1 = 100, 101
sTOK = 0
sR1, sJ1 = 94, 95
L_XS = 0
L_WP = 65536
L_SC = 151552
L_STAT = L_SC
L_CS = L_SC + 2048
L_FLAG = 163328
L_TOK = 163344
L_XST = L_SC
L_WO = 65536
L_XR = 122880
L_K = 90112
L_V = 114688
L_MRG = 139264
L_ONES = L_MRG + 1024
L_W1B = 57344
L_A3 = 0
L_RED3 = 147456
L_RED3D = 98304
L_ST4 = 147456
L_HR = 32768
A4SLOT = [0, 16384, 114688, 131072]
LDS_TOTAL = 163840
R_C, R_A, R_B = 88, 144, 200
vTS = 87
vHRES = 80
vRSTD = 84
vAM1 = 76
LOG2E = 1.4426950408889634
def FLG(e): return FL_OFF + e * 16384
def f32bits(x): return struct.unpack('<I', struct.pack('<f', x))[0]
T, T2 = 14, 15
MF = "v_mfma_f32_32x32x16_bf16"

class Gen:
    def __init__(self, stop_after=5, prof=False, cyc=False, fine=False, tlb=0, p1local=False, pd1=2, norot=False, tp=2, n1=9, m2='[(SW1,3)]', post='[0,1,3,4,2,5,6]', npre=3, p5gap=2, oplain=1, pre0=1, t1it=6, nex=0, exp=0, fflag=45, cB=5, fB=4, nC=6, w78='(15,23)', rotg=4, kvsc='sc1', kvst='sc1', kvsleep=1, w1sched='([1,1,1,1,1],4,[3,2,0,0,0])'):
        self.fine = fine; self.PD1 = pd1; self.tp = tp; self.nC = nC; self.w78 = eval(w78); self.fB = fB; self.pbl = 4; self.fst = 17; self.np3 = 3; self.kvsc = ' ' + kvsc.replace('_',' '); self.kvst = ' ' + kvst.replace('_',' '); self.kvsleep = kvsleep; self.rotg = rotg; self.fine2 = (exp & 4); self.fflag = fflag; self.cB = cB; self.exp = exp; self.nex = nex; self.t1it = t1it; self.pre0 = pre0; self.w1sched = eval(w1sched); self.oplain = oplain; self.nin = npre; self.p5gap = p5gap; self.n1 = n1; self.m2 = eval(m2); self.post = eval(post); self.norot = norot; self.tlb = tlb; self.p1local = p1local
        self.a = Asm(); self.stop_after = stop_after; self.prof = prof; self.cyc = cyc; self.tsn = {}

    def ts(self, name):
        if not self.prof: return
        a = self.a
        if name not in self.tsn: self.tsn[name] = len(self.tsn)
        n = self.tsn[name]
        a(f"{'s_memtime' if self.cyc else 's_memrealtime'} {s(sTS,2)}")
        a("s_waitcnt lgkmcnt(0)")
        a(f"v_writelane_b32 {v(vTS)}, {s(sTS)}, {n}")

    def capture(self, fn):
        rec = []
        class R:
            def __call__(self_, t): rec.append(t)
        old = self.a; self.a = R()
        try: fn()
        finally: self.a = old
        return rec

    def srd(self, dst, ptr, size):
        a = self.a
        a(f"s_mov_b32 {s(dst)}, {s(ptr)}")
        a(f"s_and_b32 {s(dst+1)}, {s(ptr+1)}, 0xffff")
        a(f"s_mov_b32 {s(dst+2)}, {size}")
        a(f"s_mov_b32 {s(dst+3)}, 0x20000")

    def dma(self, vsrc, srd, soff, m0expr, sc1=False, off=0):
        a = self.a
        if m0expr is not None:
            if isinstance(m0expr, int): a(f"s_mov_b32 m0, {m0expr}")
            else: a(f"s_add_u32 m0, {s(m0expr[0])}, {m0expr[1]}")
        so = s(soff) if isinstance(soff, int) else soff
        a(f"buffer_load_dwordx4 {v(vsrc)}, {s(srd,4)}, {so} offen{f' offset:{off}' if off else ''}{' sc1' if sc1 else ''} lds")

    def set_exec(self, mask):
        a = self.a
        lo, hi = mask & 0xffffffff, mask >> 32
        a(f"s_mov_b32 exec_lo, {lo:#x}")
        a(f"s_mov_b32 exec_hi, {hi:#x}")

    def flag_check(self, vd, tmp):
        a = self.a
        a(f"v_xor_b32 {v(tmp)}, {s(sTOK+1)}, {v(vd+1)}")
        a(f"v_and_b32 {v(tmp)}, 0xfffffff, {v(tmp)}")
        a(f"v_xor_b32 {v(vd)}, {s(sTOK)}, {v(vd)}")
        a(f"v_or_b32 {v(tmp)}, {v(tmp)}, {v(vd)}")
        a(f"v_cmp_ne_u32 vcc, 0, {v(tmp)}")

    def poll(self, vaddr, vd, tmp, mask, tag, sleep=0, sc=" sc1"):
        a = self.a
        self.set_exec(mask)
        a(f"s_mov_b32 {s(sSPIN)}, 200000")
        lab = a.loop_label(a.newlabel("POLL"+tag)); done = a.newlabel("PDONE"+tag)
        a(f"buffer_load_dwordx2 {v(vd,2)}, {v(vaddr)}, {s(SWS,4)}, 0 offen{sc}")
        a("s_waitcnt vmcnt(0)")
        self.flag_check(vd, tmp)
        a(f"s_sub_u32 {s(sSPIN)}, {s(sSPIN)}, 1")
        a(f"s_cbranch_scc1 {done}")
        a("s_nop 2")
        a(f"s_cbranch_vccz {done}")
        a("s_mov_b64 exec, vcc")
        if sleep: a(f"s_sleep {sleep}")
        a(f"s_branch {lab}")
        a.label(done)
        a("s_mov_b64 exec, -1")

    def token_load(self, vd):
        self.a(f"buffer_load_dwordx2 {v(vd,2)}, off, {s(SDBG,4)}, 0 sc1")

    def token_take(self, vd):
        a = self.a
        a(f"s_mov_b32 {s(sSPIN)}, 200000")
        lab = a.loop_label(a.newlabel("TOK")); done = a.newlabel("TOKD")
        a(f"v_readfirstlane_b32 {s(sTOK)}, {v(vd)}")
        a(f"v_readfirstlane_b32 {s(sTOK+1)}, {v(vd+1)}")
        a(f"s_cmp_lg_u32 {s(sTOK)}, 0")
        a(f"s_cbranch_scc1 {done}")
        a(f"s_sub_u32 {s(sSPIN)}, {s(sSPIN)}, 1")
        a(f"s_cbranch_scc1 {done}")
        a("s_sleep 4")
        self.token_load(vd)
        a("s_waitcnt vmcnt(0)")
        a(f"s_branch {lab}")
        a.label(done)

    def poll_group(self, e, nmem, wave, tag):
        a = self.a
        l = a.newlabel("PG")
        a(f"s_cmp_lg_u32 {s(sW)}, {wave}")
        a(f"s_cbranch_scc1 {l}")
        a(f"s_lshl_b32 {s(sT0)}, {s(sR)}, 7")
        if e == 1:
            a(f"s_lshl_b32 {s(sT0)}, {s(sR)}, 9")
            a(f"s_lshl_b32 {s(sT1)}, {s(sTH)}, 8")
            a(f"s_add_u32 {s(sT0)}, {s(sT0)}, {s(sT1)}")
        a(f"s_add_u32 {s(sT0)}, {s(sT0)}, {FLG(e)}")
        a(f"v_lshl_add_u32 {v(13)}, v1, 3, {s(sT0)}")
        self.poll(13, T, 12, (1 << nmem) - 1, tag)
        a.label(l)
        a("s_waitcnt lgkmcnt(0)")
        a("s_barrier")

    def two_path(self, fn):
        a = self.a
        l1, l2 = a.newlabel("SL"), a.newlabel("SL")
        a(f"s_cmp_eq_u32 {s(sLOCAL)}, 1")
        a(f"s_cbranch_scc0 {l1}")
        fn("")
        a(f"s_branch {l2}")
        a.label(l1)
        fn(" sc1")
        a.label(l2)

    def publish(self, e, always_sc1=False, nowait_role1=False, keep=0):
        a = self.a
        a(f"s_lshl_b32 {s(sT1)}, {s(sR)}, {11 if e == 0 else 7}")
        a(f"s_lshl_b32 {s(sT2)}, {s(sC)}, {7 if e == 0 else 3}")
        a(f"s_add_u32 {s(sT1)}, {s(sT1)}, {s(sT2)}")
        a(f"s_add_u32 {s(sT1)}, {s(sT1)}, {FL0_OFF if e == 0 else FLG(e)}")
        a(f"s_lshl_b32 {s(sT2)}, {s(sXCC)}, 28")
        a(f"s_or_b32 {s(sT2)}, {s(sT2)}, {s(sTOK+1)}")
        a(f"v_mov_b32 {v(13)}, {s(sT1)}")
        a(f"v_mov_b32 {v(T)}, {s(sTOK)}")
        a(f"v_mov_b32 {v(T2)}, {s(sT2)}")
        if nowait_role1:
            lw = a.newlabel("NW")
            a(f"s_cmp_eq_u32 {s(sROLE)}, 1")
            a(f"s_cbranch_scc1 {lw}")
            a("s_waitcnt vmcnt(0)")
            a.label(lw)
            a("s_waitcnt lgkmcnt(0)")
        else:
            a(f"s_waitcnt vmcnt({keep}) lgkmcnt(0)")
        a("s_barrier")
        lf = a.newlabel("PUB")
        a(f"s_cmp_lg_u32 {s(sW)}, 0")
        a(f"s_cbranch_scc1 {lf}")
        a(f"s_mov_b64 exec, 1")
        st = lambda sc: a(f"buffer_store_dwordx2 {v(T,2)}, {v(13)}, {s(SWS,4)}, 0 offen{sc}")
        if always_sc1: st(self.kvst)
        else: self.two_path(st)
        a(f"s_mov_b64 exec, -1")
        a.label(lf)

    def mean_operand(self, BM, vnm, tmp):
        a = self.a
        a(f"v_cvt_pk_bf16_f32 {v(BM)}, {v(vnm)}, {v(vnm)}")
        a(f"v_and_b32 {v(tmp)}, 0xffff0000, {v(BM)}")
        a(f"v_sub_f32 {v(tmp)}, {v(vnm)}, {v(tmp)}")
        a(f"v_cvt_pk_bf16_f32 {v(BM+1)}, {v(tmp)}, 0")
        a(f"v_mov_b32 {v(BM+2)}, 0")
        a(f"v_mov_b32 {v(BM+3)}, 0")

    def cs_operand(self, AM, vcs):
        a = self.a
        a(f"v_cndmask_b32 {v(vcs)}, {v(vcs)}, 0, {s(sHI,2)}")
        a(f"v_cvt_pk_bf16_f32 {v(AM+1)}, {v(vcs)}, 0")
        a(f"v_lshlrev_b32 {v(AM+2)}, 16, {v(AM+1)}")
        a(f"v_sub_f32 {v(AM+2)}, {v(vcs)}, {v(AM+2)}")
        a(f"v_cvt_pk_bf16_f32 {v(AM)}, {v(vcs)}, {v(AM+2)}")
        a(f"v_mov_b32 {v(AM+2)}, 0")
        a(f"v_mov_b32 {v(AM+3)}, 0")

    def stats_finish(self, vsum, vsq, vnm, vrs):
        a = self.a
        a(f"v_mul_f32 {v(vnm)}, {f32bits(-1.0/448):#x}, {v(vsum)}")
        a(f"v_mul_f32 {v(vsq)}, {f32bits(1.0/448):#x}, {v(vsq)}")
        a(f"v_fma_f32 {v(vsq)}, -{v(vnm)}, {v(vnm)}, {v(vsq)}")
        a(f"v_max_f32 {v(vsq)}, 0, {v(vsq)}")
        a(f"v_add_f32 {v(vsq)}, {f32bits(1e-5):#x}, {v(vsq)}")
        a(f"v_rsq_f32 {v(vrs)}, {v(vsq)}")

    def rows128_src(self, vd, rowstride, srow0, scol):
        a = self.a
        a(f"v_lshrrev_b32 {v(T)}, 3, v1")
        a(f"v_bfe_u32 {v(T2)}, v1, 4, 1")
        a(f"v_lshlrev_b32 {v(T2)}, 2, {v(T2)}")
        a(f"v_xor_b32 {v(T2)}, {v(T2)}, v1")
        a(f"v_and_b32 {v(T2)}, 7, {v(T2)}")
        a(f"v_add_u32 {v(T)}, {s(srow0)}, {v(T)}")
        a(f"v_mul_u32_u24 {v(T)}, {rowstride}, {v(T)}")
        a(f"v_lshl_add_u32 {v(T)}, {v(T2)}, 4, {v(T)}")
        a(f"v_add_u32 {v(vd)}, {s(scol)}, {v(T)}")

    def tr128_addr(self, vd, perm, sbase):
        a = self.a
        a(f"v_lshrrev_b32 {v(T)}, 5, v1")
        a(f"v_lshlrev_b32 {v(T)}, {9 if perm else 10}, {v(T)}")
        a(f"v_bfe_u32 {v(T2)}, v1, 2, 2")
        a(f"v_lshl_add_u32 {v(T)}, {v(T2)}, 7, {v(T)}")
        a(f"v_bfe_u32 {v(T2)}, v1, 4, 1")
        a(f"v_lshl_add_u32 {v(T)}, {v(T2)}, 5, {v(T)}")
        a(f"v_and_b32 {v(T2)}, 3, v1")
        a(f"v_lshl_add_u32 {v(T)}, {v(T2)}, 3, {v(T)}")
        a(f"v_bfe_u32 {v(T2)}, v1, 3, 1")
        a(f"v_lshlrev_b32 {v(T2)}, 6, {v(T2)}")
        a(f"v_xor_b32 {v(T2)}, {s(sU0)}, {v(T2)}")
        a(f"v_add_u32 {v(T)}, {v(T)}, {v(T2)}")
        a(f"v_add_u32 {v(vd)}, {s(sbase)}, {v(T)}")

    def prologue(self):
        a = self.a
        a(f"s_cmp_ge_u32 s2, 256")
        a(f"s_cbranch_scc1 L_END")
        a("s_load_dwordx16 s[4:19], s[0:1], 0")
        a("s_load_dwordx2 s[20:21], s[0:1], 64")
        a("v_and_b32 v1, 63, v0")
        a("v_lshrrev_b32 v2, 6, v0")
        a(f"v_readfirstlane_b32 {s(sW)}, v2")
        a(f"s_and_b32 {s(sT)}, {s(sW)}, 3")
        a(f"s_lshr_b32 {s(sROLE)}, {s(sW)}, 2")
        a(f"s_and_b32 {s(sR)}, s2, 7")
        a(f"s_lshl_b32 {s(sR)}, {s(sR)}, 1")
        a(f"s_lshr_b32 {s(sTMP)}, s2, 7")
        a(f"s_add_u32 {s(sR)}, {s(sR)}, {s(sTMP)}")
        a(f"s_lshr_b32 {s(sC)}, s2, 3")
        a(f"s_and_b32 {s(sC)}, {s(sC)}, 15")
        a(f"s_getreg_b32 {s(sXCC)}, hwreg(HW_REG_XCC_ID)")
        a(f"s_and_b32 {s(sXCC)}, {s(sXCC)}, 15")
        a(f"s_mov_b32 {s(sONES)}, 0x3f803f80")
        a(f"s_cmp_ge_u32 {s(sC)}, 7")
        a(f"s_cselect_b32 {s(sTH)}, 1, 0")
        a(f"s_mul_i32 {s(sTMP)}, {s(sTH)}, 7")
        a(f"s_sub_u32 {s(sCT)}, {s(sC)}, {s(sTMP)}")
        a("s_waitcnt lgkmcnt(0)")
        self.srd(SX, 4, 2048*448*2)
        self.srd(SWQKV, 6, 448*1344*2)
        self.srd(SWO, 8, 448*448*2)
        self.srd(SW1, 12, 448*1792*2)
        self.srd(SW2, 14, 1792*448*2)
        self.srd(SOUT, 16, 2048*448*2)
        self.srd(SDBG, 18, 256)
        self.srd(SWS, 20, WS_SZ)
        a(f"s_mov_b32 {s(sHI)}, 0")
        a(f"s_mov_b32 {s(sHI+1)}, -1")
        a(f"s_cmp_lt_u32 {s(sC)}, 14")
        a(f"s_cselect_b32 {s(sBUSY)}, 1, 0")
        a("v_mov_b32 v84, 0")
        a("v_mov_b32 v85, 0")
        if self.prof: a(f"v_mov_b32 {v(vTS)}, 0")
        self.ts("start")
        if self.tlb:
            lt = a.newlabel("TLB")
            a(f"s_cmp_lg_u32 {s(sW)}, 7")
            a(f"s_cbranch_scc1 {lt}")
            a(f"v_lshlrev_b32 {v(T)}, {self.tlb}, v1")
            for k in range((34 << 20) >> (self.tlb + 6)):
                a(f"s_mov_b32 {s(sT0)}, {k << (self.tlb + 6)}")
                a(f"buffer_load_dword {v(90)}, {v(T)}, {s(SWS,4)}, {s(sT0)} offen")
            a(f"v_lshlrev_b32 {v(T)}, 16, v1")
            for srd in (SWO, SW1, SW2, SOUT):
                a(f"buffer_load_dword {v(90)}, {v(T)}, {s(srd,4)}, 0 offen")
            a.label(lt)
        lz = a.newlabel("NOTOK")
        a(f"s_cmp_lg_u32 s2, 112")
        a(f"s_cbranch_scc1 {lz}")
        a(f"s_cmp_lg_u32 {s(sW)}, 0")
        a(f"s_cbranch_scc1 {lz}")
        a(f"s_memrealtime {s(sTS,2)}")
        a("s_waitcnt lgkmcnt(0)")
        a(f"s_or_b32 {s(sT0)}, {s(sTS)}, 1")
        a(f"s_and_b32 {s(sT1)}, {s(sTS+1)}, 0xfffffff")
        a(f"v_mov_b32 {v(T)}, {s(sT0)}")
        a(f"v_mov_b32 {v(T2)}, {s(sT1)}")
        a(f"s_mov_b64 exec, 1")
        a(f"buffer_store_dwordx2 {v(T,2)}, off, {s(SDBG,4)}, 0 sc1")
        a(f"s_mov_b64 exec, -1")
        a.label(lz)

    def touch_p1(self):
        a = self.a
        a(f"s_lshr_b32 {s(sT0)}, s2, 3")
        a(f"s_and_b32 {s(sT1)}, {s(sR)}, 12")
        a(f"s_lshl_b32 {s(sT1)}, {s(sT1)}, 3")
        a(f"s_add_u32 {s(sT1)}, {s(sT0)}, {s(sT1)}")
        a(f"s_mul_i32 {s(sT1)}, {s(sT1)}, {16*896}")
        a(f"s_mul_i32 {s(sT2)}, {s(sT)}, {28*128}")
        a(f"s_add_u32 {s(sT1)}, {s(sT1)}, {s(sT2)}")
        a(f"v_lshlrev_b32 {v(T)}, 7, v1")
        self.set_exec((1 << 28) - 1)
        a(f"buffer_load_dword {v(86)}, {v(T)}, {s(SX,4)}, {s(sT1)} offen")
        a("s_mov_b64 exec, -1")
        a(f"s_mul_i32 {s(sT0)}, {s(sT0)}, {14*2688}")
        a(f"s_bfe_u32 {s(sT1)}, {s(sR)}, 0x10001")
        a(f"s_mul_i32 {s(sT1)}, {s(sT1)}, 1280")
        a(f"s_add_u32 {s(sT0)}, {s(sT0)}, {s(sT1)}")
        a(f"s_mul_i32 {s(sT1)}, {s(sT)}, 39")
        a(f"v_add_u32 {v(T)}, {s(sT1)}, v1")
        a(f"v_mul_u32_u24 {v(T2)}, 5958, {v(T)}")
        a(f"v_lshrrev_b32 {v(T2)}, 16, {v(T2)}")
        a(f"v_mul_u32_u24 {v(T2)}, {2688-11*128}, {v(T2)}")
        a(f"v_lshl_add_u32 {v(T2)}, {v(T)}, 7, {v(T2)}")
        self.set_exec((1 << 39) - 1)
        a(f"buffer_load_dword {v(86)}, {v(T2)}, {s(SWQKV,4)}, {s(sT0)} offen")
        a("s_mov_b64 exec, -1")

    def touch(self, srd, kexpr):
        a = self.a
        sg, mul, add = kexpr
        a(f"s_mul_i32 {s(sT0)}, {s(sg)}, {mul*262144}")
        a(f"s_lshr_b32 {s(sT1)}, s2, 3")
        a(f"s_lshl_b32 {s(sT1)}, {s(sT1)}, 13")
        a(f"s_add_u32 {s(sT0)}, {s(sT0)}, {s(sT1)}")
        if add > 0: a(f"s_add_u32 {s(sT0)}, {s(sT0)}, {add*262144}")
        if add < 0: a(f"s_sub_u32 {s(sT0)}, {s(sT0)}, {-add*262144}")
        a(f"v_lshlrev_b32 {v(T)}, 7, v1")
        a(f"buffer_load_dword {v(86)}, {v(T)}, {s(srd,4)}, {s(sT0)} offen")

    def idle_touch_setup(self):
        a = self.a
        a(f"s_and_b32 {s(sT0)}, {s(sR)}, 1")
        a(f"s_lshl_b32 {s(sT0)}, {s(sT0)}, 1")
        a(f"s_add_u32 {s(sT0)}, {s(sT0)}, {s(sC)}")
        a(f"s_sub_u32 {s(sT0)}, {s(sT0)}, 14")
        a(f"s_lshl_b32 {s(sT1)}, {s(sT0)}, 2")
        a(f"s_add_u32 {s(sT1)}, {s(sT1)}, {s(sT)}")
        a(f"s_lshl_b32 {s(sT1)}, {s(sT1)}, 13")
        a(f"v_lshl_add_u32 {v(56)}, v1, 7, {s(sT1)}")

    def flag_pretouch(self):
        a = self.a
        a(f"s_lshl_b32 {s(sT0)}, {s(sR)}, 9")
        a(f"s_add_u32 {s(sT0)}, {s(sT0)}, {FLG(1)}")
        a(f"v_lshl_add_u32 {v(T)}, v1, 7, {s(sT0)}")
        a(f"s_lshl_b32 {s(sT0)}, {s(sR)}, 7")
        a(f"s_add_u32 {s(sT1)}, {s(sT0)}, {FLG(2)}")
        a(f"v_writelane_b32 {v(T)}, {s(sT1)}, 4")
        a(f"s_lshl_b32 {s(sT0)}, {s(sR)}, 11")
        a(f"s_add_u32 {s(sT0)}, {s(sT0)}, {FLG(3) - 16*128}")
        a(f"v_lshl_add_u32 {v(T2)}, v1, 7, {s(sT0)}")
        a(f"v_cmp_le_u32 vcc, 16, v1")
        a(f"v_cndmask_b32 {v(T)}, {v(T)}, {v(T2)}, vcc")
        self.set_exec(0xffff001f)
        a(f"buffer_load_dword {v(86)}, {v(T)}, {s(SWS,4)}, 0 offen sc1")
        a(f"s_mov_b64 exec, -1")

    def masks(self):
        a = self.a
        a(f"v_and_b32 {v(T)}, 31, v1")
        a(f"v_lshrrev_b32 {v(T2)}, 5, v1")
        a(f"v_lshlrev_b32 {v(T2)}, 2, {v(T2)}")
        a(f"v_sub_u32 {v(T)}, {v(T)}, {v(T2)}")
        for rg in range(16):
            kk = 8 * (rg // 4) + (rg % 4)
            a(f"v_cmp_le_i32 {s(sMASK+2*rg,2)}, {kk}, {v(T)}")

    def p1(self):
        a = self.a
        PD = self.PD1
        full = self.stop_after >= 3
        vXs = 100; vWs = 104; vSt = 107; vCs = 108
        ACC = 16
        AM = 112; vXr = 120; vWr = 124; SCL = 128; BM = 132; vSA = 136
        vWo = 138; vXres = 139; vRS = 140
        vTok = 142; vFl = 96
        WB = R_B + 40
        lpad, lp1end = a.newlabel("PADW"), a.newlabel("P1END")
        a(f"s_cmp_eq_u32 {s(sBUSY)}, 0")
        a(f"s_cbranch_scc1 {lpad}")
        a(f"s_and_b32 {s(sR1)}, {s(sR)}, 12")
        a(f"s_and_b32 {s(sT0)}, {s(sR)}, 1")
        a(f"s_lshl_b32 {s(sT0)}, {s(sT0)}, 1")
        a(f"s_add_u32 {s(sT0)}, {s(sT0)}, {s(sTH)}")
        a(f"s_add_u32 {s(sR1)}, {s(sR1)}, {s(sT0)}")
        a(f"s_bfe_u32 {s(sJ1)}, {s(sR)}, 0x10001")
        a(f"s_mul_i32 {s(sJ1)}, {s(sJ1)}, 7")
        a(f"s_add_u32 {s(sJ1)}, {s(sJ1)}, {s(sCT)}")
        sXm, sWm = sT4, sT5
        def setup_xsrc():
            a(f"s_lshl_b32 {s(sT0)}, {s(sR1)}, 7")
            a(f"s_lshl_b32 {s(sT1)}, {s(sT)}, 5")
            a(f"s_add_u32 {s(sT0)}, {s(sT0)}, {s(sT1)}")
            a(f"v_lshrrev_b32 {v(T)}, 3, v1")
            a(f"v_add_u32 {v(T)}, {s(sT0)}, {v(T)}")
            a(f"v_mul_u32_u24 {v(T)}, 896, {v(T)}")
            a(f"v_lshrrev_b32 {v(T2)}, 4, v1")
            a(f"v_xor_b32 {v(T2)}, {v(T2)}, v1")
            a(f"v_and_b32 {v(T2)}, 7, {v(T2)}")
            a(f"v_lshl_add_u32 {v(vXs)}, {v(T2)}, 4, {v(T)}")
            a(f"v_xor_b32 {v(T2)}, 4, {v(T2)}")
            a(f"v_lshl_add_u32 {v(vXs+1)}, {v(T2)}, 4, {v(T)}")
            a(f"v_add_u32 {v(vXs+2)}, {2*(7168-1024)}, {v(vXs)}")
            a(f"v_add_u32 {v(vXs+3)}, {3*(7168-1024)}, {v(vXs+1)}")
            a(f"v_add_u32 {v(vXs+1)}, {7168-1024}, {v(vXs+1)}")
            a(f"s_lshl_b32 {s(sXm)}, {s(sT)}, 12")
        def setup_wsrc():
            a(f"s_mul_i32 {s(sT0)}, {s(sT)}, {16*2688}")
            a(f"s_mul_i32 {s(sT1)}, {s(sJ1)}, 192")
            a(f"s_add_u32 {s(sT0)}, {s(sT0)}, {s(sT1)}")
            for m in range(3):
                a(f"v_add_u32 {v(T)}, {64*m}, v1")
                a(f"v_mul_u32_u24 {v(T2)}, 43691, {v(T)}")
                a(f"v_lshrrev_b32 {v(T2)}, 19, {v(T2)}")
                a(f"v_mul_u32_u24 {v(T2)}, 2496, {v(T2)}")
                a(f"v_lshl_add_u32 {v(T2)}, v1, 4, {v(T2)}")
                a(f"v_add_u32 {v(vWs+m)}, {s(sT0)}, {v(T2)}")
            a(f"s_mul_i32 {s(sWm)}, {s(sT)}, 3072")
        def rot_setup():
            a(f"s_and_b32 {s(sT0)}, {s(sR1)}, 3")
            a(f"s_lshl_b32 {s(sT0)}, {s(sT0)}, 1")
            a(f"s_add_u32 {s(sT0)}, {s(sT0)}, {s(sCT)}")
            a(f"s_sub_u32 {s(sT1)}, {s(sT0)}, 7")
            a(f"s_cmp_ge_u32 {s(sT0)}, 7")
            a(f"s_cselect_b32 {s(sT0)}, {s(sT1)}, {s(sT0)}")
            if self.norot: a(f"s_mov_b32 {s(sT0)}, 0")
            G_ = self.rotg
            if G_ < 7:
                a(f"s_mul_i32 {s(sT1)}, {s(sT0)}, {(256 + G_ - 1) // G_}")
                a(f"s_lshr_b32 {s(sT1)}, {s(sT1)}, 8")
                a(f"s_mul_i32 {s(sT1)}, {s(sT1)}, {G_}")
                a(f"s_sub_u32 {s(sT0)}, {s(sT0)}, {s(sT1)}")
            a(f"s_lshl_b32 {s(64)}, {s(sT0)}, 7")
        def rot_next(i):
            G_ = self.rotg
            g0 = (i // G_) * G_; g1 = min(g0 + G_, 7)
            if i % G_ == 0:
                if g1 - g0 == G_: a(f"s_add_u32 {s(64+i)}, {s(64)}, {128*g0}")
                else:
                    if g1 - g0 == 1: a(f"s_mov_b32 {s(64+i)}, {128*g0}")
                    else:
                        a(f"s_add_u32 {s(64+i)}, {s(64)}, {128*g0}")
                        a(f"s_cmp_ge_u32 {s(64+i)}, {128*g1}")
                        a(f"s_cselect_b32 {s(64+i)}, {128*g0}, {s(64+i)}")
                return
            a(f"s_add_u32 {s(64+i)}, {s(63+i)}, 128")
            a(f"s_cmp_eq_u32 {s(64+i)}, {128*g1}")
            a(f"s_cselect_b32 {s(64+i)}, {128*g0}, {s(64+i)}")
        def xdma(i):
            sT0 = 64 + i
            for j in range(4):
                self.dma(vXs+j, SX, sT0, (sXm, L_XS + (i % 4) * 16384) if j == 0 else None, off=1024*j)
        def wdma(i):
            a(f"s_mul_i32 {s(sT1)}, {s(64+i)}, {64*2688//128}")
            for m in range(3):
                self.dma(vWs+m, SWQKV, sT1, (sWm, L_WP + i * 12288) if m == 0 else None, off=1024*m)
        def setup_rd(role):
            a(f"v_and_b32 {v(T)}, 31, v1")
            a(f"v_bfe_u32 {v(T2)}, v1, 1, 3")
            a(f"v_lshrrev_b32 {v(vXr)}, 5, v1")
            a(f"v_xor_b32 {v(T2)}, {v(T2)}, {v(vXr)}")
            a(f"s_lshl_b32 {s(sT1)}, {s(sT)}, 12")
            a(f"v_lshl_add_u32 {v(T)}, {v(T)}, 7, {s(sT1)}")
            for n in range(4):
                a(f"s_add_u32 {s(sT0)}, {s(sT)}, {n}")
                a(f"s_and_b32 {s(sT0)}, {s(sT0)}, 3")
                a(f"s_lshl_b32 {s(sT1)}, {s(sT0)}, 1")
                a(f"s_mul_i32 {s(sKC+n)}, {s(sT0)}, 3072")
                a(f"v_xor_b32 {v(vXr+n)}, {s(sT1)}, {v(T2)}")
                a(f"v_lshl_add_u32 {v(vXr+n)}, {v(vXr+n)}, 4, {v(T)}")
            a(f"v_lshrrev_b32 {v(T)}, 5, v1")
            a(f"v_bfe_u32 {v(T2)}, v1, 2, 2")
            a(f"v_lshl_add_u32 {v(T)}, {v(T)}, 3, {v(T2)}")
            a(f"v_mul_u32_u24 {v(T)}, 192, {v(T)}")
            a(f"v_bfe_u32 {v(T2)}, v1, 4, 1")
            a(f"v_lshl_add_u32 {v(T)}, {v(T2)}, 5, {v(T)}")
            a(f"v_and_b32 {v(T2)}, 3, v1")
            a(f"v_lshl_add_u32 {v(T)}, {v(T2)}, 3, {v(T)}")
            a(f"v_add_u32 {v(T)}, {L_WP + (128 if role else 0)}, {v(T)}")
            for n in range(4): a(f"v_add_u32 {v(vWr+n)}, {s(sKC+n)}, {v(T)}")
            a(f"v_mov_b32 {v(vCs)}, 0")
            a(f"v_mov_b32 {v(vCs+1)}, 0")
            a(f"v_mov_b32 {v(BM+2)}, 0")
            a(f"v_mov_b32 {v(BM+3)}, 0")
        def setup_st(ti, tj):
            a(f"s_mul_i32 {s(sT0)}, {s(sJ1)}, 3")
            a(f"s_add_u32 {s(sT0)}, {s(sT0)}, {tj}")
            a(f"s_cmp_lt_u32 {s(sT0)}, 14")
            a(f"s_cselect_b32 {s(sU0+ti)}, 1, 0")
            a(f"s_lshl_b32 {s(sT0)}, {s(sT0)}, 6")
            a(f"s_lshl_b32 {s(sT1)}, {s(sR1)}, 2")
            a(f"s_add_u32 {s(sT0)}, {s(sT0)}, {s(sT1)}")
            a(f"s_add_u32 {s(sT0)}, {s(sT0)}, {s(sT)}")
            a(f"s_lshl_b32 {s(sT0)}, {s(sT0)}, 11")
            a(f"v_lshl_add_u32 {v(vSA+ti)}, v1, 4, {s(sT0)}")
        def setup_wo():
            a(f"s_lshl_b32 {s(sT0)}, {s(sT)}, 3")
            a(f"s_lshl_b32 {s(sT2)}, {s(sCT)}, 7")
            self.rows128_src(vWo, 896, sT0, sT2)
            a(f"s_lshl_b32 {s(sT0)}, {s(sR)}, 7")
            a(f"s_lshl_b32 {s(sT1)}, {s(sTH)}, 6")
            a(f"s_add_u32 {s(sT0)}, {s(sT0)}, {s(sT1)}")
            a(f"s_mul_i32 {s(sT0)}, {s(sT0)}, 896")
            a(f"v_add_u32 {v(vXres)}, {s(sT0)}, {v(vWo)}")
            a(f"s_lshl_b32 {s(sT6)}, {s(sT)}, 10")
        def wodma(j):
            a(f"s_mov_b32 {s(sT0)}, {32*j*896}")
            self.dma(vWo, SWO, sT0, (sT6, L_WO + 4096 * j))
        def xrdma(j):
            a(f"s_mov_b32 {s(sT0)}, {32*j*896}")
            self.dma(vXres, SX, sT0, (sT6, L_XR + 4096 * j))
        def setup_misc(role):
            a(f"s_lshl_b32 {s(sT0)}, {s(sT)}, 9")
            a(f"s_lshl_b32 {s(sT1)}, {s(sR1)}, 11")
            a(f"s_add_u32 {s(sT0)}, {s(sT0)}, {s(sT1)}")
            a(f"s_add_u32 {s(sT0)}, {s(sT0)}, {XS_OFF}")
            a(f"v_mov_b32 {v(94)}, {L_TOK}")
            a(f"v_and_b32 {v(T)}, 31, v1")
            a(f"v_lshl_add_u32 {v(vSt)}, {v(T)}, 4, {s(sT0)}")
            a(f"v_lshlrev_b32 {v(91)}, 2, v0")
            a(f"v_add_u32 {v(91)}, {L_CS + (1024 if role else 0)}, {v(91)}")
            a(f"v_lshlrev_b32 {v(92)}, 2, {v(T)}")
            a(f"v_add_u32 {v(92)}, {L_CS + (2048 if role else 0)}, {v(92)}")
            a(f"v_add_u32 {v(93)}, 1024, {v(92)}")
        lr1, lrj = a.newlabel("P1R1"), a.newlabel("P1J")
        a(f"s_cmp_eq_u32 {s(sROLE)}, 1")
        a(f"s_cbranch_scc1 {lr1}")
        for role in (0, 1):
            if role == 1: a.label(lr1)
            ntile = 2 if role == 0 else 1
            SET = [R_A, R_A + 48]
            ops = []
            def issue(i):
                xdma(i); wdma(i); ops.extend([i] * 7)
            if role == 0:
                rot_setup(); setup_wsrc(); wdma(0)
                setup_rd(0)
                rot_next(1); wdma(1); ops += [0] * 3 + [1] * 3
                if full: self.wo_addr()
                if self.stop_after >= 2: self.p2_pre()
                setup_st(0, 0)
                if self.tp & 1:
                    self.touch_p1(); ops += ['t', 't']
                setup_st(1, 1)
                setup_misc(0)
                later = []
            else:
                rot_setup(); setup_xsrc(); xdma(0)
                if self.fine: self.ts("first dma issued")
                rot_next(1); xdma(1); ops += [0] * 4 + [1] * 4
                if self.fine: self.ts("second dma issued")
                setup_rd(1)
                setup_wsrc()
                for i in range(2, 7): rot_next(i)
                if full: self.wo_addr()
                if self.stop_after >= 2: self.p2_pre()
                setup_st(0, 2)
                if full: setup_wo()
                setup_misc(1)
                later = []
            if self.fine: self.ts("setup done")
            for i in range(8):
                a.comment(f"---- P1 role{role} iter {i}")
                rds, mfs, css = [], [], []
                if i < 7:
                    idx = [k for k, c_ in enumerate(ops) if c_ == i]
                    if idx: a(f"s_waitcnt vmcnt({len(ops)-1-max(idx)}) lgkmcnt(0)")
                    else: a("s_waitcnt lgkmcnt(0)")
                    if self.fine and i < 3: self.ts(f"c{i} own wait done")
                    a("s_barrier")
                    if i == 0: self.ts("p1 chunk0 landed")
                    if self.fine: self.ts(f"c{i} barrier")
                    woff = (i % 4) * 12288
                    if i == 4:
                        for n in range(4): a(f"v_add_u32 {v(vWr+n)}, 49152, {v(vWr+n)}")
                    S_ = SET[i % 2]
                    for n in range(4):
                        rds.append(f"ds_read_b128 {v(S_+4*n,4)}, {v(vXr+n)} offset:{L_XS+(i%4)*16384}")
                        for tj in range(ntile):
                            b = S_ + 16 + 16 * tj + 4 * n
                            rds.append(f"ds_read_b64_tr_b16 {v(b,2)}, {v(vWr+n)} offset:{woff+tj*64}")
                            rds.append(f"ds_read_b64_tr_b16 {v(b+2,2)}, {v(vWr+n)} offset:{woff+tj*64+768}")
                    if i == 6:
                        rds.append(f"ds_read_b64 {v(vTok,2)}, {v(94)}")
                else:
                    a("s_waitcnt lgkmcnt(0)")
                    a(f"v_readfirstlane_b32 {s(sTOK)}, {v(vTok)}")
                    a(f"v_readfirstlane_b32 {s(sTOK+1)}, {v(vTok+1)}")
                def extras():
                    only = lambda w_: (a(f"s_cmp_lg_u32 {s(sW)}, {w_}"), a.newlabel("ON"))[1]
                    if role == 1 and i == 0:
                        for k in range(2, PD): issue(k)
                    if role == 1 and i + PD < 7: issue(i + PD)
                    if role == 1 and full and i in (5, 6):
                        for j in (range(0, 8) if i == 5 else range(8, 14)): wodma(j); ops.append('wo')
                        if i == 6:
                            for j in range(2): xrdma(j); ops.append('wo')
                    if role == 0:
                        if i in (1, 3):
                            l = only(3); a(f"s_cbranch_scc1 {l}")
                            if i == 1:
                                self.token_load(vTok)
                            if i == 3:
                                a("s_waitcnt vmcnt(0)")
                                self.token_take(vTok)
                                a(f"v_mov_b32 {v(T)}, {L_TOK}")
                                a(f"ds_write_b64 {v(T)}, {v(vTok,2)}")
                            a.label(l)
                    if i == 4:
                        a(f"buffer_load_dwordx4 {v(vFl,4)}, {v(vSt)}, {s(SWS,4)}, 0 offen sc1"); ops.append('st')
                    if role == 0:
                        if (self.tp & 8) and i == self.t1it:
                            self.touch(SW1, (sT, 1, 3))
                    if later and i < 7: later.pop(0)()
                if role == 1:
                    for o in rds: a(o)
                    rds = []
                    extras()
                if i > 0:
                    P_ = SET[(i - 1) % 2]
                    for n in range(4):
                        for tj in range(ntile):
                            c_in = "0" if (i == 1 and n == 0) else v(ACC+16*tj, 16)
                            mfs.append(f"{MF} {v(ACC+16*tj,16)}, {v(P_+16+16*tj+4*n,4)}, {v(P_+4*n,4)}, {c_in}")
                    for tj in range(ntile):
                        for d in range(4): a(f"v_dot2c_f32_bf16 {v(vCs+tj)}, {s(sONES)}, {v(P_+16+16*tj+d)}")
                if i == 7:
                    a(mfs.pop(0)); a(mfs.pop(0))
                    for tj in range(ntile): a(f"ds_write_b32 {v(91)}, {v(vCs+tj)} offset:{1024*tj}")
                nm = max(1, len(mfs))
                for g_ in range(nm):
                    if mfs: a(mfs[g_])
                    for o in rds[g_*len(rds)//nm:(g_+1)*len(rds)//nm]: a(o)
                if role == 0: extras()
                if self.fine and i < 7: self.ts(f"c{i} end")
            self.ts("p1 loop done")
            nafter = len(ops) - 1 - max(k for k, o in enumerate(ops) if o == 'st') + (1 if (role == 0 and (self.tp & 8)) else 0)
            a(f"s_waitcnt vmcnt({nafter})")
            a(f"s_mov_b32 {s(sSPIN)}, 200000")
            a(f"s_and_b32 {s(sT2)}, {s(sTOK+1)}, 0xffff")
            lab = a.loop_label(a.newlabel("SVL")); done = a.newlabel("SVD")
            a(f"v_lshrrev_b32 {v(T)}, 16, {v(vFl+1)}")
            a(f"v_xor_b32 {v(T)}, {s(sT2)}, {v(T)}")
            a(f"v_xor_b32 {v(T2)}, {s(sTOK)}, {v(vFl+3)}")
            a(f"v_or_b32 {v(T)}, {v(T)}, {v(T2)}")
            a(f"v_cmp_ne_u32 vcc, 0, {v(T)}")
            a(f"s_sub_u32 {s(sSPIN)}, {s(sSPIN)}, 1")
            a(f"s_cbranch_scc1 {done}")
            a("s_nop 2")
            a(f"s_cbranch_vccz {done}")
            a("s_sleep 2")
            a(f"buffer_load_dwordx4 {v(vFl,4)}, {v(vSt)}, {s(SWS,4)}, 0 offen sc1")
            a("s_waitcnt vmcnt(0)")
            a(f"s_branch {lab}")
            a.label(done)
            a(f"v_mov_b32 {v(BM)}, {v(vFl)}")
            a(f"v_and_b32 {v(BM+1)}, 0xffff, {v(vFl+1)}")
            a(f"v_mov_b32 {v(vRS)}, {v(vFl+2)}")
            a(f"v_mul_f32 {v(vRS+1)}, {f32bits(28**-0.5*LOG2E):#x}, {v(vFl+2)}")
            a("s_waitcnt lgkmcnt(0)")
            a("s_barrier")
            self.ts("stat barrier")
            S0 = WB
            for tj in range(ntile):
                for k in range(4): a(f"ds_read2_b32 {v(S0+8*tj+2*k,2)}, {v(92+tj)} offset0:{64*k} offset1:{64*k+32}")
            for tj in range(ntile):
                a(f"s_cmp_eq_u32 {s(sU0+tj)}, 1")
                a(f"s_cselect_b64 {s(sSAVE,2)}, -1, 0")
                a(f"v_cndmask_b32 {v(SCL+2*tj)}, {v(vRS)}, {v(vRS+1)}, {s(sSAVE,2)}")
                a(f"v_cndmask_b32 {v(SCL+2*tj+1)}, {v(vRS)}, {v(vRS+1)}, {s(sSAVE,2)}")
            for tj in range(ntile):
                c0 = S0 + 8 * tj
                a(f"s_waitcnt lgkmcnt({4*(ntile-1-tj)})")
                a(f"v_pk_add_f32 {v(c0,2)}, {v(c0,2)}, {v(c0+2,2)}")
                a(f"v_pk_add_f32 {v(c0+4,2)}, {v(c0+4,2)}, {v(c0+6,2)}")
                a(f"v_pk_add_f32 {v(c0,2)}, {v(c0,2)}, {v(c0+4,2)}")
                a(f"v_add_f32 {v(c0)}, {v(c0)}, {v(c0+1)}")
                self.cs_operand(AM + 4 * tj, c0)
                a(f"{MF} {v(ACC+16*tj,16)}, {v(AM+4*tj,4)}, {v(BM,4)}, {v(ACC+16*tj,16)}")
            for tj in range(ntile):
                PK = WB + 8 * tj
                A_ = ACC + 16 * tj
                for h_ in range(2):
                    for k in range(4): a(f"v_pk_mul_f32 {v(A_+8*h_+2*k,2)}, {v(A_+8*h_+2*k,2)}, {v(SCL+2*tj,2)}")
                    for k in range(4): a(f"v_cvt_pk_bf16_f32 {v(PK+4*h_+k)}, {v(A_+8*h_+2*k)}, {v(A_+8*h_+2*k+1)}")
                for h_ in range(2):
                    a(f"v_permlane32_swap_b32 {v(PK+4*h_)}, {v(PK+4*h_+2)}")
                    a(f"v_permlane32_swap_b32 {v(PK+4*h_+1)}, {v(PK+4*h_+3)}")
                    a(f"buffer_store_dwordx4 {v(PK+4*h_,4)}, {v(vSA+tj)}, {s(SWS,4)}, 0 offen offset:{1024*h_} sc1")
            self.ts("qkv stores issued")
            if role == 0: a(f"s_branch {lrj}")
        a.label(lrj)
        if self.stop_after >= 2: self.p2_copy()
        self.publish(0, True)
        self.ts("QKV published")
        if full: self.wo_read()
        self.lpad = lpad


    def stage_rows128(self, srd, rowstride, scol, ldsbase, vsrc=2):
        a = self.a
        a(f"s_mul_i32 {s(sT0)}, {s(sW)}, 56")
        self.rows128_src(vsrc, rowstride, sT0, scol)
        a(f"s_mul_i32 {s(sT1)}, {s(sW)}, 7168")
        for j in range(7):
            a(f"s_mov_b32 {s(sT0)}, {8*j*rowstride}")
            self.dma(vsrc, srd, sT0, (sT1, ldsbase + 1024 * j))

    def move_frags(self, dst, vaddr, nsteps, perm, off0=0):
        a = self.a
        for k in range(nsteps):
            a(f"ds_read_b64_tr_b16 {v(dst+4*k,2)}, {v(vaddr)} offset:{off0+k*2048}")
            a(f"ds_read_b64_tr_b16 {v(dst+4*k+2,2)}, {v(vaddr)} offset:{off0+k*2048+(1024 if perm else 512)}")

    def busy_begin(self):
        a = self.a
        l = a.newlabel("NB")
        a(f"s_cmp_eq_u32 {s(sBUSY)}, 0")
        a(f"s_cbranch_scc1 {l}")
        return l

    def idle_path(self):
        main = self.a
        side = Asm(); side.nlabel = 100000
        self.a = a = side
        lpad = self.lpad
        a("s_nop 15") if False else None
        a.label(lpad)
        a(f"s_lshl_b32 {s(sT0)}, {s(sR)}, 7")
        a(f"s_sub_u32 {s(sT1)}, {s(sC)}, 14")
        a(f"s_lshl_b32 {s(sT1)}, {s(sT1)}, 6")
        a(f"s_add_u32 {s(sT0)}, {s(sT0)}, {s(sT1)}")
        a(f"v_lshrrev_b32 {v(2)}, 3, v0")
        a(f"v_add_u32 {v(2)}, {s(sT0)}, {v(2)}")
        a(f"v_mul_u32_u24 {v(3)}, 896, {v(2)}")
        a(f"v_and_b32 {v(T)}, 7, v0")
        a(f"v_lshl_add_u32 {v(3)}, {v(T)}, 4, {v(3)}")
        for j in range(7): a(f"buffer_load_dwordx4 {v(32+4*j,4)}, {v(3)}, {s(SX,4)}, 0 offen offset:{128*j}")
        self.flag_pretouch()
        self.idle_extra = 0
        a(f"v_mov_b32 v4, 0")
        a(f"v_mov_b32 v5, 0")
        for j in range(7):
            a(f"s_waitcnt vmcnt({7-j})")
            if j == 3: self.token_load(24)
            if j == 6: a("s_waitcnt vmcnt(0)")
            for k in range(4): a(f"v_dot2c_f32_bf16 v4, {s(sONES)}, {v(32+4*j+k)}")
            for k in range(4): a(f"v_dot2c_f32_bf16 v5, {v(32+4*j+k)}, {v(32+4*j+k)}")
        for ctl in ("quad_perm:[1,0,3,2]", "quad_perm:[2,3,0,1]", "row_half_mirror"):
            a(f"v_add_f32_dpp v4, v4, v4 {ctl} row_mask:0xf bank_mask:0xf")
            a(f"v_add_f32_dpp v5, v5, v5 {ctl} row_mask:0xf bank_mask:0xf")
        self.stats_finish(4, 5, 6, 7)
        self.mean_operand(20, 6, 8)
        a(f"v_mov_b32 v22, v7")
        self.token_take(24)
        a(f"s_lshl_b32 {s(sT0)}, {s(sTOK+1)}, 16")
        a(f"v_or_b32 v21, {s(sT0)}, v21")
        a(f"v_mov_b32 v23, {s(sTOK)}")
        a(f"v_lshlrev_b32 v2, 4, v2")
        a(f"v_add_u32 v2, {XS_OFF}, v2")
        self.set_exec(0x0101010101010101)
        a(f"buffer_store_dwordx4 v[20:23], v2, {s(SWS,4)}, 0 offen sc1")
        a("s_mov_b64 exec, -1")
        self.ts("stats stored")
        a(f"s_sub_u32 {s(sT0)}, {s(sC)}, 14")
        a(f"s_lshl_b32 {s(sT0)}, {s(sT0)}, 3")
        a(f"s_add_u32 {s(sT0)}, {s(sT0)}, {s(sW)}")
        a(f"s_lshl_b32 {s(sT0)}, {s(sT0)}, 6")
        a(f"s_lshl_b32 {s(sT1)}, {s(sR)}, 2")
        a(f"s_add_u32 {s(sT0)}, {s(sT0)}, {s(sT1)}")
        a(f"s_lshl_b32 {s(sT0)}, {s(sT0)}, 11")
        a(f"s_add_u32 {s(sT0)}, {s(sT0)}, {O_OFF}")
        a(f"v_lshlrev_b32 {v(T)}, 7, v1")
        a(f"buffer_load_dword {v(86)}, {v(T)}, {s(SWS,4)}, {s(sT0)} offen sc1")
        if self.stop_after >= 2:
            self.p2_pre(); self.p2_copy()
        self.publish(0, True)
        if self.tp & 12:
            l = a.newlabel("M3")
            a(f"s_cmp_eq_u32 {s(sROLE)}, 0")
            a(f"s_cbranch_scc1 {l}")
            self.touch(SW1, (sT, 1, 3))
            a.label(l)
        self.idle_touch_setup()
        if self.tp & 2:
            lI = "L_P2POLL"
            rounds = [(SWO, h) for h in range(3)] + [(SW1, h) for h in range(self.n1)]
            a(f"v_mov_b32 {v(58)}, {L_FLAG}")
            for srd, h in rounds:
                l1_, l2_ = a.newlabel("IR"), a.newlabel("IR")
                a(f"s_cmp_eq_u32 {s(sROLE)}, 0")
                a(f"s_cbranch_scc1 {l1_}")
                a(f"s_mov_b32 {s(sT0)}, {h*131072}")
                a(f"buffer_load_dword {v(86)}, {v(56)}, {s(srd,4)}, {s(sT0)} offen")
                a("s_waitcnt vmcnt(0)")
                a.label(l1_)
                a(f"s_cmp_lg_u32 {s(sW)}, 0")
                a(f"s_cbranch_scc1 {l2_}")
                a(f"buffer_load_dwordx2 {v(62,2)}, {v(61)}, {s(SWS,4)}, 0 offen{self.kvsc}")
                a("s_waitcnt vmcnt(0)")
                self.flag_check(62, 64)
                a(f"s_bcnt1_i32_b64 {s(sT0)}, vcc")
                a(f"v_mov_b32 {v(59)}, {s(sT0)}")
                a(f"ds_write_b32 {v(58)}, {v(59)}")
                a.label(l2_)
                a("s_waitcnt lgkmcnt(0)")
                a("s_barrier")
                a(f"ds_read_b32 {v(59)}, {v(58)}")
                a("s_waitcnt lgkmcnt(0)")
                a(f"v_readfirstlane_b32 {s(sT0)}, {v(59)}")
                a("s_barrier")
                a(f"s_cmp_lt_u32 {s(sT0)}, 50")
                a(f"s_cbranch_scc1 {lI}")
        a("s_nop 7")
        a("s_branch L_P2POLL")
        self.a = main
        self.side = side

    def wo_addr(self):
        a = self.a
        if True:
            a(f"s_and_b32 {s(sT1)}, {s(sW)}, 1")
            a(f"s_lshl_b32 {s(sT0)}, {s(sROLE)}, 1")
            a(f"s_add_u32 {s(sT0)}, {s(sT0)}, {s(sT1)}")
            a(f"s_mul_i32 {s(sT0)}, {s(sT0)}, {112*128}")
            a(f"s_add_u32 {s(sT0)}, {s(sT0)}, {L_WO}")
            a(f"s_mov_b32 {s(sU0)}, 0")
            self.tr128_addr(58, False, sT0)
            a(f"v_xor_b32 {v(57)}, 64, {v(58)}")
            a(f"s_lshl_b32 {s(sU0)}, {s(sT1)}, 6")
            a(f"s_and_b32 {s(sT1)}, {s(sW)}, 2")
            a(f"s_lshl_b32 {s(sT1)}, {s(sT1)}, 4")
            a(f"v_and_b32 {v(T)}, 31, v1")
            a(f"v_add_u32 {v(T)}, {s(sT1)}, {v(T)}")
            a(f"s_lshl_b32 {s(sT0)}, {s(sROLE)}, 5")
            a(f"s_add_u32 {s(sT0)}, {s(sT0)}, {s(sU0)}")
            a(f"v_lshrrev_b32 {v(T2)}, 5, v1")
            a(f"v_lshl_add_u32 {v(T2)}, {v(T2)}, 3, {s(sT0)}")
            a(f"v_bfe_u32 {v(59)}, v1, 1, 1")
            a(f"v_lshlrev_b32 {v(59)}, 6, {v(59)}")
            a(f"v_xor_b32 {v(59)}, {v(59)}, {v(T2)}")
            a(f"v_lshl_add_u32 {v(59)}, {v(T)}, 7, {v(59)}")
            a(f"v_add_u32 {v(59)}, {L_XR}, {v(59)}")
            a(f"s_lshl_b32 {s(sT0)}, {s(sR)}, 7")
            a(f"s_lshl_b32 {s(sT1)}, {s(sTH)}, 6")
            a(f"s_add_u32 {s(sT0)}, {s(sT0)}, {s(sT1)}")
            a(f"v_add_u32 {v(T)}, {s(sT0)}, {v(T)}")
            a(f"v_mul_u32_u24 {v(T)}, 896, {v(T)}")
            a(f"s_lshl_b32 {s(sT0)}, {s(sCT)}, 7")
            a(f"v_add3_u32 {v(85)}, {v(T)}, {v(T2)}, {s(sT0)}")

    def wo_read(self):
        a = self.a
        if True:
            for k in range(16):
                ks, n_ = divmod(k, 2)
                d = R_C + 4 * k if k < 14 else 232 + 4 * (k - 14)
                off = (28 * (ks // 2) + 16 * (ks % 2) - 4 * ((ks // 2) & 1)) * 128
                a(f"ds_read_b64_tr_b16 {v(d,2)}, {v(58-n_)} offset:{off}")
                a(f"ds_read_b64_tr_b16 {v(d+2,2)}, {v(58-n_)} offset:{off+512}")
            a(f"ds_read_b64 {v(vHRES,2)}, {v(59)}")
            a(f"ds_read_b64 {v(vHRES+2,2)}, {v(59)} offset:16")

    def p2_pre(self):
        a = self.a
        QF = 72; SR = R_A; OA = 16; KB = 32; vM = 12
        AO = R_A + 80; BN = R_A + 84
        a(f"s_mul_i32 {s(sT0)}, {s(sC)}, 7")
        a(f"s_lshr_b32 {s(sT0)}, {s(sT0)}, 1")
        a(f"v_lshrrev_b32 {v(T)}, 5, v1")
        a(f"v_and_b32 {v(69)}, 31, v1")
        for p_ in range(2):
            a(f"v_add3_u32 {v(T2)}, {v(T)}, {s(sT0)}, {2*p_}")
            a(f"v_lshrrev_b32 {v(65+p_)}, 2, {v(T2)}")
            a(f"v_lshlrev_b32 {v(65+p_)}, 17, {v(65+p_)}")
            a(f"v_and_b32 {v(T2)}, 3, {v(T2)}")
            a(f"v_lshl_add_u32 {v(65+p_)}, {v(T2)}, 9, {v(65+p_)}")
        a(f"s_and_b32 {s(82)}, {s(sW)}, 1")
        a(f"s_cmp_eq_u32 {s(82)}, 1")
        a(f"s_cselect_b64 {s(sSAVE,2)}, -1, 0")
        a(f"v_cndmask_b32 {v(68)}, {v(65)}, {v(66)}, {s(sSAVE,2)}")
        a(f"v_lshl_add_u32 {v(67)}, {v(69)}, 4, {v(68)}")
        a(f"s_lshl_b32 {s(sT1)}, {s(82)}, 1")
        a(f"v_add_u32 {v(T2)}, {s(sT1)}, {v(T)}")
        a(f"v_lshlrev_b32 {v(T2)}, 2, {v(T2)}")
        a(f"v_sub_u32 {v(T2)}, {v(69)}, {v(T2)}")
        a(f"v_and_b32 {v(T2)}, 31, {v(T2)}")
        a(f"v_lshl_add_u32 {v(68)}, {v(T2)}, 4, {v(68)}")
        a(f"v_lshl_add_u32 {v(65)}, {v(69)}, 4, {v(65)}")
        a(f"v_lshl_add_u32 {v(66)}, {v(69)}, 4, {v(66)}")
        a(f"s_lshl_b32 {s(sT1)}, {s(sR)}, 2")
        a(f"s_add_u32 {s(sT2)}, {s(sT1)}, {s(sT)}")
        a(f"s_lshl_b32 {s(72)}, {s(sT2)}, 11")
        a(f"s_lshl_b32 {s(sT3)}, {s(sC)}, 17")
        a(f"s_add_u32 {s(73)}, {s(72)}, {s(sT3)}")
        a(f"s_add_u32 {s(73)}, {s(73)}, {O_OFF}")
        a(f"s_lshr_b32 {s(sT3)}, {s(sW)}, 1")
        a(f"s_mul_i32 {s(sT3)}, {s(sT3)}, 3")
        a(f"s_add_u32 {s(sT1)}, {s(sT1)}, {s(sT3)}")
        a(f"s_add_u32 {s(sT1)}, {s(sT1)}, {14*64-8}")
        a(f"s_lshl_b32 {s(74)}, {s(sT1)}, 11")
        a(f"s_lshl_b32 {s(sT3)}, {s(sT3)}, 11")
        a(f"s_lshl_b32 {s(75)}, {s(82)}, 10")
        a(f"s_add_u32 {s(75)}, {s(75)}, {s(sT3)}")
        vK = 2; vV = 3
        sB = sT4
        a(f"s_lshl_b32 {s(sT0)}, {s(sROLE)}, 2")
        a(f"s_sub_u32 {s(76)}, {s(sT)}, {s(sT0)}")
        a(f"s_add_u32 {s(76)}, {s(76)}, 4")
        a(f"s_lshl_b32 {s(sT0)}, {s(76)}, 11")
        a(f"s_add_u32 {s(sT0)}, {s(sT0)}, {L_K}")
        a(f"v_lshl_add_u32 {v(vK)}, v1, 4, {s(sT0)}")
        a(f"v_bfe_u32 {v(T)}, v1, 4, 1")
        a(f"v_and_b32 {v(vV)}, 3, v1")
        a(f"v_lshl_add_u32 {v(T)}, {v(T)}, 2, {v(vV)}")
        a(f"v_lshrrev_b32 {v(T2)}, 1, {v(T)}")
        a(f"v_lshrrev_b32 {v(vV)}, 5, v1")
        a(f"v_add_u32 {v(vV)}, {v(vV)}, {v(T2)}")
        a(f"v_bfe_u32 {v(vV+1)}, v1, 2, 2")
        a(f"v_lshl_add_u32 {v(8)}, {v(vV)}, 2, {v(vV+1)}")
        a(f"v_lshl_add_u32 {v(T2)}, {v(T2)}, 9, {s(sT0)}")
        a(f"v_and_b32 {v(vV)}, 1, v1")
        a(f"v_lshl_add_u32 {v(T2)}, {v(vV)}, 3, {v(T2)}")
        a(f"v_add_u32 {v(T2)}, {L_V-L_K}, {v(T2)}")
        a(f"s_and_b32 {s(sT1)}, {s(sC)}, 1")
        a(f"s_mul_i32 {s(sT1)}, {s(sT1)}, 7")
        a(f"s_sub_u32 {s(sT1)}, 7, {s(sT1)}")
        a(f"v_cmp_eq_u32 {s(sSAVE,2)}, {s(sT1)}, {v(T)}")
        a(f"v_mov_b32 {v(T)}, {L_ONES}")
        for k in range(4):
            a(f"v_add_u32 {v(vV+k)}, {8*k}, {v(8)}")
            a(f"v_and_b32 {v(vV+k)}, 31, {v(vV+k)}")
            a(f"v_lshl_add_u32 {v(vV+k)}, {v(vV+k)}, 4, {v(T2)}")
            a(f"v_cndmask_b32 {v(vV+k)}, {v(vV+k)}, {v(T)}, {s(sSAVE,2)}")
        sFV = sT5
        a(f"s_lshl_b32 {s(sT0)}, {s(sR)}, 2")
        a(f"s_sub_i32 {s(77)}, 8, {s(sT0)}")
        a(f"s_sub_i32 {s(77)}, {s(77)}, {s(76)}")
        a(f"s_mov_b32 {s(sT0)}, 0")
        a(f"s_lshl_b32 {s(sT2)}, {s(sC)}, 8")
        self.rows128_src(9, 3584, sT0, sT2)
        sWs8, sWl8, sWs4, sWl4 = sKC, sKC + 1, sKC + 2, sKC + 3
        a(f"s_mul_i32 {s(78)}, {s(sW)}, {8*3584}")
        a(f"s_lshl_b32 {s(79)}, {s(sW)}, 10")
        a(f"s_mul_i32 {s(80)}, {s(sT)}, {8*3584}")
        a(f"s_lshl_b32 {s(81)}, {s(sT)}, 10")
        vMA, vMX, vOS = 7, 8, 10
        a(f"s_mul_i32 {s(sT0)}, {s(sT)}, 4608")
        a(f"s_add_u32 {s(sT0)}, {s(sT0)}, {L_MRG}")
        a(f"v_lshl_add_u32 {v(vMA)}, v1, 4, {s(sT0)}")
        a(f"s_lshl_b32 {s(sT1)}, {s(sROLE)}, 8")
        a(f"s_add_u32 {s(sT0)}, {s(sT0)}, {s(sT1)}")
        a(f"s_add_u32 {s(sT0)}, {s(sT0)}, 4096")
        a(f"v_lshl_add_u32 {v(vMX)}, v1, 2, {s(sT0)}")
        a(f"v_xor_b32 {v(11)}, 256, {v(vMX)}")
        assert (L_MRG + 4096) % 512 == 0 and 4608 % 512 == 0
        a(f"v_lshl_add_u32 {v(vOS)}, v1, 4, {s(73)}")
        a(f"v_lshrrev_b32 {v(T)}, 4, v1")
        a(f"v_sub_u32 {v(T)}, {s(sR)}, {v(T)}")
        a(f"v_max_i32 {v(T)}, 0, {v(T)}")
        a(f"v_and_b32 {v(T2)}, 15, v1")
        a(f"v_cmp_le_u32 vcc, 7, {v(T2)}")
        a(f"v_cndmask_b32 {v(62)}, 0, 1, vcc")
        a(f"v_and_b32 {v(60)}, 12, {v(T)}")
        a(f"v_lshl_add_u32 {v(60)}, {v(62)}, 1, {v(60)}")
        a(f"v_bfe_u32 {v(61)}, {v(T)}, 1, 1")
        a(f"v_add_u32 {v(60)}, {v(60)}, {v(61)}")
        a(f"v_and_b32 {v(61)}, 1, {v(T)}")
        a(f"v_sub_u32 {v(61)}, {v(61)}, {v(62)}")
        a(f"v_mad_i32_i24 {v(61)}, {v(61)}, 7, {v(T2)}")
        a(f"v_cmp_le_u32 vcc, 14, {v(T2)}")
        a(f"v_cndmask_b32 {v(60)}, {v(60)}, {v(T)}, vcc")
        a(f"v_cndmask_b32 {v(61)}, {v(61)}, {v(T2)}, vcc")
        a(f"v_mov_b32 {v(62)}, {s(sR)}")
        a(f"v_cmp_le_u32 vcc, 48, v1")
        a(f"v_cndmask_b32 {v(60)}, {v(60)}, {v(62)}, vcc")
        a(f"v_cndmask_b32 {v(61)}, {v(61)}, {v(T2)}, vcc")
        a(f"v_lshl_add_u32 {v(60)}, {v(60)}, 4, {v(61)}")
        a(f"v_lshlrev_b32 {v(T)}, 7, {v(60)}")
        a(f"v_add_u32 {v(61)}, {FL0_OFF}, {v(T)}")

    def p2_copy(self):
        a = self.a
        for d, src in ((sKC+6, 72), (sU1, 73), (sKC+4, 74), (sKC+5, 75), (sT4, 76), (sT5, 77), (sKC, 78), (sKC+1, 79)):
            a(f"s_mov_b32 {s(d)}, {s(src)}")
        a(f"v_mov_b32 {v(T)}, {L_ONES}")
        a(f"v_lshl_add_u32 {v(T)}, v1, 11, {v(T)}")
        a(f"v_mov_b32 {v(70)}, 0x3f80")
        a(f"v_mov_b32 {v(71)}, 0")
        a("s_mov_b64 exec, 31")
        a(f"ds_write_b64 {v(T)}, {v(70,2)}")
        a("s_mov_b64 exec, -1")

    def p2_late(self):
        a = self.a
        OA = 16; AO = R_A + 80; BN = R_A + 84
        a(f"v_mov_b32 {v(T)}, {s(sONES)}")
        a(f"v_cndmask_b32 {v(AO)}, {v(T)}, 0, {s(sHI,2)}")
        for k in range(1, 4): a(f"v_mov_b32 {v(AO+k)}, 0")
        for k in range(1, 4): a(f"v_mov_b32 {v(BN+k)}, 0")
        for k in range(16): a(f"v_mov_b32 {v(OA+k)}, 0")
        self.masks()

    def p2(self):
        a = self.a
        QF = 72
        SR = R_A
        OA = 16
        KB = 32
        vM = 12
        AO = R_A + 80
        BN = R_A + 84
        full = self.stop_after >= 3
        vK = 2; vV = 3; sB = sT4; sFV = sT5
        sWs8, sWl8, sWs4, sWl4 = sKC, sKC + 1, sKC + 2, sKC + 3
        vMA, vMX, vOS = 7, 8, 10
        lw = a.newlabel("P2W"); lw0 = a.newlabel("P2W")
        def w1dma(items, four):
            if not full: return
            l = self.busy_begin()
            for dp, q0 in items:
                a(f"s_add_u32 {s(sT0)}, {s(sWs4 if four else sWs8)}, {q0*8*3584 + 128*dp}")
                self.dma(9, SW1, sT0, (sWl4 if four else sWl8, L_W1B * dp + 1024 * q0))
            a.label(l)
        self.idle_path()
        a.label("L_P2POLL")
        self.ts("pre poll")
        a(f"s_cmp_lg_u32 {s(sW)}, 0")
        a(f"s_cbranch_scc1 {lw}")
        self.poll(61, 62, 64, (1 << 64) - 1, "KV", sleep=self.kvsleep, sc=self.kvsc)
        self.ts("poll done")
        self.set_exec(0xffff << 48)
        a(f"v_lshrrev_b32 {v(63)}, 28, {v(63)}")
        a(f"v_cmp_ne_u32 vcc, {s(sXCC)}, {v(63)}")
        a(f"s_mov_b64 exec, -1")
        a(f"s_cmp_eq_u64 vcc, 0")
        a(f"s_cselect_b32 {s(sT0)}, 1, 0")
        a(f"v_mov_b32 {v(T2)}, {s(sT0)}")
        a(f"v_mov_b32 {v(T)}, {L_FLAG}")
        a(f"ds_write_b32 {v(T)}, {v(T2)}")
        a.label(lw)
        a("s_waitcnt lgkmcnt(0)")
        self.ts("own wait done")
        a("s_barrier")
        self.ts("QKV flags seen")
        for k in range(3):
            a(f"s_add_u32 {s(sT3)}, {s(sKC+4)}, {2048*k}")
            self.dma(67, SWS, sT3, (sKC+5, L_K + 2048 * k), sc1=True)
        for p_ in range(2):
            a(f"buffer_load_dwordx4 {v(QF+4*p_,4)}, {v(65+p_)}, {s(SWS,4)}, {s(sKC+6)} offen sc1")
        a(f"v_mov_b32 {v(T)}, {L_FLAG}")
        a(f"ds_read_b32 {v(13)}, {v(T)}")
        self.p2_late()
        a("s_waitcnt lgkmcnt(0)")
        a(f"v_readfirstlane_b32 {s(sLOCAL)}, {v(13)}")
        a("s_waitcnt vmcnt(0)")
        a("s_barrier")
        self.ts("K landed")
        for k in range(3):
            a(f"s_add_u32 {s(sT3)}, {s(sKC+4)}, {2048*k+14*64*2048}")
            self.dma(68, SWS, sT3, (sKC+5, L_V + 2048 * k), sc1=True)
        NEG = f32bits(-1.0e30)
        def valid_branch(j, lab):
            if j == 4:
                a(f"s_cmp_eq_u32 {s(sROLE)}, 1")
                a(f"s_cbranch_scc1 {lab}")
            else:
                a(f"s_cmp_gt_i32 {s(sFV)}, {j}")
                a(f"s_cbranch_scc1 {lab}")
        for j in range(5):
            for k in range(2):
                a(f"ds_read_b128 {v(KB+8*j+4*k,4)}, {v(vK)} offset:{2048*j+1024*k}")
        def zero_foreign(base):
            lz1, lz2 = a.newlabel("ZF"), a.newlabel("ZF")
            a(f"s_bitcmp1_b32 {s(sC)}, 0")
            a(f"s_cbranch_scc1 {lz1}")
            a(f"v_cndmask_b32 {v(base+6)}, {v(base+6)}, 0, {s(sHI,2)}")
            a(f"v_cndmask_b32 {v(base+7)}, {v(base+7)}, 0, {s(sHI,2)}")
            a(f"s_branch {lz2}")
            a.label(lz1)
            a(f"v_cndmask_b32 {v(base)}, 0, {v(base)}, {s(sHI,2)}")
            a(f"v_cndmask_b32 {v(base+1)}, 0, {v(base+1)}, {s(sHI,2)}")
            a.label(lz2)
        zero_foreign(QF)
        a(f"v_mov_b32 {v(vM)}, {NEG:#x}")
        a(f"v_mov_b32 {v(13)}, {NEG:#x}")
        for j in range(5):
            lsk = a.newlabel("QS")
            a(f"s_waitcnt lgkmcnt({8-2*j})")
            valid_branch(j, lsk)
            a(f"{MF} {v(SR+16*j,16)}, {v(KB+8*j,4)}, {v(QF,4)}, 0")
            a(f"{MF} {v(SR+16*j,16)}, {v(KB+8*j+4,4)}, {v(QF+4,4)}, {v(SR+16*j,16)}")
            a.label(lsk)
        sched = self.w1sched
        rounds = [(0, 8 * k) for k in range(7)] + [(1, 8 * k) for k in range(7)]
        def w1next(n):
            it = [rounds.pop(0) for _ in range(min(n, len(rounds)))]
            if it: w1dma(it, False)
            return len(it)
        npre_max = 0
        a(f"v_mov_b32 {v(T)}, {NEG:#x}")
        for j in range(5):
            lsk = a.newlabel("MX")
            valid_branch(j, lsk)
            b = SR + 16 * j
            if j == 4:
                for k in range(16): a(f"v_cndmask_b32 {v(b+k)}, {v(T)}, {v(b+k)}, {s(sMASK+2*k,2)}")
            if j == 0:
                lm = a.newlabel("MK")
                a(f"s_cmp_eq_u32 {s(sROLE)}, 0")
                a(f"s_cbranch_scc1 {lm}")
                for k in range(16): a(f"v_cndmask_b32 {v(b+k)}, {v(b+k)}, {v(T)}, {s(sMASK+2*k,2)}")
                a.label(lm)
            for k in range(8):
                d = vM if k % 2 == 0 else 13
                a(f"v_max3_f32 {v(d)}, {v(d)}, {v(b+2*k)}, {v(b+2*k+1)}")
            a.label(lsk)
            npre_max += w1next(sched[0][j])
        a(f"v_max_f32 {v(vM)}, {v(vM)}, {v(13)}")
        a(f"v_mov_b32 {v(T)}, {v(vM)}")
        a(f"v_permlane32_swap_b32 {v(T)}, {v(vM)}")
        a(f"v_max_f32 {v(vM)}, {v(vM)}, {v(T)}")
        a(f"ds_write_b32 {v(vMX)}, {v(vM)}")
        assert npre_max <= 11
        lv1, lv2 = a.newlabel("VW"), a.newlabel("VW")
        a(f"s_cmp_eq_u32 {s(sBUSY)}, 1")
        a(f"s_cbranch_scc1 {lv1}")
        a("s_waitcnt vmcnt(0)")
        a.label(lv1)
        a(f"s_waitcnt vmcnt({npre_max if full else 0}) lgkmcnt(0)")
        a("s_barrier")
        a(f"ds_read_b32 {v(T)}, {v(11)}")
        for j in range(5):
            for st in range(2):
                for rr in range(2):
                    a(f"ds_read_b64_tr_b16 {v(KB+8*j+4*st+2*rr,2)}, {v(vV+2*st+rr)} offset:{2048*j}")
        a("s_waitcnt lgkmcnt(15)")
        a(f"v_max_f32 {v(vM)}, {v(vM)}, {v(T)}")
        a(f"v_cvt_pk_bf16_f32 {v(T)}, -{v(vM)}, 0")
        a(f"v_lshlrev_b32 {v(T)}, 16, {v(T)}")
        a(f"v_sub_f32 {v(T)}, -{v(vM)}, {v(T)}")
        a(f"v_cvt_pk_bf16_f32 {v(BN)}, -{v(vM)}, {v(T)}")
        self.ts("max done")
        for j in range(5):
            lsk = a.newlabel("SB")
            valid_branch(j, lsk)
            a(f"{MF} {v(SR+16*j,16)}, {v(AO,4)}, {v(BN,4)}, {v(SR+16*j,16)}")
            a.label(lsk)
        w1next(sched[1])
        a("s_waitcnt lgkmcnt(0)")
        for j in range(5):
            lsk = a.newlabel("PS")
            valid_branch(j, lsk)
            b = SR + 16 * j
            for h_ in range(2):
                for k in range(8): a(f"v_exp_f32 {v(b+8*h_+k)}, {v(b+8*h_+k)}")
                for k in range(4): a(f"v_cvt_pk_bf16_f32 {v(b+8*h_+k)}, {v(b+8*h_+2*k)}, {v(b+8*h_+2*k+1)}")
            a(f"{MF} {v(OA,16)}, {v(KB+8*j,4)}, {v(b,4)}, {v(OA,16)}")
            a(f"{MF} {v(OA,16)}, {v(KB+8*j+4,4)}, {v(b+8,4)}, {v(OA,16)}")
            a.label(lsk)
            w1next(sched[2][j])
        assert not rounds
        self.ts("attn partial done")
        l1 = a.newlabel("MG")
        a(f"s_cmp_eq_u32 {s(sROLE)}, 1")
        a(f"s_cbranch_scc0 {l1}")
        for k in range(4): a(f"ds_write_b128 {v(vMA)}, {v(OA+4*k,4)} offset:{1024*k}")
        a.label(l1)
        a(f"s_lshl_b32 {s(sT1)}, {s(sR)}, 9")
        a(f"s_lshl_b32 {s(sT2)}, {s(sT)}, 7")
        a(f"s_add_u32 {s(sT1)}, {s(sT1)}, {s(sT2)}")
        a(f"s_lshl_b32 {s(sT2)}, {s(sC)}, 3")
        a(f"s_add_u32 {s(sT1)}, {s(sT1)}, {s(sT2)}")
        a(f"s_add_u32 {s(sT1)}, {s(sT1)}, {FLG(1)}")
        a(f"s_lshl_b32 {s(sT2)}, {s(sXCC)}, 28")
        a(f"s_or_b32 {s(sT2)}, {s(sT2)}, {s(sTOK+1)}")
        a(f"v_mov_b32 {v(13)}, {s(sT1)}")
        a(f"v_mov_b32 {v(60)}, {s(sTOK)}")
        a(f"v_mov_b32 {v(61)}, {s(sT2)}")
        a("s_waitcnt vmcnt(0) lgkmcnt(0)")
        a("s_barrier")
        self.ts("merge barrier")
        l2, l3 = a.newlabel("MG"), a.newlabel("MG")
        a(f"s_cmp_eq_u32 {s(sROLE)}, 0")
        a(f"s_cbranch_scc0 {l2}")
        O1 = 32
        for k in (3, 0, 1, 2): a(f"ds_read_b128 {v(O1+4*k,4)}, {v(vMA)} offset:{1024*k}")
        a(f"s_bitcmp1_b32 {s(sC)}, 0")
        a(f"s_cselect_b64 {s(sSAVE,2)}, -1, 0")
        a("s_waitcnt lgkmcnt(2)")
        for k in (6, 7, 0, 1): a(f"v_pk_add_f32 {v(OA+2*k,2)}, {v(OA+2*k,2)}, {v(O1+2*k,2)}")
        a(f"v_cndmask_b32 {v(T)}, {v(OA)}, {v(OA+12)}, {s(sHI,2)}")
        a(f"v_mov_b32 {v(T2)}, {v(T)}")
        a(f"v_permlane32_swap_b32 {v(T)}, {v(T2)}")
        a(f"v_cndmask_b32 {v(T2)}, {v(T2)}, {v(T)}, {s(sSAVE,2)}")
        a(f"v_rcp_f32 {v(T2)}, {v(T2)}")
        a("s_waitcnt lgkmcnt(0)")
        for k in (2, 3, 4, 5): a(f"v_pk_add_f32 {v(OA+2*k,2)}, {v(OA+2*k,2)}, {v(O1+2*k,2)}")
        a(f"v_mov_b32 {v(T)}, {v(T2)}")
        for aa in range(4):
            for k in range(2): a(f"v_pk_mul_f32 {v(OA+4*aa+2*k,2)}, {v(OA+4*aa+2*k,2)}, {v(T,2)}")
            for k in range(2): a(f"v_cvt_pk_bf16_f32 {v(O1+2*aa+k)}, {v(OA+4*aa+2*k)}, {v(OA+4*aa+2*k+1)}")
        zero_foreign(O1)
        for h_ in range(2):
            a(f"v_permlane32_swap_b32 {v(O1+4*h_)}, {v(O1+4*h_+2)}")
            a(f"v_permlane32_swap_b32 {v(O1+4*h_+1)}, {v(O1+4*h_+3)}")
        def ost(sc):
            for h_ in range(2):
                a(f"buffer_store_dwordx4 {v(O1+4*h_,4)}, {v(vOS)}, {s(SWS,4)}, 0 offen offset:{1024*h_}{sc}")
        if self.oplain: self.two_path(ost)
        else: ost(" sc1")
        if full: self.p3_addrA()
        a(f"s_mov_b64 exec, 1")
        a("s_waitcnt vmcnt(0)")
        self.two_path(lambda sc: a(f"buffer_store_dwordx2 {v(60,2)}, {v(13)}, {s(SWS,4)}, 0 offen{sc}"))
        a(f"s_mov_b64 exec, -1")
        self.ts("O flag stored")
        a(f"s_branch {l3}")
        a.label(l2)
        if full:
            self.p3_addrA()
            self.p3_moves()
        self.w1dma = w1dma
        a.label(l3)
        self.ts("O published")

    def w1_move(self, dp, ldsbase):
        a = self.a
        l = a.newlabel("W1M")
        a(f"s_lshr_b32 {s(sT0)}, {s(sT)}, 1")
        a(f"s_cmp_lg_u32 {s(sT0)}, {dp}")
        a(f"s_cbranch_scc1 {l}")
        a(f"s_and_b32 {s(sU0)}, {s(sW)}, 1")
        a(f"s_lshl_b32 {s(sU0)}, {s(sU0)}, 6")
        a(f"s_mov_b32 {s(sT0)}, {ldsbase}")
        self.tr128_addr(3, True, sT0)
        self.move_frags(R_A, 3, 28, True)
        a.label(l)

    def p3_addrA(self):
        a = self.a
        z = lambda k: 64 + k
        sN, sUu, sTile2 = z(0), z(1), z(2)
        a(f"s_and_b32 {s(sN)}, {s(sW)}, 1")
        a(f"s_bfe_u32 {s(sUu)}, {s(sW)}, 0x10001")
        a(f"s_lshl_b32 {s(sTile2)}, {s(sR)}, 2")
        a(f"s_lshl_b32 {s(sT1)}, {s(sTH)}, 1")
        a(f"s_add_u32 {s(sTile2)}, {s(sTile2)}, {s(sT1)}")
        a(f"s_lshl_b32 {s(sT0)}, {s(sROLE)}, 1")
        a(f"s_add_u32 {s(z(3))}, {s(sT0)}, {s(sN)}")
        a(f"s_lshl_b32 {s(sT0)}, {s(z(3))}, 8")
        a(f"s_add_u32 {s(sT2)}, {s(sTile2)}, {s(sUu)}")
        a(f"s_add_u32 {s(sT0)}, {s(sT0)}, {s(sT2)}")
        a(f"s_lshl_b32 {s(z(5))}, {s(sT0)}, 11")
        a(f"s_add_u32 {s(z(5))}, {s(z(5))}, {O_OFF}")
        a(f"s_lshl_b32 {s(sT0)}, {s(sT2)}, 7")
        a(f"s_lshl_b32 {s(sT1)}, {s(z(3))}, 5")
        a(f"s_add_u32 {s(sT0)}, {s(sT0)}, {s(sT1)}")
        a(f"s_add_u32 {s(z(4))}, {s(sT0)}, {FLG(1)}")

    def p3_moves(self):
        a = self.a
        lb = self.busy_begin()
        for k in range(8): a(f"v_mov_b32 {v(4+k)}, {v(232+k)}")
        a(f"s_and_b32 {s(sU0)}, {s(sW)}, 1")
        a(f"s_lshl_b32 {s(sU0)}, {s(sU0)}, 6")
        a(f"s_lshr_b32 {s(sT0)}, {s(sT)}, 1")
        a(f"s_mul_i32 {s(sT0)}, {s(sT0)}, {L_W1B}")
        self.tr128_addr(3, True, sT0)
        self.move_frags(R_A, 3, 28, True)
        a.label(lb)

    def p3_rest(self):
        a = self.a
        z = lambda k: 64 + k
        sN, sUu, sTile2 = z(0), z(1), z(2)
        a(f"s_lshl_b32 {s(sT1)}, {s(sUu)}, 15")
        a(f"s_add_u32 {s(sT1)}, {s(sT1)}, {L_RED3D}")
        a(f"s_lshl_b32 {s(sT0)}, {s(z(3))}, 11")
        a(f"s_add_u32 {s(z(15))}, {s(sT0)}, {s(sT1)}")
        a(f"s_lshl_b32 {s(sT0)}, {s(z(3))}, 13")
        a(f"s_add_u32 {s(z(16))}, {s(sT0)}, {s(sT1)}")
        a(f"s_add_u32 {s(sT0)}, {s(sTile2)}, {s(sUu)}")
        a(f"s_mul_i32 {s(sT0)}, {s(sT0)}, 28")
        a(f"s_lshl_b32 {s(sT1)}, {s(sCT)}, 2")
        a(f"s_add_u32 {s(sT0)}, {s(sT0)}, {s(sT1)}")
        a(f"s_lshl_b32 {s(sT1)}, {s(sN)}, 1")
        a(f"s_add_u32 {s(sT0)}, {s(sT0)}, {s(sT1)}")
        a(f"s_add_u32 {s(sT0)}, {s(sT0)}, {s(sROLE)}")
        a(f"s_lshl_b32 {s(sT1)}, {s(sT0)}, 10")
        a(f"s_add_u32 {s(z(17))}, {s(sT1)}, {H_OFF}")
        a(f"s_lshl_b32 {s(sT1)}, {s(sT0)}, 8")
        a(f"s_add_u32 {s(z(18))}, {s(sT1)}, {HS_OFF}")
        sKQ = z(7); self.sKQ = sKQ
        a(f"s_and_b32 {s(sKQ)}, {s(sW)}, 2")
        a(f"s_add_u32 {s(sKQ)}, {s(sKQ)}, {s(sROLE)}")
        a(f"s_mul_i32 {s(sT0)}, {s(sKQ)}, 448")
        a(f"s_lshl_b32 {s(sT2)}, {s(sN)}, 4")
        a(f"s_add_u32 {s(sT0)}, {s(sT0)}, {s(sT2)}")
        a(f"s_lshl_b32 {s(sT2)}, {s(sCT)}, 7")
        self.rows128_src(84, 896, sT0, sT2)
        sW2m = z(8); self.sW2m = sW2m
        a(f"s_lshl_b32 {s(sT0)}, {s(sKQ)}, 12")
        a(f"s_lshl_b32 {s(sT1)}, {s(sN)}, 11")
        a(f"s_add_u32 {s(sW2m)}, {s(sT0)}, {s(sT1)}")

    def cs1(self, role):
        a = self.a
        a(f"v_mov_b32 {v(86)}, 0")
        a("s_waitcnt lgkmcnt(0)")
        for k in range(56): a(f"v_dot2c_f32_bf16 {v(86)}, {s(sONES)}, {v(R_A+56*role+k)}")

    def p3(self):
        a = self.a
        ACC = 16; FB = 32; XR = 64
        lb_ = a.newlabel("BZ")
        a(f"s_cmp_eq_u32 {s(sBUSY)}, 1")
        a(f"s_cbranch_scc1 {lb_}")
        if self.tp & 2:
            a(f"s_and_b32 {s(sT0)}, {s(sR)}, 1")
            a(f"s_lshl_b32 {s(sT0)}, {s(sT0)}, 1")
            a(f"s_add_u32 {s(sT0)}, {s(sT0)}, {s(sC)}")
            a(f"s_sub_u32 {s(sT0)}, {s(sT0)}, 14")
            a(f"s_mul_i32 {s(sT0)}, {s(sT0)}, {448*896}")
            a(f"s_mul_i32 {s(sT1)}, {s(sW)}, {56*128}")
            a(f"s_add_u32 {s(sT0)}, {s(sT0)}, {s(sT1)}")
            a(f"v_lshl_add_u32 {v(21)}, v1, 7, {s(sT0)}")
            a("s_waitcnt vmcnt(0)")
            a("s_barrier")
            self.set_exec((1 << 56) - 1)
            for k in self.post:
                a(f"s_mov_b32 {s(sT0)}, {k*64*896}")
                a(f"buffer_load_dword {v(86)}, {v(21)}, {s(SW2,4)}, {s(sT0)} offen")
            a("s_mov_b64 exec, -1")
        a(f"s_branch L_FIN")
        a.label(lb_)
        z = lambda k: 64 + k
        sN, sUu, sTile2 = z(0), z(1), z(2)
        ACC = 16; FB = 48
        a(f"v_lshlrev_b32 {v(2)}, 4, v1")
        a(f"v_lshl_add_u32 {v(13)}, v1, 3, {s(z(4))}")
        self.poll(13, T, 12, 15, "O")
        self.ts("O flags seen")
        for hd in range(4):
            a(f"s_add_u32 {s(sT0)}, {s(z(5))}, {hd*64*2048}")
            for h_ in range(2):
                a(f"buffer_load_dwordx4 {v(FB+8*hd+4*h_,4)}, {v(2)}, {s(SWS,4)}, {s(sT0)} offen offset:{1024*h_} sc1")
        wf = lambda k: R_C + 4 * k if k < 14 else 4 + 4 * (k - 14)
        lcs, lcs2 = a.newlabel("CS0"), a.newlabel("CS0")
        a(f"s_cmp_eq_u32 {s(sROLE)}, 1")
        a(f"s_cbranch_scc1 {lcs}")
        self.p3_moves()
        a.label(lcs)
        self.p3_rest()
        for ks in range(8):
            a(f"s_waitcnt vmcnt({7-ks})")
            if ks == 0: self.ts("O stage0 landed")
            for n_ in range(2):
                a(f"{MF} {v(ACC+16*n_,16)}, {v(wf(2*ks+n_),4)}, {v(FB+4*ks,4)}, {'0' if ks==0 else v(ACC+16*n_,16)}")
        self.ts("p3 mfma done")
        XR = FB; RB = FB + 8
        a(f"v_add_u32 {v(12)}, {s(z(15))}, {v(2)}")
        a(f"v_add_u32 {v(13)}, {s(z(16))}, {v(2)}")
        a(f"v_lshlrev_b32 {v(3)}, 2, v1")
        a("s_waitcnt lgkmcnt(0)")
        a("s_barrier")
        for k in range(4):
            a(f"v_lshlrev_b32 {v(XR+2*k)}, 16, {v(vHRES+k)}")
            a(f"v_and_b32 {v(XR+2*k+1)}, 0xffff0000, {v(vHRES+k)}")
        pcs = [(0, L_HR), (1, L_HR + 16384), (2, L_HR + 32768), (3, 81920)][:self.np3] if self.stop_after >= 4 else []
        a(f"v_mov_b32 {v(8)}, {v(84)}")
        a(f"v_add_u32 {v(4)}, {8*896-1024}, {v(84)}")
        for kh_ in range(2):
            for n_ in range(2):
                d = 2 * kh_ + n_
                a(f"ds_write_b128 {v(12)}, {v(ACC+16*n_+8*kh_,4)} offset:{8192*d}")
                a(f"ds_write_b128 {v(12)}, {v(ACC+16*n_+8*kh_+4,4)} offset:{8192*d+1024}")
        for p, loc in pcs[:3]:
            a(f"s_mov_b32 {s(sT1)}, {32*p*896}")
            self.dma(8, SW2, sT1, (self.sW2m, loc))
            self.dma(4, SW2, sT1, None, off=1024)
        a("s_waitcnt lgkmcnt(0)")
        a("s_barrier")
        for sidx in range(4):
            a(f"ds_read_b128 {v(ACC+8*sidx,4)}, {v(13)} offset:{2048*sidx}")
            a(f"ds_read_b128 {v(ACC+8*sidx+4,4)}, {v(13)} offset:{2048*sidx+1024}")
        a("s_waitcnt lgkmcnt(6)")
        for k in range(4): a(f"v_pk_add_f32 {v(XR+2*k,2)}, {v(XR+2*k,2)}, {v(ACC+2*k,2)}")
        a("s_waitcnt lgkmcnt(2)")
        for k in range(4): a(f"v_pk_add_f32 {v(ACC+8+2*k,2)}, {v(ACC+8+2*k,2)}, {v(ACC+16+2*k,2)}")
        a("s_waitcnt lgkmcnt(0)")
        for k in range(4): a(f"v_pk_add_f32 {v(XR+2*k,2)}, {v(XR+2*k,2)}, {v(ACC+24+2*k,2)}")
        for k in range(4): a(f"v_pk_add_f32 {v(XR+2*k,2)}, {v(XR+2*k,2)}, {v(ACC+8+2*k,2)}")
        for k in range(4): a(f"v_cvt_pk_bf16_f32 {v(vHRES+k)}, {v(XR+2*k)}, {v(XR+2*k+1)}")
        a(f"buffer_store_dwordx4 {v(vHRES,4)}, {v(2)}, {s(SWS,4)}, {s(z(17))} offen sc1")
        F2 = RB
        a(f"v_pk_add_f32 {v(F2,2)}, {v(XR,2)}, {v(XR+2,2)}")
        a(f"v_pk_mul_f32 {v(F2+2,2)}, {v(XR,2)}, {v(XR,2)}")
        a(f"v_pk_add_f32 {v(F2+4,2)}, {v(XR+4,2)}, {v(XR+6,2)}")
        a(f"v_pk_fma_f32 {v(F2+2,2)}, {v(XR+2,2)}, {v(XR+2,2)}, {v(F2+2,2)}")
        a(f"v_pk_add_f32 {v(F2,2)}, {v(F2,2)}, {v(F2+4,2)}")
        a(f"v_pk_fma_f32 {v(F2+2,2)}, {v(XR+4,2)}, {v(XR+4,2)}, {v(F2+2,2)}")
        a(f"v_add_f32 {v(F2)}, {v(F2)}, {v(F2+1)}")
        a(f"v_pk_fma_f32 {v(F2+2,2)}, {v(XR+6,2)}, {v(XR+6,2)}, {v(F2+2,2)}")
        a(f"v_add_f32 {v(F2+1)}, {v(F2+2)}, {v(F2+3)}")
        a(f"v_permlane32_swap_b32 {v(F2)}, {v(F2+1)}")
        a(f"v_add_f32 {v(F2)}, {v(F2)}, {v(F2+1)}")
        a(f"buffer_store_dword {v(F2)}, {v(3)}, {s(SWS,4)}, {s(z(18))} offen sc1")
        self.ts("H stores issued")
        nk = 0
        if self.stop_after >= 4: self.p4_setup()
        self.publish(2, keep=nk)
        self.ts("H published")

    def p4_setup(self):
        a = self.a
        z = lambda k: 64 + k
        sN, sUu, sTile2, sKQ = z(0), z(1), z(2), self.sKQ
        a(f"s_lshl_b32 {s(sT0)}, {s(sKQ)}, 12")
        a(f"s_lshl_b32 {s(sU0)}, {s(sN)}, 6")
        self.tr128_addr(9, True, sT0)
        a(f"v_add_u32 {v(10)}, 65536, {v(9)}")
        a(f"s_lshl_b32 {s(sT0)}, {s(sR)}, 2")
        a(f"s_lshl_b32 {s(sT1)}, {s(sROLE)}, 1")
        a(f"s_add_u32 {s(sT0)}, {s(sT0)}, {s(sT1)}")
        a(f"s_mul_i32 {s(sT2)}, {s(sT0)}, 28672")
        a(f"s_lshl_b32 {s(sT1)}, {s(sT)}, 11")
        a(f"s_add_u32 {s(sT2)}, {s(sT2)}, {s(sT1)}")
        a(f"s_add_u32 {s(sT2)}, {s(sT2)}, {H_OFF}")
        a(f"v_add_u32 {v(3)}, {s(sT2)}, {v(2)}")
        a(f"s_lshl_b32 {s(z(9))}, {s(sW)}, 11")
        a(f"s_mul_i32 {s(sT0)}, {s(sT0)}, 112")
        a(f"s_lshl_b32 {s(sT1)}, {s(sC)}, 3")
        a(f"s_add_u32 {s(sT0)}, {s(sT0)}, {s(sT1)}")
        a(f"s_lshl_b32 {s(sT1)}, {s(sT)}, 1")
        a(f"s_add_u32 {s(sT0)}, {s(sT0)}, {s(sT1)}")
        a(f"s_lshl_b32 {s(sT0)}, {s(sT0)}, 10")
        a(f"s_add_u32 {s(sT0)}, {s(sT0)}, {H1_OFF}")
        a(f"v_add_u32 {v(7)}, {s(sT0)}, {v(2)}")
        a(f"v_add_u32 {v(11)}, {112*1024}, {v(7)}")
        a(f"s_lshl_b32 {s(sT0)}, {s(sR)}, 2")
        a(f"s_add_u32 {s(sT0)}, {s(sT0)}, {s(sT)}")
        a(f"s_mul_i32 {s(sT0)}, {s(sT0)}, 28")
        a(f"s_mul_i32 {s(sT1)}, {s(sROLE)}, 14")
        a(f"s_add_u32 {s(sT0)}, {s(sT0)}, {s(sT1)}")
        a(f"s_lshl_b32 {s(sT0)}, {s(sT0)}, 8")
        a(f"s_add_u32 {s(z(10))}, {s(sT0)}, {HS_OFF}")
        a(f"s_lshl_b32 {s(sT0)}, {s(sROLE)}, 13")
        a(f"v_add_u32 {v(5)}, {s(sT0)}, {v(2)}")
        a(f"v_add_u32 {v(6)}, 114688, {v(5)}")
        a(f"s_lshl_b32 {s(sT0)}, {s(sR)}, 11")
        a(f"s_add_u32 {s(sT0)}, {s(sT0)}, {FLG(3)}")
        a(f"s_lshl_b32 {s(sT1)}, {s(sTH)}, 9")
        a(f"s_add_u32 {s(z(12))}, {s(sT0)}, {s(sT1)}")
        a(f"s_lshl_b32 {s(sT1)}, {s(sROLE)}, 9")
        a(f"s_add_u32 {s(sT0)}, {s(sT0)}, {s(sT1)}")
        a(f"s_lshl_b32 {s(sT1)}, {s(sC)}, 5")
        a(f"s_add_u32 {s(sT0)}, {s(sT0)}, {s(sT1)}")
        a(f"s_lshl_b32 {s(sT1)}, {s(sT)}, 3")
        a(f"s_add_u32 {s(z(11))}, {s(sT0)}, {s(sT1)}")
        a(f"s_lshl_b32 {s(z(13))}, {s(sXCC)}, 28")
        a(f"s_or_b32 {s(z(13))}, {s(z(13))}, {s(sTOK+1)}")
        a(f"s_mul_i32 {s(sT0)}, {s(sTile2)}, 112")
        a(f"s_mul_i32 {s(sT2)}, {s(sKQ)}, 28")
        a(f"s_add_u32 {s(sT0)}, {s(sT0)}, {s(sT2)}")
        a(f"s_lshl_b32 {s(sT1)}, {s(sN)}, 1")
        a(f"s_add_u32 {s(sT0)}, {s(sT0)}, {s(sT1)}")
        a(f"s_lshl_b32 {s(sT0)}, {s(sT0)}, 10")
        a(f"s_add_u32 {s(z(14))}, {s(sT0)}, {H1_OFF}")
        a(f"v_lshrrev_b32 {v(T)}, 5, v1")
        a(f"v_lshl_add_u32 {v(85)}, {v(T)}, 3, {v(85)}")

    def stream_gemm(self, N, CH, rd_text, mf_text, pre_barrier, hooks, FB, NB=6):
        a = self.a
        q = []
        def lds(text, tag=None):
            a(text); q.append(tag)
        def wait_for(tag):
            idx = max(k for k, t in enumerate(q) if t == tag)
            a(f"s_waitcnt lgkmcnt({min(15, len(q)-1-idx)})")
        self.lds_wait = wait_for
        def rd(f):
            if f % CH == 0: pre_barrier(f // CH)
            lds(rd_text(f, FB + 4 * (f % NB)), ('f', f))
        for f in range(NB): rd(f)
        for f in range(N):
            wait_for(('f', f))
            a(mf_text(f, FB + 4 * (f % NB)))
            if f + NB < N: rd(f + NB)
            if f in hooks: hooks[f](lds)

    def wave_flag(self, soff_addr, off):
        a = self.a
        a(f"v_mov_b32 {v(T)}, {s(sTOK)}")
        a(f"v_mov_b32 {v(T2)}, {s(64+13)}")
        a(f"s_mov_b64 exec, 1")
        self.two_path(lambda sc: a(f"buffer_store_dwordx2 {v(T,2)}, off, {s(SWS,4)}, {s(soff_addr)} offset:{off}{sc}"))
        a(f"s_mov_b64 exec, -1")

    def w2addr(self, loc):
        return (9, loc) if loc < 65536 else ((10, loc - 65536) if loc < 131072 - 8192 else (73, loc - 131072))

    def p4(self):
        a = self.a
        z = lambda k: 64 + k
        sUu = z(1)
        ACC = 16; FB = 48; BMS = 72
        sW2m, sAm = self.sW2m, z(9)
        S = lambda k: 16384 * k
        def w2dma(p, ldsbase, half=None):
            if half in (None, 0):
                a(f"s_mov_b32 {s(sT1)}, {32*p*896}")
                self.dma(8, SW2, sT1, (sW2m, ldsbase))
            if half == 1: a(f"s_add_u32 m0, {s(sW2m)}, {ldsbase}")
            if half in (None, 1): self.dma(4, SW2, sT1, None, off=1024)
        self.w2dma = w2dma
        vCS = 86
        lcs, lcs2 = a.newlabel("CS0"), a.newlabel("CS0")
        a(f"s_cmp_eq_u32 {s(sROLE)}, 1")
        a(f"s_cbranch_scc1 {lcs}")
        self.cs1(0)
        a(f"s_branch {lcs2}")
        a.label(lcs)
        self.cs1(1)
        a.label(lcs2)
        a(f"v_lshlrev_b32 {v(T)}, 2, v0")
        a(f"v_add_u32 {v(T)}, {L_ST4+8192}, {v(T)}")
        a(f"ds_write_b32 {v(T)}, {v(vCS)}")
        a(f"v_xor_b32 {v(vAM1)}, 1024, {v(T)}")
        self.poll_group(2, 14, 1, "H")
        self.ts("H flags seen")
        def adma(i, half=None):
            if half in (None, 0):
                a(f"s_mov_b32 {s(sT0)}, {8192*i}")
                self.dma(3, SWS, sT0, (sAm, A4SLOT[i % 4]), sc1=True)
            if half == 1: a(f"s_add_u32 m0, {s(sAm)}, {A4SLOT[i % 4]}")
            if half in (None, 1): self.dma(3, SWS, sT0, None, sc1=True, off=1024)
        ops = []
        STB = R_C + 40
        for i in range(3):
            adma(i); ops += [f'A{i}'] * 2
        a(f"ds_read_b32 {v(vAM1+1)}, {v(vAM1)}")
        a(f"s_lshl_b32 {s(sT0)}, {s(sROLE)}, 11")
        a(f"s_add_u32 {s(sT0)}, {s(sT0)}, {L_ST4}")
        a(f"v_lshl_add_u32 {v(12)}, v1, 2, {s(sT0)}")
        a(f"s_lshl_b32 {s(sT0)}, {s(sTH)}, 1")
        a(f"s_add_u32 {s(sT0)}, {s(sT0)}, {s(sUu)}")
        a(f"s_lshl_b32 {s(sT0)}, {s(sT0)}, 10")
        a(f"s_add_u32 {s(sT0)}, {s(sT0)}, {L_ST4}")
        a(f"v_lshl_add_u32 {v(13)}, v1, 2, {s(sT0)}")
        a("s_waitcnt lgkmcnt(0)")
        a(f"v_add_f32 {v(vCS)}, {v(vCS)}, {v(vAM1+1)}")
        a(f"v_mov_b32 {v(T)}, {v(vCS)}")
        a(f"v_permlane32_swap_b32 {v(T)}, {v(vCS)}")
        a(f"v_add_f32 {v(vCS)}, {v(vCS)}, {v(T)}")
        self.cs_operand(vAM1, vCS)
        def vwait(tags):
            last = max(k for k, o in enumerate(ops) if o in tags)
            a(f"s_waitcnt vmcnt({len(ops)-1-last})")
        def pre_barrier(i):
            a.comment(f"---- P4 chunk {i} barrier")
            vwait([f'A{i}', f'p{i-1}'])
            if i == 3: self.lds_wait('stw')
            a("s_barrier")
            if i == 0: self.ts("H chunk0 landed")
            elif self.fine2: self.ts(f"p4 b{i}")
        def rd_text(f, reg):
            i, n = divmod(f, 8)
            slot = A4SLOT[i % 4]
            va, so = (5, slot) if slot < 65536 else (6, slot - 114688)
            return f"ds_read_b128 {v(reg,4)}, {v(va)} offset:{so+n*1024}"
        def mf_text(f, reg):
            tt, ks = divmod(f, 28)
            return f"{MF} {v(ACC+16*tt,16)}, {v(R_A+4*ks,4)}, {v(reg,4)}, {'0' if ks == 0 else v(ACC+16*tt,16)}"
        hooks = {}
        def H(f, fn):
            prev = hooks.get(f)
            hooks[f] = (lambda lds, p=prev, g=fn: (p(lds) if p else None, g(lds)))
        def op(tag): ops.append(tag)
        for j in range(4):
            H(j // 2, lambda lds, j=j: (a(f"buffer_load_dwordx4 {v(STB+4*j,4)}, {v(2)}, {s(SWS,4)}, {s(z(10))} offen offset:{1024*j} sc1"), op('S')))
        for i in range(7):
            b0 = 8 * i
            if i <= 5:
                for k in range(2):
                    def mvh(lds, j=i, k=k):
                        va, off = self.w2addr(L_HR + (j % 3) * 16384 + k * 2048)
                        lds(f"ds_read_b64_tr_b16 {v(R_C+8*j+4*k,2)}, {v(va)} offset:{off}", None)
                        lds(f"ds_read_b64_tr_b16 {v(R_C+8*j+4*k+2,2)}, {v(va)} offset:{off+1024}", None)
                    H(b0 + 3 + k, mvh)
            if i + 3 <= 6:
                H(b0 + 3, lambda lds, i=i: (adma(i + 3, 0), op(f'A{i+3}')))
                H(b0 + 4, lambda lds, i=i: (adma(i + 3, 1), op(f'A{i+3}')))
            if 1 <= i <= 4:
                H(b0 + 5, lambda lds, i=i: (w2dma(i + 2, L_HR + 16384 * ((i - 1) % 3), 0), op(f'p{i+2}')))
                H(b0 + 6, lambda lds, i=i: (w2dma(i + 2, L_HR + 16384 * ((i - 1) % 3), 1), op(f'p{i+2}')))
        self.w2b_loc = {6: S(2), 7: S(5), 8: S(6), 9: S(8), 10: S(0), 11: S(3), 12: S(0), 13: S(3)}
        when = {7: self.w78[0], 8: self.w78[1], 9: 39, 10: 47, 11: 49}
        for p in range(7 + self.nex, 12):
            f0 = when[p]
            H(f0, lambda lds, p=p: (w2dma(p, self.w2b_loc[p], 0), op('q')))
            H(f0 + 1, lambda lds, p=p: (w2dma(p, self.w2b_loc[p], 1), op('q')))
        def st_reduce(lds):
            vwait(['S'])
            for k in range(4): a(f"v_cndmask_b32 {v(STB+12+k)}, {v(STB+12+k)}, 0, {s(sHI,2)}")
            for k in range(2):
                a(f"v_pk_add_f32 {v(STB+2*k,2)}, {v(STB+2*k,2)}, {v(STB+4+2*k,2)}")
                a(f"v_pk_add_f32 {v(STB+8+2*k,2)}, {v(STB+8+2*k,2)}, {v(STB+12+2*k,2)}")
            for k in range(2): a(f"v_pk_add_f32 {v(STB+2*k,2)}, {v(STB+2*k,2)}, {v(STB+8+2*k,2)}")
            a(f"v_lshlrev_b32 {v(T)}, 4, v0")
            a(f"v_add_u32 {v(T)}, {L_ST4}, {v(T)}")
            lds(f"ds_write_b128 {v(T)}, {v(STB,4)}", 'stw')
        H(self.fst, st_reduce)
        def st_gather(lds):
            for tt in range(2):
                for hf in range(2):
                    b = STB + 8 * tt + 4 * hf
                    o = (tt * 1024 + hf * 4096) // 256
                    lds(f"ds_read2st64_b32 {v(b,2)}, {v(12)} offset0:{o} offset1:{o+1}", None)
                    lds(f"ds_read2st64_b32 {v(b+2,2)}, {v(12)} offset0:{o+2} offset1:{o+3}", 'g1')
        H(18, st_gather)
        def st_mean(lds):
            self.lds_wait('g1')
            for tt in range(2):
                b = STB + 8 * tt
                a(f"v_pk_add_f32 {v(b,2)}, {v(b,2)}, {v(b+2,2)}")
                a(f"v_pk_add_f32 {v(b+4,2)}, {v(b+4,2)}, {v(b+6,2)}")
            for tt in range(2): a(f"v_pk_add_f32 {v(STB+8*tt,2)}, {v(STB+8*tt,2)}, {v(STB+8*tt+4,2)}")
            for tt in range(2): a(f"v_add_f32 {v(STB+8*tt)}, {v(STB+8*tt)}, {v(STB+8*tt+1)}")
            for tt in range(2): a(f"v_mul_f32 {v(STB+8*tt)}, {f32bits(-1.0/448):#x}, {v(STB+8*tt)}")
        H(23, st_mean)
        def st_mean2(lds):
            for tt, bm in ((0, BMS), (1, STB + 12)):
                b = STB + 8 * tt
                a(f"v_cvt_pk_bf16_f32 {v(bm)}, {v(b)}, {v(b)}")
                a(f"v_and_b32 {v(b+1)}, 0xffff0000, {v(bm)}")
                a(f"v_sub_f32 {v(b+1)}, {v(b)}, {v(b+1)}")
                a(f"v_cvt_pk_bf16_f32 {v(bm+1)}, {v(b+1)}, 0")
                a(f"v_mov_b32 {v(bm+2)}, 0")
                a(f"v_mov_b32 {v(bm+3)}, 0")
            b = STB
            for hf in range(2):
                lds(f"ds_read2st64_b32 {v(b+4*hf,2)}, {v(13)} offset0:{16*hf} offset1:{16*hf+1}", None)
                lds(f"ds_read2st64_b32 {v(b+4*hf+2,2)}, {v(13)} offset0:{16*hf+2} offset1:{16*hf+3}", 'g2')
        H(25, st_mean2)
        H(27, lambda lds: a(f"{MF} {v(ACC,16)}, {v(vAM1,4)}, {v(BMS,4)}, {v(ACC,16)}"))
        def epi(tt, sp):
            A_ = ACC + 16 * tt
            for k in range(4): a(f"v_cvt_pk_bf16_f32 {v(A_+8*sp+k)}, {v(A_+8*sp+2*k)}, {v(A_+8*sp+2*k+1)}")
            for k in range(4): a(f"v_pk_max_i16 {v(A_+8*sp+k)}, {v(A_+8*sp+k)}, 0")
            a(f"buffer_store_dwordx4 {v(A_+8*sp,4)}, {v(7 if tt==0 else 11)}, {s(SWS,4)}, 0 offen offset:{1024*sp} sc1")
            op(f'st{tt}')
        H(31, lambda lds: epi(0, 0))
        H(32, lambda lds: epi(0, 1))
        def st_rstd(lds):
            self.lds_wait('g2')
            b = STB
            a(f"v_pk_add_f32 {v(b,2)}, {v(b,2)}, {v(b+2,2)}")
            a(f"v_pk_add_f32 {v(b+4,2)}, {v(b+4,2)}, {v(b+6,2)}")
            a(f"v_pk_add_f32 {v(b,2)}, {v(b,2)}, {v(b+4,2)}")
            a(f"v_add_f32 {v(b)}, {v(b)}, {v(b+1)}")
            a(f"v_mov_b32 {v(b+1)}, {v(b)}")
            a(f"v_permlane32_swap_b32 {v(b)}, {v(b+1)}")
            self.stats_finish(b, b + 1, b + 2, vRSTD)
        H(33, st_rstd)
        H(self.fflag, lambda lds: (self.ts("preflag") if self.fine2 else None, vwait(['st0']), self.wave_flag(z(11), 0), op('fl'), self.ts("postflag") if self.fine2 else None))
        self.stream_gemm(56, 8, rd_text, mf_text, pre_barrier, hooks, FB)
        self.ts("p4 loop done")
        a(f"{MF} {v(ACC+16,16)}, {v(vAM1,4)}, {v(STB+12,4)}, {v(ACC+16,16)}")
        a(f"s_lshl_b32 {s(sT0)}, {s(self.sKQ)}, 12")
        a(f"v_add_u32 {v(5)}, {s(sT0)}, {v(2)}")
        a(f"v_add_u32 {v(6)}, 65536, {v(5)}")
        a(f"v_add_u32 {v(72)}, 131072, {v(5)}")
        a(f"v_add_u32 {v(73)}, 131072, {v(9)}")
        a(f"v_lshl_add_u32 {v(13)}, v1, 3, {s(z(12))}")
        for p in (7, 8):
            va, off = self.w2addr(self.w2b_loc[p])
            self.move_frags(R_A + 8 * (p - 7), va, 2, True, off0=off)
        self.ops4 = ops; self.epi = epi

    def p5(self):
        a = self.a
        z = lambda k: 64 + k
        sN, sUu, sKQ = z(0), z(1), self.sKQ
        ACC = 16; FB = 48
        S = lambda k: 16384 * k
        ops = self.ops4
        def vwait(tags):
            last = max(k for k, o in enumerate(ops) if o in tags)
            a(f"s_waitcnt vmcnt({len(ops)-1-last})")
        lp = a.newlabel("PA")
        a(f"s_cmp_lg_u32 {s(sW)}, 0")
        a(f"s_cbranch_scc1 {lp}")
        self.poll(13, T, 12, (1 << 56) - 1, "HA")
        a.label(lp)
        vwait(['q', 'p6'])
        a("s_waitcnt lgkmcnt(0)")
        a("s_barrier")
        self.ts("H1A flags seen")
        sAm = self.sW2m
        cslot = [S(4), S(1), S(7), S(9), S(5), S(6), S(2), S(8), S(4), S(1), S(7), S(9), S(5), S(2)]
        def adma(c_, half=None):
            src = (c_ % 7) * 4096 + (c_ // 7) * 112 * 1024
            if half in (None, 0):
                a(f"s_add_u32 {s(sT0)}, {s(z(14))}, {src}")
                self.dma(2, SWS, sT0, (sAm, cslot[c_]), sc1=True); ops.append(f'C{c_}')
            if half == 1: a(f"s_add_u32 m0, {s(sAm)}, {cslot[c_]}")
            if half in (None, 1):
                self.dma(2, SWS, sT0, None, sc1=True, off=1024); ops.append(f'C{c_}')
        for c_ in range(self.nC): adma(c_)
        self.epi(1, 0); self.epi(1, 1)
        self.ts("H1 stores issued")
        for p in (6, 9, 10, 11):
            va, off = self.w2addr(self.w2b_loc[p])
            self.move_frags(R_C + 48 if p == 6 else R_A + 8 * (p - 7), va, 2, True, off0=off)
        a(f"s_mul_i32 {s(sT1)}, {s(sN)}, {S(8)-S(6)}")
        a(f"s_add_u32 {s(sT1)}, {s(sT1)}, {S(6)}")
        a(f"s_lshl_b32 {s(sT0)}, {s(sKQ)}, 11")
        a(f"s_add_u32 {s(sT0)}, {s(sT0)}, {s(sT1)}")
        a(f"v_add_u32 {v(74)}, {s(sT0)}, {v(2)}")
        a(f"s_lshl_b32 {s(sT0)}, {s(sROLE)}, 13")
        a(f"s_add_u32 {s(sT0)}, {s(sT0)}, {s(sT1)}")
        a(f"v_add_u32 {v(75)}, {s(sT0)}, {v(2)}")
        a(f"v_add_u32 {v(13)}, 1024, {v(13)}")
        a("s_waitcnt lgkmcnt(0)")
        def pre_barrier(i):
            a.comment(f"---- P5 chunk {i} barrier")
            tags = [f'C{i}'] + (['q2'] if i == 5 else [])
            vwait(tags)
            if i == self.cB:
                l = a.newlabel("PB")
                a(f"s_cmp_lg_u32 {s(sW)}, 0")
                a(f"s_cbranch_scc1 {l}")
                vwait(['pb'])
                self.set_exec((1 << 56) - 1)
                self.flag_check(78, 12)
                a("s_mov_b64 exec, -1")
                a("s_nop 3")
                a(f"s_cbranch_vccz {l}")
                self.poll(13, T, 12, (1 << 56) - 1, "HB")
                a.label(l)
            if i == 13: self.lds_wait('rw')
            a("s_barrier")
            if i == 0: self.ts("H1 chunk0 landed")
            elif self.fine2: self.ts(f"p5 b{i}")
        def rd_text(f, reg):
            i, n = divmod(f, 4)
            slot = cslot[i]
            va, so = (5, 6, 72)[slot // 65536], slot % 65536
            return f"ds_read_b128 {v(reg,4)}, {v(va)} offset:{so+n*1024}"
        def mf_text(f, reg):
            tt, kk = divmod(f, 28)
            wreg = R_C + 4 * kk if kk < 14 else R_A + 4 * (kk - 14)
            return f"{MF} {v(ACC+16*tt,16)}, {v(wreg,4)}, {v(reg,4)}, {'0' if kk == 0 else v(ACC+16*tt,16)}"
        hooks = {}
        def H(f, fn):
            prev = hooks.get(f)
            hooks[f] = (lambda lds, p=prev, g=fn: (p(lds) if p else None, g(lds)))
        fB = 4 * self.cB - 6
        sched = [(2 * k, it) for k, it in enumerate([('c', c_) for c_ in range(self.nC, 7)] + [('w', 12), ('w', 13)])]
        f = max(10, fB)
        for c_ in range(7, 14):
            if c_ >= 8: f = max(f, 4 * ((c_ - 8 if c_ < 13 else 6) + 3) - 6)
            sched.append((f, ('c', c_))); f += self.p5gap
        for f0, (kind, x) in sched:
            if kind == 'c':
                H(f0, lambda lds, x=x: adma(x, 0)); H(f0 + 1, lambda lds, x=x: adma(x, 1))
            else:
                H(f0, lambda lds, x=x: (self.w2dma(x, self.w2b_loc[x], 0), ops.append('q2')))
                H(f0 + 1, lambda lds, x=x: (self.w2dma(x, self.w2b_loc[x], 1), ops.append('q2')))
        for p in (12, 13):
            def mv(lds, p=p):
                va, off = self.w2addr(self.w2b_loc[p])
                for k in range(2):
                    lds(f"ds_read_b64_tr_b16 {v(R_A+8*(p-7)+4*k,2)}, {v(va)} offset:{off+k*2048}", None)
                    lds(f"ds_read_b64_tr_b16 {v(R_A+8*(p-7)+4*k+2,2)}, {v(va)} offset:{off+k*2048+1024}", None)
            H(3 + p, mv)
        XR = R_B
        RB = R_B + 8
        def red_write(lds, tt, tag):
            for d in range(2):
                lds(f"ds_write_b128 {v(74)}, {v(ACC+16*tt+8*d,4)} offset:{8192*d}", None)
                lds(f"ds_write_b128 {v(74)}, {v(ACC+16*tt+8*d+4,4)} offset:{8192*d+1024}", tag if d == 1 else None)
        def fin(tt, lds=None):
            l = a.newlabel("FN")
            a(f"s_cmp_lg_u32 {s(sUu)}, {tt}")
            a(f"s_cbranch_scc1 {l}")
            for sidx in range(4):
                a(f"ds_read_b128 {v(RB+8*sidx,4)}, {v(75)} offset:{2048*sidx}")
                a(f"ds_read_b128 {v(RB+8*sidx+4,4)}, {v(75)} offset:{2048*sidx+1024}")
            a("s_waitcnt lgkmcnt(4)")
            for k in range(4): a(f"v_pk_add_f32 {v(RB+2*k,2)}, {v(RB+2*k,2)}, {v(RB+8+2*k,2)}")
            a("s_waitcnt lgkmcnt(0)")
            for k in range(4): a(f"v_pk_add_f32 {v(RB+16+2*k,2)}, {v(RB+16+2*k,2)}, {v(RB+24+2*k,2)}")
            for k in range(4): a(f"v_pk_add_f32 {v(RB+2*k,2)}, {v(RB+2*k,2)}, {v(RB+16+2*k,2)}")
            for k in range(4): a(f"v_pk_fma_f32 {v(XR+2*k,2)}, {v(RB+2*k,2)}, {v(76,2)}, {v(XR+2*k,2)}")
            for k in range(4): a(f"v_cvt_pk_bf16_f32 {v(RB+k)}, {v(XR+2*k)}, {v(XR+2*k+1)}")
            a(f"v_permlane32_swap_b32 {v(RB)}, {v(RB+2)}")
            a(f"v_permlane32_swap_b32 {v(RB+1)}, {v(RB+3)}")
            a(f"buffer_store_dwordx4 {v(RB,4)}, {v(85)}, {s(SOUT,4)}, 0 offen")
            a.label(l)
        def prep(lds):
            for k in range(4):
                a(f"v_lshlrev_b32 {v(XR+2*k)}, 16, {v(vHRES+k)}")
                a(f"v_and_b32 {v(XR+2*k+1)}, 0xffff0000, {v(vHRES+k)}")
            a(f"v_mov_b32 {v(76)}, {v(vRSTD)}")
            a(f"v_mov_b32 {v(77)}, {v(vRSTD)}")
        H(self.fB, lambda lds: (vwait(['st1']), self.wave_flag(z(11), 1024), ops.append('fl')))
        def pbload(lds):
            a(f"s_cmp_eq_u32 {s(sW)}, 0")
            a(f"s_cselect_b32 exec_lo, -1, 1")
            a(f"s_cselect_b32 exec_hi, 0xffffff, 0")
            a(f"buffer_load_dwordx2 {v(78,2)}, {v(13)}, {s(SWS,4)}, 0 offen sc1"); ops.append('pb')
            a("s_mov_b64 exec, -1")
        H(4 * self.cB - 6 - self.pbl, pbload)
        H(20, prep)
        for q_ in range(4):
            H(35 + 2 * q_, lambda lds, q_=q_: lds(f"ds_write_b128 {v(74)}, {v(ACC+4*q_,4)} offset:{8192*(q_//2)+1024*(q_%2)}", 'rw' if q_ == 3 else None))
        H(47, lambda lds: fin(0))
        self.stream_gemm(56, 4, rd_text, mf_text, pre_barrier, hooks, FB)
        self.ts("p5 loop done")
        a(f"v_subrev_u32 {v(74)}, {S(6)}, {v(74)}")
        a(f"v_subrev_u32 {v(75)}, {S(6)}, {v(75)}")
        a(f"s_mul_i32 {s(sT0)}, {s(sN)}, {S(3)-S(2)}")
        a(f"v_add_u32 {v(74)}, {s(sT0)}, {v(74)}")
        a(f"v_add_u32 {v(75)}, {s(sT0)}, {v(75)}")
        red_write(lambda t, g=None: a(t), 1, None)
        a("s_waitcnt lgkmcnt(0)")
        a("s_barrier")
        fin(1)

    def epilogue(self):
        a = self.a
        a.label("L_FIN")
        if self.prof:
            self.ts("end")
            a(f"s_lshl_b32 {s(sT0)}, s2, 3")
            a(f"s_add_u32 {s(sT0)}, {s(sT0)}, {s(sW)}")
            a(f"s_lshl_b32 {s(sT0)}, {s(sT0)}, 8")
            a(f"s_add_u32 {s(sT0)}, {s(sT0)}, {TS_OFF}")
            a(f"v_lshlrev_b32 v14, 2, v1")
            a(f"v_add_u32 v14, {s(sT0)}, v14")
            a(f"buffer_store_dword {v(vTS)}, v14, {s(SWS,4)}, 0 offen")
            a("s_waitcnt vmcnt(0)")
        a.label("L_END")
        a("s_endpgm")

    def build(self):
        self.prologue()
        self.p1()
        if self.stop_after >= 2: self.p2()
        if self.stop_after >= 3: self.p3()
        if self.stop_after >= 4: self.p4()
        if self.stop_after >= 5: self.p5()
        self.epilogue()
        head = f"""; Generated by dev/gen.py -- fused persistent kernel: LN1+QKV -> sliding attention -> WO+res -> LN2+FF1 -> FF2+res
; @launch grid=(256,1,1) block=(512,1,1) lds={LDS_TOTAL}
.amdgcn_target "amdgcn-amd-amdhsa--gfx950"
.text
.globl {NAME}_kernel
.p2align 8
.type {NAME}_kernel,@function
{NAME}_kernel:
"""
        tail = f"""
.section .rodata,"a"
.p2align 6
.amdhsa_kernel {NAME}_kernel
  .amdhsa_next_free_vgpr 256
  .amdhsa_next_free_sgpr 102
  .amdhsa_accum_offset 256
  .amdhsa_group_segment_fixed_size 0
  .amdhsa_kernarg_size 72
  .amdhsa_user_sgpr_count 2
  .amdhsa_user_sgpr_kernarg_segment_ptr 1
  .amdhsa_system_sgpr_workgroup_id_x 1
.end_amdhsa_kernel
"""
        return head + self.a.text() + (self.side.text() if hasattr(self,'side') else '') + tail

if __name__ == "__main__":
    import argparse
    ap = argparse.ArgumentParser()
    ap.add_argument("-o", default="k.s"); ap.add_argument("--stop", type=int, default=5)
    ap.add_argument("--prof", action="store_true"); ap.add_argument("--cyc", action="store_true"); ap.add_argument("--fine", action="store_true"); ap.add_argument("--tlb", type=int, default=0); ap.add_argument("--p1local", action="store_true"); ap.add_argument("--pd1", type=int, default=2); ap.add_argument("--norot", action="store_true"); ap.add_argument("--tp", type=int, default=2); ap.add_argument("--n1", type=int, default=9); ap.add_argument("--m2", default="[(SW1,3)]"); ap.add_argument("--post", default="[0,1,3,4,2,5,6]"); ap.add_argument("--npre", type=int, default=3); ap.add_argument("--p5gap", type=int, default=2); ap.add_argument("--oplain", type=int, default=1); ap.add_argument("--pre0", type=int, default=1); ap.add_argument("--t1it", type=int, default=6); ap.add_argument("--nex", type=int, default=0); ap.add_argument("--exp", type=int, default=0); ap.add_argument("--fflag", type=int, default=45); ap.add_argument("--cB", type=int, default=5); ap.add_argument("--fB", type=int, default=4); ap.add_argument("--w78", default="(15,23)"); ap.add_argument("--nC", type=int, default=6); ap.add_argument("--rotg", type=int, default=4); ap.add_argument("--kvsc", default="sc1"); ap.add_argument("--kvst", default="sc1"); ap.add_argument("--kvsleep", type=int, default=1); ap.add_argument("--w1sched", default="([1,1,1,1,1],4,[3,2,0,0,0])")
    args = ap.parse_args()
    g = Gen(args.stop, args.prof, args.cyc, args.fine, args.tlb, args.p1local, args.pd1, args.norot, args.tp, args.n1, args.m2, args.post, args.npre, args.p5gap, args.oplain, args.pre0, args.t1it, args.nex, args.exp, args.fflag, args.cB, args.fB, args.nC, args.w78, args.rotg, args.kvsc, args.kvst, args.kvsleep, args.w1sched)
    open(args.o, "w").write(g.build())
    print("instrs", g.a.ninstr, "nops", g.a.nnops, "ts", list(g.tsn.keys()))
```

```python
import sys, math, struct
from asmlib import Asm, v, s

NAME = "sequential_preLN__sliding_block__dense_activation_relu__prompt"
QKV_OFF = 0
O_OFF  = 6 << 20
H_OFF  = 8 << 20
HS_OFF = 10 << 20
H1_OFF = 16 << 20
FL_OFF = 32 << 20
TS_OFF = 33 << 20
FL0_OFF = (32 << 20) + 131072
XS_OFF = 11 << 20
WS_SZ  = 40 << 20
SX, SWQKV, SWO, SW1, SW2, SOUT, SDBG, SWS = 24, 28, 32, 36, 40, 44, 48, 52
sR, sC, sW, sT, sROLE, sXCC, sLOCAL, sTMP = 56, 57, 58, 59, 60, 61, 62, 63
sMASK = 64
sONES = 96
sTH, sCT = 97, 23
sT0, sT1, sT2, sT3, sT4, sT5, sT6 = 3, 4, 5, 6, 7, 8, 9
sKC = 10
sBUSY = 17
sSAVE = 18
sHI = 20
sSPIN = 22
sTS = 98
sU0, sU1 = 100, 101
sTOK = 0
sR1, sJ1 = 94, 95
L_XS = 0
L_WP = 65536
L_SC = 151552
L_STAT = L_SC
L_CS = L_SC + 2048
L_FLAG = 163328
L_TOK = 163344
L_XST = L_SC
L_WO = 65536
L_XR = 122880
L_K = 90112
L_V = 114688
L_MRG = 139264
L_ONES = L_MRG + 1024
L_W1B = 57344
L_A3 = 0
L_RED3 = 147456
L_RED3D = 98304
L_ST4 = 147456
L_HR = 32768
A4SLOT = [0, 16384, 114688, 131072]
LDS_TOTAL = 163840
R_C, R_A, R_B = 88, 144, 200
vTS = 87
vHRES = 80
vRSTD = 84
vAM1 = 76
LOG2E = 1.4426950408889634
def FLG(e): return FL_OFF + e * 16384
def f32bits(x): return struct.unpack('<I', struct.pack('<f', x))[0]
T, T2 = 14, 15
MF = "v_mfma_f32_32x32x16_bf16"

class Gen:
    def __init__(self, stop_after=5, prof=False, cyc=False, fine=False, tlb=0, p1local=False, pd1=2, norot=False, tp=2, n1=9, m2='[(SW1,3)]', post='[0,1,3,4,2,5,6]', npre=3, p5gap=2, oplain=1, pre0=1, t1it=6, nex=0, exp=0, fflag=45, cB=5, fB=8, nC=4, plain=0, outsc='', w78='(15,23)', rotg=4, kvsc='sc1', kvst='sc1', kvsleep=1, w1sched='([1,1,1,1,1],4,[3,2,0,0,0])'):
        self.fine = fine; self.PD1 = pd1; self.tp = tp; self.hplain = plain & 2; self.outsc = ' ' + outsc.replace('_',' ') if outsc else ''; self.nC = nC; self.w78 = eval(w78); self.fB = fB; self.pbl = 4; self.fst = 17; self.np3 = 3; self.kvsc = ' ' + kvsc.replace('_',' '); self.kvst = ' ' + kvst.replace('_',' '); self.kvsleep = kvsleep; self.rotg = rotg; self.fine2 = (exp & 4); self.fflag = fflag; self.cB = cB; self.exp = exp; self.nex = nex; self.t1it = t1it; self.pre0 = pre0; self.w1sched = eval(w1sched); self.oplain = oplain; self.nin = npre; self.p5gap = p5gap; self.n1 = n1; self.m2 = eval(m2); self.post = eval(post); self.norot = norot; self.tlb = tlb; self.p1local = p1local
        self.a = Asm(); self.stop_after = stop_after; self.prof = prof; self.cyc = cyc; self.tsn = {}

    def ts(self, name):
        if not self.prof: return
        a = self.a
        if name not in self.tsn: self.tsn[name] = len(self.tsn)
        n = self.tsn[name]
        a(f"{'s_memtime' if self.cyc else 's_memrealtime'} {s(sTS,2)}")
        a("s_waitcnt lgkmcnt(0)")
        a(f"v_writelane_b32 {v(vTS)}, {s(sTS)}, {n}")

    def capture(self, fn):
        rec = []
        class R:
            def __call__(self_, t): rec.append(t)
        old = self.a; self.a = R()
        try: fn()
        finally: self.a = old
        return rec

    def srd(self, dst, ptr, size):
        a = self.a
        a(f"s_mov_b32 {s(dst)}, {s(ptr)}")
        a(f"s_and_b32 {s(dst+1)}, {s(ptr+1)}, 0xffff")
        a(f"s_mov_b32 {s(dst+2)}, {size}")
        a(f"s_mov_b32 {s(dst+3)}, 0x20000")

    def dma(self, vsrc, srd, soff, m0expr, sc1=False, off=0):
        a = self.a
        if m0expr is not None:
            if isinstance(m0expr, int): a(f"s_mov_b32 m0, {m0expr}")
            else: a(f"s_add_u32 m0, {s(m0expr[0])}, {m0expr[1]}")
        so = s(soff) if isinstance(soff, int) else soff
        a(f"buffer_load_dwordx4 {v(vsrc)}, {s(srd,4)}, {so} offen{f' offset:{off}' if off else ''}{' sc1' if sc1 else ''} lds")

    def set_exec(self, mask):
        a = self.a
        lo, hi = mask & 0xffffffff, mask >> 32
        a(f"s_mov_b32 exec_lo, {lo:#x}")
        a(f"s_mov_b32 exec_hi, {hi:#x}")

    def flag_check(self, vd, tmp):
        a = self.a
        a(f"v_xor_b32 {v(tmp)}, {s(sTOK+1)}, {v(vd+1)}")
        a(f"v_and_b32 {v(tmp)}, 0xfffffff, {v(tmp)}")
        a(f"v_xor_b32 {v(vd)}, {s(sTOK)}, {v(vd)}")
        a(f"v_or_b32 {v(tmp)}, {v(tmp)}, {v(vd)}")
        a(f"v_cmp_ne_u32 vcc, 0, {v(tmp)}")

    def poll(self, vaddr, vd, tmp, mask, tag, sleep=0, sc=" sc1"):
        a = self.a
        self.set_exec(mask)
        a(f"s_mov_b32 {s(sSPIN)}, 200000")
        lab = a.loop_label(a.newlabel("POLL"+tag)); done = a.newlabel("PDONE"+tag)
        a(f"buffer_load_dwordx2 {v(vd,2)}, {v(vaddr)}, {s(SWS,4)}, 0 offen{sc}")
        a("s_waitcnt vmcnt(0)")
        self.flag_check(vd, tmp)
        a(f"s_sub_u32 {s(sSPIN)}, {s(sSPIN)}, 1")
        a(f"s_cbranch_scc1 {done}")
        a("s_nop 2")
        a(f"s_cbranch_vccz {done}")
        a("s_mov_b64 exec, vcc")
        if sleep: a(f"s_sleep {sleep}")
        a(f"s_branch {lab}")
        a.label(done)
        a("s_mov_b64 exec, -1")

    def token_load(self, vd):
        self.a(f"buffer_load_dwordx2 {v(vd,2)}, off, {s(SDBG,4)}, 0 sc1")

    def token_take(self, vd):
        a = self.a
        a(f"s_mov_b32 {s(sSPIN)}, 200000")
        lab = a.loop_label(a.newlabel("TOK")); done = a.newlabel("TOKD")
        a(f"v_readfirstlane_b32 {s(sTOK)}, {v(vd)}")
        a(f"v_readfirstlane_b32 {s(sTOK+1)}, {v(vd+1)}")
        a(f"s_cmp_lg_u32 {s(sTOK)}, 0")
        a(f"s_cbranch_scc1 {done}")
        a(f"s_sub_u32 {s(sSPIN)}, {s(sSPIN)}, 1")
        a(f"s_cbranch_scc1 {done}")
        a("s_sleep 4")
        self.token_load(vd)
        a("s_waitcnt vmcnt(0)")
        a(f"s_branch {lab}")
        a.label(done)

    def poll_group(self, e, nmem, wave, tag):
        a = self.a
        l = a.newlabel("PG")
        a(f"s_cmp_lg_u32 {s(sW)}, {wave}")
        a(f"s_cbranch_scc1 {l}")
        a(f"s_lshl_b32 {s(sT0)}, {s(sR)}, 7")
        if e == 1:
            a(f"s_lshl_b32 {s(sT0)}, {s(sR)}, 9")
            a(f"s_lshl_b32 {s(sT1)}, {s(sTH)}, 8")
            a(f"s_add_u32 {s(sT0)}, {s(sT0)}, {s(sT1)}")
        a(f"s_add_u32 {s(sT0)}, {s(sT0)}, {FLG(e)}")
        a(f"v_lshl_add_u32 {v(13)}, v1, 3, {s(sT0)}")
        self.poll(13, T, 12, (1 << nmem) - 1, tag)
        a.label(l)
        a("s_waitcnt lgkmcnt(0)")
        a("s_barrier")

    def two_path(self, fn):
        a = self.a
        l1, l2 = a.newlabel("SL"), a.newlabel("SL")
        a(f"s_cmp_eq_u32 {s(sLOCAL)}, 1")
        a(f"s_cbranch_scc0 {l1}")
        fn("")
        a(f"s_branch {l2}")
        a.label(l1)
        fn(" sc1")
        a.label(l2)

    def publish(self, e, always_sc1=False, nowait_role1=False, keep=0):
        a = self.a
        a(f"s_lshl_b32 {s(sT1)}, {s(sR)}, {11 if e == 0 else 7}")
        a(f"s_lshl_b32 {s(sT2)}, {s(sC)}, {7 if e == 0 else 3}")
        a(f"s_add_u32 {s(sT1)}, {s(sT1)}, {s(sT2)}")
        a(f"s_add_u32 {s(sT1)}, {s(sT1)}, {FL0_OFF if e == 0 else FLG(e)}")
        a(f"s_lshl_b32 {s(sT2)}, {s(sXCC)}, 28")
        a(f"s_or_b32 {s(sT2)}, {s(sT2)}, {s(sTOK+1)}")
        a(f"v_mov_b32 {v(13)}, {s(sT1)}")
        a(f"v_mov_b32 {v(T)}, {s(sTOK)}")
        a(f"v_mov_b32 {v(T2)}, {s(sT2)}")
        if nowait_role1:
            lw = a.newlabel("NW")
            a(f"s_cmp_eq_u32 {s(sROLE)}, 1")
            a(f"s_cbranch_scc1 {lw}")
            a("s_waitcnt vmcnt(0)")
            a.label(lw)
            a("s_waitcnt lgkmcnt(0)")
        else:
            a(f"s_waitcnt vmcnt({keep}) lgkmcnt(0)")
        a("s_barrier")
        lf = a.newlabel("PUB")
        a(f"s_cmp_lg_u32 {s(sW)}, 0")
        a(f"s_cbranch_scc1 {lf}")
        a(f"s_mov_b64 exec, 1")
        st = lambda sc: a(f"buffer_store_dwordx2 {v(T,2)}, {v(13)}, {s(SWS,4)}, 0 offen{sc}")
        if always_sc1: st(self.kvst)
        else: self.two_path(st)
        a(f"s_mov_b64 exec, -1")
        a.label(lf)

    def mean_operand(self, BM, vnm, tmp):
        a = self.a
        a(f"v_cvt_pk_bf16_f32 {v(BM)}, {v(vnm)}, {v(vnm)}")
        a(f"v_and_b32 {v(tmp)}, 0xffff0000, {v(BM)}")
        a(f"v_sub_f32 {v(tmp)}, {v(vnm)}, {v(tmp)}")
        a(f"v_cvt_pk_bf16_f32 {v(BM+1)}, {v(tmp)}, 0")
        a(f"v_mov_b32 {v(BM+2)}, 0")
        a(f"v_mov_b32 {v(BM+3)}, 0")

    def cs_operand(self, AM, vcs):
        a = self.a
        a(f"v_cndmask_b32 {v(vcs)}, {v(vcs)}, 0, {s(sHI,2)}")
        a(f"v_cvt_pk_bf16_f32 {v(AM+1)}, {v(vcs)}, 0")
        a(f"v_lshlrev_b32 {v(AM+2)}, 16, {v(AM+1)}")
        a(f"v_sub_f32 {v(AM+2)}, {v(vcs)}, {v(AM+2)}")
        a(f"v_cvt_pk_bf16_f32 {v(AM)}, {v(vcs)}, {v(AM+2)}")
        a(f"v_mov_b32 {v(AM+2)}, 0")
        a(f"v_mov_b32 {v(AM+3)}, 0")

    def stats_finish(self, vsum, vsq, vnm, vrs):
        a = self.a
        a(f"v_mul_f32 {v(vnm)}, {f32bits(-1.0/448):#x}, {v(vsum)}")
        a(f"v_mul_f32 {v(vsq)}, {f32bits(1.0/448):#x}, {v(vsq)}")
        a(f"v_fma_f32 {v(vsq)}, -{v(vnm)}, {v(vnm)}, {v(vsq)}")
        a(f"v_max_f32 {v(vsq)}, 0, {v(vsq)}")
        a(f"v_add_f32 {v(vsq)}, {f32bits(1e-5):#x}, {v(vsq)}")
        a(f"v_rsq_f32 {v(vrs)}, {v(vsq)}")

    def rows128_src(self, vd, rowstride, srow0, scol):
        a = self.a
        a(f"v_lshrrev_b32 {v(T)}, 3, v1")
        a(f"v_bfe_u32 {v(T2)}, v1, 4, 1")
        a(f"v_lshlrev_b32 {v(T2)}, 2, {v(T2)}")
        a(f"v_xor_b32 {v(T2)}, {v(T2)}, v1")
        a(f"v_and_b32 {v(T2)}, 7, {v(T2)}")
        a(f"v_add_u32 {v(T)}, {s(srow0)}, {v(T)}")
        a(f"v_mul_u32_u24 {v(T)}, {rowstride}, {v(T)}")
        a(f"v_lshl_add_u32 {v(T)}, {v(T2)}, 4, {v(T)}")
        a(f"v_add_u32 {v(vd)}, {s(scol)}, {v(T)}")

    def tr128_addr(self, vd, perm, sbase):
        a = self.a
        a(f"v_lshrrev_b32 {v(T)}, 5, v1")
        a(f"v_lshlrev_b32 {v(T)}, {9 if perm else 10}, {v(T)}")
        a(f"v_bfe_u32 {v(T2)}, v1, 2, 2")
        a(f"v_lshl_add_u32 {v(T)}, {v(T2)}, 7, {v(T)}")
        a(f"v_bfe_u32 {v(T2)}, v1, 4, 1")
        a(f"v_lshl_add_u32 {v(T)}, {v(T2)}, 5, {v(T)}")
        a(f"v_and_b32 {v(T2)}, 3, v1")
        a(f"v_lshl_add_u32 {v(T)}, {v(T2)}, 3, {v(T)}")
        a(f"v_bfe_u32 {v(T2)}, v1, 3, 1")
        a(f"v_lshlrev_b32 {v(T2)}, 6, {v(T2)}")
        a(f"v_xor_b32 {v(T2)}, {s(sU0)}, {v(T2)}")
        a(f"v_add_u32 {v(T)}, {v(T)}, {v(T2)}")
        a(f"v_add_u32 {v(vd)}, {s(sbase)}, {v(T)}")

    def prologue(self):
        a = self.a
        a(f"s_cmp_ge_u32 s2, 256")
        a(f"s_cbranch_scc1 L_END")
        a("s_load_dwordx16 s[4:19], s[0:1], 0")
        a("s_load_dwordx2 s[20:21], s[0:1], 64")
        a("v_and_b32 v1, 63, v0")
        a("v_lshrrev_b32 v2, 6, v0")
        a(f"v_readfirstlane_b32 {s(sW)}, v2")
        a(f"s_and_b32 {s(sT)}, {s(sW)}, 3")
        a(f"s_lshr_b32 {s(sROLE)}, {s(sW)}, 2")
        a(f"s_and_b32 {s(sR)}, s2, 7")
        a(f"s_lshl_b32 {s(sR)}, {s(sR)}, 1")
        a(f"s_lshr_b32 {s(sTMP)}, s2, 7")
        a(f"s_add_u32 {s(sR)}, {s(sR)}, {s(sTMP)}")
        a(f"s_lshr_b32 {s(sC)}, s2, 3")
        a(f"s_and_b32 {s(sC)}, {s(sC)}, 15")
        a(f"s_getreg_b32 {s(sXCC)}, hwreg(HW_REG_XCC_ID)")
        a(f"s_and_b32 {s(sXCC)}, {s(sXCC)}, 15")
        a(f"s_mov_b32 {s(sONES)}, 0x3f803f80")
        a(f"s_cmp_ge_u32 {s(sC)}, 7")
        a(f"s_cselect_b32 {s(sTH)}, 1, 0")
        a(f"s_mul_i32 {s(sTMP)}, {s(sTH)}, 7")
        a(f"s_sub_u32 {s(sCT)}, {s(sC)}, {s(sTMP)}")
        a("s_waitcnt lgkmcnt(0)")
        self.srd(SX, 4, 2048*448*2)
        self.srd(SWQKV, 6, 448*1344*2)
        self.srd(SWO, 8, 448*448*2)
        self.srd(SW1, 12, 448*1792*2)
        self.srd(SW2, 14, 1792*448*2)
        self.srd(SOUT, 16, 2048*448*2)
        self.srd(SDBG, 18, 256)
        self.srd(SWS, 20, WS_SZ)
        a(f"s_mov_b32 {s(sHI)}, 0")
        a(f"s_mov_b32 {s(sHI+1)}, -1")
        a(f"s_cmp_lt_u32 {s(sC)}, 14")
        a(f"s_cselect_b32 {s(sBUSY)}, 1, 0")
        a("v_mov_b32 v84, 0")
        a("v_mov_b32 v85, 0")
        if self.prof: a(f"v_mov_b32 {v(vTS)}, 0")
        self.ts("start")
        if self.tlb:
            lt = a.newlabel("TLB")
            a(f"s_cmp_lg_u32 {s(sW)}, 7")
            a(f"s_cbranch_scc1 {lt}")
            a(f"v_lshlrev_b32 {v(T)}, {self.tlb}, v1")
            for k in range((34 << 20) >> (self.tlb + 6)):
                a(f"s_mov_b32 {s(sT0)}, {k << (self.tlb + 6)}")
                a(f"buffer_load_dword {v(90)}, {v(T)}, {s(SWS,4)}, {s(sT0)} offen")
            a(f"v_lshlrev_b32 {v(T)}, 16, v1")
            for srd in (SWO, SW1, SW2, SOUT):
                a(f"buffer_load_dword {v(90)}, {v(T)}, {s(srd,4)}, 0 offen")
            a.label(lt)
        lz = a.newlabel("NOTOK")
        a(f"s_cmp_lg_u32 s2, 112")
        a(f"s_cbranch_scc1 {lz}")
        a(f"s_cmp_lg_u32 {s(sW)}, 0")
        a(f"s_cbranch_scc1 {lz}")
        a(f"s_memrealtime {s(sTS,2)}")
        a("s_waitcnt lgkmcnt(0)")
        a(f"s_or_b32 {s(sT0)}, {s(sTS)}, 1")
        a(f"s_and_b32 {s(sT1)}, {s(sTS+1)}, 0xfffffff")
        a(f"v_mov_b32 {v(T)}, {s(sT0)}")
        a(f"v_mov_b32 {v(T2)}, {s(sT1)}")
        a(f"s_mov_b64 exec, 1")
        a(f"buffer_store_dwordx2 {v(T,2)}, off, {s(SDBG,4)}, 0 sc1")
        a(f"s_mov_b64 exec, -1")
        a.label(lz)

    def touch_p1(self):
        a = self.a
        a(f"s_lshr_b32 {s(sT0)}, s2, 3")
        a(f"s_and_b32 {s(sT1)}, {s(sR)}, 12")
        a(f"s_lshl_b32 {s(sT1)}, {s(sT1)}, 3")
        a(f"s_add_u32 {s(sT1)}, {s(sT0)}, {s(sT1)}")
        a(f"s_mul_i32 {s(sT1)}, {s(sT1)}, {16*896}")
        a(f"s_mul_i32 {s(sT2)}, {s(sT)}, {28*128}")
        a(f"s_add_u32 {s(sT1)}, {s(sT1)}, {s(sT2)}")
        a(f"v_lshlrev_b32 {v(T)}, 7, v1")
        self.set_exec((1 << 28) - 1)
        a(f"buffer_load_dword {v(86)}, {v(T)}, {s(SX,4)}, {s(sT1)} offen")
        a("s_mov_b64 exec, -1")
        a(f"s_mul_i32 {s(sT0)}, {s(sT0)}, {14*2688}")
        a(f"s_bfe_u32 {s(sT1)}, {s(sR)}, 0x10001")
        a(f"s_mul_i32 {s(sT1)}, {s(sT1)}, 1280")
        a(f"s_add_u32 {s(sT0)}, {s(sT0)}, {s(sT1)}")
        a(f"s_mul_i32 {s(sT1)}, {s(sT)}, 39")
        a(f"v_add_u32 {v(T)}, {s(sT1)}, v1")
        a(f"v_mul_u32_u24 {v(T2)}, 5958, {v(T)}")
        a(f"v_lshrrev_b32 {v(T2)}, 16, {v(T2)}")
        a(f"v_mul_u32_u24 {v(T2)}, {2688-11*128}, {v(T2)}")
        a(f"v_lshl_add_u32 {v(T2)}, {v(T)}, 7, {v(T2)}")
        self.set_exec((1 << 39) - 1)
        a(f"buffer_load_dword {v(86)}, {v(T2)}, {s(SWQKV,4)}, {s(sT0)} offen")
        a("s_mov_b64 exec, -1")

    def touch(self, srd, kexpr):
        a = self.a
        sg, mul, add = kexpr
        a(f"s_mul_i32 {s(sT0)}, {s(sg)}, {mul*262144}")
        a(f"s_lshr_b32 {s(sT1)}, s2, 3")
        a(f"s_lshl_b32 {s(sT1)}, {s(sT1)}, 13")
        a(f"s_add_u32 {s(sT0)}, {s(sT0)}, {s(sT1)}")
        if add > 0: a(f"s_add_u32 {s(sT0)}, {s(sT0)}, {add*262144}")
        if add < 0: a(f"s_sub_u32 {s(sT0)}, {s(sT0)}, {-add*262144}")
        a(f"v_lshlrev_b32 {v(T)}, 7, v1")
        a(f"buffer_load_dword {v(86)}, {v(T)}, {s(srd,4)}, {s(sT0)} offen")

    def idle_touch_setup(self):
        a = self.a
        a(f"s_and_b32 {s(sT0)}, {s(sR)}, 1")
        a(f"s_lshl_b32 {s(sT0)}, {s(sT0)}, 1")
        a(f"s_add_u32 {s(sT0)}, {s(sT0)}, {s(sC)}")
        a(f"s_sub_u32 {s(sT0)}, {s(sT0)}, 14")
        a(f"s_lshl_b32 {s(sT1)}, {s(sT0)}, 2")
        a(f"s_add_u32 {s(sT1)}, {s(sT1)}, {s(sT)}")
        a(f"s_lshl_b32 {s(sT1)}, {s(sT1)}, 13")
        a(f"v_lshl_add_u32 {v(56)}, v1, 7, {s(sT1)}")

    def flag_pretouch(self):
        a = self.a
        a(f"s_lshl_b32 {s(sT0)}, {s(sR)}, 9")
        a(f"s_add_u32 {s(sT0)}, {s(sT0)}, {FLG(1)}")
        a(f"v_lshl_add_u32 {v(T)}, v1, 7, {s(sT0)}")
        a(f"s_lshl_b32 {s(sT0)}, {s(sR)}, 7")
        a(f"s_add_u32 {s(sT1)}, {s(sT0)}, {FLG(2)}")
        a(f"v_writelane_b32 {v(T)}, {s(sT1)}, 4")
        a(f"s_lshl_b32 {s(sT0)}, {s(sR)}, 11")
        a(f"s_add_u32 {s(sT0)}, {s(sT0)}, {FLG(3) - 16*128}")
        a(f"v_lshl_add_u32 {v(T2)}, v1, 7, {s(sT0)}")
        a(f"v_cmp_le_u32 vcc, 16, v1")
        a(f"v_cndmask_b32 {v(T)}, {v(T)}, {v(T2)}, vcc")
        self.set_exec(0xffff001f)
        a(f"buffer_load_dword {v(86)}, {v(T)}, {s(SWS,4)}, 0 offen sc1")
        a(f"s_mov_b64 exec, -1")

    def masks(self):
        a = self.a
        a(f"v_and_b32 {v(T)}, 31, v1")
        a(f"v_lshrrev_b32 {v(T2)}, 5, v1")
        a(f"v_lshlrev_b32 {v(T2)}, 2, {v(T2)}")
        a(f"v_sub_u32 {v(T)}, {v(T)}, {v(T2)}")
        for rg in range(16):
            kk = 8 * (rg // 4) + (rg % 4)
            a(f"v_cmp_le_i32 {s(sMASK+2*rg,2)}, {kk}, {v(T)}")

    def p1(self):
        a = self.a
        PD = self.PD1
        full = self.stop_after >= 3
        vXs = 100; vWs = 104; vSt = 107; vCs = 108
        ACC = 16
        AM = 112; vXr = 120; vWr = 124; SCL = 128; BM = 132; vSA = 136
        vWo = 138; vXres = 139; vRS = 140
        vTok = 142; vFl = 96
        WB = R_B + 40
        lpad, lp1end = a.newlabel("PADW"), a.newlabel("P1END")
        a(f"s_cmp_eq_u32 {s(sBUSY)}, 0")
        a(f"s_cbranch_scc1 {lpad}")
        a(f"s_and_b32 {s(sR1)}, {s(sR)}, 12")
        a(f"s_and_b32 {s(sT0)}, {s(sR)}, 1")
        a(f"s_lshl_b32 {s(sT0)}, {s(sT0)}, 1")
        a(f"s_add_u32 {s(sT0)}, {s(sT0)}, {s(sTH)}")
        a(f"s_add_u32 {s(sR1)}, {s(sR1)}, {s(sT0)}")
        a(f"s_bfe_u32 {s(sJ1)}, {s(sR)}, 0x10001")
        a(f"s_mul_i32 {s(sJ1)}, {s(sJ1)}, 7")
        a(f"s_add_u32 {s(sJ1)}, {s(sJ1)}, {s(sCT)}")
        sXm, sWm = sT4, sT5
        def setup_xsrc():
            a(f"s_lshl_b32 {s(sT0)}, {s(sR1)}, 7")
            a(f"s_lshl_b32 {s(sT1)}, {s(sT)}, 5")
            a(f"s_add_u32 {s(sT0)}, {s(sT0)}, {s(sT1)}")
            a(f"v_lshrrev_b32 {v(T)}, 3, v1")
            a(f"v_add_u32 {v(T)}, {s(sT0)}, {v(T)}")
            a(f"v_mul_u32_u24 {v(T)}, 896, {v(T)}")
            a(f"v_lshrrev_b32 {v(T2)}, 4, v1")
            a(f"v_xor_b32 {v(T2)}, {v(T2)}, v1")
            a(f"v_and_b32 {v(T2)}, 7, {v(T2)}")
            a(f"v_lshl_add_u32 {v(vXs)}, {v(T2)}, 4, {v(T)}")
            a(f"v_xor_b32 {v(T2)}, 4, {v(T2)}")
            a(f"v_lshl_add_u32 {v(vXs+1)}, {v(T2)}, 4, {v(T)}")
            a(f"v_add_u32 {v(vXs+2)}, {2*(7168-1024)}, {v(vXs)}")
            a(f"v_add_u32 {v(vXs+3)}, {3*(7168-1024)}, {v(vXs+1)}")
            a(f"v_add_u32 {v(vXs+1)}, {7168-1024}, {v(vXs+1)}")
            a(f"s_lshl_b32 {s(sXm)}, {s(sT)}, 12")
        def setup_wsrc():
            a(f"s_mul_i32 {s(sT0)}, {s(sT)}, {16*2688}")
            a(f"s_mul_i32 {s(sT1)}, {s(sJ1)}, 192")
            a(f"s_add_u32 {s(sT0)}, {s(sT0)}, {s(sT1)}")
            for m in range(3):
                a(f"v_add_u32 {v(T)}, {64*m}, v1")
                a(f"v_mul_u32_u24 {v(T2)}, 43691, {v(T)}")
                a(f"v_lshrrev_b32 {v(T2)}, 19, {v(T2)}")
                a(f"v_mul_u32_u24 {v(T2)}, 2496, {v(T2)}")
                a(f"v_lshl_add_u32 {v(T2)}, v1, 4, {v(T2)}")
                a(f"v_add_u32 {v(vWs+m)}, {s(sT0)}, {v(T2)}")
            a(f"s_mul_i32 {s(sWm)}, {s(sT)}, 3072")
        def rot_setup():
            a(f"s_and_b32 {s(sT0)}, {s(sR1)}, 3")
            a(f"s_lshl_b32 {s(sT0)}, {s(sT0)}, 1")
            a(f"s_add_u32 {s(sT0)}, {s(sT0)}, {s(sCT)}")
            a(f"s_sub_u32 {s(sT1)}, {s(sT0)}, 7")
            a(f"s_cmp_ge_u32 {s(sT0)}, 7")
            a(f"s_cselect_b32 {s(sT0)}, {s(sT1)}, {s(sT0)}")
            if self.norot: a(f"s_mov_b32 {s(sT0)}, 0")
            G_ = self.rotg
            if G_ < 7:
                a(f"s_mul_i32 {s(sT1)}, {s(sT0)}, {(256 + G_ - 1) // G_}")
                a(f"s_lshr_b32 {s(sT1)}, {s(sT1)}, 8")
                a(f"s_mul_i32 {s(sT1)}, {s(sT1)}, {G_}")
                a(f"s_sub_u32 {s(sT0)}, {s(sT0)}, {s(sT1)}")
            a(f"s_lshl_b32 {s(64)}, {s(sT0)}, 7")
        def rot_next(i):
            G_ = self.rotg
            g0 = (i // G_) * G_; g1 = min(g0 + G_, 7)
            if i % G_ == 0:
                if g1 - g0 == G_: a(f"s_add_u32 {s(64+i)}, {s(64)}, {128*g0}")
                else:
                    if g1 - g0 == 1: a(f"s_mov_b32 {s(64+i)}, {128*g0}")
                    else:
                        a(f"s_add_u32 {s(64+i)}, {s(64)}, {128*g0}")
                        a(f"s_cmp_ge_u32 {s(64+i)}, {128*g1}")
                        a(f"s_cselect_b32 {s(64+i)}, {128*g0}, {s(64+i)}")
                return
            a(f"s_add_u32 {s(64+i)}, {s(63+i)}, 128")
            a(f"s_cmp_eq_u32 {s(64+i)}, {128*g1}")
            a(f"s_cselect_b32 {s(64+i)}, {128*g0}, {s(64+i)}")
        def xdma(i):
            sT0 = 64 + i
            for j in range(4):
                self.dma(vXs+j, SX, sT0, (sXm, L_XS + (i % 4) * 16384) if j == 0 else None, off=1024*j)
        def wdma(i):
            a(f"s_mul_i32 {s(sT1)}, {s(64+i)}, {64*2688//128}")
            for m in range(3):
                self.dma(vWs+m, SWQKV, sT1, (sWm, L_WP + i * 12288) if m == 0 else None, off=1024*m)
        def setup_rd(role):
            a(f"v_and_b32 {v(T)}, 31, v1")
            a(f"v_bfe_u32 {v(T2)}, v1, 1, 3")
            a(f"v_lshrrev_b32 {v(vXr)}, 5, v1")
            a(f"v_xor_b32 {v(T2)}, {v(T2)}, {v(vXr)}")
            a(f"s_lshl_b32 {s(sT1)}, {s(sT)}, 12")
            a(f"v_lshl_add_u32 {v(T)}, {v(T)}, 7, {s(sT1)}")
            for n in range(4):
                a(f"s_add_u32 {s(sT0)}, {s(sT)}, {n}")
                a(f"s_and_b32 {s(sT0)}, {s(sT0)}, 3")
                a(f"s_lshl_b32 {s(sT1)}, {s(sT0)}, 1")
                a(f"s_mul_i32 {s(sKC+n)}, {s(sT0)}, 3072")
                a(f"v_xor_b32 {v(vXr+n)}, {s(sT1)}, {v(T2)}")
                a(f"v_lshl_add_u32 {v(vXr+n)}, {v(vXr+n)}, 4, {v(T)}")
            a(f"v_lshrrev_b32 {v(T)}, 5, v1")
            a(f"v_bfe_u32 {v(T2)}, v1, 2, 2")
            a(f"v_lshl_add_u32 {v(T)}, {v(T)}, 3, {v(T2)}")
            a(f"v_mul_u32_u24 {v(T)}, 192, {v(T)}")
            a(f"v_bfe_u32 {v(T2)}, v1, 4, 1")
            a(f"v_lshl_add_u32 {v(T)}, {v(T2)}, 5, {v(T)}")
            a(f"v_and_b32 {v(T2)}, 3, v1")
            a(f"v_lshl_add_u32 {v(T)}, {v(T2)}, 3, {v(T)}")
            a(f"v_add_u32 {v(T)}, {L_WP + (128 if role else 0)}, {v(T)}")
            for n in range(4): a(f"v_add_u32 {v(vWr+n)}, {s(sKC+n)}, {v(T)}")
            a(f"v_mov_b32 {v(vCs)}, 0")
            a(f"v_mov_b32 {v(vCs+1)}, 0")
            a(f"v_mov_b32 {v(BM+2)}, 0")
            a(f"v_mov_b32 {v(BM+3)}, 0")
        def setup_st(ti, tj):
            a(f"s_mul_i32 {s(sT0)}, {s(sJ1)}, 3")
            a(f"s_add_u32 {s(sT0)}, {s(sT0)}, {tj}")
            a(f"s_cmp_lt_u32 {s(sT0)}, 14")
            a(f"s_cselect_b32 {s(sU0+ti)}, 1, 0")
            a(f"s_lshl_b32 {s(sT0)}, {s(sT0)}, 6")
            a(f"s_lshl_b32 {s(sT1)}, {s(sR1)}, 2")
            a(f"s_add_u32 {s(sT0)}, {s(sT0)}, {s(sT1)}")
            a(f"s_add_u32 {s(sT0)}, {s(sT0)}, {s(sT)}")
            a(f"s_lshl_b32 {s(sT0)}, {s(sT0)}, 11")
            a(f"v_lshl_add_u32 {v(vSA+ti)}, v1, 4, {s(sT0)}")
        def setup_wo():
            a(f"s_lshl_b32 {s(sT0)}, {s(sT)}, 3")
            a(f"s_lshl_b32 {s(sT2)}, {s(sCT)}, 7")
            self.rows128_src(vWo, 896, sT0, sT2)
            a(f"s_lshl_b32 {s(sT0)}, {s(sR)}, 7")
            a(f"s_lshl_b32 {s(sT1)}, {s(sTH)}, 6")
            a(f"s_add_u32 {s(sT0)}, {s(sT0)}, {s(sT1)}")
            a(f"s_mul_i32 {s(sT0)}, {s(sT0)}, 896")
            a(f"v_add_u32 {v(vXres)}, {s(sT0)}, {v(vWo)}")
            a(f"s_lshl_b32 {s(sT6)}, {s(sT)}, 10")
        def wodma(j):
            a(f"s_mov_b32 {s(sT0)}, {32*j*896}")
            self.dma(vWo, SWO, sT0, (sT6, L_WO + 4096 * j))
        def xrdma(j):
            a(f"s_mov_b32 {s(sT0)}, {32*j*896}")
            self.dma(vXres, SX, sT0, (sT6, L_XR + 4096 * j))
        def setup_misc(role):
            a(f"s_lshl_b32 {s(sT0)}, {s(sT)}, 9")
            a(f"s_lshl_b32 {s(sT1)}, {s(sR1)}, 11")
            a(f"s_add_u32 {s(sT0)}, {s(sT0)}, {s(sT1)}")
            a(f"s_add_u32 {s(sT0)}, {s(sT0)}, {XS_OFF}")
            a(f"v_mov_b32 {v(94)}, {L_TOK}")
            a(f"v_and_b32 {v(T)}, 31, v1")
            a(f"v_lshl_add_u32 {v(vSt)}, {v(T)}, 4, {s(sT0)}")
            a(f"v_lshlrev_b32 {v(91)}, 2, v0")
            a(f"v_add_u32 {v(91)}, {L_CS + (1024 if role else 0)}, {v(91)}")
            a(f"v_lshlrev_b32 {v(92)}, 2, {v(T)}")
            a(f"v_add_u32 {v(92)}, {L_CS + (2048 if role else 0)}, {v(92)}")
            a(f"v_add_u32 {v(93)}, 1024, {v(92)}")
        lr1, lrj = a.newlabel("P1R1"), a.newlabel("P1J")
        a(f"s_cmp_eq_u32 {s(sROLE)}, 1")
        a(f"s_cbranch_scc1 {lr1}")
        for role in (0, 1):
            if role == 1: a.label(lr1)
            ntile = 2 if role == 0 else 1
            SET = [R_A, R_A + 48]
            ops = []
            def issue(i):
                xdma(i); wdma(i); ops.extend([i] * 7)
            if role == 0:
                rot_setup(); setup_wsrc(); wdma(0)
                setup_rd(0)
                rot_next(1); wdma(1); ops += [0] * 3 + [1] * 3
                if full: self.wo_addr()
                if self.stop_after >= 2: self.p2_pre()
                setup_st(0, 0)
                if self.tp & 1:
                    self.touch_p1(); ops += ['t', 't']
                setup_st(1, 1)
                setup_misc(0)
                later = []
            else:
                rot_setup(); setup_xsrc(); xdma(0)
                if self.fine: self.ts("first dma issued")
                rot_next(1); xdma(1); ops += [0] * 4 + [1] * 4
                if self.fine: self.ts("second dma issued")
                setup_rd(1)
                setup_wsrc()
                for i in range(2, 7): rot_next(i)
                if full: self.wo_addr()
                if self.stop_after >= 2: self.p2_pre()
                setup_st(0, 2)
                if full: setup_wo()
                setup_misc(1)
                later = []
            if self.fine: self.ts("setup done")
            for i in range(8):
                a.comment(f"---- P1 role{role} iter {i}")
                rds, mfs, css = [], [], []
                if i < 7:
                    idx = [k for k, c_ in enumerate(ops) if c_ == i]
                    if idx: a(f"s_waitcnt vmcnt({len(ops)-1-max(idx)}) lgkmcnt(0)")
                    else: a("s_waitcnt lgkmcnt(0)")
                    if self.fine and i < 3: self.ts(f"c{i} own wait done")
                    a("s_barrier")
                    if i == 0: self.ts("p1 chunk0 landed")
                    if self.fine: self.ts(f"c{i} barrier")
                    woff = (i % 4) * 12288
                    if i == 4:
                        for n in range(4): a(f"v_add_u32 {v(vWr+n)}, 49152, {v(vWr+n)}")
                    S_ = SET[i % 2]
                    for n in range(4):
                        rds.append(f"ds_read_b128 {v(S_+4*n,4)}, {v(vXr+n)} offset:{L_XS+(i%4)*16384}")
                        for tj in range(ntile):
                            b = S_ + 16 + 16 * tj + 4 * n
                            rds.append(f"ds_read_b64_tr_b16 {v(b,2)}, {v(vWr+n)} offset:{woff+tj*64}")
                            rds.append(f"ds_read_b64_tr_b16 {v(b+2,2)}, {v(vWr+n)} offset:{woff+tj*64+768}")
                    if i == 6:
                        rds.append(f"ds_read_b64 {v(vTok,2)}, {v(94)}")
                else:
                    a("s_waitcnt lgkmcnt(0)")
                    a(f"v_readfirstlane_b32 {s(sTOK)}, {v(vTok)}")
                    a(f"v_readfirstlane_b32 {s(sTOK+1)}, {v(vTok+1)}")
                def extras():
                    only = lambda w_: (a(f"s_cmp_lg_u32 {s(sW)}, {w_}"), a.newlabel("ON"))[1]
                    if role == 1 and i == 0:
                        for k in range(2, PD): issue(k)
                    if role == 1 and i + PD < 7: issue(i + PD)
                    if role == 1 and full and i in (5, 6):
                        for j in (range(0, 8) if i == 5 else range(8, 14)): wodma(j); ops.append('wo')
                        if i == 6:
                            for j in range(2): xrdma(j); ops.append('wo')
                    if role == 0:
                        if i in (1, 3):
                            l = only(3); a(f"s_cbranch_scc1 {l}")
                            if i == 1:
                                self.token_load(vTok)
                            if i == 3:
                                a("s_waitcnt vmcnt(0)")
                                self.token_take(vTok)
                                a(f"v_mov_b32 {v(T)}, {L_TOK}")
                                a(f"ds_write_b64 {v(T)}, {v(vTok,2)}")
                            a.label(l)
                    if i == 4:
                        a(f"buffer_load_dwordx4 {v(vFl,4)}, {v(vSt)}, {s(SWS,4)}, 0 offen sc1"); ops.append('st')
                    if role == 0:
                        if (self.tp & 8) and i == self.t1it:
                            self.touch(SW1, (sT, 1, 3))
                    if later and i < 7: later.pop(0)()
                if role == 1:
                    for o in rds: a(o)
                    rds = []
                    extras()
                if i > 0:
                    P_ = SET[(i - 1) % 2]
                    for n in range(4):
                        for tj in range(ntile):
                            c_in = "0" if (i == 1 and n == 0) else v(ACC+16*tj, 16)
                            mfs.append(f"{MF} {v(ACC+16*tj,16)}, {v(P_+16+16*tj+4*n,4)}, {v(P_+4*n,4)}, {c_in}")
                    for tj in range(ntile):
                        for d in range(4): a(f"v_dot2c_f32_bf16 {v(vCs+tj)}, {s(sONES)}, {v(P_+16+16*tj+d)}")
                if i == 7:
                    a(mfs.pop(0)); a(mfs.pop(0))
                    for tj in range(ntile): a(f"ds_write_b32 {v(91)}, {v(vCs+tj)} offset:{1024*tj}")
                nm = max(1, len(mfs))
                for g_ in range(nm):
                    if mfs: a(mfs[g_])
                    for o in rds[g_*len(rds)//nm:(g_+1)*len(rds)//nm]: a(o)
                if role == 0: extras()
                if self.fine and i < 7: self.ts(f"c{i} end")
            self.ts("p1 loop done")
            nafter = len(ops) - 1 - max(k for k, o in enumerate(ops) if o == 'st') + (1 if (role == 0 and (self.tp & 8)) else 0)
            a(f"s_waitcnt vmcnt({nafter})")
            a(f"s_mov_b32 {s(sSPIN)}, 200000")
            a(f"s_and_b32 {s(sT2)}, {s(sTOK+1)}, 0xffff")
            lab = a.loop_label(a.newlabel("SVL")); done = a.newlabel("SVD")
            a(f"v_lshrrev_b32 {v(T)}, 16, {v(vFl+1)}")
            a(f"v_xor_b32 {v(T)}, {s(sT2)}, {v(T)}")
            a(f"v_xor_b32 {v(T2)}, {s(sTOK)}, {v(vFl+3)}")
            a(f"v_or_b32 {v(T)}, {v(T)}, {v(T2)}")
            a(f"v_cmp_ne_u32 vcc, 0, {v(T)}")
            a(f"s_sub_u32 {s(sSPIN)}, {s(sSPIN)}, 1")
            a(f"s_cbranch_scc1 {done}")
            a("s_nop 2")
            a(f"s_cbranch_vccz {done}")
            a("s_sleep 2")
            a(f"buffer_load_dwordx4 {v(vFl,4)}, {v(vSt)}, {s(SWS,4)}, 0 offen sc1")
            a("s_waitcnt vmcnt(0)")
            a(f"s_branch {lab}")
            a.label(done)
            a(f"v_mov_b32 {v(BM)}, {v(vFl)}")
            a(f"v_and_b32 {v(BM+1)}, 0xffff, {v(vFl+1)}")
            a(f"v_mov_b32 {v(vRS)}, {v(vFl+2)}")
            a(f"v_mul_f32 {v(vRS+1)}, {f32bits(28**-0.5*LOG2E):#x}, {v(vFl+2)}")
            a("s_waitcnt lgkmcnt(0)")
            a("s_barrier")
            self.ts("stat barrier")
            S0 = WB
            for tj in range(ntile):
                for k in range(4): a(f"ds_read2_b32 {v(S0+8*tj+2*k,2)}, {v(92+tj)} offset0:{64*k} offset1:{64*k+32}")
            for tj in range(ntile):
                a(f"s_cmp_eq_u32 {s(sU0+tj)}, 1")
                a(f"s_cselect_b64 {s(sSAVE,2)}, -1, 0")
                a(f"v_cndmask_b32 {v(SCL+2*tj)}, {v(vRS)}, {v(vRS+1)}, {s(sSAVE,2)}")
                a(f"v_cndmask_b32 {v(SCL+2*tj+1)}, {v(vRS)}, {v(vRS+1)}, {s(sSAVE,2)}")
            for tj in range(ntile):
                c0 = S0 + 8 * tj
                a(f"s_waitcnt lgkmcnt({4*(ntile-1-tj)})")
                a(f"v_pk_add_f32 {v(c0,2)}, {v(c0,2)}, {v(c0+2,2)}")
                a(f"v_pk_add_f32 {v(c0+4,2)}, {v(c0+4,2)}, {v(c0+6,2)}")
                a(f"v_pk_add_f32 {v(c0,2)}, {v(c0,2)}, {v(c0+4,2)}")
                a(f"v_add_f32 {v(c0)}, {v(c0)}, {v(c0+1)}")
                self.cs_operand(AM + 4 * tj, c0)
                a(f"{MF} {v(ACC+16*tj,16)}, {v(AM+4*tj,4)}, {v(BM,4)}, {v(ACC+16*tj,16)}")
            for tj in range(ntile):
                PK = WB + 8 * tj
                A_ = ACC + 16 * tj
                for h_ in range(2):
                    for k in range(4): a(f"v_pk_mul_f32 {v(A_+8*h_+2*k,2)}, {v(A_+8*h_+2*k,2)}, {v(SCL+2*tj,2)}")
                    for k in range(4): a(f"v_cvt_pk_bf16_f32 {v(PK+4*h_+k)}, {v(A_+8*h_+2*k)}, {v(A_+8*h_+2*k+1)}")
                for h_ in range(2):
                    a(f"v_permlane32_swap_b32 {v(PK+4*h_)}, {v(PK+4*h_+2)}")
                    a(f"v_permlane32_swap_b32 {v(PK+4*h_+1)}, {v(PK+4*h_+3)}")
                    a(f"buffer_store_dwordx4 {v(PK+4*h_,4)}, {v(vSA+tj)}, {s(SWS,4)}, 0 offen offset:{1024*h_} sc1")
            self.ts("qkv stores issued")
            if role == 0: a(f"s_branch {lrj}")
        a.label(lrj)
        if self.stop_after >= 2: self.p2_copy()
        self.publish(0, True)
        self.ts("QKV published")
        if full: self.wo_read()
        self.lpad = lpad


    def stage_rows128(self, srd, rowstride, scol, ldsbase, vsrc=2):
        a = self.a
        a(f"s_mul_i32 {s(sT0)}, {s(sW)}, 56")
        self.rows128_src(vsrc, rowstride, sT0, scol)
        a(f"s_mul_i32 {s(sT1)}, {s(sW)}, 7168")
        for j in range(7):
            a(f"s_mov_b32 {s(sT0)}, {8*j*rowstride}")
            self.dma(vsrc, srd, sT0, (sT1, ldsbase + 1024 * j))

    def move_frags(self, dst, vaddr, nsteps, perm, off0=0):
        a = self.a
        for k in range(nsteps):
            a(f"ds_read_b64_tr_b16 {v(dst+4*k,2)}, {v(vaddr)} offset:{off0+k*2048}")
            a(f"ds_read_b64_tr_b16 {v(dst+4*k+2,2)}, {v(vaddr)} offset:{off0+k*2048+(1024 if perm else 512)}")

    def busy_begin(self):
        a = self.a
        l = a.newlabel("NB")
        a(f"s_cmp_eq_u32 {s(sBUSY)}, 0")
        a(f"s_cbranch_scc1 {l}")
        return l

    def idle_path(self):
        main = self.a
        side = Asm(); side.nlabel = 100000
        self.a = a = side
        lpad = self.lpad
        a("s_nop 15") if False else None
        a.label(lpad)
        a(f"s_lshl_b32 {s(sT0)}, {s(sR)}, 7")
        a(f"s_sub_u32 {s(sT1)}, {s(sC)}, 14")
        a(f"s_lshl_b32 {s(sT1)}, {s(sT1)}, 6")
        a(f"s_add_u32 {s(sT0)}, {s(sT0)}, {s(sT1)}")
        a(f"v_lshrrev_b32 {v(2)}, 3, v0")
        a(f"v_add_u32 {v(2)}, {s(sT0)}, {v(2)}")
        a(f"v_mul_u32_u24 {v(3)}, 896, {v(2)}")
        a(f"v_and_b32 {v(T)}, 7, v0")
        a(f"v_lshl_add_u32 {v(3)}, {v(T)}, 4, {v(3)}")
        for j in range(7): a(f"buffer_load_dwordx4 {v(32+4*j,4)}, {v(3)}, {s(SX,4)}, 0 offen offset:{128*j}")
        self.flag_pretouch()
        self.idle_extra = 0
        a(f"v_mov_b32 v4, 0")
        a(f"v_mov_b32 v5, 0")
        for j in range(7):
            a(f"s_waitcnt vmcnt({7-j})")
            if j == 3: self.token_load(24)
            if j == 6: a("s_waitcnt vmcnt(0)")
            for k in range(4): a(f"v_dot2c_f32_bf16 v4, {s(sONES)}, {v(32+4*j+k)}")
            for k in range(4): a(f"v_dot2c_f32_bf16 v5, {v(32+4*j+k)}, {v(32+4*j+k)}")
        for ctl in ("quad_perm:[1,0,3,2]", "quad_perm:[2,3,0,1]", "row_half_mirror"):
            a(f"v_add_f32_dpp v4, v4, v4 {ctl} row_mask:0xf bank_mask:0xf")
            a(f"v_add_f32_dpp v5, v5, v5 {ctl} row_mask:0xf bank_mask:0xf")
        self.stats_finish(4, 5, 6, 7)
        self.mean_operand(20, 6, 8)
        a(f"v_mov_b32 v22, v7")
        self.token_take(24)
        a(f"s_lshl_b32 {s(sT0)}, {s(sTOK+1)}, 16")
        a(f"v_or_b32 v21, {s(sT0)}, v21")
        a(f"v_mov_b32 v23, {s(sTOK)}")
        a(f"v_lshlrev_b32 v2, 4, v2")
        a(f"v_add_u32 v2, {XS_OFF}, v2")
        self.set_exec(0x0101010101010101)
        a(f"buffer_store_dwordx4 v[20:23], v2, {s(SWS,4)}, 0 offen sc1")
        a("s_mov_b64 exec, -1")
        self.ts("stats stored")
        a(f"s_sub_u32 {s(sT0)}, {s(sC)}, 14")
        a(f"s_lshl_b32 {s(sT0)}, {s(sT0)}, 3")
        a(f"s_add_u32 {s(sT0)}, {s(sT0)}, {s(sW)}")
        a(f"s_lshl_b32 {s(sT0)}, {s(sT0)}, 6")
        a(f"s_lshl_b32 {s(sT1)}, {s(sR)}, 2")
        a(f"s_add_u32 {s(sT0)}, {s(sT0)}, {s(sT1)}")
        a(f"s_lshl_b32 {s(sT0)}, {s(sT0)}, 11")
        a(f"s_add_u32 {s(sT0)}, {s(sT0)}, {O_OFF}")
        a(f"v_lshlrev_b32 {v(T)}, 7, v1")
        a(f"buffer_load_dword {v(86)}, {v(T)}, {s(SWS,4)}, {s(sT0)} offen sc1")
        if self.hplain:
            a(f"s_sub_u32 {s(sT0)}, {s(sC)}, 14")
            a(f"s_lshl_b32 {s(sT0)}, {s(sT0)}, 3")
            a(f"s_add_u32 {s(sT0)}, {s(sT0)}, {s(sW)}")
            a(f"s_lshl_b32 {s(sT1)}, {s(sR)}, 4")
            a(f"s_add_u32 {s(sT0)}, {s(sT0)}, {s(sT1)}")
            a(f"s_mul_i32 {s(sT1)}, {s(sT0)}, {56*128}")
            a(f"s_add_u32 {s(sT1)}, {s(sT1)}, {H_OFF}")
            self.set_exec((1 << 56) - 1)
            a(f"buffer_load_dword {v(86)}, {v(T)}, {s(SWS,4)}, {s(sT1)} offen sc1")
            a(f"s_mul_i32 {s(sT1)}, {s(sT0)}, {14*128}")
            a(f"s_add_u32 {s(sT1)}, {s(sT1)}, {HS_OFF}")
            self.set_exec((1 << 14) - 1)
            a(f"buffer_load_dword {v(86)}, {v(T)}, {s(SWS,4)}, {s(sT1)} offen sc1")
            a("s_mov_b64 exec, -1")
        if self.stop_after >= 2:
            self.p2_pre(); self.p2_copy()
        self.publish(0, True)
        if self.tp & 12:
            l = a.newlabel("M3")
            a(f"s_cmp_eq_u32 {s(sROLE)}, 0")
            a(f"s_cbranch_scc1 {l}")
            self.touch(SW1, (sT, 1, 3))
            a.label(l)
        self.idle_touch_setup()
        if self.tp & 2:
            lI = "L_P2POLL"
            rounds = [(SWO, h) for h in range(3)] + [(SW1, h) for h in range(self.n1)]
            a(f"v_mov_b32 {v(58)}, {L_FLAG}")
            for srd, h in rounds:
                l1_, l2_ = a.newlabel("IR"), a.newlabel("IR")
                a(f"s_cmp_eq_u32 {s(sROLE)}, 0")
                a(f"s_cbranch_scc1 {l1_}")
                a(f"s_mov_b32 {s(sT0)}, {h*131072}")
                a(f"buffer_load_dword {v(86)}, {v(56)}, {s(srd,4)}, {s(sT0)} offen")
                a("s_waitcnt vmcnt(0)")
                a.label(l1_)
                a(f"s_cmp_lg_u32 {s(sW)}, 0")
                a(f"s_cbranch_scc1 {l2_}")
                a(f"buffer_load_dwordx2 {v(62,2)}, {v(61)}, {s(SWS,4)}, 0 offen{self.kvsc}")
                a("s_waitcnt vmcnt(0)")
                self.flag_check(62, 64)
                a(f"s_bcnt1_i32_b64 {s(sT0)}, vcc")
                a(f"v_mov_b32 {v(59)}, {s(sT0)}")
                a(f"ds_write_b32 {v(58)}, {v(59)}")
                a.label(l2_)
                a("s_waitcnt lgkmcnt(0)")
                a("s_barrier")
                a(f"ds_read_b32 {v(59)}, {v(58)}")
                a("s_waitcnt lgkmcnt(0)")
                a(f"v_readfirstlane_b32 {s(sT0)}, {v(59)}")
                a("s_barrier")
                a(f"s_cmp_lt_u32 {s(sT0)}, 50")
                a(f"s_cbranch_scc1 {lI}")
        a("s_nop 7")
        a("s_branch L_P2POLL")
        self.a = main
        self.side = side

    def wo_addr(self):
        a = self.a
        if True:
            a(f"s_and_b32 {s(sT1)}, {s(sW)}, 1")
            a(f"s_lshl_b32 {s(sT0)}, {s(sROLE)}, 1")
            a(f"s_add_u32 {s(sT0)}, {s(sT0)}, {s(sT1)}")
            a(f"s_mul_i32 {s(sT0)}, {s(sT0)}, {112*128}")
            a(f"s_add_u32 {s(sT0)}, {s(sT0)}, {L_WO}")
            a(f"s_mov_b32 {s(sU0)}, 0")
            self.tr128_addr(58, False, sT0)
            a(f"v_xor_b32 {v(57)}, 64, {v(58)}")
            a(f"s_lshl_b32 {s(sU0)}, {s(sT1)}, 6")
            a(f"s_and_b32 {s(sT1)}, {s(sW)}, 2")
            a(f"s_lshl_b32 {s(sT1)}, {s(sT1)}, 4")
            a(f"v_and_b32 {v(T)}, 31, v1")
            a(f"v_add_u32 {v(T)}, {s(sT1)}, {v(T)}")
            a(f"s_lshl_b32 {s(sT0)}, {s(sROLE)}, 5")
            a(f"s_add_u32 {s(sT0)}, {s(sT0)}, {s(sU0)}")
            a(f"v_lshrrev_b32 {v(T2)}, 5, v1")
            a(f"v_lshl_add_u32 {v(T2)}, {v(T2)}, 3, {s(sT0)}")
            a(f"v_bfe_u32 {v(59)}, v1, 1, 1")
            a(f"v_lshlrev_b32 {v(59)}, 6, {v(59)}")
            a(f"v_xor_b32 {v(59)}, {v(59)}, {v(T2)}")
            a(f"v_lshl_add_u32 {v(59)}, {v(T)}, 7, {v(59)}")
            a(f"v_add_u32 {v(59)}, {L_XR}, {v(59)}")
            a(f"s_lshl_b32 {s(sT0)}, {s(sR)}, 7")
            a(f"s_lshl_b32 {s(sT1)}, {s(sTH)}, 6")
            a(f"s_add_u32 {s(sT0)}, {s(sT0)}, {s(sT1)}")
            a(f"v_add_u32 {v(T)}, {s(sT0)}, {v(T)}")
            a(f"v_mul_u32_u24 {v(T)}, 896, {v(T)}")
            a(f"s_lshl_b32 {s(sT0)}, {s(sCT)}, 7")
            a(f"v_add3_u32 {v(85)}, {v(T)}, {v(T2)}, {s(sT0)}")

    def wo_read(self):
        a = self.a
        if True:
            for k in range(16):
                ks, n_ = divmod(k, 2)
                d = R_C + 4 * k if k < 14 else 232 + 4 * (k - 14)
                off = (28 * (ks // 2) + 16 * (ks % 2) - 4 * ((ks // 2) & 1)) * 128
                a(f"ds_read_b64_tr_b16 {v(d,2)}, {v(58-n_)} offset:{off}")
                a(f"ds_read_b64_tr_b16 {v(d+2,2)}, {v(58-n_)} offset:{off+512}")
            a(f"ds_read_b64 {v(vHRES,2)}, {v(59)}")
            a(f"ds_read_b64 {v(vHRES+2,2)}, {v(59)} offset:16")

    def p2_pre(self):
        a = self.a
        QF = 72; SR = R_A; OA = 16; KB = 32; vM = 12
        AO = R_A + 80; BN = R_A + 84
        a(f"s_mul_i32 {s(sT0)}, {s(sC)}, 7")
        a(f"s_lshr_b32 {s(sT0)}, {s(sT0)}, 1")
        a(f"v_lshrrev_b32 {v(T)}, 5, v1")
        a(f"v_and_b32 {v(69)}, 31, v1")
        for p_ in range(2):
            a(f"v_add3_u32 {v(T2)}, {v(T)}, {s(sT0)}, {2*p_}")
            a(f"v_lshrrev_b32 {v(65+p_)}, 2, {v(T2)}")
            a(f"v_lshlrev_b32 {v(65+p_)}, 17, {v(65+p_)}")
            a(f"v_and_b32 {v(T2)}, 3, {v(T2)}")
            a(f"v_lshl_add_u32 {v(65+p_)}, {v(T2)}, 9, {v(65+p_)}")
        a(f"s_and_b32 {s(82)}, {s(sW)}, 1")
        a(f"s_cmp_eq_u32 {s(82)}, 1")
        a(f"s_cselect_b64 {s(sSAVE,2)}, -1, 0")
        a(f"v_cndmask_b32 {v(68)}, {v(65)}, {v(66)}, {s(sSAVE,2)}")
        a(f"v_lshl_add_u32 {v(67)}, {v(69)}, 4, {v(68)}")
        a(f"s_lshl_b32 {s(sT1)}, {s(82)}, 1")
        a(f"v_add_u32 {v(T2)}, {s(sT1)}, {v(T)}")
        a(f"v_lshlrev_b32 {v(T2)}, 2, {v(T2)}")
        a(f"v_sub_u32 {v(T2)}, {v(69)}, {v(T2)}")
        a(f"v_and_b32 {v(T2)}, 31, {v(T2)}")
        a(f"v_lshl_add_u32 {v(68)}, {v(T2)}, 4, {v(68)}")
        a(f"v_lshl_add_u32 {v(65)}, {v(69)}, 4, {v(65)}")
        a(f"v_lshl_add_u32 {v(66)}, {v(69)}, 4, {v(66)}")
        a(f"s_lshl_b32 {s(sT1)}, {s(sR)}, 2")
        a(f"s_add_u32 {s(sT2)}, {s(sT1)}, {s(sT)}")
        a(f"s_lshl_b32 {s(72)}, {s(sT2)}, 11")
        a(f"s_lshl_b32 {s(sT3)}, {s(sC)}, 17")
        a(f"s_add_u32 {s(73)}, {s(72)}, {s(sT3)}")
        a(f"s_add_u32 {s(73)}, {s(73)}, {O_OFF}")
        a(f"s_lshr_b32 {s(sT3)}, {s(sW)}, 1")
        a(f"s_mul_i32 {s(sT3)}, {s(sT3)}, 3")
        a(f"s_add_u32 {s(sT1)}, {s(sT1)}, {s(sT3)}")
        a(f"s_add_u32 {s(sT1)}, {s(sT1)}, {14*64-8}")
        a(f"s_lshl_b32 {s(74)}, {s(sT1)}, 11")
        a(f"s_lshl_b32 {s(sT3)}, {s(sT3)}, 11")
        a(f"s_lshl_b32 {s(75)}, {s(82)}, 10")
        a(f"s_add_u32 {s(75)}, {s(75)}, {s(sT3)}")
        vK = 2; vV = 3
        sB = sT4
        a(f"s_lshl_b32 {s(sT0)}, {s(sROLE)}, 2")
        a(f"s_sub_u32 {s(76)}, {s(sT)}, {s(sT0)}")
        a(f"s_add_u32 {s(76)}, {s(76)}, 4")
        a(f"s_lshl_b32 {s(sT0)}, {s(76)}, 11")
        a(f"s_add_u32 {s(sT0)}, {s(sT0)}, {L_K}")
        a(f"v_lshl_add_u32 {v(vK)}, v1, 4, {s(sT0)}")
        a(f"v_bfe_u32 {v(T)}, v1, 4, 1")
        a(f"v_and_b32 {v(vV)}, 3, v1")
        a(f"v_lshl_add_u32 {v(T)}, {v(T)}, 2, {v(vV)}")
        a(f"v_lshrrev_b32 {v(T2)}, 1, {v(T)}")
        a(f"v_lshrrev_b32 {v(vV)}, 5, v1")
        a(f"v_add_u32 {v(vV)}, {v(vV)}, {v(T2)}")
        a(f"v_bfe_u32 {v(vV+1)}, v1, 2, 2")
        a(f"v_lshl_add_u32 {v(8)}, {v(vV)}, 2, {v(vV+1)}")
        a(f"v_lshl_add_u32 {v(T2)}, {v(T2)}, 9, {s(sT0)}")
        a(f"v_and_b32 {v(vV)}, 1, v1")
        a(f"v_lshl_add_u32 {v(T2)}, {v(vV)}, 3, {v(T2)}")
        a(f"v_add_u32 {v(T2)}, {L_V-L_K}, {v(T2)}")
        a(f"s_and_b32 {s(sT1)}, {s(sC)}, 1")
        a(f"s_mul_i32 {s(sT1)}, {s(sT1)}, 7")
        a(f"s_sub_u32 {s(sT1)}, 7, {s(sT1)}")
        a(f"v_cmp_eq_u32 {s(sSAVE,2)}, {s(sT1)}, {v(T)}")
        a(f"v_mov_b32 {v(T)}, {L_ONES}")
        for k in range(4):
            a(f"v_add_u32 {v(vV+k)}, {8*k}, {v(8)}")
            a(f"v_and_b32 {v(vV+k)}, 31, {v(vV+k)}")
            a(f"v_lshl_add_u32 {v(vV+k)}, {v(vV+k)}, 4, {v(T2)}")
            a(f"v_cndmask_b32 {v(vV+k)}, {v(vV+k)}, {v(T)}, {s(sSAVE,2)}")
        sFV = sT5
        a(f"s_lshl_b32 {s(sT0)}, {s(sR)}, 2")
        a(f"s_sub_i32 {s(77)}, 8, {s(sT0)}")
        a(f"s_sub_i32 {s(77)}, {s(77)}, {s(76)}")
        a(f"s_mov_b32 {s(sT0)}, 0")
        a(f"s_lshl_b32 {s(sT2)}, {s(sC)}, 8")
        self.rows128_src(9, 3584, sT0, sT2)
        sWs8, sWl8, sWs4, sWl4 = sKC, sKC + 1, sKC + 2, sKC + 3
        a(f"s_mul_i32 {s(78)}, {s(sW)}, {8*3584}")
        a(f"s_lshl_b32 {s(79)}, {s(sW)}, 10")
        a(f"s_mul_i32 {s(80)}, {s(sT)}, {8*3584}")
        a(f"s_lshl_b32 {s(81)}, {s(sT)}, 10")
        vMA, vMX, vOS = 7, 8, 10
        a(f"s_mul_i32 {s(sT0)}, {s(sT)}, 4608")
        a(f"s_add_u32 {s(sT0)}, {s(sT0)}, {L_MRG}")
        a(f"v_lshl_add_u32 {v(vMA)}, v1, 4, {s(sT0)}")
        a(f"s_lshl_b32 {s(sT1)}, {s(sROLE)}, 8")
        a(f"s_add_u32 {s(sT0)}, {s(sT0)}, {s(sT1)}")
        a(f"s_add_u32 {s(sT0)}, {s(sT0)}, 4096")
        a(f"v_lshl_add_u32 {v(vMX)}, v1, 2, {s(sT0)}")
        a(f"v_xor_b32 {v(11)}, 256, {v(vMX)}")
        assert (L_MRG + 4096) % 512 == 0 and 4608 % 512 == 0
        a(f"v_lshl_add_u32 {v(vOS)}, v1, 4, {s(73)}")
        a(f"v_lshrrev_b32 {v(T)}, 4, v1")
        a(f"v_sub_u32 {v(T)}, {s(sR)}, {v(T)}")
        a(f"v_max_i32 {v(T)}, 0, {v(T)}")
        a(f"v_and_b32 {v(T2)}, 15, v1")
        a(f"v_cmp_le_u32 vcc, 7, {v(T2)}")
        a(f"v_cndmask_b32 {v(62)}, 0, 1, vcc")
        a(f"v_and_b32 {v(60)}, 12, {v(T)}")
        a(f"v_lshl_add_u32 {v(60)}, {v(62)}, 1, {v(60)}")
        a(f"v_bfe_u32 {v(61)}, {v(T)}, 1, 1")
        a(f"v_add_u32 {v(60)}, {v(60)}, {v(61)}")
        a(f"v_and_b32 {v(61)}, 1, {v(T)}")
        a(f"v_sub_u32 {v(61)}, {v(61)}, {v(62)}")
        a(f"v_mad_i32_i24 {v(61)}, {v(61)}, 7, {v(T2)}")
        a(f"v_cmp_le_u32 vcc, 14, {v(T2)}")
        a(f"v_cndmask_b32 {v(60)}, {v(60)}, {v(T)}, vcc")
        a(f"v_cndmask_b32 {v(61)}, {v(61)}, {v(T2)}, vcc")
        a(f"v_mov_b32 {v(62)}, {s(sR)}")
        a(f"v_cmp_le_u32 vcc, 48, v1")
        a(f"v_cndmask_b32 {v(60)}, {v(60)}, {v(62)}, vcc")
        a(f"v_cndmask_b32 {v(61)}, {v(61)}, {v(T2)}, vcc")
        a(f"v_lshl_add_u32 {v(60)}, {v(60)}, 4, {v(61)}")
        a(f"v_lshlrev_b32 {v(T)}, 7, {v(60)}")
        a(f"v_add_u32 {v(61)}, {FL0_OFF}, {v(T)}")

    def p2_copy(self):
        a = self.a
        for d, src in ((sKC+6, 72), (sU1, 73), (sKC+4, 74), (sKC+5, 75), (sT4, 76), (sT5, 77), (sKC, 78), (sKC+1, 79)):
            a(f"s_mov_b32 {s(d)}, {s(src)}")
        a(f"v_mov_b32 {v(T)}, {L_ONES}")
        a(f"v_lshl_add_u32 {v(T)}, v1, 11, {v(T)}")
        a(f"v_mov_b32 {v(70)}, 0x3f80")
        a(f"v_mov_b32 {v(71)}, 0")
        a("s_mov_b64 exec, 31")
        a(f"ds_write_b64 {v(T)}, {v(70,2)}")
        a("s_mov_b64 exec, -1")

    def p2_late(self):
        a = self.a
        OA = 16; AO = R_A + 80; BN = R_A + 84
        a(f"v_mov_b32 {v(T)}, {s(sONES)}")
        a(f"v_cndmask_b32 {v(AO)}, {v(T)}, 0, {s(sHI,2)}")
        for k in range(1, 4): a(f"v_mov_b32 {v(AO+k)}, 0")
        for k in range(1, 4): a(f"v_mov_b32 {v(BN+k)}, 0")
        for k in range(16): a(f"v_mov_b32 {v(OA+k)}, 0")
        self.masks()

    def p2(self):
        a = self.a
        QF = 72
        SR = R_A
        OA = 16
        KB = 32
        vM = 12
        AO = R_A + 80
        BN = R_A + 84
        full = self.stop_after >= 3
        vK = 2; vV = 3; sB = sT4; sFV = sT5
        sWs8, sWl8, sWs4, sWl4 = sKC, sKC + 1, sKC + 2, sKC + 3
        vMA, vMX, vOS = 7, 8, 10
        lw = a.newlabel("P2W"); lw0 = a.newlabel("P2W")
        def w1dma(items, four):
            if not full: return
            l = self.busy_begin()
            for dp, q0 in items:
                a(f"s_add_u32 {s(sT0)}, {s(sWs4 if four else sWs8)}, {q0*8*3584 + 128*dp}")
                self.dma(9, SW1, sT0, (sWl4 if four else sWl8, L_W1B * dp + 1024 * q0))
            a.label(l)
        self.idle_path()
        a.label("L_P2POLL")
        self.ts("pre poll")
        a(f"s_cmp_lg_u32 {s(sW)}, 0")
        a(f"s_cbranch_scc1 {lw}")
        self.poll(61, 62, 64, (1 << 64) - 1, "KV", sleep=self.kvsleep, sc=self.kvsc)
        self.ts("poll done")
        self.set_exec(0xffff << 48)
        a(f"v_lshrrev_b32 {v(63)}, 28, {v(63)}")
        a(f"v_cmp_ne_u32 vcc, {s(sXCC)}, {v(63)}")
        a(f"s_mov_b64 exec, -1")
        a(f"s_cmp_eq_u64 vcc, 0")
        a(f"s_cselect_b32 {s(sT0)}, 1, 0")
        a(f"v_mov_b32 {v(T2)}, {s(sT0)}")
        a(f"v_mov_b32 {v(T)}, {L_FLAG}")
        a(f"ds_write_b32 {v(T)}, {v(T2)}")
        a.label(lw)
        a("s_waitcnt lgkmcnt(0)")
        self.ts("own wait done")
        a("s_barrier")
        self.ts("QKV flags seen")
        for k in range(3):
            a(f"s_add_u32 {s(sT3)}, {s(sKC+4)}, {2048*k}")
            self.dma(67, SWS, sT3, (sKC+5, L_K + 2048 * k), sc1=True)
        for p_ in range(2):
            a(f"buffer_load_dwordx4 {v(QF+4*p_,4)}, {v(65+p_)}, {s(SWS,4)}, {s(sKC+6)} offen sc1")
        a(f"v_mov_b32 {v(T)}, {L_FLAG}")
        a(f"ds_read_b32 {v(13)}, {v(T)}")
        self.p2_late()
        a("s_waitcnt lgkmcnt(0)")
        a(f"v_readfirstlane_b32 {s(sLOCAL)}, {v(13)}")
        a("s_waitcnt vmcnt(0)")
        a("s_barrier")
        self.ts("K landed")
        for k in range(3):
            a(f"s_add_u32 {s(sT3)}, {s(sKC+4)}, {2048*k+14*64*2048}")
            self.dma(68, SWS, sT3, (sKC+5, L_V + 2048 * k), sc1=True)
        NEG = f32bits(-1.0e30)
        def valid_branch(j, lab):
            if j == 4:
                a(f"s_cmp_eq_u32 {s(sROLE)}, 1")
                a(f"s_cbranch_scc1 {lab}")
            else:
                a(f"s_cmp_gt_i32 {s(sFV)}, {j}")
                a(f"s_cbranch_scc1 {lab}")
        for j in range(5):
            for k in range(2):
                a(f"ds_read_b128 {v(KB+8*j+4*k,4)}, {v(vK)} offset:{2048*j+1024*k}")
        def zero_foreign(base):
            lz1, lz2 = a.newlabel("ZF"), a.newlabel("ZF")
            a(f"s_bitcmp1_b32 {s(sC)}, 0")
            a(f"s_cbranch_scc1 {lz1}")
            a(f"v_cndmask_b32 {v(base+6)}, {v(base+6)}, 0, {s(sHI,2)}")
            a(f"v_cndmask_b32 {v(base+7)}, {v(base+7)}, 0, {s(sHI,2)}")
            a(f"s_branch {lz2}")
            a.label(lz1)
            a(f"v_cndmask_b32 {v(base)}, 0, {v(base)}, {s(sHI,2)}")
            a(f"v_cndmask_b32 {v(base+1)}, 0, {v(base+1)}, {s(sHI,2)}")
            a.label(lz2)
        zero_foreign(QF)
        a(f"v_mov_b32 {v(vM)}, {NEG:#x}")
        a(f"v_mov_b32 {v(13)}, {NEG:#x}")
        for j in range(5):
            lsk = a.newlabel("QS")
            a(f"s_waitcnt lgkmcnt({8-2*j})")
            valid_branch(j, lsk)
            a(f"{MF} {v(SR+16*j,16)}, {v(KB+8*j,4)}, {v(QF,4)}, 0")
            a(f"{MF} {v(SR+16*j,16)}, {v(KB+8*j+4,4)}, {v(QF+4,4)}, {v(SR+16*j,16)}")
            a.label(lsk)
        sched = self.w1sched
        rounds = [(0, 8 * k) for k in range(7)] + [(1, 8 * k) for k in range(7)]
        def w1next(n):
            it = [rounds.pop(0) for _ in range(min(n, len(rounds)))]
            if it: w1dma(it, False)
            return len(it)
        npre_max = 0
        a(f"v_mov_b32 {v(T)}, {NEG:#x}")
        for j in range(5):
            lsk = a.newlabel("MX")
            valid_branch(j, lsk)
            b = SR + 16 * j
            if j == 4:
                for k in range(16): a(f"v_cndmask_b32 {v(b+k)}, {v(T)}, {v(b+k)}, {s(sMASK+2*k,2)}")
            if j == 0:
                lm = a.newlabel("MK")
                a(f"s_cmp_eq_u32 {s(sROLE)}, 0")
                a(f"s_cbranch_scc1 {lm}")
                for k in range(16): a(f"v_cndmask_b32 {v(b+k)}, {v(b+k)}, {v(T)}, {s(sMASK+2*k,2)}")
                a.label(lm)
            for k in range(8):
                d = vM if k % 2 == 0 else 13
                a(f"v_max3_f32 {v(d)}, {v(d)}, {v(b+2*k)}, {v(b+2*k+1)}")
            a.label(lsk)
            npre_max += w1next(sched[0][j])
        a(f"v_max_f32 {v(vM)}, {v(vM)}, {v(13)}")
        a(f"v_mov_b32 {v(T)}, {v(vM)}")
        a(f"v_permlane32_swap_b32 {v(T)}, {v(vM)}")
        a(f"v_max_f32 {v(vM)}, {v(vM)}, {v(T)}")
        a(f"ds_write_b32 {v(vMX)}, {v(vM)}")
        assert npre_max <= 11
        lv1, lv2 = a.newlabel("VW"), a.newlabel("VW")
        a(f"s_cmp_eq_u32 {s(sBUSY)}, 1")
        a(f"s_cbranch_scc1 {lv1}")
        a("s_waitcnt vmcnt(0)")
        a.label(lv1)
        a(f"s_waitcnt vmcnt({npre_max if full else 0}) lgkmcnt(0)")
        a("s_barrier")
        a(f"ds_read_b32 {v(T)}, {v(11)}")
        for j in range(5):
            for st in range(2):
                for rr in range(2):
                    a(f"ds_read_b64_tr_b16 {v(KB+8*j+4*st+2*rr,2)}, {v(vV+2*st+rr)} offset:{2048*j}")
        a("s_waitcnt lgkmcnt(15)")
        a(f"v_max_f32 {v(vM)}, {v(vM)}, {v(T)}")
        a(f"v_cvt_pk_bf16_f32 {v(T)}, -{v(vM)}, 0")
        a(f"v_lshlrev_b32 {v(T)}, 16, {v(T)}")
        a(f"v_sub_f32 {v(T)}, -{v(vM)}, {v(T)}")
        a(f"v_cvt_pk_bf16_f32 {v(BN)}, -{v(vM)}, {v(T)}")
        self.ts("max done")
        for j in range(5):
            lsk = a.newlabel("SB")
            valid_branch(j, lsk)
            a(f"{MF} {v(SR+16*j,16)}, {v(AO,4)}, {v(BN,4)}, {v(SR+16*j,16)}")
            a.label(lsk)
        w1next(sched[1])
        a("s_waitcnt lgkmcnt(0)")
        for j in range(5):
            lsk = a.newlabel("PS")
            valid_branch(j, lsk)
            b = SR + 16 * j
            for h_ in range(2):
                for k in range(8): a(f"v_exp_f32 {v(b+8*h_+k)}, {v(b+8*h_+k)}")
                for k in range(4): a(f"v_cvt_pk_bf16_f32 {v(b+8*h_+k)}, {v(b+8*h_+2*k)}, {v(b+8*h_+2*k+1)}")
            a(f"{MF} {v(OA,16)}, {v(KB+8*j,4)}, {v(b,4)}, {v(OA,16)}")
            a(f"{MF} {v(OA,16)}, {v(KB+8*j+4,4)}, {v(b+8,4)}, {v(OA,16)}")
            a.label(lsk)
            w1next(sched[2][j])
        assert not rounds
        self.ts("attn partial done")
        l1 = a.newlabel("MG")
        a(f"s_cmp_eq_u32 {s(sROLE)}, 1")
        a(f"s_cbranch_scc0 {l1}")
        for k in range(4): a(f"ds_write_b128 {v(vMA)}, {v(OA+4*k,4)} offset:{1024*k}")
        a.label(l1)
        a(f"s_lshl_b32 {s(sT1)}, {s(sR)}, 9")
        a(f"s_lshl_b32 {s(sT2)}, {s(sT)}, 7")
        a(f"s_add_u32 {s(sT1)}, {s(sT1)}, {s(sT2)}")
        a(f"s_lshl_b32 {s(sT2)}, {s(sC)}, 3")
        a(f"s_add_u32 {s(sT1)}, {s(sT1)}, {s(sT2)}")
        a(f"s_add_u32 {s(sT1)}, {s(sT1)}, {FLG(1)}")
        a(f"s_lshl_b32 {s(sT2)}, {s(sXCC)}, 28")
        a(f"s_or_b32 {s(sT2)}, {s(sT2)}, {s(sTOK+1)}")
        a(f"v_mov_b32 {v(13)}, {s(sT1)}")
        a(f"v_mov_b32 {v(60)}, {s(sTOK)}")
        a(f"v_mov_b32 {v(61)}, {s(sT2)}")
        a("s_waitcnt vmcnt(0) lgkmcnt(0)")
        a("s_barrier")
        self.ts("merge barrier")
        l2, l3 = a.newlabel("MG"), a.newlabel("MG")
        a(f"s_cmp_eq_u32 {s(sROLE)}, 0")
        a(f"s_cbranch_scc0 {l2}")
        O1 = 32
        for k in (3, 0, 1, 2): a(f"ds_read_b128 {v(O1+4*k,4)}, {v(vMA)} offset:{1024*k}")
        a(f"s_bitcmp1_b32 {s(sC)}, 0")
        a(f"s_cselect_b64 {s(sSAVE,2)}, -1, 0")
        a("s_waitcnt lgkmcnt(2)")
        for k in (6, 7, 0, 1): a(f"v_pk_add_f32 {v(OA+2*k,2)}, {v(OA+2*k,2)}, {v(O1+2*k,2)}")
        a(f"v_cndmask_b32 {v(T)}, {v(OA)}, {v(OA+12)}, {s(sHI,2)}")
        a(f"v_mov_b32 {v(T2)}, {v(T)}")
        a(f"v_permlane32_swap_b32 {v(T)}, {v(T2)}")
        a(f"v_cndmask_b32 {v(T2)}, {v(T2)}, {v(T)}, {s(sSAVE,2)}")
        a(f"v_rcp_f32 {v(T2)}, {v(T2)}")
        a("s_waitcnt lgkmcnt(0)")
        for k in (2, 3, 4, 5): a(f"v_pk_add_f32 {v(OA+2*k,2)}, {v(OA+2*k,2)}, {v(O1+2*k,2)}")
        a(f"v_mov_b32 {v(T)}, {v(T2)}")
        for aa in range(4):
            for k in range(2): a(f"v_pk_mul_f32 {v(OA+4*aa+2*k,2)}, {v(OA+4*aa+2*k,2)}, {v(T,2)}")
            for k in range(2): a(f"v_cvt_pk_bf16_f32 {v(O1+2*aa+k)}, {v(OA+4*aa+2*k)}, {v(OA+4*aa+2*k+1)}")
        zero_foreign(O1)
        for h_ in range(2):
            a(f"v_permlane32_swap_b32 {v(O1+4*h_)}, {v(O1+4*h_+2)}")
            a(f"v_permlane32_swap_b32 {v(O1+4*h_+1)}, {v(O1+4*h_+3)}")
        def ost(sc):
            for h_ in range(2):
                a(f"buffer_store_dwordx4 {v(O1+4*h_,4)}, {v(vOS)}, {s(SWS,4)}, 0 offen offset:{1024*h_}{sc}")
        if self.oplain: self.two_path(ost)
        else: ost(" sc1")
        if full: self.p3_addrA()
        a(f"s_mov_b64 exec, 1")
        a("s_waitcnt vmcnt(0)")
        self.two_path(lambda sc: a(f"buffer_store_dwordx2 {v(60,2)}, {v(13)}, {s(SWS,4)}, 0 offen{sc}"))
        a(f"s_mov_b64 exec, -1")
        self.ts("O flag stored")
        a(f"s_branch {l3}")
        a.label(l2)
        if full:
            self.p3_addrA()
            self.p3_moves()
        self.w1dma = w1dma
        a.label(l3)
        self.ts("O published")

    def w1_move(self, dp, ldsbase):
        a = self.a
        l = a.newlabel("W1M")
        a(f"s_lshr_b32 {s(sT0)}, {s(sT)}, 1")
        a(f"s_cmp_lg_u32 {s(sT0)}, {dp}")
        a(f"s_cbranch_scc1 {l}")
        a(f"s_and_b32 {s(sU0)}, {s(sW)}, 1")
        a(f"s_lshl_b32 {s(sU0)}, {s(sU0)}, 6")
        a(f"s_mov_b32 {s(sT0)}, {ldsbase}")
        self.tr128_addr(3, True, sT0)
        self.move_frags(R_A, 3, 28, True)
        a.label(l)

    def p3_addrA(self):
        a = self.a
        z = lambda k: 64 + k
        sN, sUu, sTile2 = z(0), z(1), z(2)
        a(f"s_and_b32 {s(sN)}, {s(sW)}, 1")
        a(f"s_bfe_u32 {s(sUu)}, {s(sW)}, 0x10001")
        a(f"s_lshl_b32 {s(sTile2)}, {s(sR)}, 2")
        a(f"s_lshl_b32 {s(sT1)}, {s(sTH)}, 1")
        a(f"s_add_u32 {s(sTile2)}, {s(sTile2)}, {s(sT1)}")
        a(f"s_lshl_b32 {s(sT0)}, {s(sROLE)}, 1")
        a(f"s_add_u32 {s(z(3))}, {s(sT0)}, {s(sN)}")
        a(f"s_lshl_b32 {s(sT0)}, {s(z(3))}, 8")
        a(f"s_add_u32 {s(sT2)}, {s(sTile2)}, {s(sUu)}")
        a(f"s_add_u32 {s(sT0)}, {s(sT0)}, {s(sT2)}")
        a(f"s_lshl_b32 {s(z(5))}, {s(sT0)}, 11")
        a(f"s_add_u32 {s(z(5))}, {s(z(5))}, {O_OFF}")
        a(f"s_lshl_b32 {s(sT0)}, {s(sT2)}, 7")
        a(f"s_lshl_b32 {s(sT1)}, {s(z(3))}, 5")
        a(f"s_add_u32 {s(sT0)}, {s(sT0)}, {s(sT1)}")
        a(f"s_add_u32 {s(z(4))}, {s(sT0)}, {FLG(1)}")

    def p3_moves(self):
        a = self.a
        lb = self.busy_begin()
        for k in range(8): a(f"v_mov_b32 {v(4+k)}, {v(232+k)}")
        a(f"s_and_b32 {s(sU0)}, {s(sW)}, 1")
        a(f"s_lshl_b32 {s(sU0)}, {s(sU0)}, 6")
        a(f"s_lshr_b32 {s(sT0)}, {s(sT)}, 1")
        a(f"s_mul_i32 {s(sT0)}, {s(sT0)}, {L_W1B}")
        self.tr128_addr(3, True, sT0)
        self.move_frags(R_A, 3, 28, True)
        a.label(lb)

    def p3_rest(self):
        a = self.a
        z = lambda k: 64 + k
        sN, sUu, sTile2 = z(0), z(1), z(2)
        a(f"s_lshl_b32 {s(sT1)}, {s(sUu)}, 15")
        a(f"s_add_u32 {s(sT1)}, {s(sT1)}, {L_RED3D}")
        a(f"s_lshl_b32 {s(sT0)}, {s(z(3))}, 11")
        a(f"s_add_u32 {s(z(15))}, {s(sT0)}, {s(sT1)}")
        a(f"s_lshl_b32 {s(sT0)}, {s(z(3))}, 13")
        a(f"s_add_u32 {s(z(16))}, {s(sT0)}, {s(sT1)}")
        a(f"s_add_u32 {s(sT0)}, {s(sTile2)}, {s(sUu)}")
        a(f"s_mul_i32 {s(sT0)}, {s(sT0)}, 28")
        a(f"s_lshl_b32 {s(sT1)}, {s(sCT)}, 2")
        a(f"s_add_u32 {s(sT0)}, {s(sT0)}, {s(sT1)}")
        a(f"s_lshl_b32 {s(sT1)}, {s(sN)}, 1")
        a(f"s_add_u32 {s(sT0)}, {s(sT0)}, {s(sT1)}")
        a(f"s_add_u32 {s(sT0)}, {s(sT0)}, {s(sROLE)}")
        a(f"s_lshl_b32 {s(sT1)}, {s(sT0)}, 10")
        a(f"s_add_u32 {s(z(17))}, {s(sT1)}, {H_OFF}")
        a(f"s_lshl_b32 {s(sT1)}, {s(sT0)}, 8")
        a(f"s_add_u32 {s(z(18))}, {s(sT1)}, {HS_OFF}")
        sKQ = z(7); self.sKQ = sKQ
        a(f"s_and_b32 {s(sKQ)}, {s(sW)}, 2")
        a(f"s_add_u32 {s(sKQ)}, {s(sKQ)}, {s(sROLE)}")
        a(f"s_mul_i32 {s(sT0)}, {s(sKQ)}, 448")
        a(f"s_lshl_b32 {s(sT2)}, {s(sN)}, 4")
        a(f"s_add_u32 {s(sT0)}, {s(sT0)}, {s(sT2)}")
        a(f"s_lshl_b32 {s(sT2)}, {s(sCT)}, 7")
        self.rows128_src(84, 896, sT0, sT2)
        sW2m = z(8); self.sW2m = sW2m
        a(f"s_lshl_b32 {s(sT0)}, {s(sKQ)}, 12")
        a(f"s_lshl_b32 {s(sT1)}, {s(sN)}, 11")
        a(f"s_add_u32 {s(sW2m)}, {s(sT0)}, {s(sT1)}")

    def cs1(self, role):
        a = self.a
        a(f"v_mov_b32 {v(86)}, 0")
        a("s_waitcnt lgkmcnt(0)")
        for k in range(56): a(f"v_dot2c_f32_bf16 {v(86)}, {s(sONES)}, {v(R_A+56*role+k)}")

    def p3(self):
        a = self.a
        ACC = 16; FB = 32; XR = 64
        lb_ = a.newlabel("BZ")
        a(f"s_cmp_eq_u32 {s(sBUSY)}, 1")
        a(f"s_cbranch_scc1 {lb_}")
        if self.tp & 2:
            a(f"s_and_b32 {s(sT0)}, {s(sR)}, 1")
            a(f"s_lshl_b32 {s(sT0)}, {s(sT0)}, 1")
            a(f"s_add_u32 {s(sT0)}, {s(sT0)}, {s(sC)}")
            a(f"s_sub_u32 {s(sT0)}, {s(sT0)}, 14")
            a(f"s_mul_i32 {s(sT0)}, {s(sT0)}, {448*896}")
            a(f"s_mul_i32 {s(sT1)}, {s(sW)}, {56*128}")
            a(f"s_add_u32 {s(sT0)}, {s(sT0)}, {s(sT1)}")
            a(f"v_lshl_add_u32 {v(21)}, v1, 7, {s(sT0)}")
            a("s_waitcnt vmcnt(0)")
            a("s_barrier")
            self.set_exec((1 << 56) - 1)
            for k in self.post:
                a(f"s_mov_b32 {s(sT0)}, {k*64*896}")
                a(f"buffer_load_dword {v(86)}, {v(21)}, {s(SW2,4)}, {s(sT0)} offen")
            a("s_mov_b64 exec, -1")
        a(f"s_branch L_FIN")
        a.label(lb_)
        z = lambda k: 64 + k
        sN, sUu, sTile2 = z(0), z(1), z(2)
        ACC = 16; FB = 48
        a(f"v_lshlrev_b32 {v(2)}, 4, v1")
        a(f"v_lshl_add_u32 {v(13)}, v1, 3, {s(z(4))}")
        self.poll(13, T, 12, 15, "O")
        self.ts("O flags seen")
        for hd in range(4):
            a(f"s_add_u32 {s(sT0)}, {s(z(5))}, {hd*64*2048}")
            for h_ in range(2):
                a(f"buffer_load_dwordx4 {v(FB+8*hd+4*h_,4)}, {v(2)}, {s(SWS,4)}, {s(sT0)} offen offset:{1024*h_} sc1")
        wf = lambda k: R_C + 4 * k if k < 14 else 4 + 4 * (k - 14)
        lcs, lcs2 = a.newlabel("CS0"), a.newlabel("CS0")
        a(f"s_cmp_eq_u32 {s(sROLE)}, 1")
        a(f"s_cbranch_scc1 {lcs}")
        self.p3_moves()
        a.label(lcs)
        self.p3_rest()
        for ks in range(8):
            a(f"s_waitcnt vmcnt({7-ks})")
            if ks == 0: self.ts("O stage0 landed")
            for n_ in range(2):
                a(f"{MF} {v(ACC+16*n_,16)}, {v(wf(2*ks+n_),4)}, {v(FB+4*ks,4)}, {'0' if ks==0 else v(ACC+16*n_,16)}")
        self.ts("p3 mfma done")
        XR = FB; RB = FB + 8
        a(f"v_add_u32 {v(12)}, {s(z(15))}, {v(2)}")
        a(f"v_add_u32 {v(13)}, {s(z(16))}, {v(2)}")
        a(f"v_lshlrev_b32 {v(3)}, 2, v1")
        a("s_waitcnt lgkmcnt(0)")
        a("s_barrier")
        for k in range(4):
            a(f"v_lshlrev_b32 {v(XR+2*k)}, 16, {v(vHRES+k)}")
            a(f"v_and_b32 {v(XR+2*k+1)}, 0xffff0000, {v(vHRES+k)}")
        pcs = [(0, L_HR), (1, L_HR + 16384), (2, L_HR + 32768), (3, 81920)][:self.np3] if self.stop_after >= 4 else []
        a(f"v_mov_b32 {v(8)}, {v(84)}")
        a(f"v_add_u32 {v(4)}, {8*896-1024}, {v(84)}")
        for kh_ in range(2):
            for n_ in range(2):
                d = 2 * kh_ + n_
                a(f"ds_write_b128 {v(12)}, {v(ACC+16*n_+8*kh_,4)} offset:{8192*d}")
                a(f"ds_write_b128 {v(12)}, {v(ACC+16*n_+8*kh_+4,4)} offset:{8192*d+1024}")
        for p, loc in pcs[:3]:
            a(f"s_mov_b32 {s(sT1)}, {32*p*896}")
            self.dma(8, SW2, sT1, (self.sW2m, loc))
            self.dma(4, SW2, sT1, None, off=1024)
        a("s_waitcnt lgkmcnt(0)")
        a("s_barrier")
        for sidx in range(4):
            a(f"ds_read_b128 {v(ACC+8*sidx,4)}, {v(13)} offset:{2048*sidx}")
            a(f"ds_read_b128 {v(ACC+8*sidx+4,4)}, {v(13)} offset:{2048*sidx+1024}")
        a("s_waitcnt lgkmcnt(6)")
        for k in range(4): a(f"v_pk_add_f32 {v(XR+2*k,2)}, {v(XR+2*k,2)}, {v(ACC+2*k,2)}")
        a("s_waitcnt lgkmcnt(2)")
        for k in range(4): a(f"v_pk_add_f32 {v(ACC+8+2*k,2)}, {v(ACC+8+2*k,2)}, {v(ACC+16+2*k,2)}")
        a("s_waitcnt lgkmcnt(0)")
        for k in range(4): a(f"v_pk_add_f32 {v(XR+2*k,2)}, {v(XR+2*k,2)}, {v(ACC+24+2*k,2)}")
        for k in range(4): a(f"v_pk_add_f32 {v(XR+2*k,2)}, {v(XR+2*k,2)}, {v(ACC+8+2*k,2)}")
        for k in range(4): a(f"v_cvt_pk_bf16_f32 {v(vHRES+k)}, {v(XR+2*k)}, {v(XR+2*k+1)}")
        st_ = lambda sc: a(f"buffer_store_dwordx4 {v(vHRES,4)}, {v(2)}, {s(SWS,4)}, {s(z(17))} offen{sc}")
        if self.hplain: self.two_path(st_)
        else: st_(" sc1")
        F2 = RB
        a(f"v_pk_add_f32 {v(F2,2)}, {v(XR,2)}, {v(XR+2,2)}")
        a(f"v_pk_mul_f32 {v(F2+2,2)}, {v(XR,2)}, {v(XR,2)}")
        a(f"v_pk_add_f32 {v(F2+4,2)}, {v(XR+4,2)}, {v(XR+6,2)}")
        a(f"v_pk_fma_f32 {v(F2+2,2)}, {v(XR+2,2)}, {v(XR+2,2)}, {v(F2+2,2)}")
        a(f"v_pk_add_f32 {v(F2,2)}, {v(F2,2)}, {v(F2+4,2)}")
        a(f"v_pk_fma_f32 {v(F2+2,2)}, {v(XR+4,2)}, {v(XR+4,2)}, {v(F2+2,2)}")
        a(f"v_add_f32 {v(F2)}, {v(F2)}, {v(F2+1)}")
        a(f"v_pk_fma_f32 {v(F2+2,2)}, {v(XR+6,2)}, {v(XR+6,2)}, {v(F2+2,2)}")
        a(f"v_add_f32 {v(F2+1)}, {v(F2+2)}, {v(F2+3)}")
        a(f"v_permlane32_swap_b32 {v(F2)}, {v(F2+1)}")
        a(f"v_add_f32 {v(F2)}, {v(F2)}, {v(F2+1)}")
        st_ = lambda sc: a(f"buffer_store_dword {v(F2)}, {v(3)}, {s(SWS,4)}, {s(z(18))} offen{sc}")
        if self.hplain: self.two_path(st_)
        else: st_(" sc1")
        self.ts("H stores issued")
        nk = 0
        if self.stop_after >= 4: self.p4_setup()
        self.publish(2, keep=nk)
        self.ts("H published")

    def p4_setup(self):
        a = self.a
        z = lambda k: 64 + k
        sN, sUu, sTile2, sKQ = z(0), z(1), z(2), self.sKQ
        a(f"s_lshl_b32 {s(sT0)}, {s(sKQ)}, 12")
        a(f"s_lshl_b32 {s(sU0)}, {s(sN)}, 6")
        self.tr128_addr(9, True, sT0)
        a(f"v_add_u32 {v(10)}, 65536, {v(9)}")
        a(f"s_lshl_b32 {s(sT0)}, {s(sR)}, 2")
        a(f"s_lshl_b32 {s(sT1)}, {s(sROLE)}, 1")
        a(f"s_add_u32 {s(sT0)}, {s(sT0)}, {s(sT1)}")
        a(f"s_mul_i32 {s(sT2)}, {s(sT0)}, 28672")
        a(f"s_lshl_b32 {s(sT1)}, {s(sT)}, 11")
        a(f"s_add_u32 {s(sT2)}, {s(sT2)}, {s(sT1)}")
        a(f"s_add_u32 {s(sT2)}, {s(sT2)}, {H_OFF}")
        a(f"v_add_u32 {v(3)}, {s(sT2)}, {v(2)}")
        a(f"s_lshl_b32 {s(z(9))}, {s(sW)}, 11")
        a(f"s_mul_i32 {s(sT0)}, {s(sT0)}, 112")
        a(f"s_lshl_b32 {s(sT1)}, {s(sC)}, 3")
        a(f"s_add_u32 {s(sT0)}, {s(sT0)}, {s(sT1)}")
        a(f"s_lshl_b32 {s(sT1)}, {s(sT)}, 1")
        a(f"s_add_u32 {s(sT0)}, {s(sT0)}, {s(sT1)}")
        a(f"s_lshl_b32 {s(sT0)}, {s(sT0)}, 10")
        a(f"s_add_u32 {s(sT0)}, {s(sT0)}, {H1_OFF}")
        a(f"v_add_u32 {v(7)}, {s(sT0)}, {v(2)}")
        a(f"v_add_u32 {v(11)}, {112*1024}, {v(7)}")
        a(f"s_lshl_b32 {s(sT0)}, {s(sR)}, 2")
        a(f"s_add_u32 {s(sT0)}, {s(sT0)}, {s(sT)}")
        a(f"s_mul_i32 {s(sT0)}, {s(sT0)}, 28")
        a(f"s_mul_i32 {s(sT1)}, {s(sROLE)}, 14")
        a(f"s_add_u32 {s(sT0)}, {s(sT0)}, {s(sT1)}")
        a(f"s_lshl_b32 {s(sT0)}, {s(sT0)}, 8")
        a(f"s_add_u32 {s(z(10))}, {s(sT0)}, {HS_OFF}")
        a(f"s_lshl_b32 {s(sT0)}, {s(sROLE)}, 13")
        a(f"v_add_u32 {v(5)}, {s(sT0)}, {v(2)}")
        a(f"v_add_u32 {v(6)}, 114688, {v(5)}")
        a(f"s_lshl_b32 {s(sT0)}, {s(sR)}, 11")
        a(f"s_add_u32 {s(sT0)}, {s(sT0)}, {FLG(3)}")
        a(f"s_lshl_b32 {s(sT1)}, {s(sTH)}, 9")
        a(f"s_add_u32 {s(z(12))}, {s(sT0)}, {s(sT1)}")
        a(f"s_lshl_b32 {s(sT1)}, {s(sROLE)}, 9")
        a(f"s_add_u32 {s(sT0)}, {s(sT0)}, {s(sT1)}")
        a(f"s_lshl_b32 {s(sT1)}, {s(sC)}, 5")
        a(f"s_add_u32 {s(sT0)}, {s(sT0)}, {s(sT1)}")
        a(f"s_lshl_b32 {s(sT1)}, {s(sT)}, 3")
        a(f"s_add_u32 {s(z(11))}, {s(sT0)}, {s(sT1)}")
        a(f"s_lshl_b32 {s(z(13))}, {s(sXCC)}, 28")
        a(f"s_or_b32 {s(z(13))}, {s(z(13))}, {s(sTOK+1)}")
        a(f"s_mul_i32 {s(sT0)}, {s(sTile2)}, 112")
        a(f"s_mul_i32 {s(sT2)}, {s(sKQ)}, 28")
        a(f"s_add_u32 {s(sT0)}, {s(sT0)}, {s(sT2)}")
        a(f"s_lshl_b32 {s(sT1)}, {s(sN)}, 1")
        a(f"s_add_u32 {s(sT0)}, {s(sT0)}, {s(sT1)}")
        a(f"s_lshl_b32 {s(sT0)}, {s(sT0)}, 10")
        a(f"s_add_u32 {s(z(14))}, {s(sT0)}, {H1_OFF}")
        a(f"v_lshrrev_b32 {v(T)}, 5, v1")
        a(f"v_lshl_add_u32 {v(85)}, {v(T)}, 3, {v(85)}")

    def stream_gemm(self, N, CH, rd_text, mf_text, pre_barrier, hooks, FB, NB=6):
        a = self.a
        q = []
        def lds(text, tag=None):
            a(text); q.append(tag)
        def wait_for(tag):
            idx = max(k for k, t in enumerate(q) if t == tag)
            a(f"s_waitcnt lgkmcnt({min(15, len(q)-1-idx)})")
        self.lds_wait = wait_for
        def rd(f):
            if f % CH == 0: pre_barrier(f // CH)
            lds(rd_text(f, FB + 4 * (f % NB)), ('f', f))
        for f in range(NB): rd(f)
        for f in range(N):
            wait_for(('f', f))
            a(mf_text(f, FB + 4 * (f % NB)))
            if f + NB < N: rd(f + NB)
            if f in hooks: hooks[f](lds)

    def wave_flag(self, soff_addr, off):
        a = self.a
        a(f"v_mov_b32 {v(T)}, {s(sTOK)}")
        a(f"v_mov_b32 {v(T2)}, {s(64+13)}")
        a(f"s_mov_b64 exec, 1")
        self.two_path(lambda sc: a(f"buffer_store_dwordx2 {v(T,2)}, off, {s(SWS,4)}, {s(soff_addr)} offset:{off}{sc}"))
        a(f"s_mov_b64 exec, -1")

    def w2addr(self, loc):
        return (9, loc) if loc < 65536 else ((10, loc - 65536) if loc < 131072 - 8192 else (73, loc - 131072))

    def p4(self):
        a = self.a
        z = lambda k: 64 + k
        sUu = z(1)
        ACC = 16; FB = 48; BMS = 72
        sW2m, sAm = self.sW2m, z(9)
        S = lambda k: 16384 * k
        def w2dma(p, ldsbase, half=None):
            if half in (None, 0):
                a(f"s_mov_b32 {s(sT1)}, {32*p*896}")
                self.dma(8, SW2, sT1, (sW2m, ldsbase))
            if half == 1: a(f"s_add_u32 m0, {s(sW2m)}, {ldsbase}")
            if half in (None, 1): self.dma(4, SW2, sT1, None, off=1024)
        self.w2dma = w2dma
        vCS = 86
        lcs, lcs2 = a.newlabel("CS0"), a.newlabel("CS0")
        a(f"s_cmp_eq_u32 {s(sROLE)}, 1")
        a(f"s_cbranch_scc1 {lcs}")
        self.cs1(0)
        a(f"s_branch {lcs2}")
        a.label(lcs)
        self.cs1(1)
        a.label(lcs2)
        a(f"v_lshlrev_b32 {v(T)}, 2, v0")
        a(f"v_add_u32 {v(T)}, {L_ST4+8192}, {v(T)}")
        a(f"ds_write_b32 {v(T)}, {v(vCS)}")
        a(f"v_xor_b32 {v(vAM1)}, 1024, {v(T)}")
        self.poll_group(2, 14, 1, "H")
        self.ts("H flags seen")
        def adma(i, half=None):
            if half in (None, 0):
                a(f"s_mov_b32 {s(sT0)}, {8192*i}")
                self.dma(3, SWS, sT0, (sAm, A4SLOT[i % 4]), sc1=True)
            if half == 1: a(f"s_add_u32 m0, {s(sAm)}, {A4SLOT[i % 4]}")
            if half in (None, 1): self.dma(3, SWS, sT0, None, sc1=True, off=1024)
        ops = []
        STB = R_C + 40
        for i in range(3):
            adma(i); ops += [f'A{i}'] * 2
        a(f"ds_read_b32 {v(vAM1+1)}, {v(vAM1)}")
        a(f"s_lshl_b32 {s(sT0)}, {s(sROLE)}, 11")
        a(f"s_add_u32 {s(sT0)}, {s(sT0)}, {L_ST4}")
        a(f"v_lshl_add_u32 {v(12)}, v1, 2, {s(sT0)}")
        a(f"s_lshl_b32 {s(sT0)}, {s(sTH)}, 1")
        a(f"s_add_u32 {s(sT0)}, {s(sT0)}, {s(sUu)}")
        a(f"s_lshl_b32 {s(sT0)}, {s(sT0)}, 10")
        a(f"s_add_u32 {s(sT0)}, {s(sT0)}, {L_ST4}")
        a(f"v_lshl_add_u32 {v(13)}, v1, 2, {s(sT0)}")
        a("s_waitcnt lgkmcnt(0)")
        a(f"v_add_f32 {v(vCS)}, {v(vCS)}, {v(vAM1+1)}")
        a(f"v_mov_b32 {v(T)}, {v(vCS)}")
        a(f"v_permlane32_swap_b32 {v(T)}, {v(vCS)}")
        a(f"v_add_f32 {v(vCS)}, {v(vCS)}, {v(T)}")
        self.cs_operand(vAM1, vCS)
        def vwait(tags):
            last = max(k for k, o in enumerate(ops) if o in tags)
            a(f"s_waitcnt vmcnt({len(ops)-1-last})")
        def pre_barrier(i):
            a.comment(f"---- P4 chunk {i} barrier")
            vwait([f'A{i}', f'p{i-1}'])
            if i == 3: self.lds_wait('stw')
            a("s_barrier")
            if i == 0: self.ts("H chunk0 landed")
            elif self.fine2: self.ts(f"p4 b{i}")
        def rd_text(f, reg):
            i, n = divmod(f, 8)
            slot = A4SLOT[i % 4]
            va, so = (5, slot) if slot < 65536 else (6, slot - 114688)
            return f"ds_read_b128 {v(reg,4)}, {v(va)} offset:{so+n*1024}"
        def mf_text(f, reg):
            tt, ks = divmod(f, 28)
            return f"{MF} {v(ACC+16*tt,16)}, {v(R_A+4*ks,4)}, {v(reg,4)}, {'0' if ks == 0 else v(ACC+16*tt,16)}"
        hooks = {}
        def H(f, fn):
            prev = hooks.get(f)
            hooks[f] = (lambda lds, p=prev, g=fn: (p(lds) if p else None, g(lds)))
        def op(tag): ops.append(tag)
        for j in range(4):
            H(j // 2, lambda lds, j=j: (a(f"buffer_load_dwordx4 {v(STB+4*j,4)}, {v(2)}, {s(SWS,4)}, {s(z(10))} offen offset:{1024*j} sc1"), op('S')))
        for i in range(7):
            b0 = 8 * i
            if i <= 5:
                for k in range(2):
                    def mvh(lds, j=i, k=k):
                        va, off = self.w2addr(L_HR + (j % 3) * 16384 + k * 2048)
                        lds(f"ds_read_b64_tr_b16 {v(R_C+8*j+4*k,2)}, {v(va)} offset:{off}", None)
                        lds(f"ds_read_b64_tr_b16 {v(R_C+8*j+4*k+2,2)}, {v(va)} offset:{off+1024}", None)
                    H(b0 + 3 + k, mvh)
            if i + 3 <= 6:
                H(b0 + 3, lambda lds, i=i: (adma(i + 3, 0), op(f'A{i+3}')))
                H(b0 + 4, lambda lds, i=i: (adma(i + 3, 1), op(f'A{i+3}')))
            if 1 <= i <= 4:
                H(b0 + 5, lambda lds, i=i: (w2dma(i + 2, L_HR + 16384 * ((i - 1) % 3), 0), op(f'p{i+2}')))
                H(b0 + 6, lambda lds, i=i: (w2dma(i + 2, L_HR + 16384 * ((i - 1) % 3), 1), op(f'p{i+2}')))
        self.w2b_loc = {6: S(2), 7: S(5), 8: S(6), 9: S(8), 10: S(0), 11: S(3), 12: S(0), 13: S(3)}
        when = {7: self.w78[0], 8: self.w78[1], 9: 39, 10: 47, 11: 49}
        for p in range(7 + self.nex, 12):
            f0 = when[p]
            H(f0, lambda lds, p=p: (w2dma(p, self.w2b_loc[p], 0), op('q')))
            H(f0 + 1, lambda lds, p=p: (w2dma(p, self.w2b_loc[p], 1), op('q')))
        def st_reduce(lds):
            vwait(['S'])
            for k in range(4): a(f"v_cndmask_b32 {v(STB+12+k)}, {v(STB+12+k)}, 0, {s(sHI,2)}")
            for k in range(2):
                a(f"v_pk_add_f32 {v(STB+2*k,2)}, {v(STB+2*k,2)}, {v(STB+4+2*k,2)}")
                a(f"v_pk_add_f32 {v(STB+8+2*k,2)}, {v(STB+8+2*k,2)}, {v(STB+12+2*k,2)}")
            for k in range(2): a(f"v_pk_add_f32 {v(STB+2*k,2)}, {v(STB+2*k,2)}, {v(STB+8+2*k,2)}")
            a(f"v_lshlrev_b32 {v(T)}, 4, v0")
            a(f"v_add_u32 {v(T)}, {L_ST4}, {v(T)}")
            lds(f"ds_write_b128 {v(T)}, {v(STB,4)}", 'stw')
        H(self.fst, st_reduce)
        def st_gather(lds):
            for tt in range(2):
                for hf in range(2):
                    b = STB + 8 * tt + 4 * hf
                    o = (tt * 1024 + hf * 4096) // 256
                    lds(f"ds_read2st64_b32 {v(b,2)}, {v(12)} offset0:{o} offset1:{o+1}", None)
                    lds(f"ds_read2st64_b32 {v(b+2,2)}, {v(12)} offset0:{o+2} offset1:{o+3}", 'g1')
        H(18, st_gather)
        def st_mean(lds):
            self.lds_wait('g1')
            for tt in range(2):
                b = STB + 8 * tt
                a(f"v_pk_add_f32 {v(b,2)}, {v(b,2)}, {v(b+2,2)}")
                a(f"v_pk_add_f32 {v(b+4,2)}, {v(b+4,2)}, {v(b+6,2)}")
            for tt in range(2): a(f"v_pk_add_f32 {v(STB+8*tt,2)}, {v(STB+8*tt,2)}, {v(STB+8*tt+4,2)}")
            for tt in range(2): a(f"v_add_f32 {v(STB+8*tt)}, {v(STB+8*tt)}, {v(STB+8*tt+1)}")
            for tt in range(2): a(f"v_mul_f32 {v(STB+8*tt)}, {f32bits(-1.0/448):#x}, {v(STB+8*tt)}")
        H(23, st_mean)
        def st_mean2(lds):
            for tt, bm in ((0, BMS), (1, STB + 12)):
                b = STB + 8 * tt
                a(f"v_cvt_pk_bf16_f32 {v(bm)}, {v(b)}, {v(b)}")
                a(f"v_and_b32 {v(b+1)}, 0xffff0000, {v(bm)}")
                a(f"v_sub_f32 {v(b+1)}, {v(b)}, {v(b+1)}")
                a(f"v_cvt_pk_bf16_f32 {v(bm+1)}, {v(b+1)}, 0")
                a(f"v_mov_b32 {v(bm+2)}, 0")
                a(f"v_mov_b32 {v(bm+3)}, 0")
            b = STB
            for hf in range(2):
                lds(f"ds_read2st64_b32 {v(b+4*hf,2)}, {v(13)} offset0:{16*hf} offset1:{16*hf+1}", None)
                lds(f"ds_read2st64_b32 {v(b+4*hf+2,2)}, {v(13)} offset0:{16*hf+2} offset1:{16*hf+3}", 'g2')
        H(25, st_mean2)
        H(27, lambda lds: a(f"{MF} {v(ACC,16)}, {v(vAM1,4)}, {v(BMS,4)}, {v(ACC,16)}"))
        def epi(tt, sp):
            A_ = ACC + 16 * tt
            for k in range(4): a(f"v_cvt_pk_bf16_f32 {v(A_+8*sp+k)}, {v(A_+8*sp+2*k)}, {v(A_+8*sp+2*k+1)}")
            for k in range(4): a(f"v_pk_max_i16 {v(A_+8*sp+k)}, {v(A_+8*sp+k)}, 0")
            a(f"buffer_store_dwordx4 {v(A_+8*sp,4)}, {v(7 if tt==0 else 11)}, {s(SWS,4)}, 0 offen offset:{1024*sp} sc1")
            op(f'st{tt}')
        H(31, lambda lds: epi(0, 0))
        H(32, lambda lds: epi(0, 1))
        def st_rstd(lds):
            self.lds_wait('g2')
            b = STB
            a(f"v_pk_add_f32 {v(b,2)}, {v(b,2)}, {v(b+2,2)}")
            a(f"v_pk_add_f32 {v(b+4,2)}, {v(b+4,2)}, {v(b+6,2)}")
            a(f"v_pk_add_f32 {v(b,2)}, {v(b,2)}, {v(b+4,2)}")
            a(f"v_add_f32 {v(b)}, {v(b)}, {v(b+1)}")
            a(f"v_mov_b32 {v(b+1)}, {v(b)}")
            a(f"v_permlane32_swap_b32 {v(b)}, {v(b+1)}")
            self.stats_finish(b, b + 1, b + 2, vRSTD)
        H(33, st_rstd)
        H(self.fflag, lambda lds: (self.ts("preflag") if self.fine2 else None, vwait(['st0']), self.wave_flag(z(11), 0), op('fl'), self.ts("postflag") if self.fine2 else None))
        self.stream_gemm(56, 8, rd_text, mf_text, pre_barrier, hooks, FB)
        self.ts("p4 loop done")
        a(f"{MF} {v(ACC+16,16)}, {v(vAM1,4)}, {v(STB+12,4)}, {v(ACC+16,16)}")
        a(f"s_lshl_b32 {s(sT0)}, {s(self.sKQ)}, 12")
        a(f"v_add_u32 {v(5)}, {s(sT0)}, {v(2)}")
        a(f"v_add_u32 {v(6)}, 65536, {v(5)}")
        a(f"v_add_u32 {v(72)}, 131072, {v(5)}")
        a(f"v_add_u32 {v(73)}, 131072, {v(9)}")
        a(f"v_lshl_add_u32 {v(13)}, v1, 3, {s(z(12))}")
        for p in (7, 8):
            va, off = self.w2addr(self.w2b_loc[p])
            self.move_frags(R_A + 8 * (p - 7), va, 2, True, off0=off)
        self.ops4 = ops; self.epi = epi

    def p5(self):
        a = self.a
        z = lambda k: 64 + k
        sN, sUu, sKQ = z(0), z(1), self.sKQ
        ACC = 16; FB = 48
        S = lambda k: 16384 * k
        ops = self.ops4
        def vwait(tags):
            last = max(k for k, o in enumerate(ops) if o in tags)
            a(f"s_waitcnt vmcnt({len(ops)-1-last})")
        lp = a.newlabel("PA")
        a(f"s_cmp_lg_u32 {s(sW)}, 0")
        a(f"s_cbranch_scc1 {lp}")
        self.poll(13, T, 12, (1 << 56) - 1, "HA")
        a.label(lp)
        vwait(['q', 'p6'])
        a("s_waitcnt lgkmcnt(0)")
        a("s_barrier")
        self.ts("H1A flags seen")
        sAm = self.sW2m
        cslot = [S(4), S(1), S(7), S(9), S(5), S(6), S(2), S(8), S(4), S(1), S(7), S(9), S(5), S(2)]
        def adma(c_, half=None):
            src = (c_ % 7) * 4096 + (c_ // 7) * 112 * 1024
            if half in (None, 0):
                a(f"s_add_u32 {s(sT0)}, {s(z(14))}, {src}")
                self.dma(2, SWS, sT0, (sAm, cslot[c_]), sc1=True); ops.append(f'C{c_}')
            if half == 1: a(f"s_add_u32 m0, {s(sAm)}, {cslot[c_]}")
            if half in (None, 1):
                self.dma(2, SWS, sT0, None, sc1=True, off=1024); ops.append(f'C{c_}')
        for c_ in range(self.nC): adma(c_)
        self.epi(1, 0); self.epi(1, 1)
        self.ts("H1 stores issued")
        for p in (6, 9, 10, 11):
            va, off = self.w2addr(self.w2b_loc[p])
            self.move_frags(R_C + 48 if p == 6 else R_A + 8 * (p - 7), va, 2, True, off0=off)
        a(f"s_mul_i32 {s(sT1)}, {s(sN)}, {S(8)-S(6)}")
        a(f"s_add_u32 {s(sT1)}, {s(sT1)}, {S(6)}")
        a(f"s_lshl_b32 {s(sT0)}, {s(sKQ)}, 11")
        a(f"s_add_u32 {s(sT0)}, {s(sT0)}, {s(sT1)}")
        a(f"v_add_u32 {v(74)}, {s(sT0)}, {v(2)}")
        a(f"s_lshl_b32 {s(sT0)}, {s(sROLE)}, 13")
        a(f"s_add_u32 {s(sT0)}, {s(sT0)}, {s(sT1)}")
        a(f"v_add_u32 {v(75)}, {s(sT0)}, {v(2)}")
        a(f"v_add_u32 {v(13)}, 1024, {v(13)}")
        a("s_waitcnt lgkmcnt(0)")
        def pre_barrier(i):
            a.comment(f"---- P5 chunk {i} barrier")
            tags = [f'C{i}'] + (['q2'] if i == 5 else [])
            vwait(tags)
            if i == self.cB:
                l = a.newlabel("PB")
                a(f"s_cmp_lg_u32 {s(sW)}, 0")
                a(f"s_cbranch_scc1 {l}")
                vwait(['pb'])
                self.set_exec((1 << 56) - 1)
                self.flag_check(78, 12)
                a("s_mov_b64 exec, -1")
                a("s_nop 3")
                a(f"s_cbranch_vccz {l}")
                self.poll(13, T, 12, (1 << 56) - 1, "HB")
                a.label(l)
            if i == 13: self.lds_wait('rw')
            a("s_barrier")
            if i == 0: self.ts("H1 chunk0 landed")
            elif self.fine2: self.ts(f"p5 b{i}")
        def rd_text(f, reg):
            i, n = divmod(f, 4)
            slot = cslot[i]
            va, so = (5, 6, 72)[slot // 65536], slot % 65536
            return f"ds_read_b128 {v(reg,4)}, {v(va)} offset:{so+n*1024}"
        def mf_text(f, reg):
            tt, kk = divmod(f, 28)
            wreg = R_C + 4 * kk if kk < 14 else R_A + 4 * (kk - 14)
            return f"{MF} {v(ACC+16*tt,16)}, {v(wreg,4)}, {v(reg,4)}, {'0' if kk == 0 else v(ACC+16*tt,16)}"
        hooks = {}
        def H(f, fn):
            prev = hooks.get(f)
            hooks[f] = (lambda lds, p=prev, g=fn: (p(lds) if p else None, g(lds)))
        fB = 4 * self.cB - 6
        sched = [(2 * k, it) for k, it in enumerate([('c', c_) for c_ in range(self.nC, 7)] + [('w', 12), ('w', 13)])]
        f = max(10, fB)
        for c_ in range(7, 14):
            if c_ >= 8: f = max(f, 4 * ((c_ - 8 if c_ < 13 else 6) + 3) - 6)
            sched.append((f, ('c', c_))); f += self.p5gap
        for f0, (kind, x) in sched:
            if kind == 'c':
                H(f0, lambda lds, x=x: adma(x, 0)); H(f0 + 1, lambda lds, x=x: adma(x, 1))
            else:
                H(f0, lambda lds, x=x: (self.w2dma(x, self.w2b_loc[x], 0), ops.append('q2')))
                H(f0 + 1, lambda lds, x=x: (self.w2dma(x, self.w2b_loc[x], 1), ops.append('q2')))
        for p in (12, 13):
            def mv(lds, p=p):
                va, off = self.w2addr(self.w2b_loc[p])
                for k in range(2):
                    lds(f"ds_read_b64_tr_b16 {v(R_A+8*(p-7)+4*k,2)}, {v(va)} offset:{off+k*2048}", None)
                    lds(f"ds_read_b64_tr_b16 {v(R_A+8*(p-7)+4*k+2,2)}, {v(va)} offset:{off+k*2048+1024}", None)
            H(3 + p, mv)
        XR = R_B
        RB = R_B + 8
        def red_write(lds, tt, tag):
            for d in range(2):
                lds(f"ds_write_b128 {v(74)}, {v(ACC+16*tt+8*d,4)} offset:{8192*d}", None)
                lds(f"ds_write_b128 {v(74)}, {v(ACC+16*tt+8*d+4,4)} offset:{8192*d+1024}", tag if d == 1 else None)
        def fin(tt, lds=None):
            l = a.newlabel("FN")
            a(f"s_cmp_lg_u32 {s(sUu)}, {tt}")
            a(f"s_cbranch_scc1 {l}")
            for sidx in range(4):
                a(f"ds_read_b128 {v(RB+8*sidx,4)}, {v(75)} offset:{2048*sidx}")
                a(f"ds_read_b128 {v(RB+8*sidx+4,4)}, {v(75)} offset:{2048*sidx+1024}")
            a("s_waitcnt lgkmcnt(4)")
            for k in range(4): a(f"v_pk_add_f32 {v(RB+2*k,2)}, {v(RB+2*k,2)}, {v(RB+8+2*k,2)}")
            a("s_waitcnt lgkmcnt(0)")
            for k in range(4): a(f"v_pk_add_f32 {v(RB+16+2*k,2)}, {v(RB+16+2*k,2)}, {v(RB+24+2*k,2)}")
            for k in range(4): a(f"v_pk_add_f32 {v(RB+2*k,2)}, {v(RB+2*k,2)}, {v(RB+16+2*k,2)}")
            for k in range(4): a(f"v_pk_fma_f32 {v(XR+2*k,2)}, {v(RB+2*k,2)}, {v(76,2)}, {v(XR+2*k,2)}")
            for k in range(4): a(f"v_cvt_pk_bf16_f32 {v(RB+k)}, {v(XR+2*k)}, {v(XR+2*k+1)}")
            a(f"v_permlane32_swap_b32 {v(RB)}, {v(RB+2)}")
            a(f"v_permlane32_swap_b32 {v(RB+1)}, {v(RB+3)}")
            a(f"buffer_store_dwordx4 {v(RB,4)}, {v(85)}, {s(SOUT,4)}, 0 offen{self.outsc}")
            a.label(l)
        def prep(lds):
            for k in range(4):
                a(f"v_lshlrev_b32 {v(XR+2*k)}, 16, {v(vHRES+k)}")
                a(f"v_and_b32 {v(XR+2*k+1)}, 0xffff0000, {v(vHRES+k)}")
            a(f"v_mov_b32 {v(76)}, {v(vRSTD)}")
            a(f"v_mov_b32 {v(77)}, {v(vRSTD)}")
        H(self.fB, lambda lds: (vwait(['st1']), self.wave_flag(z(11), 1024), ops.append('fl')))
        def pbload(lds):
            a(f"s_cmp_eq_u32 {s(sW)}, 0")
            a(f"s_cselect_b32 exec_lo, -1, 1")
            a(f"s_cselect_b32 exec_hi, 0xffffff, 0")
            a(f"buffer_load_dwordx2 {v(78,2)}, {v(13)}, {s(SWS,4)}, 0 offen sc1"); ops.append('pb')
            a("s_mov_b64 exec, -1")
        H(4 * self.cB - 6 - self.pbl, pbload)
        H(20, prep)
        for q_ in range(4):
            H(35 + 2 * q_, lambda lds, q_=q_: lds(f"ds_write_b128 {v(74)}, {v(ACC+4*q_,4)} offset:{8192*(q_//2)+1024*(q_%2)}", 'rw' if q_ == 3 else None))
        H(47, lambda lds: fin(0))
        self.stream_gemm(56, 4, rd_text, mf_text, pre_barrier, hooks, FB)
        self.ts("p5 loop done")
        a(f"v_subrev_u32 {v(74)}, {S(6)}, {v(74)}")
        a(f"v_subrev_u32 {v(75)}, {S(6)}, {v(75)}")
        a(f"s_mul_i32 {s(sT0)}, {s(sN)}, {S(3)-S(2)}")
        a(f"v_add_u32 {v(74)}, {s(sT0)}, {v(74)}")
        a(f"v_add_u32 {v(75)}, {s(sT0)}, {v(75)}")
        red_write(lambda t, g=None: a(t), 1, None)
        a("s_waitcnt lgkmcnt(0)")
        a("s_barrier")
        fin(1)

    def epilogue(self):
        a = self.a
        a.label("L_FIN")
        if self.prof:
            self.ts("end")
            a(f"s_lshl_b32 {s(sT0)}, s2, 3")
            a(f"s_add_u32 {s(sT0)}, {s(sT0)}, {s(sW)}")
            a(f"s_lshl_b32 {s(sT0)}, {s(sT0)}, 8")
            a(f"s_add_u32 {s(sT0)}, {s(sT0)}, {TS_OFF}")
            a(f"v_lshlrev_b32 v14, 2, v1")
            a(f"v_add_u32 v14, {s(sT0)}, v14")
            a(f"buffer_store_dword {v(vTS)}, v14, {s(SWS,4)}, 0 offen")
            a("s_waitcnt vmcnt(0)")
        a.label("L_END")
        a("s_endpgm")

    def build(self):
        self.prologue()
        self.p1()
        if self.stop_after >= 2: self.p2()
        if self.stop_after >= 3: self.p3()
        if self.stop_after >= 4: self.p4()
        if self.stop_after >= 5: self.p5()
        self.epilogue()
        head = f"""; Generated by dev/gen.py -- fused persistent kernel: LN1+QKV -> sliding attention -> WO+res -> LN2+FF1 -> FF2+res
; @launch grid=(256,1,1) block=(512,1,1) lds={LDS_TOTAL}
.amdgcn_target "amdgcn-amd-amdhsa--gfx950"
.text
.globl {NAME}_kernel
.p2align 8
.type {NAME}_kernel,@function
{NAME}_kernel:
"""
        tail = f"""
.section .rodata,"a"
.p2align 6
.amdhsa_kernel {NAME}_kernel
  .amdhsa_next_free_vgpr 256
  .amdhsa_next_free_sgpr 102
  .amdhsa_accum_offset 256
  .amdhsa_group_segment_fixed_size 0
  .amdhsa_kernarg_size 72
  .amdhsa_user_sgpr_count 2
  .amdhsa_user_sgpr_kernarg_segment_ptr 1
  .amdhsa_system_sgpr_workgroup_id_x 1
.end_amdhsa_kernel
"""
        return head + self.a.text() + (self.side.text() if hasattr(self,'side') else '') + tail

if __name__ == "__main__":
    import argparse
    ap = argparse.ArgumentParser()
    ap.add_argument("-o", default="k.s"); ap.add_argument("--stop", type=int, default=5)
    ap.add_argument("--prof", action="store_true"); ap.add_argument("--cyc", action="store_true"); ap.add_argument("--fine", action="store_true"); ap.add_argument("--tlb", type=int, default=0); ap.add_argument("--p1local", action="store_true"); ap.add_argument("--pd1", type=int, default=2); ap.add_argument("--norot", action="store_true"); ap.add_argument("--tp", type=int, default=2); ap.add_argument("--n1", type=int, default=9); ap.add_argument("--m2", default="[(SW1,3)]"); ap.add_argument("--post", default="[0,1,3,4,2,5,6]"); ap.add_argument("--npre", type=int, default=3); ap.add_argument("--p5gap", type=int, default=2); ap.add_argument("--oplain", type=int, default=1); ap.add_argument("--pre0", type=int, default=1); ap.add_argument("--t1it", type=int, default=6); ap.add_argument("--nex", type=int, default=0); ap.add_argument("--exp", type=int, default=0); ap.add_argument("--fflag", type=int, default=45); ap.add_argument("--cB", type=int, default=5); ap.add_argument("--fB", type=int, default=8); ap.add_argument("--w78", default="(15,23)"); ap.add_argument("--nC", type=int, default=4); ap.add_argument("--plain", type=int, default=0); ap.add_argument("--outsc", default=""); ap.add_argument("--rotg", type=int, default=4); ap.add_argument("--kvsc", default="sc1"); ap.add_argument("--kvst", default="sc1"); ap.add_argument("--kvsleep", type=int, default=1); ap.add_argument("--w1sched", default="([1,1,1,1,1],4,[3,2,0,0,0])")
    args = ap.parse_args()
    g = Gen(args.stop, args.prof, args.cyc, args.fine, args.tlb, args.p1local, args.pd1, args.norot, args.tp, args.n1, args.m2, args.post, args.npre, args.p5gap, args.oplain, args.pre0, args.t1it, args.nex, args.exp, args.fflag, args.cB, args.fB, args.nC, args.plain, args.outsc, args.w78, args.rotg, args.kvsc, args.kvst, args.kvsleep, args.w1sched)
    open(args.o, "w").write(g.build())
    print("instrs", g.a.ninstr, "nops", g.a.nnops, "ts", list(g.tsn.keys()))
```

```python
import sys, math, struct
from asmlib import Asm, v, s

NAME = "sequential_preLN__sliding_block__dense_activation_relu__prompt"
QKV_OFF = 0
O_OFF  = 6 << 20
H_OFF  = 8 << 20
HS_OFF = 10 << 20
H1_OFF = 16 << 20
FL_OFF = 32 << 20
TS_OFF = 33 << 20
FL0_OFF = (32 << 20) + 131072
XS_OFF = 11 << 20
WS_SZ  = 40 << 20
SX, SWQKV, SWO, SW1, SW2, SOUT, SDBG, SWS = 24, 28, 32, 36, 40, 44, 48, 52
sR, sC, sW, sT, sROLE, sXCC, sLOCAL, sTMP = 56, 57, 58, 59, 60, 61, 62, 63
sMASK = 64
sONES = 96
sTH, sCT = 97, 23
sT0, sT1, sT2, sT3, sT4, sT5, sT6 = 3, 4, 5, 6, 7, 8, 9
sKC = 10
sBUSY = 17
sSAVE = 18
sHI = 20
sSPIN = 22
sTS = 98
sU0, sU1 = 100, 101
sTOK = 0
sR1, sJ1 = 94, 95
L_XS = 0
L_WP = 65536
L_SC = 151552
L_STAT = L_SC
L_CS = L_SC + 2048
L_FLAG = 163328
L_TOK = 163344
L_XST = L_SC
L_WO = 65536
L_XR = 122880
L_K = 90112
L_V = 114688
L_MRG = 139264
L_ONES = L_MRG + 1024
L_W1B = 57344
L_A3 = 0
L_RED3 = 147456
L_RED3D = 98304
L_ST4 = 147456
L_HR = 32768
A4SLOT = [0, 16384, 114688, 131072]
LDS_TOTAL = 163840
R_C, R_A, R_B = 88, 144, 200
vTS = 87
vHRES = 80
vRSTD = 84
vAM1 = 76
LOG2E = 1.4426950408889634
def FLG(e): return FL_OFF + e * 16384
def f32bits(x): return struct.unpack('<I', struct.pack('<f', x))[0]
T, T2 = 14, 15
MF = "v_mfma_f32_32x32x16_bf16"

class Gen:
    def __init__(self, stop_after=5, prof=False, cyc=False, fine=False, tlb=0, p1local=False, pd1=2, norot=False, tp=2, n1=9, m2='[(SW1,3)]', post='[0,1,3,4,2,5,6]', npre=3, p5gap=2, oplain=1, pre0=1, t1it=6, nex=0, exp=0, fflag=45, cB=5, fB=8, nC=4, plain=0, outsc='', w78='(15,23)', rotg=4, kvsc='sc1', kvst='sc1', kvsleep=1, w1sched='([1,1,1,1,1],4,[3,2,0,0,0])'):
        self.fine = fine; self.PD1 = pd1; self.tp = tp; self.dbgts = exp & 8; self.hplain = plain & 2; self.outsc = ' ' + outsc.replace('_',' ') if outsc else ''; self.nC = nC; self.w78 = eval(w78); self.fB = fB; self.pbl = 4; self.fst = 17; self.np3 = 3; self.kvsc = ' ' + kvsc.replace('_',' '); self.kvst = ' ' + kvst.replace('_',' '); self.kvsleep = kvsleep; self.rotg = rotg; self.fine2 = (exp & 4); self.fflag = fflag; self.cB = cB; self.exp = exp; self.nex = nex; self.t1it = t1it; self.pre0 = pre0; self.w1sched = eval(w1sched); self.oplain = oplain; self.nin = npre; self.p5gap = p5gap; self.n1 = n1; self.m2 = eval(m2); self.post = eval(post); self.norot = norot; self.tlb = tlb; self.p1local = p1local
        self.a = Asm(); self.stop_after = stop_after; self.prof = prof; self.cyc = cyc; self.tsn = {}

    def ts(self, name):
        if not self.prof: return
        if self.dbgts and name not in ("start","p1 chunk0 landed","p1 loop done","QKV published","QKV flags seen","max done","O flag stored","H published","H chunk0 landed","p4 loop done","H1 chunk0 landed","end"): return
        a = self.a
        if self.dbgts and name in ("start", "end"):
            a(f"s_memtime {s(sTS,2)}")
            a("s_waitcnt lgkmcnt(0)")
            a(f"v_writelane_b32 {v(vTS)}, {s(sTS)}, {12 if name == 'start' else 13}")
        if name not in self.tsn: self.tsn[name] = len(self.tsn)
        n = self.tsn[name]
        a(f"{'s_memtime' if self.cyc else 's_memrealtime'} {s(sTS,2)}")
        a("s_waitcnt lgkmcnt(0)")
        a(f"v_writelane_b32 {v(vTS)}, {s(sTS)}, {n}")

    def capture(self, fn):
        rec = []
        class R:
            def __call__(self_, t): rec.append(t)
        old = self.a; self.a = R()
        try: fn()
        finally: self.a = old
        return rec

    def srd(self, dst, ptr, size):
        a = self.a
        a(f"s_mov_b32 {s(dst)}, {s(ptr)}")
        a(f"s_and_b32 {s(dst+1)}, {s(ptr+1)}, 0xffff")
        a(f"s_mov_b32 {s(dst+2)}, {size}")
        a(f"s_mov_b32 {s(dst+3)}, 0x20000")

    def dma(self, vsrc, srd, soff, m0expr, sc1=False, off=0):
        a = self.a
        if m0expr is not None:
            if isinstance(m0expr, int): a(f"s_mov_b32 m0, {m0expr}")
            else: a(f"s_add_u32 m0, {s(m0expr[0])}, {m0expr[1]}")
        so = s(soff) if isinstance(soff, int) else soff
        a(f"buffer_load_dwordx4 {v(vsrc)}, {s(srd,4)}, {so} offen{f' offset:{off}' if off else ''}{' sc1' if sc1 else ''} lds")

    def set_exec(self, mask):
        a = self.a
        lo, hi = mask & 0xffffffff, mask >> 32
        a(f"s_mov_b32 exec_lo, {lo:#x}")
        a(f"s_mov_b32 exec_hi, {hi:#x}")

    def flag_check(self, vd, tmp):
        a = self.a
        a(f"v_xor_b32 {v(tmp)}, {s(sTOK+1)}, {v(vd+1)}")
        a(f"v_and_b32 {v(tmp)}, 0xfffffff, {v(tmp)}")
        a(f"v_xor_b32 {v(vd)}, {s(sTOK)}, {v(vd)}")
        a(f"v_or_b32 {v(tmp)}, {v(tmp)}, {v(vd)}")
        a(f"v_cmp_ne_u32 vcc, 0, {v(tmp)}")

    def poll(self, vaddr, vd, tmp, mask, tag, sleep=0, sc=" sc1"):
        a = self.a
        self.set_exec(mask)
        a(f"s_mov_b32 {s(sSPIN)}, 200000")
        lab = a.loop_label(a.newlabel("POLL"+tag)); done = a.newlabel("PDONE"+tag)
        a(f"buffer_load_dwordx2 {v(vd,2)}, {v(vaddr)}, {s(SWS,4)}, 0 offen{sc}")
        a("s_waitcnt vmcnt(0)")
        self.flag_check(vd, tmp)
        a(f"s_sub_u32 {s(sSPIN)}, {s(sSPIN)}, 1")
        a(f"s_cbranch_scc1 {done}")
        a("s_nop 2")
        a(f"s_cbranch_vccz {done}")
        a("s_mov_b64 exec, vcc")
        if sleep: a(f"s_sleep {sleep}")
        a(f"s_branch {lab}")
        a.label(done)
        a("s_mov_b64 exec, -1")

    def token_load(self, vd):
        self.a(f"buffer_load_dwordx2 {v(vd,2)}, off, {s(SDBG,4)}, 0 sc1")

    def token_take(self, vd):
        a = self.a
        a(f"s_mov_b32 {s(sSPIN)}, 200000")
        lab = a.loop_label(a.newlabel("TOK")); done = a.newlabel("TOKD")
        a(f"v_readfirstlane_b32 {s(sTOK)}, {v(vd)}")
        a(f"v_readfirstlane_b32 {s(sTOK+1)}, {v(vd+1)}")
        a(f"s_cmp_lg_u32 {s(sTOK)}, 0")
        a(f"s_cbranch_scc1 {done}")
        a(f"s_sub_u32 {s(sSPIN)}, {s(sSPIN)}, 1")
        a(f"s_cbranch_scc1 {done}")
        a("s_sleep 4")
        self.token_load(vd)
        a("s_waitcnt vmcnt(0)")
        a(f"s_branch {lab}")
        a.label(done)

    def poll_group(self, e, nmem, wave, tag):
        a = self.a
        l = a.newlabel("PG")
        a(f"s_cmp_lg_u32 {s(sW)}, {wave}")
        a(f"s_cbranch_scc1 {l}")
        a(f"s_lshl_b32 {s(sT0)}, {s(sR)}, 7")
        if e == 1:
            a(f"s_lshl_b32 {s(sT0)}, {s(sR)}, 9")
            a(f"s_lshl_b32 {s(sT1)}, {s(sTH)}, 8")
            a(f"s_add_u32 {s(sT0)}, {s(sT0)}, {s(sT1)}")
        a(f"s_add_u32 {s(sT0)}, {s(sT0)}, {FLG(e)}")
        a(f"v_lshl_add_u32 {v(13)}, v1, 3, {s(sT0)}")
        self.poll(13, T, 12, (1 << nmem) - 1, tag)
        a.label(l)
        a("s_waitcnt lgkmcnt(0)")
        a("s_barrier")

    def two_path(self, fn):
        a = self.a
        l1, l2 = a.newlabel("SL"), a.newlabel("SL")
        a(f"s_cmp_eq_u32 {s(sLOCAL)}, 1")
        a(f"s_cbranch_scc0 {l1}")
        fn("")
        a(f"s_branch {l2}")
        a.label(l1)
        fn(" sc1")
        a.label(l2)

    def publish(self, e, always_sc1=False, nowait_role1=False, keep=0):
        a = self.a
        a(f"s_lshl_b32 {s(sT1)}, {s(sR)}, {11 if e == 0 else 7}")
        a(f"s_lshl_b32 {s(sT2)}, {s(sC)}, {7 if e == 0 else 3}")
        a(f"s_add_u32 {s(sT1)}, {s(sT1)}, {s(sT2)}")
        a(f"s_add_u32 {s(sT1)}, {s(sT1)}, {FL0_OFF if e == 0 else FLG(e)}")
        a(f"s_lshl_b32 {s(sT2)}, {s(sXCC)}, 28")
        a(f"s_or_b32 {s(sT2)}, {s(sT2)}, {s(sTOK+1)}")
        a(f"v_mov_b32 {v(13)}, {s(sT1)}")
        a(f"v_mov_b32 {v(T)}, {s(sTOK)}")
        a(f"v_mov_b32 {v(T2)}, {s(sT2)}")
        if nowait_role1:
            lw = a.newlabel("NW")
            a(f"s_cmp_eq_u32 {s(sROLE)}, 1")
            a(f"s_cbranch_scc1 {lw}")
            a("s_waitcnt vmcnt(0)")
            a.label(lw)
            a("s_waitcnt lgkmcnt(0)")
        else:
            a(f"s_waitcnt vmcnt({keep}) lgkmcnt(0)")
        a("s_barrier")
        lf = a.newlabel("PUB")
        a(f"s_cmp_lg_u32 {s(sW)}, 0")
        a(f"s_cbranch_scc1 {lf}")
        a(f"s_mov_b64 exec, 1")
        st = lambda sc: a(f"buffer_store_dwordx2 {v(T,2)}, {v(13)}, {s(SWS,4)}, 0 offen{sc}")
        if always_sc1: st(self.kvst)
        else: self.two_path(st)
        a(f"s_mov_b64 exec, -1")
        a.label(lf)

    def mean_operand(self, BM, vnm, tmp):
        a = self.a
        a(f"v_cvt_pk_bf16_f32 {v(BM)}, {v(vnm)}, {v(vnm)}")
        a(f"v_and_b32 {v(tmp)}, 0xffff0000, {v(BM)}")
        a(f"v_sub_f32 {v(tmp)}, {v(vnm)}, {v(tmp)}")
        a(f"v_cvt_pk_bf16_f32 {v(BM+1)}, {v(tmp)}, 0")
        a(f"v_mov_b32 {v(BM+2)}, 0")
        a(f"v_mov_b32 {v(BM+3)}, 0")

    def cs_operand(self, AM, vcs):
        a = self.a
        a(f"v_cndmask_b32 {v(vcs)}, {v(vcs)}, 0, {s(sHI,2)}")
        a(f"v_cvt_pk_bf16_f32 {v(AM+1)}, {v(vcs)}, 0")
        a(f"v_lshlrev_b32 {v(AM+2)}, 16, {v(AM+1)}")
        a(f"v_sub_f32 {v(AM+2)}, {v(vcs)}, {v(AM+2)}")
        a(f"v_cvt_pk_bf16_f32 {v(AM)}, {v(vcs)}, {v(AM+2)}")
        a(f"v_mov_b32 {v(AM+2)}, 0")
        a(f"v_mov_b32 {v(AM+3)}, 0")

    def stats_finish(self, vsum, vsq, vnm, vrs):
        a = self.a
        a(f"v_mul_f32 {v(vnm)}, {f32bits(-1.0/448):#x}, {v(vsum)}")
        a(f"v_mul_f32 {v(vsq)}, {f32bits(1.0/448):#x}, {v(vsq)}")
        a(f"v_fma_f32 {v(vsq)}, -{v(vnm)}, {v(vnm)}, {v(vsq)}")
        a(f"v_max_f32 {v(vsq)}, 0, {v(vsq)}")
        a(f"v_add_f32 {v(vsq)}, {f32bits(1e-5):#x}, {v(vsq)}")
        a(f"v_rsq_f32 {v(vrs)}, {v(vsq)}")

    def rows128_src(self, vd, rowstride, srow0, scol):
        a = self.a
        a(f"v_lshrrev_b32 {v(T)}, 3, v1")
        a(f"v_bfe_u32 {v(T2)}, v1, 4, 1")
        a(f"v_lshlrev_b32 {v(T2)}, 2, {v(T2)}")
        a(f"v_xor_b32 {v(T2)}, {v(T2)}, v1")
        a(f"v_and_b32 {v(T2)}, 7, {v(T2)}")
        a(f"v_add_u32 {v(T)}, {s(srow0)}, {v(T)}")
        a(f"v_mul_u32_u24 {v(T)}, {rowstride}, {v(T)}")
        a(f"v_lshl_add_u32 {v(T)}, {v(T2)}, 4, {v(T)}")
        a(f"v_add_u32 {v(vd)}, {s(scol)}, {v(T)}")

    def tr128_addr(self, vd, perm, sbase):
        a = self.a
        a(f"v_lshrrev_b32 {v(T)}, 5, v1")
        a(f"v_lshlrev_b32 {v(T)}, {9 if perm else 10}, {v(T)}")
        a(f"v_bfe_u32 {v(T2)}, v1, 2, 2")
        a(f"v_lshl_add_u32 {v(T)}, {v(T2)}, 7, {v(T)}")
        a(f"v_bfe_u32 {v(T2)}, v1, 4, 1")
        a(f"v_lshl_add_u32 {v(T)}, {v(T2)}, 5, {v(T)}")
        a(f"v_and_b32 {v(T2)}, 3, v1")
        a(f"v_lshl_add_u32 {v(T)}, {v(T2)}, 3, {v(T)}")
        a(f"v_bfe_u32 {v(T2)}, v1, 3, 1")
        a(f"v_lshlrev_b32 {v(T2)}, 6, {v(T2)}")
        a(f"v_xor_b32 {v(T2)}, {s(sU0)}, {v(T2)}")
        a(f"v_add_u32 {v(T)}, {v(T)}, {v(T2)}")
        a(f"v_add_u32 {v(vd)}, {s(sbase)}, {v(T)}")

    def prologue(self):
        a = self.a
        a(f"s_cmp_ge_u32 s2, 256")
        a(f"s_cbranch_scc1 L_END")
        a("s_load_dwordx16 s[4:19], s[0:1], 0")
        a("s_load_dwordx2 s[20:21], s[0:1], 64")
        a("v_and_b32 v1, 63, v0")
        a("v_lshrrev_b32 v2, 6, v0")
        a(f"v_readfirstlane_b32 {s(sW)}, v2")
        a(f"s_and_b32 {s(sT)}, {s(sW)}, 3")
        a(f"s_lshr_b32 {s(sROLE)}, {s(sW)}, 2")
        a(f"s_and_b32 {s(sR)}, s2, 7")
        a(f"s_lshl_b32 {s(sR)}, {s(sR)}, 1")
        a(f"s_lshr_b32 {s(sTMP)}, s2, 7")
        a(f"s_add_u32 {s(sR)}, {s(sR)}, {s(sTMP)}")
        a(f"s_lshr_b32 {s(sC)}, s2, 3")
        a(f"s_and_b32 {s(sC)}, {s(sC)}, 15")
        a(f"s_getreg_b32 {s(sXCC)}, hwreg(HW_REG_XCC_ID)")
        a(f"s_and_b32 {s(sXCC)}, {s(sXCC)}, 15")
        a(f"s_mov_b32 {s(sONES)}, 0x3f803f80")
        a(f"s_cmp_ge_u32 {s(sC)}, 7")
        a(f"s_cselect_b32 {s(sTH)}, 1, 0")
        a(f"s_mul_i32 {s(sTMP)}, {s(sTH)}, 7")
        a(f"s_sub_u32 {s(sCT)}, {s(sC)}, {s(sTMP)}")
        a("s_waitcnt lgkmcnt(0)")
        self.srd(SX, 4, 2048*448*2)
        self.srd(SWQKV, 6, 448*1344*2)
        self.srd(SWO, 8, 448*448*2)
        self.srd(SW1, 12, 448*1792*2)
        self.srd(SW2, 14, 1792*448*2)
        self.srd(SOUT, 16, 2048*448*2)
        self.srd(SDBG, 18, 256)
        self.srd(SWS, 20, WS_SZ)
        a(f"s_mov_b32 {s(sHI)}, 0")
        a(f"s_mov_b32 {s(sHI+1)}, -1")
        a(f"s_cmp_lt_u32 {s(sC)}, 14")
        a(f"s_cselect_b32 {s(sBUSY)}, 1, 0")
        a("v_mov_b32 v84, 0")
        a("v_mov_b32 v85, 0")
        if self.prof: a(f"v_mov_b32 {v(vTS)}, 0")
        self.ts("start")
        if self.tlb:
            lt = a.newlabel("TLB")
            a(f"s_cmp_lg_u32 {s(sW)}, 7")
            a(f"s_cbranch_scc1 {lt}")
            a(f"v_lshlrev_b32 {v(T)}, {self.tlb}, v1")
            for k in range((34 << 20) >> (self.tlb + 6)):
                a(f"s_mov_b32 {s(sT0)}, {k << (self.tlb + 6)}")
                a(f"buffer_load_dword {v(90)}, {v(T)}, {s(SWS,4)}, {s(sT0)} offen")
            a(f"v_lshlrev_b32 {v(T)}, 16, v1")
            for srd in (SWO, SW1, SW2, SOUT):
                a(f"buffer_load_dword {v(90)}, {v(T)}, {s(srd,4)}, 0 offen")
            a.label(lt)
        lz = a.newlabel("NOTOK")
        a(f"s_cmp_lg_u32 s2, 112")
        a(f"s_cbranch_scc1 {lz}")
        a(f"s_cmp_lg_u32 {s(sW)}, 0")
        a(f"s_cbranch_scc1 {lz}")
        a(f"s_memrealtime {s(sTS,2)}")
        a("s_waitcnt lgkmcnt(0)")
        a(f"s_or_b32 {s(sT0)}, {s(sTS)}, 1")
        a(f"s_and_b32 {s(sT1)}, {s(sTS+1)}, 0xfffffff")
        a(f"v_mov_b32 {v(T)}, {s(sT0)}")
        a(f"v_mov_b32 {v(T2)}, {s(sT1)}")
        a(f"s_mov_b64 exec, 1")
        a(f"buffer_store_dwordx2 {v(T,2)}, off, {s(SDBG,4)}, 0 sc1")
        a(f"s_mov_b64 exec, -1")
        a.label(lz)

    def touch_p1(self):
        a = self.a
        a(f"s_lshr_b32 {s(sT0)}, s2, 3")
        a(f"s_and_b32 {s(sT1)}, {s(sR)}, 12")
        a(f"s_lshl_b32 {s(sT1)}, {s(sT1)}, 3")
        a(f"s_add_u32 {s(sT1)}, {s(sT0)}, {s(sT1)}")
        a(f"s_mul_i32 {s(sT1)}, {s(sT1)}, {16*896}")
        a(f"s_mul_i32 {s(sT2)}, {s(sT)}, {28*128}")
        a(f"s_add_u32 {s(sT1)}, {s(sT1)}, {s(sT2)}")
        a(f"v_lshlrev_b32 {v(T)}, 7, v1")
        self.set_exec((1 << 28) - 1)
        a(f"buffer_load_dword {v(86)}, {v(T)}, {s(SX,4)}, {s(sT1)} offen")
        a("s_mov_b64 exec, -1")
        a(f"s_mul_i32 {s(sT0)}, {s(sT0)}, {14*2688}")
        a(f"s_bfe_u32 {s(sT1)}, {s(sR)}, 0x10001")
        a(f"s_mul_i32 {s(sT1)}, {s(sT1)}, 1280")
        a(f"s_add_u32 {s(sT0)}, {s(sT0)}, {s(sT1)}")
        a(f"s_mul_i32 {s(sT1)}, {s(sT)}, 39")
        a(f"v_add_u32 {v(T)}, {s(sT1)}, v1")
        a(f"v_mul_u32_u24 {v(T2)}, 5958, {v(T)}")
        a(f"v_lshrrev_b32 {v(T2)}, 16, {v(T2)}")
        a(f"v_mul_u32_u24 {v(T2)}, {2688-11*128}, {v(T2)}")
        a(f"v_lshl_add_u32 {v(T2)}, {v(T)}, 7, {v(T2)}")
        self.set_exec((1 << 39) - 1)
        a(f"buffer_load_dword {v(86)}, {v(T2)}, {s(SWQKV,4)}, {s(sT0)} offen")
        a("s_mov_b64 exec, -1")

    def touch(self, srd, kexpr):
        a = self.a
        sg, mul, add = kexpr
        a(f"s_mul_i32 {s(sT0)}, {s(sg)}, {mul*262144}")
        a(f"s_lshr_b32 {s(sT1)}, s2, 3")
        a(f"s_lshl_b32 {s(sT1)}, {s(sT1)}, 13")
        a(f"s_add_u32 {s(sT0)}, {s(sT0)}, {s(sT1)}")
        if add > 0: a(f"s_add_u32 {s(sT0)}, {s(sT0)}, {add*262144}")
        if add < 0: a(f"s_sub_u32 {s(sT0)}, {s(sT0)}, {-add*262144}")
        a(f"v_lshlrev_b32 {v(T)}, 7, v1")
        a(f"buffer_load_dword {v(86)}, {v(T)}, {s(srd,4)}, {s(sT0)} offen")

    def idle_touch_setup(self):
        a = self.a
        a(f"s_and_b32 {s(sT0)}, {s(sR)}, 1")
        a(f"s_lshl_b32 {s(sT0)}, {s(sT0)}, 1")
        a(f"s_add_u32 {s(sT0)}, {s(sT0)}, {s(sC)}")
        a(f"s_sub_u32 {s(sT0)}, {s(sT0)}, 14")
        a(f"s_lshl_b32 {s(sT1)}, {s(sT0)}, 2")
        a(f"s_add_u32 {s(sT1)}, {s(sT1)}, {s(sT)}")
        a(f"s_lshl_b32 {s(sT1)}, {s(sT1)}, 13")
        a(f"v_lshl_add_u32 {v(56)}, v1, 7, {s(sT1)}")

    def flag_pretouch(self):
        a = self.a
        a(f"s_lshl_b32 {s(sT0)}, {s(sR)}, 9")
        a(f"s_add_u32 {s(sT0)}, {s(sT0)}, {FLG(1)}")
        a(f"v_lshl_add_u32 {v(T)}, v1, 7, {s(sT0)}")
        a(f"s_lshl_b32 {s(sT0)}, {s(sR)}, 7")
        a(f"s_add_u32 {s(sT1)}, {s(sT0)}, {FLG(2)}")
        a(f"v_writelane_b32 {v(T)}, {s(sT1)}, 4")
        a(f"s_lshl_b32 {s(sT0)}, {s(sR)}, 11")
        a(f"s_add_u32 {s(sT0)}, {s(sT0)}, {FLG(3) - 16*128}")
        a(f"v_lshl_add_u32 {v(T2)}, v1, 7, {s(sT0)}")
        a(f"v_cmp_le_u32 vcc, 16, v1")
        a(f"v_cndmask_b32 {v(T)}, {v(T)}, {v(T2)}, vcc")
        self.set_exec(0xffff001f)
        a(f"buffer_load_dword {v(86)}, {v(T)}, {s(SWS,4)}, 0 offen sc1")
        a(f"s_mov_b64 exec, -1")

    def masks(self):
        a = self.a
        a(f"v_and_b32 {v(T)}, 31, v1")
        a(f"v_lshrrev_b32 {v(T2)}, 5, v1")
        a(f"v_lshlrev_b32 {v(T2)}, 2, {v(T2)}")
        a(f"v_sub_u32 {v(T)}, {v(T)}, {v(T2)}")
        for rg in range(16):
            kk = 8 * (rg // 4) + (rg % 4)
            a(f"v_cmp_le_i32 {s(sMASK+2*rg,2)}, {kk}, {v(T)}")

    def p1(self):
        a = self.a
        PD = self.PD1
        full = self.stop_after >= 3
        vXs = 100; vWs = 104; vSt = 107; vCs = 108
        ACC = 16
        AM = 112; vXr = 120; vWr = 124; SCL = 128; BM = 132; vSA = 136
        vWo = 138; vXres = 139; vRS = 140
        vTok = 142; vFl = 96
        WB = R_B + 40
        lpad, lp1end = a.newlabel("PADW"), a.newlabel("P1END")
        a(f"s_cmp_eq_u32 {s(sBUSY)}, 0")
        a(f"s_cbranch_scc1 {lpad}")
        a(f"s_and_b32 {s(sR1)}, {s(sR)}, 12")
        a(f"s_and_b32 {s(sT0)}, {s(sR)}, 1")
        a(f"s_lshl_b32 {s(sT0)}, {s(sT0)}, 1")
        a(f"s_add_u32 {s(sT0)}, {s(sT0)}, {s(sTH)}")
        a(f"s_add_u32 {s(sR1)}, {s(sR1)}, {s(sT0)}")
        a(f"s_bfe_u32 {s(sJ1)}, {s(sR)}, 0x10001")
        a(f"s_mul_i32 {s(sJ1)}, {s(sJ1)}, 7")
        a(f"s_add_u32 {s(sJ1)}, {s(sJ1)}, {s(sCT)}")
        sXm, sWm = sT4, sT5
        def setup_xsrc():
            a(f"s_lshl_b32 {s(sT0)}, {s(sR1)}, 7")
            a(f"s_lshl_b32 {s(sT1)}, {s(sT)}, 5")
            a(f"s_add_u32 {s(sT0)}, {s(sT0)}, {s(sT1)}")
            a(f"v_lshrrev_b32 {v(T)}, 3, v1")
            a(f"v_add_u32 {v(T)}, {s(sT0)}, {v(T)}")
            a(f"v_mul_u32_u24 {v(T)}, 896, {v(T)}")
            a(f"v_lshrrev_b32 {v(T2)}, 4, v1")
            a(f"v_xor_b32 {v(T2)}, {v(T2)}, v1")
            a(f"v_and_b32 {v(T2)}, 7, {v(T2)}")
            a(f"v_lshl_add_u32 {v(vXs)}, {v(T2)}, 4, {v(T)}")
            a(f"v_xor_b32 {v(T2)}, 4, {v(T2)}")
            a(f"v_lshl_add_u32 {v(vXs+1)}, {v(T2)}, 4, {v(T)}")
            a(f"v_add_u32 {v(vXs+2)}, {2*(7168-1024)}, {v(vXs)}")
            a(f"v_add_u32 {v(vXs+3)}, {3*(7168-1024)}, {v(vXs+1)}")
            a(f"v_add_u32 {v(vXs+1)}, {7168-1024}, {v(vXs+1)}")
            a(f"s_lshl_b32 {s(sXm)}, {s(sT)}, 12")
        def setup_wsrc():
            a(f"s_mul_i32 {s(sT0)}, {s(sT)}, {16*2688}")
            a(f"s_mul_i32 {s(sT1)}, {s(sJ1)}, 192")
            a(f"s_add_u32 {s(sT0)}, {s(sT0)}, {s(sT1)}")
            for m in range(3):
                a(f"v_add_u32 {v(T)}, {64*m}, v1")
                a(f"v_mul_u32_u24 {v(T2)}, 43691, {v(T)}")
                a(f"v_lshrrev_b32 {v(T2)}, 19, {v(T2)}")
                a(f"v_mul_u32_u24 {v(T2)}, 2496, {v(T2)}")
                a(f"v_lshl_add_u32 {v(T2)}, v1, 4, {v(T2)}")
                a(f"v_add_u32 {v(vWs+m)}, {s(sT0)}, {v(T2)}")
            a(f"s_mul_i32 {s(sWm)}, {s(sT)}, 3072")
        def rot_setup():
            a(f"s_and_b32 {s(sT0)}, {s(sR1)}, 3")
            a(f"s_lshl_b32 {s(sT0)}, {s(sT0)}, 1")
            a(f"s_add_u32 {s(sT0)}, {s(sT0)}, {s(sCT)}")
            a(f"s_sub_u32 {s(sT1)}, {s(sT0)}, 7")
            a(f"s_cmp_ge_u32 {s(sT0)}, 7")
            a(f"s_cselect_b32 {s(sT0)}, {s(sT1)}, {s(sT0)}")
            if self.norot: a(f"s_mov_b32 {s(sT0)}, 0")
            G_ = self.rotg
            if G_ < 7:
                a(f"s_mul_i32 {s(sT1)}, {s(sT0)}, {(256 + G_ - 1) // G_}")
                a(f"s_lshr_b32 {s(sT1)}, {s(sT1)}, 8")
                a(f"s_mul_i32 {s(sT1)}, {s(sT1)}, {G_}")
                a(f"s_sub_u32 {s(sT0)}, {s(sT0)}, {s(sT1)}")
            a(f"s_lshl_b32 {s(64)}, {s(sT0)}, 7")
        def rot_next(i):
            G_ = self.rotg
            g0 = (i // G_) * G_; g1 = min(g0 + G_, 7)
            if i % G_ == 0:
                if g1 - g0 == G_: a(f"s_add_u32 {s(64+i)}, {s(64)}, {128*g0}")
                else:
                    if g1 - g0 == 1: a(f"s_mov_b32 {s(64+i)}, {128*g0}")
                    else:
                        a(f"s_add_u32 {s(64+i)}, {s(64)}, {128*g0}")
                        a(f"s_cmp_ge_u32 {s(64+i)}, {128*g1}")
                        a(f"s_cselect_b32 {s(64+i)}, {128*g0}, {s(64+i)}")
                return
            a(f"s_add_u32 {s(64+i)}, {s(63+i)}, 128")
            a(f"s_cmp_eq_u32 {s(64+i)}, {128*g1}")
            a(f"s_cselect_b32 {s(64+i)}, {128*g0}, {s(64+i)}")
        def xdma(i):
            sT0 = 64 + i
            for j in range(4):
                self.dma(vXs+j, SX, sT0, (sXm, L_XS + (i % 4) * 16384) if j == 0 else None, off=1024*j)
        def wdma(i):
            a(f"s_mul_i32 {s(sT1)}, {s(64+i)}, {64*2688//128}")
            for m in range(3):
                self.dma(vWs+m, SWQKV, sT1, (sWm, L_WP + i * 12288) if m == 0 else None, off=1024*m)
        def setup_rd(role):
            a(f"v_and_b32 {v(T)}, 31, v1")
            a(f"v_bfe_u32 {v(T2)}, v1, 1, 3")
            a(f"v_lshrrev_b32 {v(vXr)}, 5, v1")
            a(f"v_xor_b32 {v(T2)}, {v(T2)}, {v(vXr)}")
            a(f"s_lshl_b32 {s(sT1)}, {s(sT)}, 12")
            a(f"v_lshl_add_u32 {v(T)}, {v(T)}, 7, {s(sT1)}")
            for n in range(4):
                a(f"s_add_u32 {s(sT0)}, {s(sT)}, {n}")
                a(f"s_and_b32 {s(sT0)}, {s(sT0)}, 3")
                a(f"s_lshl_b32 {s(sT1)}, {s(sT0)}, 1")
                a(f"s_mul_i32 {s(sKC+n)}, {s(sT0)}, 3072")
                a(f"v_xor_b32 {v(vXr+n)}, {s(sT1)}, {v(T2)}")
                a(f"v_lshl_add_u32 {v(vXr+n)}, {v(vXr+n)}, 4, {v(T)}")
            a(f"v_lshrrev_b32 {v(T)}, 5, v1")
            a(f"v_bfe_u32 {v(T2)}, v1, 2, 2")
            a(f"v_lshl_add_u32 {v(T)}, {v(T)}, 3, {v(T2)}")
            a(f"v_mul_u32_u24 {v(T)}, 192, {v(T)}")
            a(f"v_bfe_u32 {v(T2)}, v1, 4, 1")
            a(f"v_lshl_add_u32 {v(T)}, {v(T2)}, 5, {v(T)}")
            a(f"v_and_b32 {v(T2)}, 3, v1")
            a(f"v_lshl_add_u32 {v(T)}, {v(T2)}, 3, {v(T)}")
            a(f"v_add_u32 {v(T)}, {L_WP + (128 if role else 0)}, {v(T)}")
            for n in range(4): a(f"v_add_u32 {v(vWr+n)}, {s(sKC+n)}, {v(T)}")
            a(f"v_mov_b32 {v(vCs)}, 0")
            a(f"v_mov_b32 {v(vCs+1)}, 0")
            a(f"v_mov_b32 {v(BM+2)}, 0")
            a(f"v_mov_b32 {v(BM+3)}, 0")
        def setup_st(ti, tj):
            a(f"s_mul_i32 {s(sT0)}, {s(sJ1)}, 3")
            a(f"s_add_u32 {s(sT0)}, {s(sT0)}, {tj}")
            a(f"s_cmp_lt_u32 {s(sT0)}, 14")
            a(f"s_cselect_b32 {s(sU0+ti)}, 1, 0")
            a(f"s_lshl_b32 {s(sT0)}, {s(sT0)}, 6")
            a(f"s_lshl_b32 {s(sT1)}, {s(sR1)}, 2")
            a(f"s_add_u32 {s(sT0)}, {s(sT0)}, {s(sT1)}")
            a(f"s_add_u32 {s(sT0)}, {s(sT0)}, {s(sT)}")
            a(f"s_lshl_b32 {s(sT0)}, {s(sT0)}, 11")
            a(f"v_lshl_add_u32 {v(vSA+ti)}, v1, 4, {s(sT0)}")
        def setup_wo():
            a(f"s_lshl_b32 {s(sT0)}, {s(sT)}, 3")
            a(f"s_lshl_b32 {s(sT2)}, {s(sCT)}, 7")
            self.rows128_src(vWo, 896, sT0, sT2)
            a(f"s_lshl_b32 {s(sT0)}, {s(sR)}, 7")
            a(f"s_lshl_b32 {s(sT1)}, {s(sTH)}, 6")
            a(f"s_add_u32 {s(sT0)}, {s(sT0)}, {s(sT1)}")
            a(f"s_mul_i32 {s(sT0)}, {s(sT0)}, 896")
            a(f"v_add_u32 {v(vXres)}, {s(sT0)}, {v(vWo)}")
            a(f"s_lshl_b32 {s(sT6)}, {s(sT)}, 10")
        def wodma(j):
            a(f"s_mov_b32 {s(sT0)}, {32*j*896}")
            self.dma(vWo, SWO, sT0, (sT6, L_WO + 4096 * j))
        def xrdma(j):
            a(f"s_mov_b32 {s(sT0)}, {32*j*896}")
            self.dma(vXres, SX, sT0, (sT6, L_XR + 4096 * j))
        def setup_misc(role):
            a(f"s_lshl_b32 {s(sT0)}, {s(sT)}, 9")
            a(f"s_lshl_b32 {s(sT1)}, {s(sR1)}, 11")
            a(f"s_add_u32 {s(sT0)}, {s(sT0)}, {s(sT1)}")
            a(f"s_add_u32 {s(sT0)}, {s(sT0)}, {XS_OFF}")
            a(f"v_mov_b32 {v(94)}, {L_TOK}")
            a(f"v_and_b32 {v(T)}, 31, v1")
            a(f"v_lshl_add_u32 {v(vSt)}, {v(T)}, 4, {s(sT0)}")
            a(f"v_lshlrev_b32 {v(91)}, 2, v0")
            a(f"v_add_u32 {v(91)}, {L_CS + (1024 if role else 0)}, {v(91)}")
            a(f"v_lshlrev_b32 {v(92)}, 2, {v(T)}")
            a(f"v_add_u32 {v(92)}, {L_CS + (2048 if role else 0)}, {v(92)}")
            a(f"v_add_u32 {v(93)}, 1024, {v(92)}")
        lr1, lrj = a.newlabel("P1R1"), a.newlabel("P1J")
        a(f"s_cmp_eq_u32 {s(sROLE)}, 1")
        a(f"s_cbranch_scc1 {lr1}")
        for role in (0, 1):
            if role == 1: a.label(lr1)
            ntile = 2 if role == 0 else 1
            SET = [R_A, R_A + 48]
            ops = []
            def issue(i):
                xdma(i); wdma(i); ops.extend([i] * 7)
            if role == 0:
                rot_setup(); setup_wsrc(); wdma(0)
                setup_rd(0)
                rot_next(1); wdma(1); ops += [0] * 3 + [1] * 3
                if full: self.wo_addr()
                if self.stop_after >= 2: self.p2_pre()
                setup_st(0, 0)
                if self.tp & 1:
                    self.touch_p1(); ops += ['t', 't']
                setup_st(1, 1)
                setup_misc(0)
                later = []
            else:
                rot_setup(); setup_xsrc(); xdma(0)
                if self.fine: self.ts("first dma issued")
                rot_next(1); xdma(1); ops += [0] * 4 + [1] * 4
                if self.fine: self.ts("second dma issued")
                setup_rd(1)
                setup_wsrc()
                for i in range(2, 7): rot_next(i)
                if full: self.wo_addr()
                if self.stop_after >= 2: self.p2_pre()
                setup_st(0, 2)
                if full: setup_wo()
                setup_misc(1)
                later = []
            if self.fine: self.ts("setup done")
            for i in range(8):
                a.comment(f"---- P1 role{role} iter {i}")
                rds, mfs, css = [], [], []
                if i < 7:
                    idx = [k for k, c_ in enumerate(ops) if c_ == i]
                    if idx: a(f"s_waitcnt vmcnt({len(ops)-1-max(idx)}) lgkmcnt(0)")
                    else: a("s_waitcnt lgkmcnt(0)")
                    if self.fine and i < 3: self.ts(f"c{i} own wait done")
                    a("s_barrier")
                    if i == 0: self.ts("p1 chunk0 landed")
                    if self.fine: self.ts(f"c{i} barrier")
                    woff = (i % 4) * 12288
                    if i == 4:
                        for n in range(4): a(f"v_add_u32 {v(vWr+n)}, 49152, {v(vWr+n)}")
                    S_ = SET[i % 2]
                    for n in range(4):
                        rds.append(f"ds_read_b128 {v(S_+4*n,4)}, {v(vXr+n)} offset:{L_XS+(i%4)*16384}")
                        for tj in range(ntile):
                            b = S_ + 16 + 16 * tj + 4 * n
                            rds.append(f"ds_read_b64_tr_b16 {v(b,2)}, {v(vWr+n)} offset:{woff+tj*64}")
                            rds.append(f"ds_read_b64_tr_b16 {v(b+2,2)}, {v(vWr+n)} offset:{woff+tj*64+768}")
                    if i == 6:
                        rds.append(f"ds_read_b64 {v(vTok,2)}, {v(94)}")
                else:
                    a("s_waitcnt lgkmcnt(0)")
                    a(f"v_readfirstlane_b32 {s(sTOK)}, {v(vTok)}")
                    a(f"v_readfirstlane_b32 {s(sTOK+1)}, {v(vTok+1)}")
                def extras():
                    only = lambda w_: (a(f"s_cmp_lg_u32 {s(sW)}, {w_}"), a.newlabel("ON"))[1]
                    if role == 1 and i == 0:
                        for k in range(2, PD): issue(k)
                    if role == 1 and i + PD < 7: issue(i + PD)
                    if role == 1 and full and i in (5, 6):
                        for j in (range(0, 8) if i == 5 else range(8, 14)): wodma(j); ops.append('wo')
                        if i == 6:
                            for j in range(2): xrdma(j); ops.append('wo')
                    if role == 0:
                        if i in (1, 3):
                            l = only(3); a(f"s_cbranch_scc1 {l}")
                            if i == 1:
                                self.token_load(vTok)
                            if i == 3:
                                a("s_waitcnt vmcnt(0)")
                                self.token_take(vTok)
                                a(f"v_mov_b32 {v(T)}, {L_TOK}")
                                a(f"ds_write_b64 {v(T)}, {v(vTok,2)}")
                            a.label(l)
                    if i == 4:
                        a(f"buffer_load_dwordx4 {v(vFl,4)}, {v(vSt)}, {s(SWS,4)}, 0 offen sc1"); ops.append('st')
                    if role == 0:
                        if (self.tp & 8) and i == self.t1it:
                            self.touch(SW1, (sT, 1, 3))
                    if later and i < 7: later.pop(0)()
                if role == 1:
                    for o in rds: a(o)
                    rds = []
                    extras()
                if i > 0:
                    P_ = SET[(i - 1) % 2]
                    for n in range(4):
                        for tj in range(ntile):
                            c_in = "0" if (i == 1 and n == 0) else v(ACC+16*tj, 16)
                            mfs.append(f"{MF} {v(ACC+16*tj,16)}, {v(P_+16+16*tj+4*n,4)}, {v(P_+4*n,4)}, {c_in}")
                    for tj in range(ntile):
                        for d in range(4): a(f"v_dot2c_f32_bf16 {v(vCs+tj)}, {s(sONES)}, {v(P_+16+16*tj+d)}")
                if i == 7:
                    a(mfs.pop(0)); a(mfs.pop(0))
                    for tj in range(ntile): a(f"ds_write_b32 {v(91)}, {v(vCs+tj)} offset:{1024*tj}")
                nm = max(1, len(mfs))
                for g_ in range(nm):
                    if mfs: a(mfs[g_])
                    for o in rds[g_*len(rds)//nm:(g_+1)*len(rds)//nm]: a(o)
                if role == 0: extras()
                if self.fine and i < 7: self.ts(f"c{i} end")
            self.ts("p1 loop done")
            nafter = len(ops) - 1 - max(k for k, o in enumerate(ops) if o == 'st') + (1 if (role == 0 and (self.tp & 8)) else 0)
            a(f"s_waitcnt vmcnt({nafter})")
            a(f"s_mov_b32 {s(sSPIN)}, 200000")
            a(f"s_and_b32 {s(sT2)}, {s(sTOK+1)}, 0xffff")
            lab = a.loop_label(a.newlabel("SVL")); done = a.newlabel("SVD")
            a(f"v_lshrrev_b32 {v(T)}, 16, {v(vFl+1)}")
            a(f"v_xor_b32 {v(T)}, {s(sT2)}, {v(T)}")
            a(f"v_xor_b32 {v(T2)}, {s(sTOK)}, {v(vFl+3)}")
            a(f"v_or_b32 {v(T)}, {v(T)}, {v(T2)}")
            a(f"v_cmp_ne_u32 vcc, 0, {v(T)}")
            a(f"s_sub_u32 {s(sSPIN)}, {s(sSPIN)}, 1")
            a(f"s_cbranch_scc1 {done}")
            a("s_nop 2")
            a(f"s_cbranch_vccz {done}")
            a("s_sleep 2")
            a(f"buffer_load_dwordx4 {v(vFl,4)}, {v(vSt)}, {s(SWS,4)}, 0 offen sc1")
            a("s_waitcnt vmcnt(0)")
            a(f"s_branch {lab}")
            a.label(done)
            a(f"v_mov_b32 {v(BM)}, {v(vFl)}")
            a(f"v_and_b32 {v(BM+1)}, 0xffff, {v(vFl+1)}")
            a(f"v_mov_b32 {v(vRS)}, {v(vFl+2)}")
            a(f"v_mul_f32 {v(vRS+1)}, {f32bits(28**-0.5*LOG2E):#x}, {v(vFl+2)}")
            a("s_waitcnt lgkmcnt(0)")
            a("s_barrier")
            self.ts("stat barrier")
            S0 = WB
            for tj in range(ntile):
                for k in range(4): a(f"ds_read2_b32 {v(S0+8*tj+2*k,2)}, {v(92+tj)} offset0:{64*k} offset1:{64*k+32}")
            for tj in range(ntile):
                a(f"s_cmp_eq_u32 {s(sU0+tj)}, 1")
                a(f"s_cselect_b64 {s(sSAVE,2)}, -1, 0")
                a(f"v_cndmask_b32 {v(SCL+2*tj)}, {v(vRS)}, {v(vRS+1)}, {s(sSAVE,2)}")
                a(f"v_cndmask_b32 {v(SCL+2*tj+1)}, {v(vRS)}, {v(vRS+1)}, {s(sSAVE,2)}")
            for tj in range(ntile):
                c0 = S0 + 8 * tj
                a(f"s_waitcnt lgkmcnt({4*(ntile-1-tj)})")
                a(f"v_pk_add_f32 {v(c0,2)}, {v(c0,2)}, {v(c0+2,2)}")
                a(f"v_pk_add_f32 {v(c0+4,2)}, {v(c0+4,2)}, {v(c0+6,2)}")
                a(f"v_pk_add_f32 {v(c0,2)}, {v(c0,2)}, {v(c0+4,2)}")
                a(f"v_add_f32 {v(c0)}, {v(c0)}, {v(c0+1)}")
                self.cs_operand(AM + 4 * tj, c0)
                a(f"{MF} {v(ACC+16*tj,16)}, {v(AM+4*tj,4)}, {v(BM,4)}, {v(ACC+16*tj,16)}")
            for tj in range(ntile):
                PK = WB + 8 * tj
                A_ = ACC + 16 * tj
                for h_ in range(2):
                    for k in range(4): a(f"v_pk_mul_f32 {v(A_+8*h_+2*k,2)}, {v(A_+8*h_+2*k,2)}, {v(SCL+2*tj,2)}")
                    for k in range(4): a(f"v_cvt_pk_bf16_f32 {v(PK+4*h_+k)}, {v(A_+8*h_+2*k)}, {v(A_+8*h_+2*k+1)}")
                for h_ in range(2):
                    a(f"v_permlane32_swap_b32 {v(PK+4*h_)}, {v(PK+4*h_+2)}")
                    a(f"v_permlane32_swap_b32 {v(PK+4*h_+1)}, {v(PK+4*h_+3)}")
                    a(f"buffer_store_dwordx4 {v(PK+4*h_,4)}, {v(vSA+tj)}, {s(SWS,4)}, 0 offen offset:{1024*h_} sc1")
            self.ts("qkv stores issued")
            if role == 0: a(f"s_branch {lrj}")
        a.label(lrj)
        if self.stop_after >= 2: self.p2_copy()
        self.publish(0, True)
        self.ts("QKV published")
        if full: self.wo_read()
        self.lpad = lpad


    def stage_rows128(self, srd, rowstride, scol, ldsbase, vsrc=2):
        a = self.a
        a(f"s_mul_i32 {s(sT0)}, {s(sW)}, 56")
        self.rows128_src(vsrc, rowstride, sT0, scol)
        a(f"s_mul_i32 {s(sT1)}, {s(sW)}, 7168")
        for j in range(7):
            a(f"s_mov_b32 {s(sT0)}, {8*j*rowstride}")
            self.dma(vsrc, srd, sT0, (sT1, ldsbase + 1024 * j))

    def move_frags(self, dst, vaddr, nsteps, perm, off0=0):
        a = self.a
        for k in range(nsteps):
            a(f"ds_read_b64_tr_b16 {v(dst+4*k,2)}, {v(vaddr)} offset:{off0+k*2048}")
            a(f"ds_read_b64_tr_b16 {v(dst+4*k+2,2)}, {v(vaddr)} offset:{off0+k*2048+(1024 if perm else 512)}")

    def busy_begin(self):
        a = self.a
        l = a.newlabel("NB")
        a(f"s_cmp_eq_u32 {s(sBUSY)}, 0")
        a(f"s_cbranch_scc1 {l}")
        return l

    def idle_path(self):
        main = self.a
        side = Asm(); side.nlabel = 100000
        self.a = a = side
        lpad = self.lpad
        a("s_nop 15") if False else None
        a.label(lpad)
        a(f"s_lshl_b32 {s(sT0)}, {s(sR)}, 7")
        a(f"s_sub_u32 {s(sT1)}, {s(sC)}, 14")
        a(f"s_lshl_b32 {s(sT1)}, {s(sT1)}, 6")
        a(f"s_add_u32 {s(sT0)}, {s(sT0)}, {s(sT1)}")
        a(f"v_lshrrev_b32 {v(2)}, 3, v0")
        a(f"v_add_u32 {v(2)}, {s(sT0)}, {v(2)}")
        a(f"v_mul_u32_u24 {v(3)}, 896, {v(2)}")
        a(f"v_and_b32 {v(T)}, 7, v0")
        a(f"v_lshl_add_u32 {v(3)}, {v(T)}, 4, {v(3)}")
        for j in range(7): a(f"buffer_load_dwordx4 {v(32+4*j,4)}, {v(3)}, {s(SX,4)}, 0 offen offset:{128*j}")
        self.flag_pretouch()
        self.idle_extra = 0
        a(f"v_mov_b32 v4, 0")
        a(f"v_mov_b32 v5, 0")
        for j in range(7):
            a(f"s_waitcnt vmcnt({7-j})")
            if j == 3: self.token_load(24)
            if j == 6: a("s_waitcnt vmcnt(0)")
            for k in range(4): a(f"v_dot2c_f32_bf16 v4, {s(sONES)}, {v(32+4*j+k)}")
            for k in range(4): a(f"v_dot2c_f32_bf16 v5, {v(32+4*j+k)}, {v(32+4*j+k)}")
        for ctl in ("quad_perm:[1,0,3,2]", "quad_perm:[2,3,0,1]", "row_half_mirror"):
            a(f"v_add_f32_dpp v4, v4, v4 {ctl} row_mask:0xf bank_mask:0xf")
            a(f"v_add_f32_dpp v5, v5, v5 {ctl} row_mask:0xf bank_mask:0xf")
        self.stats_finish(4, 5, 6, 7)
        self.mean_operand(20, 6, 8)
        a(f"v_mov_b32 v22, v7")
        self.token_take(24)
        a(f"s_lshl_b32 {s(sT0)}, {s(sTOK+1)}, 16")
        a(f"v_or_b32 v21, {s(sT0)}, v21")
        a(f"v_mov_b32 v23, {s(sTOK)}")
        a(f"v_lshlrev_b32 v2, 4, v2")
        a(f"v_add_u32 v2, {XS_OFF}, v2")
        self.set_exec(0x0101010101010101)
        a(f"buffer_store_dwordx4 v[20:23], v2, {s(SWS,4)}, 0 offen sc1")
        a("s_mov_b64 exec, -1")
        self.ts("stats stored")
        a(f"s_sub_u32 {s(sT0)}, {s(sC)}, 14")
        a(f"s_lshl_b32 {s(sT0)}, {s(sT0)}, 3")
        a(f"s_add_u32 {s(sT0)}, {s(sT0)}, {s(sW)}")
        a(f"s_lshl_b32 {s(sT0)}, {s(sT0)}, 6")
        a(f"s_lshl_b32 {s(sT1)}, {s(sR)}, 2")
        a(f"s_add_u32 {s(sT0)}, {s(sT0)}, {s(sT1)}")
        a(f"s_lshl_b32 {s(sT0)}, {s(sT0)}, 11")
        a(f"s_add_u32 {s(sT0)}, {s(sT0)}, {O_OFF}")
        a(f"v_lshlrev_b32 {v(T)}, 7, v1")
        a(f"buffer_load_dword {v(86)}, {v(T)}, {s(SWS,4)}, {s(sT0)} offen sc1")
        if self.hplain:
            a(f"s_sub_u32 {s(sT0)}, {s(sC)}, 14")
            a(f"s_lshl_b32 {s(sT0)}, {s(sT0)}, 3")
            a(f"s_add_u32 {s(sT0)}, {s(sT0)}, {s(sW)}")
            a(f"s_lshl_b32 {s(sT1)}, {s(sR)}, 4")
            a(f"s_add_u32 {s(sT0)}, {s(sT0)}, {s(sT1)}")
            a(f"s_mul_i32 {s(sT1)}, {s(sT0)}, {56*128}")
            a(f"s_add_u32 {s(sT1)}, {s(sT1)}, {H_OFF}")
            self.set_exec((1 << 56) - 1)
            a(f"buffer_load_dword {v(86)}, {v(T)}, {s(SWS,4)}, {s(sT1)} offen sc1")
            a(f"s_mul_i32 {s(sT1)}, {s(sT0)}, {14*128}")
            a(f"s_add_u32 {s(sT1)}, {s(sT1)}, {HS_OFF}")
            self.set_exec((1 << 14) - 1)
            a(f"buffer_load_dword {v(86)}, {v(T)}, {s(SWS,4)}, {s(sT1)} offen sc1")
            a("s_mov_b64 exec, -1")
        if self.stop_after >= 2:
            self.p2_pre(); self.p2_copy()
        self.publish(0, True)
        if self.tp & 12:
            l = a.newlabel("M3")
            a(f"s_cmp_eq_u32 {s(sROLE)}, 0")
            a(f"s_cbranch_scc1 {l}")
            self.touch(SW1, (sT, 1, 3))
            a.label(l)
        self.idle_touch_setup()
        if self.tp & 2:
            lI = "L_P2POLL"
            rounds = [(SWO, h) for h in range(3)] + [(SW1, h) for h in range(self.n1)]
            a(f"v_mov_b32 {v(58)}, {L_FLAG}")
            for srd, h in rounds:
                l1_, l2_ = a.newlabel("IR"), a.newlabel("IR")
                a(f"s_cmp_eq_u32 {s(sROLE)}, 0")
                a(f"s_cbranch_scc1 {l1_}")
                a(f"s_mov_b32 {s(sT0)}, {h*131072}")
                a(f"buffer_load_dword {v(86)}, {v(56)}, {s(srd,4)}, {s(sT0)} offen")
                a("s_waitcnt vmcnt(0)")
                a.label(l1_)
                a(f"s_cmp_lg_u32 {s(sW)}, 0")
                a(f"s_cbranch_scc1 {l2_}")
                a(f"buffer_load_dwordx2 {v(62,2)}, {v(61)}, {s(SWS,4)}, 0 offen{self.kvsc}")
                a("s_waitcnt vmcnt(0)")
                self.flag_check(62, 64)
                a(f"s_bcnt1_i32_b64 {s(sT0)}, vcc")
                a(f"v_mov_b32 {v(59)}, {s(sT0)}")
                a(f"ds_write_b32 {v(58)}, {v(59)}")
                a.label(l2_)
                a("s_waitcnt lgkmcnt(0)")
                a("s_barrier")
                a(f"ds_read_b32 {v(59)}, {v(58)}")
                a("s_waitcnt lgkmcnt(0)")
                a(f"v_readfirstlane_b32 {s(sT0)}, {v(59)}")
                a("s_barrier")
                a(f"s_cmp_lt_u32 {s(sT0)}, 50")
                a(f"s_cbranch_scc1 {lI}")
        a("s_nop 7")
        a("s_branch L_P2POLL")
        self.a = main
        self.side = side

    def wo_addr(self):
        a = self.a
        if True:
            a(f"s_and_b32 {s(sT1)}, {s(sW)}, 1")
            a(f"s_lshl_b32 {s(sT0)}, {s(sROLE)}, 1")
            a(f"s_add_u32 {s(sT0)}, {s(sT0)}, {s(sT1)}")
            a(f"s_mul_i32 {s(sT0)}, {s(sT0)}, {112*128}")
            a(f"s_add_u32 {s(sT0)}, {s(sT0)}, {L_WO}")
            a(f"s_mov_b32 {s(sU0)}, 0")
            self.tr128_addr(58, False, sT0)
            a(f"v_xor_b32 {v(57)}, 64, {v(58)}")
            a(f"s_lshl_b32 {s(sU0)}, {s(sT1)}, 6")
            a(f"s_and_b32 {s(sT1)}, {s(sW)}, 2")
            a(f"s_lshl_b32 {s(sT1)}, {s(sT1)}, 4")
            a(f"v_and_b32 {v(T)}, 31, v1")
            a(f"v_add_u32 {v(T)}, {s(sT1)}, {v(T)}")
            a(f"s_lshl_b32 {s(sT0)}, {s(sROLE)}, 5")
            a(f"s_add_u32 {s(sT0)}, {s(sT0)}, {s(sU0)}")
            a(f"v_lshrrev_b32 {v(T2)}, 5, v1")
            a(f"v_lshl_add_u32 {v(T2)}, {v(T2)}, 3, {s(sT0)}")
            a(f"v_bfe_u32 {v(59)}, v1, 1, 1")
            a(f"v_lshlrev_b32 {v(59)}, 6, {v(59)}")
            a(f"v_xor_b32 {v(59)}, {v(59)}, {v(T2)}")
            a(f"v_lshl_add_u32 {v(59)}, {v(T)}, 7, {v(59)}")
            a(f"v_add_u32 {v(59)}, {L_XR}, {v(59)}")
            a(f"s_lshl_b32 {s(sT0)}, {s(sR)}, 7")
            a(f"s_lshl_b32 {s(sT1)}, {s(sTH)}, 6")
            a(f"s_add_u32 {s(sT0)}, {s(sT0)}, {s(sT1)}")
            a(f"v_add_u32 {v(T)}, {s(sT0)}, {v(T)}")
            a(f"v_mul_u32_u24 {v(T)}, 896, {v(T)}")
            a(f"s_lshl_b32 {s(sT0)}, {s(sCT)}, 7")
            a(f"v_add3_u32 {v(85)}, {v(T)}, {v(T2)}, {s(sT0)}")

    def wo_read(self):
        a = self.a
        if True:
            for k in range(16):
                ks, n_ = divmod(k, 2)
                d = R_C + 4 * k if k < 14 else 232 + 4 * (k - 14)
                off = (28 * (ks // 2) + 16 * (ks % 2) - 4 * ((ks // 2) & 1)) * 128
                a(f"ds_read_b64_tr_b16 {v(d,2)}, {v(58-n_)} offset:{off}")
                a(f"ds_read_b64_tr_b16 {v(d+2,2)}, {v(58-n_)} offset:{off+512}")
            a(f"ds_read_b64 {v(vHRES,2)}, {v(59)}")
            a(f"ds_read_b64 {v(vHRES+2,2)}, {v(59)} offset:16")

    def p2_pre(self):
        a = self.a
        QF = 72; SR = R_A; OA = 16; KB = 32; vM = 12
        AO = R_A + 80; BN = R_A + 84
        a(f"s_mul_i32 {s(sT0)}, {s(sC)}, 7")
        a(f"s_lshr_b32 {s(sT0)}, {s(sT0)}, 1")
        a(f"v_lshrrev_b32 {v(T)}, 5, v1")
        a(f"v_and_b32 {v(69)}, 31, v1")
        for p_ in range(2):
            a(f"v_add3_u32 {v(T2)}, {v(T)}, {s(sT0)}, {2*p_}")
            a(f"v_lshrrev_b32 {v(65+p_)}, 2, {v(T2)}")
            a(f"v_lshlrev_b32 {v(65+p_)}, 17, {v(65+p_)}")
            a(f"v_and_b32 {v(T2)}, 3, {v(T2)}")
            a(f"v_lshl_add_u32 {v(65+p_)}, {v(T2)}, 9, {v(65+p_)}")
        a(f"s_and_b32 {s(82)}, {s(sW)}, 1")
        a(f"s_cmp_eq_u32 {s(82)}, 1")
        a(f"s_cselect_b64 {s(sSAVE,2)}, -1, 0")
        a(f"v_cndmask_b32 {v(68)}, {v(65)}, {v(66)}, {s(sSAVE,2)}")
        a(f"v_lshl_add_u32 {v(67)}, {v(69)}, 4, {v(68)}")
        a(f"s_lshl_b32 {s(sT1)}, {s(82)}, 1")
        a(f"v_add_u32 {v(T2)}, {s(sT1)}, {v(T)}")
        a(f"v_lshlrev_b32 {v(T2)}, 2, {v(T2)}")
        a(f"v_sub_u32 {v(T2)}, {v(69)}, {v(T2)}")
        a(f"v_and_b32 {v(T2)}, 31, {v(T2)}")
        a(f"v_lshl_add_u32 {v(68)}, {v(T2)}, 4, {v(68)}")
        a(f"v_lshl_add_u32 {v(65)}, {v(69)}, 4, {v(65)}")
        a(f"v_lshl_add_u32 {v(66)}, {v(69)}, 4, {v(66)}")
        a(f"s_lshl_b32 {s(sT1)}, {s(sR)}, 2")
        a(f"s_add_u32 {s(sT2)}, {s(sT1)}, {s(sT)}")
        a(f"s_lshl_b32 {s(72)}, {s(sT2)}, 11")
        a(f"s_lshl_b32 {s(sT3)}, {s(sC)}, 17")
        a(f"s_add_u32 {s(73)}, {s(72)}, {s(sT3)}")
        a(f"s_add_u32 {s(73)}, {s(73)}, {O_OFF}")
        a(f"s_lshr_b32 {s(sT3)}, {s(sW)}, 1")
        a(f"s_mul_i32 {s(sT3)}, {s(sT3)}, 3")
        a(f"s_add_u32 {s(sT1)}, {s(sT1)}, {s(sT3)}")
        a(f"s_add_u32 {s(sT1)}, {s(sT1)}, {14*64-8}")
        a(f"s_lshl_b32 {s(74)}, {s(sT1)}, 11")
        a(f"s_lshl_b32 {s(sT3)}, {s(sT3)}, 11")
        a(f"s_lshl_b32 {s(75)}, {s(82)}, 10")
        a(f"s_add_u32 {s(75)}, {s(75)}, {s(sT3)}")
        vK = 2; vV = 3
        sB = sT4
        a(f"s_lshl_b32 {s(sT0)}, {s(sROLE)}, 2")
        a(f"s_sub_u32 {s(76)}, {s(sT)}, {s(sT0)}")
        a(f"s_add_u32 {s(76)}, {s(76)}, 4")
        a(f"s_lshl_b32 {s(sT0)}, {s(76)}, 11")
        a(f"s_add_u32 {s(sT0)}, {s(sT0)}, {L_K}")
        a(f"v_lshl_add_u32 {v(vK)}, v1, 4, {s(sT0)}")
        a(f"v_bfe_u32 {v(T)}, v1, 4, 1")
        a(f"v_and_b32 {v(vV)}, 3, v1")
        a(f"v_lshl_add_u32 {v(T)}, {v(T)}, 2, {v(vV)}")
        a(f"v_lshrrev_b32 {v(T2)}, 1, {v(T)}")
        a(f"v_lshrrev_b32 {v(vV)}, 5, v1")
        a(f"v_add_u32 {v(vV)}, {v(vV)}, {v(T2)}")
        a(f"v_bfe_u32 {v(vV+1)}, v1, 2, 2")
        a(f"v_lshl_add_u32 {v(8)}, {v(vV)}, 2, {v(vV+1)}")
        a(f"v_lshl_add_u32 {v(T2)}, {v(T2)}, 9, {s(sT0)}")
        a(f"v_and_b32 {v(vV)}, 1, v1")
        a(f"v_lshl_add_u32 {v(T2)}, {v(vV)}, 3, {v(T2)}")
        a(f"v_add_u32 {v(T2)}, {L_V-L_K}, {v(T2)}")
        a(f"s_and_b32 {s(sT1)}, {s(sC)}, 1")
        a(f"s_mul_i32 {s(sT1)}, {s(sT1)}, 7")
        a(f"s_sub_u32 {s(sT1)}, 7, {s(sT1)}")
        a(f"v_cmp_eq_u32 {s(sSAVE,2)}, {s(sT1)}, {v(T)}")
        a(f"v_mov_b32 {v(T)}, {L_ONES}")
        for k in range(4):
            a(f"v_add_u32 {v(vV+k)}, {8*k}, {v(8)}")
            a(f"v_and_b32 {v(vV+k)}, 31, {v(vV+k)}")
            a(f"v_lshl_add_u32 {v(vV+k)}, {v(vV+k)}, 4, {v(T2)}")
            a(f"v_cndmask_b32 {v(vV+k)}, {v(vV+k)}, {v(T)}, {s(sSAVE,2)}")
        sFV = sT5
        a(f"s_lshl_b32 {s(sT0)}, {s(sR)}, 2")
        a(f"s_sub_i32 {s(77)}, 8, {s(sT0)}")
        a(f"s_sub_i32 {s(77)}, {s(77)}, {s(76)}")
        a(f"s_mov_b32 {s(sT0)}, 0")
        a(f"s_lshl_b32 {s(sT2)}, {s(sC)}, 8")
        self.rows128_src(9, 3584, sT0, sT2)
        sWs8, sWl8, sWs4, sWl4 = sKC, sKC + 1, sKC + 2, sKC + 3
        a(f"s_mul_i32 {s(78)}, {s(sW)}, {8*3584}")
        a(f"s_lshl_b32 {s(79)}, {s(sW)}, 10")
        a(f"s_mul_i32 {s(80)}, {s(sT)}, {8*3584}")
        a(f"s_lshl_b32 {s(81)}, {s(sT)}, 10")
        vMA, vMX, vOS = 7, 8, 10
        a(f"s_mul_i32 {s(sT0)}, {s(sT)}, 4608")
        a(f"s_add_u32 {s(sT0)}, {s(sT0)}, {L_MRG}")
        a(f"v_lshl_add_u32 {v(vMA)}, v1, 4, {s(sT0)}")
        a(f"s_lshl_b32 {s(sT1)}, {s(sROLE)}, 8")
        a(f"s_add_u32 {s(sT0)}, {s(sT0)}, {s(sT1)}")
        a(f"s_add_u32 {s(sT0)}, {s(sT0)}, 4096")
        a(f"v_lshl_add_u32 {v(vMX)}, v1, 2, {s(sT0)}")
        a(f"v_xor_b32 {v(11)}, 256, {v(vMX)}")
        assert (L_MRG + 4096) % 512 == 0 and 4608 % 512 == 0
        a(f"v_lshl_add_u32 {v(vOS)}, v1, 4, {s(73)}")
        a(f"v_lshrrev_b32 {v(T)}, 4, v1")
        a(f"v_sub_u32 {v(T)}, {s(sR)}, {v(T)}")
        a(f"v_max_i32 {v(T)}, 0, {v(T)}")
        a(f"v_and_b32 {v(T2)}, 15, v1")
        a(f"v_cmp_le_u32 vcc, 7, {v(T2)}")
        a(f"v_cndmask_b32 {v(62)}, 0, 1, vcc")
        a(f"v_and_b32 {v(60)}, 12, {v(T)}")
        a(f"v_lshl_add_u32 {v(60)}, {v(62)}, 1, {v(60)}")
        a(f"v_bfe_u32 {v(61)}, {v(T)}, 1, 1")
        a(f"v_add_u32 {v(60)}, {v(60)}, {v(61)}")
        a(f"v_and_b32 {v(61)}, 1, {v(T)}")
        a(f"v_sub_u32 {v(61)}, {v(61)}, {v(62)}")
        a(f"v_mad_i32_i24 {v(61)}, {v(61)}, 7, {v(T2)}")
        a(f"v_cmp_le_u32 vcc, 14, {v(T2)}")
        a(f"v_cndmask_b32 {v(60)}, {v(60)}, {v(T)}, vcc")
        a(f"v_cndmask_b32 {v(61)}, {v(61)}, {v(T2)}, vcc")
        a(f"v_mov_b32 {v(62)}, {s(sR)}")
        a(f"v_cmp_le_u32 vcc, 48, v1")
        a(f"v_cndmask_b32 {v(60)}, {v(60)}, {v(62)}, vcc")
        a(f"v_cndmask_b32 {v(61)}, {v(61)}, {v(T2)}, vcc")
        a(f"v_lshl_add_u32 {v(60)}, {v(60)}, 4, {v(61)}")
        a(f"v_lshlrev_b32 {v(T)}, 7, {v(60)}")
        a(f"v_add_u32 {v(61)}, {FL0_OFF}, {v(T)}")

    def p2_copy(self):
        a = self.a
        for d, src in ((sKC+6, 72), (sU1, 73), (sKC+4, 74), (sKC+5, 75), (sT4, 76), (sT5, 77), (sKC, 78), (sKC+1, 79)):
            a(f"s_mov_b32 {s(d)}, {s(src)}")
        a(f"v_mov_b32 {v(T)}, {L_ONES}")
        a(f"v_lshl_add_u32 {v(T)}, v1, 11, {v(T)}")
        a(f"v_mov_b32 {v(70)}, 0x3f80")
        a(f"v_mov_b32 {v(71)}, 0")
        a("s_mov_b64 exec, 31")
        a(f"ds_write_b64 {v(T)}, {v(70,2)}")
        a("s_mov_b64 exec, -1")

    def p2_late(self):
        a = self.a
        OA = 16; AO = R_A + 80; BN = R_A + 84
        a(f"v_mov_b32 {v(T)}, {s(sONES)}")
        a(f"v_cndmask_b32 {v(AO)}, {v(T)}, 0, {s(sHI,2)}")
        for k in range(1, 4): a(f"v_mov_b32 {v(AO+k)}, 0")
        for k in range(1, 4): a(f"v_mov_b32 {v(BN+k)}, 0")
        for k in range(16): a(f"v_mov_b32 {v(OA+k)}, 0")
        self.masks()

    def p2(self):
        a = self.a
        QF = 72
        SR = R_A
        OA = 16
        KB = 32
        vM = 12
        AO = R_A + 80
        BN = R_A + 84
        full = self.stop_after >= 3
        vK = 2; vV = 3; sB = sT4; sFV = sT5
        sWs8, sWl8, sWs4, sWl4 = sKC, sKC + 1, sKC + 2, sKC + 3
        vMA, vMX, vOS = 7, 8, 10
        lw = a.newlabel("P2W"); lw0 = a.newlabel("P2W")
        def w1dma(items, four):
            if not full: return
            l = self.busy_begin()
            for dp, q0 in items:
                a(f"s_add_u32 {s(sT0)}, {s(sWs4 if four else sWs8)}, {q0*8*3584 + 128*dp}")
                self.dma(9, SW1, sT0, (sWl4 if four else sWl8, L_W1B * dp + 1024 * q0))
            a.label(l)
        self.idle_path()
        a.label("L_P2POLL")
        self.ts("pre poll")
        a(f"s_cmp_lg_u32 {s(sW)}, 0")
        a(f"s_cbranch_scc1 {lw}")
        self.poll(61, 62, 64, (1 << 64) - 1, "KV", sleep=self.kvsleep, sc=self.kvsc)
        self.ts("poll done")
        self.set_exec(0xffff << 48)
        a(f"v_lshrrev_b32 {v(63)}, 28, {v(63)}")
        a(f"v_cmp_ne_u32 vcc, {s(sXCC)}, {v(63)}")
        a(f"s_mov_b64 exec, -1")
        a(f"s_cmp_eq_u64 vcc, 0")
        a(f"s_cselect_b32 {s(sT0)}, 1, 0")
        a(f"v_mov_b32 {v(T2)}, {s(sT0)}")
        a(f"v_mov_b32 {v(T)}, {L_FLAG}")
        a(f"ds_write_b32 {v(T)}, {v(T2)}")
        a.label(lw)
        a("s_waitcnt lgkmcnt(0)")
        self.ts("own wait done")
        a("s_barrier")
        self.ts("QKV flags seen")
        for k in range(3):
            a(f"s_add_u32 {s(sT3)}, {s(sKC+4)}, {2048*k}")
            self.dma(67, SWS, sT3, (sKC+5, L_K + 2048 * k), sc1=True)
        for p_ in range(2):
            a(f"buffer_load_dwordx4 {v(QF+4*p_,4)}, {v(65+p_)}, {s(SWS,4)}, {s(sKC+6)} offen sc1")
        a(f"v_mov_b32 {v(T)}, {L_FLAG}")
        a(f"ds_read_b32 {v(13)}, {v(T)}")
        self.p2_late()
        a("s_waitcnt lgkmcnt(0)")
        a(f"v_readfirstlane_b32 {s(sLOCAL)}, {v(13)}")
        a("s_waitcnt vmcnt(0)")
        a("s_barrier")
        self.ts("K landed")
        for k in range(3):
            a(f"s_add_u32 {s(sT3)}, {s(sKC+4)}, {2048*k+14*64*2048}")
            self.dma(68, SWS, sT3, (sKC+5, L_V + 2048 * k), sc1=True)
        NEG = f32bits(-1.0e30)
        def valid_branch(j, lab):
            if j == 4:
                a(f"s_cmp_eq_u32 {s(sROLE)}, 1")
                a(f"s_cbranch_scc1 {lab}")
            else:
                a(f"s_cmp_gt_i32 {s(sFV)}, {j}")
                a(f"s_cbranch_scc1 {lab}")
        for j in range(5):
            for k in range(2):
                a(f"ds_read_b128 {v(KB+8*j+4*k,4)}, {v(vK)} offset:{2048*j+1024*k}")
        def zero_foreign(base):
            lz1, lz2 = a.newlabel("ZF"), a.newlabel("ZF")
            a(f"s_bitcmp1_b32 {s(sC)}, 0")
            a(f"s_cbranch_scc1 {lz1}")
            a(f"v_cndmask_b32 {v(base+6)}, {v(base+6)}, 0, {s(sHI,2)}")
            a(f"v_cndmask_b32 {v(base+7)}, {v(base+7)}, 0, {s(sHI,2)}")
            a(f"s_branch {lz2}")
            a.label(lz1)
            a(f"v_cndmask_b32 {v(base)}, 0, {v(base)}, {s(sHI,2)}")
            a(f"v_cndmask_b32 {v(base+1)}, 0, {v(base+1)}, {s(sHI,2)}")
            a.label(lz2)
        zero_foreign(QF)
        a(f"v_mov_b32 {v(vM)}, {NEG:#x}")
        a(f"v_mov_b32 {v(13)}, {NEG:#x}")
        for j in range(5):
            lsk = a.newlabel("QS")
            a(f"s_waitcnt lgkmcnt({8-2*j})")
            valid_branch(j, lsk)
            a(f"{MF} {v(SR+16*j,16)}, {v(KB+8*j,4)}, {v(QF,4)}, 0")
            a(f"{MF} {v(SR+16*j,16)}, {v(KB+8*j+4,4)}, {v(QF+4,4)}, {v(SR+16*j,16)}")
            a.label(lsk)
        sched = self.w1sched
        rounds = [(0, 8 * k) for k in range(7)] + [(1, 8 * k) for k in range(7)]
        def w1next(n):
            it = [rounds.pop(0) for _ in range(min(n, len(rounds)))]
            if it: w1dma(it, False)
            return len(it)
        npre_max = 0
        a(f"v_mov_b32 {v(T)}, {NEG:#x}")
        for j in range(5):
            lsk = a.newlabel("MX")
            valid_branch(j, lsk)
            b = SR + 16 * j
            if j == 4:
                for k in range(16): a(f"v_cndmask_b32 {v(b+k)}, {v(T)}, {v(b+k)}, {s(sMASK+2*k,2)}")
            if j == 0:
                lm = a.newlabel("MK")
                a(f"s_cmp_eq_u32 {s(sROLE)}, 0")
                a(f"s_cbranch_scc1 {lm}")
                for k in range(16): a(f"v_cndmask_b32 {v(b+k)}, {v(b+k)}, {v(T)}, {s(sMASK+2*k,2)}")
                a.label(lm)
            for k in range(8):
                d = vM if k % 2 == 0 else 13
                a(f"v_max3_f32 {v(d)}, {v(d)}, {v(b+2*k)}, {v(b+2*k+1)}")
            a.label(lsk)
            npre_max += w1next(sched[0][j])
        a(f"v_max_f32 {v(vM)}, {v(vM)}, {v(13)}")
        a(f"v_mov_b32 {v(T)}, {v(vM)}")
        a(f"v_permlane32_swap_b32 {v(T)}, {v(vM)}")
        a(f"v_max_f32 {v(vM)}, {v(vM)}, {v(T)}")
        a(f"ds_write_b32 {v(vMX)}, {v(vM)}")
        assert npre_max <= 11
        lv1, lv2 = a.newlabel("VW"), a.newlabel("VW")
        a(f"s_cmp_eq_u32 {s(sBUSY)}, 1")
        a(f"s_cbranch_scc1 {lv1}")
        a("s_waitcnt vmcnt(0)")
        a.label(lv1)
        a(f"s_waitcnt vmcnt({npre_max if full else 0}) lgkmcnt(0)")
        a("s_barrier")
        a(f"ds_read_b32 {v(T)}, {v(11)}")
        for j in range(5):
            for st in range(2):
                for rr in range(2):
                    a(f"ds_read_b64_tr_b16 {v(KB+8*j+4*st+2*rr,2)}, {v(vV+2*st+rr)} offset:{2048*j}")
        a("s_waitcnt lgkmcnt(15)")
        a(f"v_max_f32 {v(vM)}, {v(vM)}, {v(T)}")
        a(f"v_cvt_pk_bf16_f32 {v(T)}, -{v(vM)}, 0")
        a(f"v_lshlrev_b32 {v(T)}, 16, {v(T)}")
        a(f"v_sub_f32 {v(T)}, -{v(vM)}, {v(T)}")
        a(f"v_cvt_pk_bf16_f32 {v(BN)}, -{v(vM)}, {v(T)}")
        self.ts("max done")
        for j in range(5):
            lsk = a.newlabel("SB")
            valid_branch(j, lsk)
            a(f"{MF} {v(SR+16*j,16)}, {v(AO,4)}, {v(BN,4)}, {v(SR+16*j,16)}")
            a.label(lsk)
        w1next(sched[1])
        a("s_waitcnt lgkmcnt(0)")
        for j in range(5):
            lsk = a.newlabel("PS")
            valid_branch(j, lsk)
            b = SR + 16 * j
            for h_ in range(2):
                for k in range(8): a(f"v_exp_f32 {v(b+8*h_+k)}, {v(b+8*h_+k)}")
                for k in range(4): a(f"v_cvt_pk_bf16_f32 {v(b+8*h_+k)}, {v(b+8*h_+2*k)}, {v(b+8*h_+2*k+1)}")
            a(f"{MF} {v(OA,16)}, {v(KB+8*j,4)}, {v(b,4)}, {v(OA,16)}")
            a(f"{MF} {v(OA,16)}, {v(KB+8*j+4,4)}, {v(b+8,4)}, {v(OA,16)}")
            a.label(lsk)
            w1next(sched[2][j])
        assert not rounds
        self.ts("attn partial done")
        l1 = a.newlabel("MG")
        a(f"s_cmp_eq_u32 {s(sROLE)}, 1")
        a(f"s_cbranch_scc0 {l1}")
        for k in range(4): a(f"ds_write_b128 {v(vMA)}, {v(OA+4*k,4)} offset:{1024*k}")
        a.label(l1)
        a(f"s_lshl_b32 {s(sT1)}, {s(sR)}, 9")
        a(f"s_lshl_b32 {s(sT2)}, {s(sT)}, 7")
        a(f"s_add_u32 {s(sT1)}, {s(sT1)}, {s(sT2)}")
        a(f"s_lshl_b32 {s(sT2)}, {s(sC)}, 3")
        a(f"s_add_u32 {s(sT1)}, {s(sT1)}, {s(sT2)}")
        a(f"s_add_u32 {s(sT1)}, {s(sT1)}, {FLG(1)}")
        a(f"s_lshl_b32 {s(sT2)}, {s(sXCC)}, 28")
        a(f"s_or_b32 {s(sT2)}, {s(sT2)}, {s(sTOK+1)}")
        a(f"v_mov_b32 {v(13)}, {s(sT1)}")
        a(f"v_mov_b32 {v(60)}, {s(sTOK)}")
        a(f"v_mov_b32 {v(61)}, {s(sT2)}")
        a("s_waitcnt vmcnt(0) lgkmcnt(0)")
        a("s_barrier")
        self.ts("merge barrier")
        l2, l3 = a.newlabel("MG"), a.newlabel("MG")
        a(f"s_cmp_eq_u32 {s(sROLE)}, 0")
        a(f"s_cbranch_scc0 {l2}")
        O1 = 32
        for k in (3, 0, 1, 2): a(f"ds_read_b128 {v(O1+4*k,4)}, {v(vMA)} offset:{1024*k}")
        a(f"s_bitcmp1_b32 {s(sC)}, 0")
        a(f"s_cselect_b64 {s(sSAVE,2)}, -1, 0")
        a("s_waitcnt lgkmcnt(2)")
        for k in (6, 7, 0, 1): a(f"v_pk_add_f32 {v(OA+2*k,2)}, {v(OA+2*k,2)}, {v(O1+2*k,2)}")
        a(f"v_cndmask_b32 {v(T)}, {v(OA)}, {v(OA+12)}, {s(sHI,2)}")
        a(f"v_mov_b32 {v(T2)}, {v(T)}")
        a(f"v_permlane32_swap_b32 {v(T)}, {v(T2)}")
        a(f"v_cndmask_b32 {v(T2)}, {v(T2)}, {v(T)}, {s(sSAVE,2)}")
        a(f"v_rcp_f32 {v(T2)}, {v(T2)}")
        a("s_waitcnt lgkmcnt(0)")
        for k in (2, 3, 4, 5): a(f"v_pk_add_f32 {v(OA+2*k,2)}, {v(OA+2*k,2)}, {v(O1+2*k,2)}")
        a(f"v_mov_b32 {v(T)}, {v(T2)}")
        for aa in range(4):
            for k in range(2): a(f"v_pk_mul_f32 {v(OA+4*aa+2*k,2)}, {v(OA+4*aa+2*k,2)}, {v(T,2)}")
            for k in range(2): a(f"v_cvt_pk_bf16_f32 {v(O1+2*aa+k)}, {v(OA+4*aa+2*k)}, {v(OA+4*aa+2*k+1)}")
        zero_foreign(O1)
        for h_ in range(2):
            a(f"v_permlane32_swap_b32 {v(O1+4*h_)}, {v(O1+4*h_+2)}")
            a(f"v_permlane32_swap_b32 {v(O1+4*h_+1)}, {v(O1+4*h_+3)}")
        def ost(sc):
            for h_ in range(2):
                a(f"buffer_store_dwordx4 {v(O1+4*h_,4)}, {v(vOS)}, {s(SWS,4)}, 0 offen offset:{1024*h_}{sc}")
        if self.oplain: self.two_path(ost)
        else: ost(" sc1")
        if full: self.p3_addrA()
        a(f"s_mov_b64 exec, 1")
        a("s_waitcnt vmcnt(0)")
        self.two_path(lambda sc: a(f"buffer_store_dwordx2 {v(60,2)}, {v(13)}, {s(SWS,4)}, 0 offen{sc}"))
        a(f"s_mov_b64 exec, -1")
        self.ts("O flag stored")
        a(f"s_branch {l3}")
        a.label(l2)
        if full:
            self.p3_addrA()
            self.p3_moves()
        self.w1dma = w1dma
        a.label(l3)
        self.ts("O published")

    def w1_move(self, dp, ldsbase):
        a = self.a
        l = a.newlabel("W1M")
        a(f"s_lshr_b32 {s(sT0)}, {s(sT)}, 1")
        a(f"s_cmp_lg_u32 {s(sT0)}, {dp}")
        a(f"s_cbranch_scc1 {l}")
        a(f"s_and_b32 {s(sU0)}, {s(sW)}, 1")
        a(f"s_lshl_b32 {s(sU0)}, {s(sU0)}, 6")
        a(f"s_mov_b32 {s(sT0)}, {ldsbase}")
        self.tr128_addr(3, True, sT0)
        self.move_frags(R_A, 3, 28, True)
        a.label(l)

    def p3_addrA(self):
        a = self.a
        z = lambda k: 64 + k
        sN, sUu, sTile2 = z(0), z(1), z(2)
        a(f"s_and_b32 {s(sN)}, {s(sW)}, 1")
        a(f"s_bfe_u32 {s(sUu)}, {s(sW)}, 0x10001")
        a(f"s_lshl_b32 {s(sTile2)}, {s(sR)}, 2")
        a(f"s_lshl_b32 {s(sT1)}, {s(sTH)}, 1")
        a(f"s_add_u32 {s(sTile2)}, {s(sTile2)}, {s(sT1)}")
        a(f"s_lshl_b32 {s(sT0)}, {s(sROLE)}, 1")
        a(f"s_add_u32 {s(z(3))}, {s(sT0)}, {s(sN)}")
        a(f"s_lshl_b32 {s(sT0)}, {s(z(3))}, 8")
        a(f"s_add_u32 {s(sT2)}, {s(sTile2)}, {s(sUu)}")
        a(f"s_add_u32 {s(sT0)}, {s(sT0)}, {s(sT2)}")
        a(f"s_lshl_b32 {s(z(5))}, {s(sT0)}, 11")
        a(f"s_add_u32 {s(z(5))}, {s(z(5))}, {O_OFF}")
        a(f"s_lshl_b32 {s(sT0)}, {s(sT2)}, 7")
        a(f"s_lshl_b32 {s(sT1)}, {s(z(3))}, 5")
        a(f"s_add_u32 {s(sT0)}, {s(sT0)}, {s(sT1)}")
        a(f"s_add_u32 {s(z(4))}, {s(sT0)}, {FLG(1)}")

    def p3_moves(self):
        a = self.a
        lb = self.busy_begin()
        for k in range(8): a(f"v_mov_b32 {v(4+k)}, {v(232+k)}")
        a(f"s_and_b32 {s(sU0)}, {s(sW)}, 1")
        a(f"s_lshl_b32 {s(sU0)}, {s(sU0)}, 6")
        a(f"s_lshr_b32 {s(sT0)}, {s(sT)}, 1")
        a(f"s_mul_i32 {s(sT0)}, {s(sT0)}, {L_W1B}")
        self.tr128_addr(3, True, sT0)
        self.move_frags(R_A, 3, 28, True)
        a.label(lb)

    def p3_rest(self):
        a = self.a
        z = lambda k: 64 + k
        sN, sUu, sTile2 = z(0), z(1), z(2)
        a(f"s_lshl_b32 {s(sT1)}, {s(sUu)}, 15")
        a(f"s_add_u32 {s(sT1)}, {s(sT1)}, {L_RED3D}")
        a(f"s_lshl_b32 {s(sT0)}, {s(z(3))}, 11")
        a(f"s_add_u32 {s(z(15))}, {s(sT0)}, {s(sT1)}")
        a(f"s_lshl_b32 {s(sT0)}, {s(z(3))}, 13")
        a(f"s_add_u32 {s(z(16))}, {s(sT0)}, {s(sT1)}")
        a(f"s_add_u32 {s(sT0)}, {s(sTile2)}, {s(sUu)}")
        a(f"s_mul_i32 {s(sT0)}, {s(sT0)}, 28")
        a(f"s_lshl_b32 {s(sT1)}, {s(sCT)}, 2")
        a(f"s_add_u32 {s(sT0)}, {s(sT0)}, {s(sT1)}")
        a(f"s_lshl_b32 {s(sT1)}, {s(sN)}, 1")
        a(f"s_add_u32 {s(sT0)}, {s(sT0)}, {s(sT1)}")
        a(f"s_add_u32 {s(sT0)}, {s(sT0)}, {s(sROLE)}")
        a(f"s_lshl_b32 {s(sT1)}, {s(sT0)}, 10")
        a(f"s_add_u32 {s(z(17))}, {s(sT1)}, {H_OFF}")
        a(f"s_lshl_b32 {s(sT1)}, {s(sT0)}, 8")
        a(f"s_add_u32 {s(z(18))}, {s(sT1)}, {HS_OFF}")
        sKQ = z(7); self.sKQ = sKQ
        a(f"s_and_b32 {s(sKQ)}, {s(sW)}, 2")
        a(f"s_add_u32 {s(sKQ)}, {s(sKQ)}, {s(sROLE)}")
        a(f"s_mul_i32 {s(sT0)}, {s(sKQ)}, 448")
        a(f"s_lshl_b32 {s(sT2)}, {s(sN)}, 4")
        a(f"s_add_u32 {s(sT0)}, {s(sT0)}, {s(sT2)}")
        a(f"s_lshl_b32 {s(sT2)}, {s(sCT)}, 7")
        self.rows128_src(84, 896, sT0, sT2)
        sW2m = z(8); self.sW2m = sW2m
        a(f"s_lshl_b32 {s(sT0)}, {s(sKQ)}, 12")
        a(f"s_lshl_b32 {s(sT1)}, {s(sN)}, 11")
        a(f"s_add_u32 {s(sW2m)}, {s(sT0)}, {s(sT1)}")

    def cs1(self, role):
        a = self.a
        a(f"v_mov_b32 {v(86)}, 0")
        a("s_waitcnt lgkmcnt(0)")
        for k in range(56): a(f"v_dot2c_f32_bf16 {v(86)}, {s(sONES)}, {v(R_A+56*role+k)}")

    def p3(self):
        a = self.a
        ACC = 16; FB = 32; XR = 64
        lb_ = a.newlabel("BZ")
        a(f"s_cmp_eq_u32 {s(sBUSY)}, 1")
        a(f"s_cbranch_scc1 {lb_}")
        if self.tp & 2:
            a(f"s_and_b32 {s(sT0)}, {s(sR)}, 1")
            a(f"s_lshl_b32 {s(sT0)}, {s(sT0)}, 1")
            a(f"s_add_u32 {s(sT0)}, {s(sT0)}, {s(sC)}")
            a(f"s_sub_u32 {s(sT0)}, {s(sT0)}, 14")
            a(f"s_mul_i32 {s(sT0)}, {s(sT0)}, {448*896}")
            a(f"s_mul_i32 {s(sT1)}, {s(sW)}, {56*128}")
            a(f"s_add_u32 {s(sT0)}, {s(sT0)}, {s(sT1)}")
            a(f"v_lshl_add_u32 {v(21)}, v1, 7, {s(sT0)}")
            a("s_waitcnt vmcnt(0)")
            a("s_barrier")
            self.set_exec((1 << 56) - 1)
            for k in self.post:
                a(f"s_mov_b32 {s(sT0)}, {k*64*896}")
                a(f"buffer_load_dword {v(86)}, {v(21)}, {s(SW2,4)}, {s(sT0)} offen")
            a("s_mov_b64 exec, -1")
        a(f"s_branch L_FIN")
        a.label(lb_)
        z = lambda k: 64 + k
        sN, sUu, sTile2 = z(0), z(1), z(2)
        ACC = 16; FB = 48
        a(f"v_lshlrev_b32 {v(2)}, 4, v1")
        a(f"v_lshl_add_u32 {v(13)}, v1, 3, {s(z(4))}")
        self.poll(13, T, 12, 15, "O")
        self.ts("O flags seen")
        for hd in range(4):
            a(f"s_add_u32 {s(sT0)}, {s(z(5))}, {hd*64*2048}")
            for h_ in range(2):
                a(f"buffer_load_dwordx4 {v(FB+8*hd+4*h_,4)}, {v(2)}, {s(SWS,4)}, {s(sT0)} offen offset:{1024*h_} sc1")
        wf = lambda k: R_C + 4 * k if k < 14 else 4 + 4 * (k - 14)
        lcs, lcs2 = a.newlabel("CS0"), a.newlabel("CS0")
        a(f"s_cmp_eq_u32 {s(sROLE)}, 1")
        a(f"s_cbranch_scc1 {lcs}")
        self.p3_moves()
        a.label(lcs)
        self.p3_rest()
        for ks in range(8):
            a(f"s_waitcnt vmcnt({7-ks})")
            if ks == 0: self.ts("O stage0 landed")
            for n_ in range(2):
                a(f"{MF} {v(ACC+16*n_,16)}, {v(wf(2*ks+n_),4)}, {v(FB+4*ks,4)}, {'0' if ks==0 else v(ACC+16*n_,16)}")
        self.ts("p3 mfma done")
        XR = FB; RB = FB + 8
        a(f"v_add_u32 {v(12)}, {s(z(15))}, {v(2)}")
        a(f"v_add_u32 {v(13)}, {s(z(16))}, {v(2)}")
        a(f"v_lshlrev_b32 {v(3)}, 2, v1")
        a("s_waitcnt lgkmcnt(0)")
        a("s_barrier")
        for k in range(4):
            a(f"v_lshlrev_b32 {v(XR+2*k)}, 16, {v(vHRES+k)}")
            a(f"v_and_b32 {v(XR+2*k+1)}, 0xffff0000, {v(vHRES+k)}")
        pcs = [(0, L_HR), (1, L_HR + 16384), (2, L_HR + 32768), (3, 81920)][:self.np3] if self.stop_after >= 4 else []
        a(f"v_mov_b32 {v(8)}, {v(84)}")
        a(f"v_add_u32 {v(4)}, {8*896-1024}, {v(84)}")
        for kh_ in range(2):
            for n_ in range(2):
                d = 2 * kh_ + n_
                a(f"ds_write_b128 {v(12)}, {v(ACC+16*n_+8*kh_,4)} offset:{8192*d}")
                a(f"ds_write_b128 {v(12)}, {v(ACC+16*n_+8*kh_+4,4)} offset:{8192*d+1024}")
        for p, loc in pcs[:3]:
            a(f"s_mov_b32 {s(sT1)}, {32*p*896}")
            self.dma(8, SW2, sT1, (self.sW2m, loc))
            self.dma(4, SW2, sT1, None, off=1024)
        a("s_waitcnt lgkmcnt(0)")
        a("s_barrier")
        for sidx in range(4):
            a(f"ds_read_b128 {v(ACC+8*sidx,4)}, {v(13)} offset:{2048*sidx}")
            a(f"ds_read_b128 {v(ACC+8*sidx+4,4)}, {v(13)} offset:{2048*sidx+1024}")
        a("s_waitcnt lgkmcnt(6)")
        for k in range(4): a(f"v_pk_add_f32 {v(XR+2*k,2)}, {v(XR+2*k,2)}, {v(ACC+2*k,2)}")
        a("s_waitcnt lgkmcnt(2)")
        for k in range(4): a(f"v_pk_add_f32 {v(ACC+8+2*k,2)}, {v(ACC+8+2*k,2)}, {v(ACC+16+2*k,2)}")
        a("s_waitcnt lgkmcnt(0)")
        for k in range(4): a(f"v_pk_add_f32 {v(XR+2*k,2)}, {v(XR+2*k,2)}, {v(ACC+24+2*k,2)}")
        for k in range(4): a(f"v_pk_add_f32 {v(XR+2*k,2)}, {v(XR+2*k,2)}, {v(ACC+8+2*k,2)}")
        for k in range(4): a(f"v_cvt_pk_bf16_f32 {v(vHRES+k)}, {v(XR+2*k)}, {v(XR+2*k+1)}")
        st_ = lambda sc: a(f"buffer_store_dwordx4 {v(vHRES,4)}, {v(2)}, {s(SWS,4)}, {s(z(17))} offen{sc}")
        if self.hplain: self.two_path(st_)
        else: st_(" sc1")
        F2 = RB
        a(f"v_pk_add_f32 {v(F2,2)}, {v(XR,2)}, {v(XR+2,2)}")
        a(f"v_pk_mul_f32 {v(F2+2,2)}, {v(XR,2)}, {v(XR,2)}")
        a(f"v_pk_add_f32 {v(F2+4,2)}, {v(XR+4,2)}, {v(XR+6,2)}")
        a(f"v_pk_fma_f32 {v(F2+2,2)}, {v(XR+2,2)}, {v(XR+2,2)}, {v(F2+2,2)}")
        a(f"v_pk_add_f32 {v(F2,2)}, {v(F2,2)}, {v(F2+4,2)}")
        a(f"v_pk_fma_f32 {v(F2+2,2)}, {v(XR+4,2)}, {v(XR+4,2)}, {v(F2+2,2)}")
        a(f"v_add_f32 {v(F2)}, {v(F2)}, {v(F2+1)}")
        a(f"v_pk_fma_f32 {v(F2+2,2)}, {v(XR+6,2)}, {v(XR+6,2)}, {v(F2+2,2)}")
        a(f"v_add_f32 {v(F2+1)}, {v(F2+2)}, {v(F2+3)}")
        a(f"v_permlane32_swap_b32 {v(F2)}, {v(F2+1)}")
        a(f"v_add_f32 {v(F2)}, {v(F2)}, {v(F2+1)}")
        st_ = lambda sc: a(f"buffer_store_dword {v(F2)}, {v(3)}, {s(SWS,4)}, {s(z(18))} offen{sc}")
        if self.hplain: self.two_path(st_)
        else: st_(" sc1")
        self.ts("H stores issued")
        nk = 0
        if self.stop_after >= 4: self.p4_setup()
        self.publish(2, keep=nk)
        self.ts("H published")

    def p4_setup(self):
        a = self.a
        z = lambda k: 64 + k
        sN, sUu, sTile2, sKQ = z(0), z(1), z(2), self.sKQ
        a(f"s_lshl_b32 {s(sT0)}, {s(sKQ)}, 12")
        a(f"s_lshl_b32 {s(sU0)}, {s(sN)}, 6")
        self.tr128_addr(9, True, sT0)
        a(f"v_add_u32 {v(10)}, 65536, {v(9)}")
        a(f"s_lshl_b32 {s(sT0)}, {s(sR)}, 2")
        a(f"s_lshl_b32 {s(sT1)}, {s(sROLE)}, 1")
        a(f"s_add_u32 {s(sT0)}, {s(sT0)}, {s(sT1)}")
        a(f"s_mul_i32 {s(sT2)}, {s(sT0)}, 28672")
        a(f"s_lshl_b32 {s(sT1)}, {s(sT)}, 11")
        a(f"s_add_u32 {s(sT2)}, {s(sT2)}, {s(sT1)}")
        a(f"s_add_u32 {s(sT2)}, {s(sT2)}, {H_OFF}")
        a(f"v_add_u32 {v(3)}, {s(sT2)}, {v(2)}")
        a(f"s_lshl_b32 {s(z(9))}, {s(sW)}, 11")
        a(f"s_mul_i32 {s(sT0)}, {s(sT0)}, 112")
        a(f"s_lshl_b32 {s(sT1)}, {s(sC)}, 3")
        a(f"s_add_u32 {s(sT0)}, {s(sT0)}, {s(sT1)}")
        a(f"s_lshl_b32 {s(sT1)}, {s(sT)}, 1")
        a(f"s_add_u32 {s(sT0)}, {s(sT0)}, {s(sT1)}")
        a(f"s_lshl_b32 {s(sT0)}, {s(sT0)}, 10")
        a(f"s_add_u32 {s(sT0)}, {s(sT0)}, {H1_OFF}")
        a(f"v_add_u32 {v(7)}, {s(sT0)}, {v(2)}")
        a(f"v_add_u32 {v(11)}, {112*1024}, {v(7)}")
        a(f"s_lshl_b32 {s(sT0)}, {s(sR)}, 2")
        a(f"s_add_u32 {s(sT0)}, {s(sT0)}, {s(sT)}")
        a(f"s_mul_i32 {s(sT0)}, {s(sT0)}, 28")
        a(f"s_mul_i32 {s(sT1)}, {s(sROLE)}, 14")
        a(f"s_add_u32 {s(sT0)}, {s(sT0)}, {s(sT1)}")
        a(f"s_lshl_b32 {s(sT0)}, {s(sT0)}, 8")
        a(f"s_add_u32 {s(z(10))}, {s(sT0)}, {HS_OFF}")
        a(f"s_lshl_b32 {s(sT0)}, {s(sROLE)}, 13")
        a(f"v_add_u32 {v(5)}, {s(sT0)}, {v(2)}")
        a(f"v_add_u32 {v(6)}, 114688, {v(5)}")
        a(f"s_lshl_b32 {s(sT0)}, {s(sR)}, 11")
        a(f"s_add_u32 {s(sT0)}, {s(sT0)}, {FLG(3)}")
        a(f"s_lshl_b32 {s(sT1)}, {s(sTH)}, 9")
        a(f"s_add_u32 {s(z(12))}, {s(sT0)}, {s(sT1)}")
        a(f"s_lshl_b32 {s(sT1)}, {s(sROLE)}, 9")
        a(f"s_add_u32 {s(sT0)}, {s(sT0)}, {s(sT1)}")
        a(f"s_lshl_b32 {s(sT1)}, {s(sC)}, 5")
        a(f"s_add_u32 {s(sT0)}, {s(sT0)}, {s(sT1)}")
        a(f"s_lshl_b32 {s(sT1)}, {s(sT)}, 3")
        a(f"s_add_u32 {s(z(11))}, {s(sT0)}, {s(sT1)}")
        a(f"s_lshl_b32 {s(z(13))}, {s(sXCC)}, 28")
        a(f"s_or_b32 {s(z(13))}, {s(z(13))}, {s(sTOK+1)}")
        a(f"s_mul_i32 {s(sT0)}, {s(sTile2)}, 112")
        a(f"s_mul_i32 {s(sT2)}, {s(sKQ)}, 28")
        a(f"s_add_u32 {s(sT0)}, {s(sT0)}, {s(sT2)}")
        a(f"s_lshl_b32 {s(sT1)}, {s(sN)}, 1")
        a(f"s_add_u32 {s(sT0)}, {s(sT0)}, {s(sT1)}")
        a(f"s_lshl_b32 {s(sT0)}, {s(sT0)}, 10")
        a(f"s_add_u32 {s(z(14))}, {s(sT0)}, {H1_OFF}")
        a(f"v_lshrrev_b32 {v(T)}, 5, v1")
        a(f"v_lshl_add_u32 {v(85)}, {v(T)}, 3, {v(85)}")

    def stream_gemm(self, N, CH, rd_text, mf_text, pre_barrier, hooks, FB, NB=6):
        a = self.a
        q = []
        def lds(text, tag=None):
            a(text); q.append(tag)
        def wait_for(tag):
            idx = max(k for k, t in enumerate(q) if t == tag)
            a(f"s_waitcnt lgkmcnt({min(15, len(q)-1-idx)})")
        self.lds_wait = wait_for
        def rd(f):
            if f % CH == 0: pre_barrier(f // CH)
            lds(rd_text(f, FB + 4 * (f % NB)), ('f', f))
        for f in range(NB): rd(f)
        for f in range(N):
            wait_for(('f', f))
            a(mf_text(f, FB + 4 * (f % NB)))
            if f + NB < N: rd(f + NB)
            if f in hooks: hooks[f](lds)

    def wave_flag(self, soff_addr, off):
        a = self.a
        a(f"v_mov_b32 {v(T)}, {s(sTOK)}")
        a(f"v_mov_b32 {v(T2)}, {s(64+13)}")
        a(f"s_mov_b64 exec, 1")
        self.two_path(lambda sc: a(f"buffer_store_dwordx2 {v(T,2)}, off, {s(SWS,4)}, {s(soff_addr)} offset:{off}{sc}"))
        a(f"s_mov_b64 exec, -1")

    def w2addr(self, loc):
        return (9, loc) if loc < 65536 else ((10, loc - 65536) if loc < 131072 - 8192 else (73, loc - 131072))

    def p4(self):
        a = self.a
        z = lambda k: 64 + k
        sUu = z(1)
        ACC = 16; FB = 48; BMS = 72
        sW2m, sAm = self.sW2m, z(9)
        S = lambda k: 16384 * k
        def w2dma(p, ldsbase, half=None):
            if half in (None, 0):
                a(f"s_mov_b32 {s(sT1)}, {32*p*896}")
                self.dma(8, SW2, sT1, (sW2m, ldsbase))
            if half == 1: a(f"s_add_u32 m0, {s(sW2m)}, {ldsbase}")
            if half in (None, 1): self.dma(4, SW2, sT1, None, off=1024)
        self.w2dma = w2dma
        vCS = 86
        lcs, lcs2 = a.newlabel("CS0"), a.newlabel("CS0")
        a(f"s_cmp_eq_u32 {s(sROLE)}, 1")
        a(f"s_cbranch_scc1 {lcs}")
        self.cs1(0)
        a(f"s_branch {lcs2}")
        a.label(lcs)
        self.cs1(1)
        a.label(lcs2)
        a(f"v_lshlrev_b32 {v(T)}, 2, v0")
        a(f"v_add_u32 {v(T)}, {L_ST4+8192}, {v(T)}")
        a(f"ds_write_b32 {v(T)}, {v(vCS)}")
        a(f"v_xor_b32 {v(vAM1)}, 1024, {v(T)}")
        self.poll_group(2, 14, 1, "H")
        self.ts("H flags seen")
        def adma(i, half=None):
            if half in (None, 0):
                a(f"s_mov_b32 {s(sT0)}, {8192*i}")
                self.dma(3, SWS, sT0, (sAm, A4SLOT[i % 4]), sc1=True)
            if half == 1: a(f"s_add_u32 m0, {s(sAm)}, {A4SLOT[i % 4]}")
            if half in (None, 1): self.dma(3, SWS, sT0, None, sc1=True, off=1024)
        ops = []
        STB = R_C + 40
        for i in range(3):
            adma(i); ops += [f'A{i}'] * 2
        a(f"ds_read_b32 {v(vAM1+1)}, {v(vAM1)}")
        a(f"s_lshl_b32 {s(sT0)}, {s(sROLE)}, 11")
        a(f"s_add_u32 {s(sT0)}, {s(sT0)}, {L_ST4}")
        a(f"v_lshl_add_u32 {v(12)}, v1, 2, {s(sT0)}")
        a(f"s_lshl_b32 {s(sT0)}, {s(sTH)}, 1")
        a(f"s_add_u32 {s(sT0)}, {s(sT0)}, {s(sUu)}")
        a(f"s_lshl_b32 {s(sT0)}, {s(sT0)}, 10")
        a(f"s_add_u32 {s(sT0)}, {s(sT0)}, {L_ST4}")
        a(f"v_lshl_add_u32 {v(13)}, v1, 2, {s(sT0)}")
        a("s_waitcnt lgkmcnt(0)")
        a(f"v_add_f32 {v(vCS)}, {v(vCS)}, {v(vAM1+1)}")
        a(f"v_mov_b32 {v(T)}, {v(vCS)}")
        a(f"v_permlane32_swap_b32 {v(T)}, {v(vCS)}")
        a(f"v_add_f32 {v(vCS)}, {v(vCS)}, {v(T)}")
        self.cs_operand(vAM1, vCS)
        def vwait(tags):
            last = max(k for k, o in enumerate(ops) if o in tags)
            a(f"s_waitcnt vmcnt({len(ops)-1-last})")
        def pre_barrier(i):
            a.comment(f"---- P4 chunk {i} barrier")
            vwait([f'A{i}', f'p{i-1}'])
            if i == 3: self.lds_wait('stw')
            a("s_barrier")
            if i == 0: self.ts("H chunk0 landed")
            elif self.fine2: self.ts(f"p4 b{i}")
        def rd_text(f, reg):
            i, n = divmod(f, 8)
            slot = A4SLOT[i % 4]
            va, so = (5, slot) if slot < 65536 else (6, slot - 114688)
            return f"ds_read_b128 {v(reg,4)}, {v(va)} offset:{so+n*1024}"
        def mf_text(f, reg):
            tt, ks = divmod(f, 28)
            return f"{MF} {v(ACC+16*tt,16)}, {v(R_A+4*ks,4)}, {v(reg,4)}, {'0' if ks == 0 else v(ACC+16*tt,16)}"
        hooks = {}
        def H(f, fn):
            prev = hooks.get(f)
            hooks[f] = (lambda lds, p=prev, g=fn: (p(lds) if p else None, g(lds)))
        def op(tag): ops.append(tag)
        for j in range(4):
            H(j // 2, lambda lds, j=j: (a(f"buffer_load_dwordx4 {v(STB+4*j,4)}, {v(2)}, {s(SWS,4)}, {s(z(10))} offen offset:{1024*j} sc1"), op('S')))
        for i in range(7):
            b0 = 8 * i
            if i <= 5:
                for k in range(2):
                    def mvh(lds, j=i, k=k):
                        va, off = self.w2addr(L_HR + (j % 3) * 16384 + k * 2048)
                        lds(f"ds_read_b64_tr_b16 {v(R_C+8*j+4*k,2)}, {v(va)} offset:{off}", None)
                        lds(f"ds_read_b64_tr_b16 {v(R_C+8*j+4*k+2,2)}, {v(va)} offset:{off+1024}", None)
                    H(b0 + 3 + k, mvh)
            if i + 3 <= 6:
                H(b0 + 3, lambda lds, i=i: (adma(i + 3, 0), op(f'A{i+3}')))
                H(b0 + 4, lambda lds, i=i: (adma(i + 3, 1), op(f'A{i+3}')))
            if 1 <= i <= 4:
                H(b0 + 5, lambda lds, i=i: (w2dma(i + 2, L_HR + 16384 * ((i - 1) % 3), 0), op(f'p{i+2}')))
                H(b0 + 6, lambda lds, i=i: (w2dma(i + 2, L_HR + 16384 * ((i - 1) % 3), 1), op(f'p{i+2}')))
        self.w2b_loc = {6: S(2), 7: S(5), 8: S(6), 9: S(8), 10: S(0), 11: S(3), 12: S(0), 13: S(3)}
        when = {7: self.w78[0], 8: self.w78[1], 9: 39, 10: 47, 11: 49}
        for p in range(7 + self.nex, 12):
            f0 = when[p]
            H(f0, lambda lds, p=p: (w2dma(p, self.w2b_loc[p], 0), op('q')))
            H(f0 + 1, lambda lds, p=p: (w2dma(p, self.w2b_loc[p], 1), op('q')))
        def st_reduce(lds):
            vwait(['S'])
            for k in range(4): a(f"v_cndmask_b32 {v(STB+12+k)}, {v(STB+12+k)}, 0, {s(sHI,2)}")
            for k in range(2):
                a(f"v_pk_add_f32 {v(STB+2*k,2)}, {v(STB+2*k,2)}, {v(STB+4+2*k,2)}")
                a(f"v_pk_add_f32 {v(STB+8+2*k,2)}, {v(STB+8+2*k,2)}, {v(STB+12+2*k,2)}")
            for k in range(2): a(f"v_pk_add_f32 {v(STB+2*k,2)}, {v(STB+2*k,2)}, {v(STB+8+2*k,2)}")
            a(f"v_lshlrev_b32 {v(T)}, 4, v0")
            a(f"v_add_u32 {v(T)}, {L_ST4}, {v(T)}")
            lds(f"ds_write_b128 {v(T)}, {v(STB,4)}", 'stw')
        H(self.fst, st_reduce)
        def st_gather(lds):
            for tt in range(2):
                for hf in range(2):
                    b = STB + 8 * tt + 4 * hf
                    o = (tt * 1024 + hf * 4096) // 256
                    lds(f"ds_read2st64_b32 {v(b,2)}, {v(12)} offset0:{o} offset1:{o+1}", None)
                    lds(f"ds_read2st64_b32 {v(b+2,2)}, {v(12)} offset0:{o+2} offset1:{o+3}", 'g1')
        H(18, st_gather)
        def st_mean(lds):
            self.lds_wait('g1')
            for tt in range(2):
                b = STB + 8 * tt
                a(f"v_pk_add_f32 {v(b,2)}, {v(b,2)}, {v(b+2,2)}")
                a(f"v_pk_add_f32 {v(b+4,2)}, {v(b+4,2)}, {v(b+6,2)}")
            for tt in range(2): a(f"v_pk_add_f32 {v(STB+8*tt,2)}, {v(STB+8*tt,2)}, {v(STB+8*tt+4,2)}")
            for tt in range(2): a(f"v_add_f32 {v(STB+8*tt)}, {v(STB+8*tt)}, {v(STB+8*tt+1)}")
            for tt in range(2): a(f"v_mul_f32 {v(STB+8*tt)}, {f32bits(-1.0/448):#x}, {v(STB+8*tt)}")
        H(23, st_mean)
        def st_mean2(lds):
            for tt, bm in ((0, BMS), (1, STB + 12)):
                b = STB + 8 * tt
                a(f"v_cvt_pk_bf16_f32 {v(bm)}, {v(b)}, {v(b)}")
                a(f"v_and_b32 {v(b+1)}, 0xffff0000, {v(bm)}")
                a(f"v_sub_f32 {v(b+1)}, {v(b)}, {v(b+1)}")
                a(f"v_cvt_pk_bf16_f32 {v(bm+1)}, {v(b+1)}, 0")
                a(f"v_mov_b32 {v(bm+2)}, 0")
                a(f"v_mov_b32 {v(bm+3)}, 0")
            b = STB
            for hf in range(2):
                lds(f"ds_read2st64_b32 {v(b+4*hf,2)}, {v(13)} offset0:{16*hf} offset1:{16*hf+1}", None)
                lds(f"ds_read2st64_b32 {v(b+4*hf+2,2)}, {v(13)} offset0:{16*hf+2} offset1:{16*hf+3}", 'g2')
        H(25, st_mean2)
        H(27, lambda lds: a(f"{MF} {v(ACC,16)}, {v(vAM1,4)}, {v(BMS,4)}, {v(ACC,16)}"))
        def epi(tt, sp):
            A_ = ACC + 16 * tt
            for k in range(4): a(f"v_cvt_pk_bf16_f32 {v(A_+8*sp+k)}, {v(A_+8*sp+2*k)}, {v(A_+8*sp+2*k+1)}")
            for k in range(4): a(f"v_pk_max_i16 {v(A_+8*sp+k)}, {v(A_+8*sp+k)}, 0")
            a(f"buffer_store_dwordx4 {v(A_+8*sp,4)}, {v(7 if tt==0 else 11)}, {s(SWS,4)}, 0 offen offset:{1024*sp} sc1")
            op(f'st{tt}')
        H(31, lambda lds: epi(0, 0))
        H(32, lambda lds: epi(0, 1))
        def st_rstd(lds):
            self.lds_wait('g2')
            b = STB
            a(f"v_pk_add_f32 {v(b,2)}, {v(b,2)}, {v(b+2,2)}")
            a(f"v_pk_add_f32 {v(b+4,2)}, {v(b+4,2)}, {v(b+6,2)}")
            a(f"v_pk_add_f32 {v(b,2)}, {v(b,2)}, {v(b+4,2)}")
            a(f"v_add_f32 {v(b)}, {v(b)}, {v(b+1)}")
            a(f"v_mov_b32 {v(b+1)}, {v(b)}")
            a(f"v_permlane32_swap_b32 {v(b)}, {v(b+1)}")
            self.stats_finish(b, b + 1, b + 2, vRSTD)
        H(33, st_rstd)
        H(self.fflag, lambda lds: (self.ts("preflag") if self.fine2 else None, vwait(['st0']), self.wave_flag(z(11), 0), op('fl'), self.ts("postflag") if self.fine2 else None))
        self.stream_gemm(56, 8, rd_text, mf_text, pre_barrier, hooks, FB)
        self.ts("p4 loop done")
        a(f"{MF} {v(ACC+16,16)}, {v(vAM1,4)}, {v(STB+12,4)}, {v(ACC+16,16)}")
        a(f"s_lshl_b32 {s(sT0)}, {s(self.sKQ)}, 12")
        a(f"v_add_u32 {v(5)}, {s(sT0)}, {v(2)}")
        a(f"v_add_u32 {v(6)}, 65536, {v(5)}")
        a(f"v_add_u32 {v(72)}, 131072, {v(5)}")
        a(f"v_add_u32 {v(73)}, 131072, {v(9)}")
        a(f"v_lshl_add_u32 {v(13)}, v1, 3, {s(z(12))}")
        for p in (7, 8):
            va, off = self.w2addr(self.w2b_loc[p])
            self.move_frags(R_A + 8 * (p - 7), va, 2, True, off0=off)
        self.ops4 = ops; self.epi = epi

    def p5(self):
        a = self.a
        z = lambda k: 64 + k
        sN, sUu, sKQ = z(0), z(1), self.sKQ
        ACC = 16; FB = 48
        S = lambda k: 16384 * k
        ops = self.ops4
        def vwait(tags):
            last = max(k for k, o in enumerate(ops) if o in tags)
            a(f"s_waitcnt vmcnt({len(ops)-1-last})")
        lp = a.newlabel("PA")
        a(f"s_cmp_lg_u32 {s(sW)}, 0")
        a(f"s_cbranch_scc1 {lp}")
        self.poll(13, T, 12, (1 << 56) - 1, "HA")
        a.label(lp)
        vwait(['q', 'p6'])
        a("s_waitcnt lgkmcnt(0)")
        a("s_barrier")
        self.ts("H1A flags seen")
        sAm = self.sW2m
        cslot = [S(4), S(1), S(7), S(9), S(5), S(6), S(2), S(8), S(4), S(1), S(7), S(9), S(5), S(2)]
        def adma(c_, half=None):
            src = (c_ % 7) * 4096 + (c_ // 7) * 112 * 1024
            if half in (None, 0):
                a(f"s_add_u32 {s(sT0)}, {s(z(14))}, {src}")
                self.dma(2, SWS, sT0, (sAm, cslot[c_]), sc1=True); ops.append(f'C{c_}')
            if half == 1: a(f"s_add_u32 m0, {s(sAm)}, {cslot[c_]}")
            if half in (None, 1):
                self.dma(2, SWS, sT0, None, sc1=True, off=1024); ops.append(f'C{c_}')
        for c_ in range(self.nC): adma(c_)
        self.epi(1, 0); self.epi(1, 1)
        self.ts("H1 stores issued")
        for p in (6, 9, 10, 11):
            va, off = self.w2addr(self.w2b_loc[p])
            self.move_frags(R_C + 48 if p == 6 else R_A + 8 * (p - 7), va, 2, True, off0=off)
        a(f"s_mul_i32 {s(sT1)}, {s(sN)}, {S(8)-S(6)}")
        a(f"s_add_u32 {s(sT1)}, {s(sT1)}, {S(6)}")
        a(f"s_lshl_b32 {s(sT0)}, {s(sKQ)}, 11")
        a(f"s_add_u32 {s(sT0)}, {s(sT0)}, {s(sT1)}")
        a(f"v_add_u32 {v(74)}, {s(sT0)}, {v(2)}")
        a(f"s_lshl_b32 {s(sT0)}, {s(sROLE)}, 13")
        a(f"s_add_u32 {s(sT0)}, {s(sT0)}, {s(sT1)}")
        a(f"v_add_u32 {v(75)}, {s(sT0)}, {v(2)}")
        a(f"v_add_u32 {v(13)}, 1024, {v(13)}")
        a("s_waitcnt lgkmcnt(0)")
        def pre_barrier(i):
            a.comment(f"---- P5 chunk {i} barrier")
            tags = [f'C{i}'] + (['q2'] if i == 5 else [])
            vwait(tags)
            if i == self.cB:
                l = a.newlabel("PB")
                a(f"s_cmp_lg_u32 {s(sW)}, 0")
                a(f"s_cbranch_scc1 {l}")
                vwait(['pb'])
                self.set_exec((1 << 56) - 1)
                self.flag_check(78, 12)
                a("s_mov_b64 exec, -1")
                a("s_nop 3")
                a(f"s_cbranch_vccz {l}")
                self.poll(13, T, 12, (1 << 56) - 1, "HB")
                a.label(l)
            if i == 13: self.lds_wait('rw')
            a("s_barrier")
            if i == 0: self.ts("H1 chunk0 landed")
            elif self.fine2: self.ts(f"p5 b{i}")
        def rd_text(f, reg):
            i, n = divmod(f, 4)
            slot = cslot[i]
            va, so = (5, 6, 72)[slot // 65536], slot % 65536
            return f"ds_read_b128 {v(reg,4)}, {v(va)} offset:{so+n*1024}"
        def mf_text(f, reg):
            tt, kk = divmod(f, 28)
            wreg = R_C + 4 * kk if kk < 14 else R_A + 4 * (kk - 14)
            return f"{MF} {v(ACC+16*tt,16)}, {v(wreg,4)}, {v(reg,4)}, {'0' if kk == 0 else v(ACC+16*tt,16)}"
        hooks = {}
        def H(f, fn):
            prev = hooks.get(f)
            hooks[f] = (lambda lds, p=prev, g=fn: (p(lds) if p else None, g(lds)))
        fB = 4 * self.cB - 6
        sched = [(2 * k, it) for k, it in enumerate([('c', c_) for c_ in range(self.nC, 7)] + [('w', 12), ('w', 13)])]
        f = max(10, fB)
        for c_ in range(7, 14):
            if c_ >= 8: f = max(f, 4 * ((c_ - 8 if c_ < 13 else 6) + 3) - 6)
            sched.append((f, ('c', c_))); f += self.p5gap
        for f0, (kind, x) in sched:
            if kind == 'c':
                H(f0, lambda lds, x=x: adma(x, 0)); H(f0 + 1, lambda lds, x=x: adma(x, 1))
            else:
                H(f0, lambda lds, x=x: (self.w2dma(x, self.w2b_loc[x], 0), ops.append('q2')))
                H(f0 + 1, lambda lds, x=x: (self.w2dma(x, self.w2b_loc[x], 1), ops.append('q2')))
        for p in (12, 13):
            def mv(lds, p=p):
                va, off = self.w2addr(self.w2b_loc[p])
                for k in range(2):
                    lds(f"ds_read_b64_tr_b16 {v(R_A+8*(p-7)+4*k,2)}, {v(va)} offset:{off+k*2048}", None)
                    lds(f"ds_read_b64_tr_b16 {v(R_A+8*(p-7)+4*k+2,2)}, {v(va)} offset:{off+k*2048+1024}", None)
            H(3 + p, mv)
        XR = R_B
        RB = R_B + 8
        def red_write(lds, tt, tag):
            for d in range(2):
                lds(f"ds_write_b128 {v(74)}, {v(ACC+16*tt+8*d,4)} offset:{8192*d}", None)
                lds(f"ds_write_b128 {v(74)}, {v(ACC+16*tt+8*d+4,4)} offset:{8192*d+1024}", tag if d == 1 else None)
        def fin(tt, lds=None):
            l = a.newlabel("FN")
            a(f"s_cmp_lg_u32 {s(sUu)}, {tt}")
            a(f"s_cbranch_scc1 {l}")
            for sidx in range(4):
                a(f"ds_read_b128 {v(RB+8*sidx,4)}, {v(75)} offset:{2048*sidx}")
                a(f"ds_read_b128 {v(RB+8*sidx+4,4)}, {v(75)} offset:{2048*sidx+1024}")
            a("s_waitcnt lgkmcnt(4)")
            for k in range(4): a(f"v_pk_add_f32 {v(RB+2*k,2)}, {v(RB+2*k,2)}, {v(RB+8+2*k,2)}")
            a("s_waitcnt lgkmcnt(0)")
            for k in range(4): a(f"v_pk_add_f32 {v(RB+16+2*k,2)}, {v(RB+16+2*k,2)}, {v(RB+24+2*k,2)}")
            for k in range(4): a(f"v_pk_add_f32 {v(RB+2*k,2)}, {v(RB+2*k,2)}, {v(RB+16+2*k,2)}")
            for k in range(4): a(f"v_pk_fma_f32 {v(XR+2*k,2)}, {v(RB+2*k,2)}, {v(76,2)}, {v(XR+2*k,2)}")
            for k in range(4): a(f"v_cvt_pk_bf16_f32 {v(RB+k)}, {v(XR+2*k)}, {v(XR+2*k+1)}")
            a(f"v_permlane32_swap_b32 {v(RB)}, {v(RB+2)}")
            a(f"v_permlane32_swap_b32 {v(RB+1)}, {v(RB+3)}")
            a(f"buffer_store_dwordx4 {v(RB,4)}, {v(85)}, {s(SOUT,4)}, 0 offen{self.outsc}")
            a.label(l)
        def prep(lds):
            for k in range(4):
                a(f"v_lshlrev_b32 {v(XR+2*k)}, 16, {v(vHRES+k)}")
                a(f"v_and_b32 {v(XR+2*k+1)}, 0xffff0000, {v(vHRES+k)}")
            a(f"v_mov_b32 {v(76)}, {v(vRSTD)}")
            a(f"v_mov_b32 {v(77)}, {v(vRSTD)}")
        H(self.fB, lambda lds: (vwait(['st1']), self.wave_flag(z(11), 1024), ops.append('fl')))
        def pbload(lds):
            a(f"s_cmp_eq_u32 {s(sW)}, 0")
            a(f"s_cselect_b32 exec_lo, -1, 1")
            a(f"s_cselect_b32 exec_hi, 0xffffff, 0")
            a(f"buffer_load_dwordx2 {v(78,2)}, {v(13)}, {s(SWS,4)}, 0 offen sc1"); ops.append('pb')
            a("s_mov_b64 exec, -1")
        H(4 * self.cB - 6 - self.pbl, pbload)
        H(20, prep)
        for q_ in range(4):
            H(35 + 2 * q_, lambda lds, q_=q_: lds(f"ds_write_b128 {v(74)}, {v(ACC+4*q_,4)} offset:{8192*(q_//2)+1024*(q_%2)}", 'rw' if q_ == 3 else None))
        H(47, lambda lds: fin(0))
        self.stream_gemm(56, 4, rd_text, mf_text, pre_barrier, hooks, FB)
        self.ts("p5 loop done")
        a(f"v_subrev_u32 {v(74)}, {S(6)}, {v(74)}")
        a(f"v_subrev_u32 {v(75)}, {S(6)}, {v(75)}")
        a(f"s_mul_i32 {s(sT0)}, {s(sN)}, {S(3)-S(2)}")
        a(f"v_add_u32 {v(74)}, {s(sT0)}, {v(74)}")
        a(f"v_add_u32 {v(75)}, {s(sT0)}, {v(75)}")
        red_write(lambda t, g=None: a(t), 1, None)
        a("s_waitcnt lgkmcnt(0)")
        a("s_barrier")
        fin(1)

    def epilogue(self):
        a = self.a
        a.label("L_FIN")
        if self.prof:
            self.ts("end")
            a(f"s_lshl_b32 {s(sT0)}, s2, 3")
            a(f"s_add_u32 {s(sT0)}, {s(sT0)}, {s(sW)}")
            a(f"s_lshl_b32 {s(sT0)}, {s(sT0)}, 8")
            a(f"s_add_u32 {s(sT0)}, {s(sT0)}, {TS_OFF}")
            a(f"v_lshlrev_b32 v14, 2, v1")
            a(f"v_add_u32 v14, {s(sT0)}, v14")
            a(f"buffer_store_dword {v(vTS)}, v14, {s(SWS,4)}, 0 offen")
            if self.dbgts:
                l = a.newlabel("DB")
                a(f"s_cmp_lg_u32 s2, 40")
                a(f"s_cbranch_scc1 {l}")
                a(f"s_cmp_lg_u32 {s(sW)}, 0")
                a(f"s_cbranch_scc1 {l}")
                a(f"v_lshlrev_b32 v14, 2, v1")
                self.set_exec((1 << 14) - 1)
                a(f"buffer_store_dword {v(vTS)}, v14, {s(SDBG,4)}, 0 offen offset:8")
                a("s_mov_b64 exec, -1")
                a.label(l)
            a("s_waitcnt vmcnt(0)")
        a.label("L_END")
        a("s_endpgm")

    def build(self):
        self.prologue()
        self.p1()
        if self.stop_after >= 2: self.p2()
        if self.stop_after >= 3: self.p3()
        if self.stop_after >= 4: self.p4()
        if self.stop_after >= 5: self.p5()
        self.epilogue()
        head = f"""; Generated by dev/gen.py -- fused persistent kernel: LN1+QKV -> sliding attention -> WO+res -> LN2+FF1 -> FF2+res
; @launch grid=(256,1,1) block=(512,1,1) lds={LDS_TOTAL}
.amdgcn_target "amdgcn-amd-amdhsa--gfx950"
.text
.globl {NAME}_kernel
.p2align 8
.type {NAME}_kernel,@function
{NAME}_kernel:
"""
        tail = f"""
.section .rodata,"a"
.p2align 6
.amdhsa_kernel {NAME}_kernel
  .amdhsa_next_free_vgpr 256
  .amdhsa_next_free_sgpr 102
  .amdhsa_accum_offset 256
  .amdhsa_group_segment_fixed_size 0
  .amdhsa_kernarg_size 72
  .amdhsa_user_sgpr_count 2
  .amdhsa_user_sgpr_kernarg_segment_ptr 1
  .amdhsa_system_sgpr_workgroup_id_x 1
.end_amdhsa_kernel
"""
        return head + self.a.text() + (self.side.text() if hasattr(self,'side') else '') + tail

if __name__ == "__main__":
    import argparse
    ap = argparse.ArgumentParser()
    ap.add_argument("-o", default="k.s"); ap.add_argument("--stop", type=int, default=5)
    ap.add_argument("--prof", action="store_true"); ap.add_argument("--cyc", action="store_true"); ap.add_argument("--fine", action="store_true"); ap.add_argument("--tlb", type=int, default=0); ap.add_argument("--p1local", action="store_true"); ap.add_argument("--pd1", type=int, default=2); ap.add_argument("--norot", action="store_true"); ap.add_argument("--tp", type=int, default=2); ap.add_argument("--n1", type=int, default=9); ap.add_argument("--m2", default="[(SW1,3)]"); ap.add_argument("--post", default="[0,1,3,4,2,5,6]"); ap.add_argument("--npre", type=int, default=3); ap.add_argument("--p5gap", type=int, default=2); ap.add_argument("--oplain", type=int, default=1); ap.add_argument("--pre0", type=int, default=1); ap.add_argument("--t1it", type=int, default=6); ap.add_argument("--nex", type=int, default=0); ap.add_argument("--exp", type=int, default=0); ap.add_argument("--fflag", type=int, default=45); ap.add_argument("--cB", type=int, default=5); ap.add_argument("--fB", type=int, default=8); ap.add_argument("--w78", default="(15,23)"); ap.add_argument("--nC", type=int, default=4); ap.add_argument("--plain", type=int, default=0); ap.add_argument("--outsc", default=""); ap.add_argument("--rotg", type=int, default=4); ap.add_argument("--kvsc", default="sc1"); ap.add_argument("--kvst", default="sc1"); ap.add_argument("--kvsleep", type=int, default=1); ap.add_argument("--w1sched", default="([1,1,1,1,1],4,[3,2,0,0,0])")
    args = ap.parse_args()
    g = Gen(args.stop, args.prof, args.cyc, args.fine, args.tlb, args.p1local, args.pd1, args.norot, args.tp, args.n1, args.m2, args.post, args.npre, args.p5gap, args.oplain, args.pre0, args.t1it, args.nex, args.exp, args.fflag, args.cB, args.fB, args.nC, args.plain, args.outsc, args.w78, args.rotg, args.kvsc, args.kvst, args.kvsleep, args.w1sched)
    open(args.o, "w").write(g.build())
    print("instrs", g.a.ninstr, "nops", g.a.nnops, "ts", list(g.tsn.keys()))
```

```python
import sys, math, struct
from asmlib import Asm, v, s

NAME = "sequential_preLN__sliding_block__dense_activation_relu__prompt"
QKV_OFF = 0
O_OFF  = 6 << 20
H_OFF  = 8 << 20
HS_OFF = 10 << 20
H1_OFF = 16 << 20
FL_OFF = 32 << 20
TS_OFF = 33 << 20
FL0_OFF = (32 << 20) + 131072
XS_OFF = 11 << 20
WS_SZ  = 40 << 20
SX, SWQKV, SWO, SW1, SW2, SOUT, SDBG, SWS = 24, 28, 32, 36, 40, 44, 48, 52
sR, sC, sW, sT, sROLE, sXCC, sLOCAL, sTMP = 56, 57, 58, 59, 60, 61, 62, 63
sMASK = 64
sONES = 96
sTH, sCT = 97, 23
sT0, sT1, sT2, sT3, sT4, sT5, sT6 = 3, 4, 5, 6, 7, 8, 9
sKC = 10
sBUSY = 17
sSAVE = 18
sHI = 20
sSPIN = 22
sTS = 98
sU0, sU1 = 100, 101
sTOK = 0
sR1, sJ1 = 94, 95
L_XS = 0
L_WP = 65536
L_SC = 151552
L_STAT = L_SC
L_CS = L_SC + 2048
L_FLAG = 163328
L_TOK = 163344
L_XST = L_SC
L_WO = 65536
L_XR = 122880
L_K = 90112
L_V = 114688
L_MRG = 139264
L_ONES = L_MRG + 1024
L_W1B = 57344
L_A3 = 0
L_RED3 = 147456
L_RED3D = 98304
L_ST4 = 147456
L_HR = 32768
A4SLOT = [0, 16384, 114688, 131072]
LDS_TOTAL = 163840
R_C, R_A, R_B = 88, 144, 200
vTS = 87
vHRES = 80
vRSTD = 84
vAM1 = 76
LOG2E = 1.4426950408889634
def FLG(e): return FL_OFF + e * 16384
def f32bits(x): return struct.unpack('<I', struct.pack('<f', x))[0]
T, T2 = 14, 15
MF = "v_mfma_f32_32x32x16_bf16"

class Gen:
    def __init__(self, stop_after=5, prof=False, cyc=False, fine=False, tlb=0, p1local=False, pd1=2, norot=False, tp=2, n1=9, m2='[(SW1,3)]', post='[0,1,3,4,2,5,6]', npre=3, p5gap=2, oplain=1, pre0=1, t1it=6, nex=0, exp=0, fflag=45, cB=5, fB=8, nC=4, cpf=1, w78='(15,23)', rotg=4, kvsc='sc1', kvst='sc1', kvsleep=1, w1sched='([1,1,1,1,1],4,[3,2,0,0,0])'):
        self.fine = fine; self.PD1 = pd1; self.tp = tp; self.cpf = cpf; self.nC = nC; self.w78 = eval(w78); self.fB = fB; self.pbl = 4; self.fst = 17; self.np3 = 3; self.kvsc = ' ' + kvsc.replace('_',' '); self.kvst = ' ' + kvst.replace('_',' '); self.kvsleep = kvsleep; self.rotg = rotg; self.fine2 = (exp & 4); self.fflag = fflag; self.cB = cB; self.exp = exp; self.nex = nex; self.t1it = t1it; self.pre0 = pre0; self.w1sched = eval(w1sched); self.oplain = oplain; self.nin = npre; self.p5gap = p5gap; self.n1 = n1; self.m2 = eval(m2); self.post = eval(post); self.norot = norot; self.tlb = tlb; self.p1local = p1local
        self.a = Asm(); self.stop_after = stop_after; self.prof = prof; self.cyc = cyc; self.tsn = {}

    def ts(self, name):
        if not self.prof: return
        a = self.a
        if name not in self.tsn: self.tsn[name] = len(self.tsn)
        n = self.tsn[name]
        a(f"{'s_memtime' if self.cyc else 's_memrealtime'} {s(sTS,2)}")
        a("s_waitcnt lgkmcnt(0)")
        a(f"v_writelane_b32 {v(vTS)}, {s(sTS)}, {n}")

    def capture(self, fn):
        rec = []
        class R:
            def __call__(self_, t): rec.append(t)
        old = self.a; self.a = R()
        try: fn()
        finally: self.a = old
        return rec

    def srd(self, dst, ptr, size):
        a = self.a
        a(f"s_mov_b32 {s(dst)}, {s(ptr)}")
        a(f"s_and_b32 {s(dst+1)}, {s(ptr+1)}, 0xffff")
        a(f"s_mov_b32 {s(dst+2)}, {size}")
        a(f"s_mov_b32 {s(dst+3)}, 0x20000")

    def dma(self, vsrc, srd, soff, m0expr, sc1=False, off=0):
        a = self.a
        if m0expr is not None:
            if isinstance(m0expr, int): a(f"s_mov_b32 m0, {m0expr}")
            else: a(f"s_add_u32 m0, {s(m0expr[0])}, {m0expr[1]}")
        so = s(soff) if isinstance(soff, int) else soff
        a(f"buffer_load_dwordx4 {v(vsrc)}, {s(srd,4)}, {so} offen{f' offset:{off}' if off else ''}{' sc1' if sc1 else ''} lds")

    def set_exec(self, mask):
        a = self.a
        lo, hi = mask & 0xffffffff, mask >> 32
        a(f"s_mov_b32 exec_lo, {lo:#x}")
        a(f"s_mov_b32 exec_hi, {hi:#x}")

    def flag_check(self, vd, tmp):
        a = self.a
        a(f"v_xor_b32 {v(tmp)}, {s(sTOK+1)}, {v(vd+1)}")
        a(f"v_and_b32 {v(tmp)}, 0xfffffff, {v(tmp)}")
        a(f"v_xor_b32 {v(vd)}, {s(sTOK)}, {v(vd)}")
        a(f"v_or_b32 {v(tmp)}, {v(tmp)}, {v(vd)}")
        a(f"v_cmp_ne_u32 vcc, 0, {v(tmp)}")

    def poll(self, vaddr, vd, tmp, mask, tag, sleep=0, sc=" sc1"):
        a = self.a
        self.set_exec(mask)
        a(f"s_mov_b32 {s(sSPIN)}, 200000")
        lab = a.loop_label(a.newlabel("POLL"+tag)); done = a.newlabel("PDONE"+tag)
        a(f"buffer_load_dwordx2 {v(vd,2)}, {v(vaddr)}, {s(SWS,4)}, 0 offen{sc}")
        a("s_waitcnt vmcnt(0)")
        self.flag_check(vd, tmp)
        a(f"s_sub_u32 {s(sSPIN)}, {s(sSPIN)}, 1")
        a(f"s_cbranch_scc1 {done}")
        a("s_nop 2")
        a(f"s_cbranch_vccz {done}")
        a("s_mov_b64 exec, vcc")
        if sleep: a(f"s_sleep {sleep}")
        a(f"s_branch {lab}")
        a.label(done)
        a("s_mov_b64 exec, -1")

    def token_load(self, vd):
        self.a(f"buffer_load_dwordx2 {v(vd,2)}, off, {s(SDBG,4)}, 0 sc1")

    def token_take(self, vd):
        a = self.a
        a(f"s_mov_b32 {s(sSPIN)}, 200000")
        lab = a.loop_label(a.newlabel("TOK")); done = a.newlabel("TOKD")
        a(f"v_readfirstlane_b32 {s(sTOK)}, {v(vd)}")
        a(f"v_readfirstlane_b32 {s(sTOK+1)}, {v(vd+1)}")
        a(f"s_cmp_lg_u32 {s(sTOK)}, 0")
        a(f"s_cbranch_scc1 {done}")
        a(f"s_sub_u32 {s(sSPIN)}, {s(sSPIN)}, 1")
        a(f"s_cbranch_scc1 {done}")
        a("s_sleep 4")
        self.token_load(vd)
        a("s_waitcnt vmcnt(0)")
        a(f"s_branch {lab}")
        a.label(done)

    def poll_group(self, e, nmem, wave, tag):
        a = self.a
        l = a.newlabel("PG")
        a(f"s_cmp_lg_u32 {s(sW)}, {wave}")
        a(f"s_cbranch_scc1 {l}")
        a(f"s_lshl_b32 {s(sT0)}, {s(sR)}, 7")
        if e == 1:
            a(f"s_lshl_b32 {s(sT0)}, {s(sR)}, 9")
            a(f"s_lshl_b32 {s(sT1)}, {s(sTH)}, 8")
            a(f"s_add_u32 {s(sT0)}, {s(sT0)}, {s(sT1)}")
        a(f"s_add_u32 {s(sT0)}, {s(sT0)}, {FLG(e)}")
        a(f"v_lshl_add_u32 {v(13)}, v1, 3, {s(sT0)}")
        self.poll(13, T, 12, (1 << nmem) - 1, tag)
        a.label(l)
        a("s_waitcnt lgkmcnt(0)")
        a("s_barrier")

    def two_path(self, fn):
        a = self.a
        l1, l2 = a.newlabel("SL"), a.newlabel("SL")
        a(f"s_cmp_eq_u32 {s(sLOCAL)}, 1")
        a(f"s_cbranch_scc0 {l1}")
        fn("")
        a(f"s_branch {l2}")
        a.label(l1)
        fn(" sc1")
        a.label(l2)

    def publish(self, e, always_sc1=False, nowait_role1=False, keep=0):
        a = self.a
        a(f"s_lshl_b32 {s(sT1)}, {s(sR)}, {11 if e == 0 else 7}")
        a(f"s_lshl_b32 {s(sT2)}, {s(sC)}, {7 if e == 0 else 3}")
        a(f"s_add_u32 {s(sT1)}, {s(sT1)}, {s(sT2)}")
        a(f"s_add_u32 {s(sT1)}, {s(sT1)}, {FL0_OFF if e == 0 else FLG(e)}")
        a(f"s_lshl_b32 {s(sT2)}, {s(sXCC)}, 28")
        a(f"s_or_b32 {s(sT2)}, {s(sT2)}, {s(sTOK+1)}")
        a(f"v_mov_b32 {v(13)}, {s(sT1)}")
        a(f"v_mov_b32 {v(T)}, {s(sTOK)}")
        a(f"v_mov_b32 {v(T2)}, {s(sT2)}")
        if nowait_role1:
            lw = a.newlabel("NW")
            a(f"s_cmp_eq_u32 {s(sROLE)}, 1")
            a(f"s_cbranch_scc1 {lw}")
            a("s_waitcnt vmcnt(0)")
            a.label(lw)
            a("s_waitcnt lgkmcnt(0)")
        else:
            a(f"s_waitcnt vmcnt({keep}) lgkmcnt(0)")
        a("s_barrier")
        lf = a.newlabel("PUB")
        a(f"s_cmp_lg_u32 {s(sW)}, 0")
        a(f"s_cbranch_scc1 {lf}")
        a(f"s_mov_b64 exec, 1")
        st = lambda sc: a(f"buffer_store_dwordx2 {v(T,2)}, {v(13)}, {s(SWS,4)}, 0 offen{sc}")
        if always_sc1: st(self.kvst)
        else: self.two_path(st)
        a(f"s_mov_b64 exec, -1")
        a.label(lf)

    def mean_operand(self, BM, vnm, tmp):
        a = self.a
        a(f"v_cvt_pk_bf16_f32 {v(BM)}, {v(vnm)}, {v(vnm)}")
        a(f"v_and_b32 {v(tmp)}, 0xffff0000, {v(BM)}")
        a(f"v_sub_f32 {v(tmp)}, {v(vnm)}, {v(tmp)}")
        a(f"v_cvt_pk_bf16_f32 {v(BM+1)}, {v(tmp)}, 0")
        a(f"v_mov_b32 {v(BM+2)}, 0")
        a(f"v_mov_b32 {v(BM+3)}, 0")

    def cs_operand(self, AM, vcs):
        a = self.a
        a(f"v_cndmask_b32 {v(vcs)}, {v(vcs)}, 0, {s(sHI,2)}")
        a(f"v_cvt_pk_bf16_f32 {v(AM+1)}, {v(vcs)}, 0")
        a(f"v_lshlrev_b32 {v(AM+2)}, 16, {v(AM+1)}")
        a(f"v_sub_f32 {v(AM+2)}, {v(vcs)}, {v(AM+2)}")
        a(f"v_cvt_pk_bf16_f32 {v(AM)}, {v(vcs)}, {v(AM+2)}")
        a(f"v_mov_b32 {v(AM+2)}, 0")
        a(f"v_mov_b32 {v(AM+3)}, 0")

    def stats_finish(self, vsum, vsq, vnm, vrs):
        a = self.a
        a(f"v_mul_f32 {v(vnm)}, {f32bits(-1.0/448):#x}, {v(vsum)}")
        a(f"v_mul_f32 {v(vsq)}, {f32bits(1.0/448):#x}, {v(vsq)}")
        a(f"v_fma_f32 {v(vsq)}, -{v(vnm)}, {v(vnm)}, {v(vsq)}")
        a(f"v_max_f32 {v(vsq)}, 0, {v(vsq)}")
        a(f"v_add_f32 {v(vsq)}, {f32bits(1e-5):#x}, {v(vsq)}")
        a(f"v_rsq_f32 {v(vrs)}, {v(vsq)}")

    def rows128_src(self, vd, rowstride, srow0, scol):
        a = self.a
        a(f"v_lshrrev_b32 {v(T)}, 3, v1")
        a(f"v_bfe_u32 {v(T2)}, v1, 4, 1")
        a(f"v_lshlrev_b32 {v(T2)}, 2, {v(T2)}")
        a(f"v_xor_b32 {v(T2)}, {v(T2)}, v1")
        a(f"v_and_b32 {v(T2)}, 7, {v(T2)}")
        a(f"v_add_u32 {v(T)}, {s(srow0)}, {v(T)}")
        a(f"v_mul_u32_u24 {v(T)}, {rowstride}, {v(T)}")
        a(f"v_lshl_add_u32 {v(T)}, {v(T2)}, 4, {v(T)}")
        a(f"v_add_u32 {v(vd)}, {s(scol)}, {v(T)}")

    def tr128_addr(self, vd, perm, sbase):
        a = self.a
        a(f"v_lshrrev_b32 {v(T)}, 5, v1")
        a(f"v_lshlrev_b32 {v(T)}, {9 if perm else 10}, {v(T)}")
        a(f"v_bfe_u32 {v(T2)}, v1, 2, 2")
        a(f"v_lshl_add_u32 {v(T)}, {v(T2)}, 7, {v(T)}")
        a(f"v_bfe_u32 {v(T2)}, v1, 4, 1")
        a(f"v_lshl_add_u32 {v(T)}, {v(T2)}, 5, {v(T)}")
        a(f"v_and_b32 {v(T2)}, 3, v1")
        a(f"v_lshl_add_u32 {v(T)}, {v(T2)}, 3, {v(T)}")
        a(f"v_bfe_u32 {v(T2)}, v1, 3, 1")
        a(f"v_lshlrev_b32 {v(T2)}, 6, {v(T2)}")
        a(f"v_xor_b32 {v(T2)}, {s(sU0)}, {v(T2)}")
        a(f"v_add_u32 {v(T)}, {v(T)}, {v(T2)}")
        a(f"v_add_u32 {v(vd)}, {s(sbase)}, {v(T)}")

    def prologue(self):
        a = self.a
        a(f"s_cmp_ge_u32 s2, 256")
        a(f"s_cbranch_scc1 L_END")
        a("s_load_dwordx16 s[4:19], s[0:1], 0")
        a("s_load_dwordx2 s[20:21], s[0:1], 64")
        a("v_and_b32 v1, 63, v0")
        a("v_lshrrev_b32 v2, 6, v0")
        a(f"v_readfirstlane_b32 {s(sW)}, v2")
        a(f"s_and_b32 {s(sT)}, {s(sW)}, 3")
        a(f"s_lshr_b32 {s(sROLE)}, {s(sW)}, 2")
        a(f"s_and_b32 {s(sR)}, s2, 7")
        a(f"s_lshl_b32 {s(sR)}, {s(sR)}, 1")
        a(f"s_lshr_b32 {s(sTMP)}, s2, 7")
        a(f"s_add_u32 {s(sR)}, {s(sR)}, {s(sTMP)}")
        a(f"s_lshr_b32 {s(sC)}, s2, 3")
        a(f"s_and_b32 {s(sC)}, {s(sC)}, 15")
        a(f"s_getreg_b32 {s(sXCC)}, hwreg(HW_REG_XCC_ID)")
        a(f"s_and_b32 {s(sXCC)}, {s(sXCC)}, 15")
        a(f"s_mov_b32 {s(sONES)}, 0x3f803f80")
        a(f"s_cmp_ge_u32 {s(sC)}, 7")
        a(f"s_cselect_b32 {s(sTH)}, 1, 0")
        a(f"s_mul_i32 {s(sTMP)}, {s(sTH)}, 7")
        a(f"s_sub_u32 {s(sCT)}, {s(sC)}, {s(sTMP)}")
        a("s_waitcnt lgkmcnt(0)")
        self.srd(SX, 4, 2048*448*2)
        self.srd(SWQKV, 6, 448*1344*2)
        self.srd(SWO, 8, 448*448*2)
        self.srd(SW1, 12, 448*1792*2)
        self.srd(SW2, 14, 1792*448*2)
        self.srd(SOUT, 16, 2048*448*2)
        self.srd(SDBG, 18, 256)
        self.srd(SWS, 20, WS_SZ)
        a(f"s_mov_b32 {s(sHI)}, 0")
        a(f"s_mov_b32 {s(sHI+1)}, -1")
        a(f"s_cmp_lt_u32 {s(sC)}, 14")
        a(f"s_cselect_b32 {s(sBUSY)}, 1, 0")
        a("v_mov_b32 v84, 0")
        a("v_mov_b32 v85, 0")
        if self.prof: a(f"v_mov_b32 {v(vTS)}, 0")
        self.ts("start")
        if self.tlb:
            lt = a.newlabel("TLB")
            a(f"s_cmp_lg_u32 {s(sW)}, 7")
            a(f"s_cbranch_scc1 {lt}")
            a(f"v_lshlrev_b32 {v(T)}, {self.tlb}, v1")
            for k in range((34 << 20) >> (self.tlb + 6)):
                a(f"s_mov_b32 {s(sT0)}, {k << (self.tlb + 6)}")
                a(f"buffer_load_dword {v(90)}, {v(T)}, {s(SWS,4)}, {s(sT0)} offen")
            a(f"v_lshlrev_b32 {v(T)}, 16, v1")
            for srd in (SWO, SW1, SW2, SOUT):
                a(f"buffer_load_dword {v(90)}, {v(T)}, {s(srd,4)}, 0 offen")
            a.label(lt)
        lz = a.newlabel("NOTOK")
        a(f"s_cmp_lg_u32 s2, 112")
        a(f"s_cbranch_scc1 {lz}")
        a(f"s_cmp_lg_u32 {s(sW)}, 0")
        a(f"s_cbranch_scc1 {lz}")
        a(f"s_memrealtime {s(sTS,2)}")
        a("s_waitcnt lgkmcnt(0)")
        a(f"s_or_b32 {s(sT0)}, {s(sTS)}, 1")
        a(f"s_and_b32 {s(sT1)}, {s(sTS+1)}, 0xfffffff")
        a(f"v_mov_b32 {v(T)}, {s(sT0)}")
        a(f"v_mov_b32 {v(T2)}, {s(sT1)}")
        a(f"s_mov_b64 exec, 1")
        a(f"buffer_store_dwordx2 {v(T,2)}, off, {s(SDBG,4)}, 0 sc1")
        a(f"s_mov_b64 exec, -1")
        a.label(lz)

    def touch_p1(self):
        a = self.a
        a(f"s_lshr_b32 {s(sT0)}, s2, 3")
        a(f"s_and_b32 {s(sT1)}, {s(sR)}, 12")
        a(f"s_lshl_b32 {s(sT1)}, {s(sT1)}, 3")
        a(f"s_add_u32 {s(sT1)}, {s(sT0)}, {s(sT1)}")
        a(f"s_mul_i32 {s(sT1)}, {s(sT1)}, {16*896}")
        a(f"s_mul_i32 {s(sT2)}, {s(sT)}, {28*128}")
        a(f"s_add_u32 {s(sT1)}, {s(sT1)}, {s(sT2)}")
        a(f"v_lshlrev_b32 {v(T)}, 7, v1")
        self.set_exec((1 << 28) - 1)
        a(f"buffer_load_dword {v(86)}, {v(T)}, {s(SX,4)}, {s(sT1)} offen")
        a("s_mov_b64 exec, -1")
        a(f"s_mul_i32 {s(sT0)}, {s(sT0)}, {14*2688}")
        a(f"s_bfe_u32 {s(sT1)}, {s(sR)}, 0x10001")
        a(f"s_mul_i32 {s(sT1)}, {s(sT1)}, 1280")
        a(f"s_add_u32 {s(sT0)}, {s(sT0)}, {s(sT1)}")
        a(f"s_mul_i32 {s(sT1)}, {s(sT)}, 39")
        a(f"v_add_u32 {v(T)}, {s(sT1)}, v1")
        a(f"v_mul_u32_u24 {v(T2)}, 5958, {v(T)}")
        a(f"v_lshrrev_b32 {v(T2)}, 16, {v(T2)}")
        a(f"v_mul_u32_u24 {v(T2)}, {2688-11*128}, {v(T2)}")
        a(f"v_lshl_add_u32 {v(T2)}, {v(T)}, 7, {v(T2)}")
        self.set_exec((1 << 39) - 1)
        a(f"buffer_load_dword {v(86)}, {v(T2)}, {s(SWQKV,4)}, {s(sT0)} offen")
        a("s_mov_b64 exec, -1")

    def touch(self, srd, kexpr):
        a = self.a
        sg, mul, add = kexpr
        a(f"s_mul_i32 {s(sT0)}, {s(sg)}, {mul*262144}")
        a(f"s_lshr_b32 {s(sT1)}, s2, 3")
        a(f"s_lshl_b32 {s(sT1)}, {s(sT1)}, 13")
        a(f"s_add_u32 {s(sT0)}, {s(sT0)}, {s(sT1)}")
        if add > 0: a(f"s_add_u32 {s(sT0)}, {s(sT0)}, {add*262144}")
        if add < 0: a(f"s_sub_u32 {s(sT0)}, {s(sT0)}, {-add*262144}")
        a(f"v_lshlrev_b32 {v(T)}, 7, v1")
        a(f"buffer_load_dword {v(86)}, {v(T)}, {s(srd,4)}, {s(sT0)} offen")

    def idle_touch_setup(self):
        a = self.a
        a(f"s_and_b32 {s(sT0)}, {s(sR)}, 1")
        a(f"s_lshl_b32 {s(sT0)}, {s(sT0)}, 1")
        a(f"s_add_u32 {s(sT0)}, {s(sT0)}, {s(sC)}")
        a(f"s_sub_u32 {s(sT0)}, {s(sT0)}, 14")
        a(f"s_lshl_b32 {s(sT1)}, {s(sT0)}, 2")
        a(f"s_add_u32 {s(sT1)}, {s(sT1)}, {s(sT)}")
        a(f"s_lshl_b32 {s(sT1)}, {s(sT1)}, 13")
        a(f"v_lshl_add_u32 {v(56)}, v1, 7, {s(sT1)}")

    def flag_pretouch(self):
        a = self.a
        a(f"s_lshl_b32 {s(sT0)}, {s(sR)}, 9")
        a(f"s_add_u32 {s(sT0)}, {s(sT0)}, {FLG(1)}")
        a(f"v_lshl_add_u32 {v(T)}, v1, 7, {s(sT0)}")
        a(f"s_lshl_b32 {s(sT0)}, {s(sR)}, 7")
        a(f"s_add_u32 {s(sT1)}, {s(sT0)}, {FLG(2)}")
        a(f"v_writelane_b32 {v(T)}, {s(sT1)}, 4")
        a(f"s_lshl_b32 {s(sT0)}, {s(sR)}, 11")
        a(f"s_add_u32 {s(sT0)}, {s(sT0)}, {FLG(3) - 16*128}")
        a(f"v_lshl_add_u32 {v(T2)}, v1, 7, {s(sT0)}")
        a(f"v_cmp_le_u32 vcc, 16, v1")
        a(f"v_cndmask_b32 {v(T)}, {v(T)}, {v(T2)}, vcc")
        self.set_exec(0xffff001f)
        a(f"buffer_load_dword {v(86)}, {v(T)}, {s(SWS,4)}, 0 offen sc1")
        a(f"s_mov_b64 exec, -1")

    def masks(self):
        a = self.a
        a(f"v_and_b32 {v(T)}, 31, v1")
        a(f"v_lshrrev_b32 {v(T2)}, 5, v1")
        a(f"v_lshlrev_b32 {v(T2)}, 2, {v(T2)}")
        a(f"v_sub_u32 {v(T)}, {v(T)}, {v(T2)}")
        for rg in range(16):
            kk = 8 * (rg // 4) + (rg % 4)
            a(f"v_cmp_le_i32 {s(sMASK+2*rg,2)}, {kk}, {v(T)}")

    def p1(self):
        a = self.a
        PD = self.PD1
        full = self.stop_after >= 3
        vXs = 100; vWs = 104; vSt = 107; vCs = 108
        ACC = 16
        AM = 112; vXr = 120; vWr = 124; SCL = 128; BM = 132; vSA = 136
        vWo = 138; vXres = 139; vRS = 140
        vTok = 142; vFl = 96
        WB = R_B + 40
        lpad, lp1end = a.newlabel("PADW"), a.newlabel("P1END")
        a(f"s_cmp_eq_u32 {s(sBUSY)}, 0")
        a(f"s_cbranch_scc1 {lpad}")
        a(f"s_and_b32 {s(sR1)}, {s(sR)}, 12")
        a(f"s_and_b32 {s(sT0)}, {s(sR)}, 1")
        a(f"s_lshl_b32 {s(sT0)}, {s(sT0)}, 1")
        a(f"s_add_u32 {s(sT0)}, {s(sT0)}, {s(sTH)}")
        a(f"s_add_u32 {s(sR1)}, {s(sR1)}, {s(sT0)}")
        a(f"s_bfe_u32 {s(sJ1)}, {s(sR)}, 0x10001")
        a(f"s_mul_i32 {s(sJ1)}, {s(sJ1)}, 7")
        a(f"s_add_u32 {s(sJ1)}, {s(sJ1)}, {s(sCT)}")
        sXm, sWm = sT4, sT5
        def setup_xsrc():
            a(f"s_lshl_b32 {s(sT0)}, {s(sR1)}, 7")
            a(f"s_lshl_b32 {s(sT1)}, {s(sT)}, 5")
            a(f"s_add_u32 {s(sT0)}, {s(sT0)}, {s(sT1)}")
            a(f"v_lshrrev_b32 {v(T)}, 3, v1")
            a(f"v_add_u32 {v(T)}, {s(sT0)}, {v(T)}")
            a(f"v_mul_u32_u24 {v(T)}, 896, {v(T)}")
            a(f"v_lshrrev_b32 {v(T2)}, 4, v1")
            a(f"v_xor_b32 {v(T2)}, {v(T2)}, v1")
            a(f"v_and_b32 {v(T2)}, 7, {v(T2)}")
            a(f"v_lshl_add_u32 {v(vXs)}, {v(T2)}, 4, {v(T)}")
            a(f"v_xor_b32 {v(T2)}, 4, {v(T2)}")
            a(f"v_lshl_add_u32 {v(vXs+1)}, {v(T2)}, 4, {v(T)}")
            a(f"v_add_u32 {v(vXs+2)}, {2*(7168-1024)}, {v(vXs)}")
            a(f"v_add_u32 {v(vXs+3)}, {3*(7168-1024)}, {v(vXs+1)}")
            a(f"v_add_u32 {v(vXs+1)}, {7168-1024}, {v(vXs+1)}")
            a(f"s_lshl_b32 {s(sXm)}, {s(sT)}, 12")
        def setup_wsrc():
            a(f"s_mul_i32 {s(sT0)}, {s(sT)}, {16*2688}")
            a(f"s_mul_i32 {s(sT1)}, {s(sJ1)}, 192")
            a(f"s_add_u32 {s(sT0)}, {s(sT0)}, {s(sT1)}")
            for m in range(3):
                a(f"v_add_u32 {v(T)}, {64*m}, v1")
                a(f"v_mul_u32_u24 {v(T2)}, 43691, {v(T)}")
                a(f"v_lshrrev_b32 {v(T2)}, 19, {v(T2)}")
                a(f"v_mul_u32_u24 {v(T2)}, 2496, {v(T2)}")
                a(f"v_lshl_add_u32 {v(T2)}, v1, 4, {v(T2)}")
                a(f"v_add_u32 {v(vWs+m)}, {s(sT0)}, {v(T2)}")
            a(f"s_mul_i32 {s(sWm)}, {s(sT)}, 3072")
        def rot_setup():
            a(f"s_and_b32 {s(sT0)}, {s(sR1)}, 3")
            a(f"s_lshl_b32 {s(sT0)}, {s(sT0)}, 1")
            a(f"s_add_u32 {s(sT0)}, {s(sT0)}, {s(sCT)}")
            a(f"s_sub_u32 {s(sT1)}, {s(sT0)}, 7")
            a(f"s_cmp_ge_u32 {s(sT0)}, 7")
            a(f"s_cselect_b32 {s(sT0)}, {s(sT1)}, {s(sT0)}")
            if self.norot: a(f"s_mov_b32 {s(sT0)}, 0")
            G_ = self.rotg
            if G_ < 7:
                a(f"s_mul_i32 {s(sT1)}, {s(sT0)}, {(256 + G_ - 1) // G_}")
                a(f"s_lshr_b32 {s(sT1)}, {s(sT1)}, 8")
                a(f"s_mul_i32 {s(sT1)}, {s(sT1)}, {G_}")
                a(f"s_sub_u32 {s(sT0)}, {s(sT0)}, {s(sT1)}")
            a(f"s_lshl_b32 {s(64)}, {s(sT0)}, 7")
        def rot_next(i):
            G_ = self.rotg
            g0 = (i // G_) * G_; g1 = min(g0 + G_, 7)
            if i % G_ == 0:
                if g1 - g0 == G_: a(f"s_add_u32 {s(64+i)}, {s(64)}, {128*g0}")
                else:
                    if g1 - g0 == 1: a(f"s_mov_b32 {s(64+i)}, {128*g0}")
                    else:
                        a(f"s_add_u32 {s(64+i)}, {s(64)}, {128*g0}")
                        a(f"s_cmp_ge_u32 {s(64+i)}, {128*g1}")
                        a(f"s_cselect_b32 {s(64+i)}, {128*g0}, {s(64+i)}")
                return
            a(f"s_add_u32 {s(64+i)}, {s(63+i)}, 128")
            a(f"s_cmp_eq_u32 {s(64+i)}, {128*g1}")
            a(f"s_cselect_b32 {s(64+i)}, {128*g0}, {s(64+i)}")
        def xdma(i):
            sT0 = 64 + i
            for j in range(4):
                self.dma(vXs+j, SX, sT0, (sXm, L_XS + (i % 4) * 16384) if j == 0 else None, off=1024*j)
        def wdma(i):
            a(f"s_mul_i32 {s(sT1)}, {s(64+i)}, {64*2688//128}")
            for m in range(3):
                self.dma(vWs+m, SWQKV, sT1, (sWm, L_WP + i * 12288) if m == 0 else None, off=1024*m)
        def setup_rd(role):
            a(f"v_and_b32 {v(T)}, 31, v1")
            a(f"v_bfe_u32 {v(T2)}, v1, 1, 3")
            a(f"v_lshrrev_b32 {v(vXr)}, 5, v1")
            a(f"v_xor_b32 {v(T2)}, {v(T2)}, {v(vXr)}")
            a(f"s_lshl_b32 {s(sT1)}, {s(sT)}, 12")
            a(f"v_lshl_add_u32 {v(T)}, {v(T)}, 7, {s(sT1)}")
            for n in range(4):
                a(f"s_add_u32 {s(sT0)}, {s(sT)}, {n}")
                a(f"s_and_b32 {s(sT0)}, {s(sT0)}, 3")
                a(f"s_lshl_b32 {s(sT1)}, {s(sT0)}, 1")
                a(f"s_mul_i32 {s(sKC+n)}, {s(sT0)}, 3072")
                a(f"v_xor_b32 {v(vXr+n)}, {s(sT1)}, {v(T2)}")
                a(f"v_lshl_add_u32 {v(vXr+n)}, {v(vXr+n)}, 4, {v(T)}")
            a(f"v_lshrrev_b32 {v(T)}, 5, v1")
            a(f"v_bfe_u32 {v(T2)}, v1, 2, 2")
            a(f"v_lshl_add_u32 {v(T)}, {v(T)}, 3, {v(T2)}")
            a(f"v_mul_u32_u24 {v(T)}, 192, {v(T)}")
            a(f"v_bfe_u32 {v(T2)}, v1, 4, 1")
            a(f"v_lshl_add_u32 {v(T)}, {v(T2)}, 5, {v(T)}")
            a(f"v_and_b32 {v(T2)}, 3, v1")
            a(f"v_lshl_add_u32 {v(T)}, {v(T2)}, 3, {v(T)}")
            a(f"v_add_u32 {v(T)}, {L_WP + (128 if role else 0)}, {v(T)}")
            for n in range(4): a(f"v_add_u32 {v(vWr+n)}, {s(sKC+n)}, {v(T)}")
            a(f"v_mov_b32 {v(vCs)}, 0")
            a(f"v_mov_b32 {v(vCs+1)}, 0")
            a(f"v_mov_b32 {v(BM+2)}, 0")
            a(f"v_mov_b32 {v(BM+3)}, 0")
        def setup_st(ti, tj):
            a(f"s_mul_i32 {s(sT0)}, {s(sJ1)}, 3")
            a(f"s_add_u32 {s(sT0)}, {s(sT0)}, {tj}")
            a(f"s_cmp_lt_u32 {s(sT0)}, 14")
            a(f"s_cselect_b32 {s(sU0+ti)}, 1, 0")
            a(f"s_lshl_b32 {s(sT0)}, {s(sT0)}, 6")
            a(f"s_lshl_b32 {s(sT1)}, {s(sR1)}, 2")
            a(f"s_add_u32 {s(sT0)}, {s(sT0)}, {s(sT1)}")
            a(f"s_add_u32 {s(sT0)}, {s(sT0)}, {s(sT)}")
            a(f"s_lshl_b32 {s(sT0)}, {s(sT0)}, 11")
            a(f"v_lshl_add_u32 {v(vSA+ti)}, v1, 4, {s(sT0)}")
        def setup_wo():
            a(f"s_lshl_b32 {s(sT0)}, {s(sT)}, 3")
            a(f"s_lshl_b32 {s(sT2)}, {s(sCT)}, 7")
            self.rows128_src(vWo, 896, sT0, sT2)
            a(f"s_lshl_b32 {s(sT0)}, {s(sR)}, 7")
            a(f"s_lshl_b32 {s(sT1)}, {s(sTH)}, 6")
            a(f"s_add_u32 {s(sT0)}, {s(sT0)}, {s(sT1)}")
            a(f"s_mul_i32 {s(sT0)}, {s(sT0)}, 896")
            a(f"v_add_u32 {v(vXres)}, {s(sT0)}, {v(vWo)}")
            a(f"s_lshl_b32 {s(sT6)}, {s(sT)}, 10")
        def wodma(j):
            a(f"s_mov_b32 {s(sT0)}, {32*j*896}")
            self.dma(vWo, SWO, sT0, (sT6, L_WO + 4096 * j))
        def xrdma(j):
            a(f"s_mov_b32 {s(sT0)}, {32*j*896}")
            self.dma(vXres, SX, sT0, (sT6, L_XR + 4096 * j))
        def setup_misc(role):
            a(f"s_lshl_b32 {s(sT0)}, {s(sT)}, 9")
            a(f"s_lshl_b32 {s(sT1)}, {s(sR1)}, 11")
            a(f"s_add_u32 {s(sT0)}, {s(sT0)}, {s(sT1)}")
            a(f"s_add_u32 {s(sT0)}, {s(sT0)}, {XS_OFF}")
            a(f"v_mov_b32 {v(94)}, {L_TOK}")
            a(f"v_and_b32 {v(T)}, 31, v1")
            a(f"v_lshl_add_u32 {v(vSt)}, {v(T)}, 4, {s(sT0)}")
            a(f"v_lshlrev_b32 {v(91)}, 2, v0")
            a(f"v_add_u32 {v(91)}, {L_CS + (1024 if role else 0)}, {v(91)}")
            a(f"v_lshlrev_b32 {v(92)}, 2, {v(T)}")
            a(f"v_add_u32 {v(92)}, {L_CS + (2048 if role else 0)}, {v(92)}")
            a(f"v_add_u32 {v(93)}, 1024, {v(92)}")
        lr1, lrj = a.newlabel("P1R1"), a.newlabel("P1J")
        a(f"s_cmp_eq_u32 {s(sROLE)}, 1")
        a(f"s_cbranch_scc1 {lr1}")
        for role in (0, 1):
            if role == 1: a.label(lr1)
            ntile = 2 if role == 0 else 1
            SET = [R_A, R_A + 48]
            ops = []
            def issue(i):
                xdma(i); wdma(i); ops.extend([i] * 7)
            if role == 0:
                rot_setup(); setup_wsrc(); wdma(0)
                setup_rd(0)
                rot_next(1); wdma(1); ops += [0] * 3 + [1] * 3
                if full: self.wo_addr()
                if self.stop_after >= 2: self.p2_pre()
                setup_st(0, 0)
                if self.tp & 1:
                    self.touch_p1(); ops += ['t', 't']
                setup_st(1, 1)
                setup_misc(0)
                later = []
            else:
                rot_setup(); setup_xsrc(); xdma(0)
                if self.fine: self.ts("first dma issued")
                rot_next(1); xdma(1); ops += [0] * 4 + [1] * 4
                if self.fine: self.ts("second dma issued")
                setup_rd(1)
                setup_wsrc()
                for i in range(2, 7): rot_next(i)
                if full: self.wo_addr()
                if self.stop_after >= 2: self.p2_pre()
                setup_st(0, 2)
                if full: setup_wo()
                setup_misc(1)
                later = []
            if self.fine: self.ts("setup done")
            for i in range(8):
                a.comment(f"---- P1 role{role} iter {i}")
                rds, mfs, css = [], [], []
                if i < 7:
                    idx = [k for k, c_ in enumerate(ops) if c_ == i]
                    if idx: a(f"s_waitcnt vmcnt({len(ops)-1-max(idx)}) lgkmcnt(0)")
                    else: a("s_waitcnt lgkmcnt(0)")
                    if self.fine and i < 3: self.ts(f"c{i} own wait done")
                    a("s_barrier")
                    if i == 0: self.ts("p1 chunk0 landed")
                    if self.fine: self.ts(f"c{i} barrier")
                    woff = (i % 4) * 12288
                    if i == 4:
                        for n in range(4): a(f"v_add_u32 {v(vWr+n)}, 49152, {v(vWr+n)}")
                    S_ = SET[i % 2]
                    for n in range(4):
                        rds.append(f"ds_read_b128 {v(S_+4*n,4)}, {v(vXr+n)} offset:{L_XS+(i%4)*16384}")
                        for tj in range(ntile):
                            b = S_ + 16 + 16 * tj + 4 * n
                            rds.append(f"ds_read_b64_tr_b16 {v(b,2)}, {v(vWr+n)} offset:{woff+tj*64}")
                            rds.append(f"ds_read_b64_tr_b16 {v(b+2,2)}, {v(vWr+n)} offset:{woff+tj*64+768}")
                    if i == 6:
                        rds.append(f"ds_read_b64 {v(vTok,2)}, {v(94)}")
                else:
                    a("s_waitcnt lgkmcnt(0)")
                    a(f"v_readfirstlane_b32 {s(sTOK)}, {v(vTok)}")
                    a(f"v_readfirstlane_b32 {s(sTOK+1)}, {v(vTok+1)}")
                def extras():
                    only = lambda w_: (a(f"s_cmp_lg_u32 {s(sW)}, {w_}"), a.newlabel("ON"))[1]
                    if role == 1 and i == 0:
                        for k in range(2, PD): issue(k)
                    if role == 1 and i + PD < 7: issue(i + PD)
                    if role == 1 and full and i in (5, 6):
                        for j in (range(0, 8) if i == 5 else range(8, 14)): wodma(j); ops.append('wo')
                        if i == 6:
                            for j in range(2): xrdma(j); ops.append('wo')
                    if role == 0:
                        if i in (1, 3):
                            l = only(3); a(f"s_cbranch_scc1 {l}")
                            if i == 1:
                                self.token_load(vTok)
                            if i == 3:
                                a("s_waitcnt vmcnt(0)")
                                self.token_take(vTok)
                                a(f"v_mov_b32 {v(T)}, {L_TOK}")
                                a(f"ds_write_b64 {v(T)}, {v(vTok,2)}")
                            a.label(l)
                    if i == 4:
                        a(f"buffer_load_dwordx4 {v(vFl,4)}, {v(vSt)}, {s(SWS,4)}, 0 offen sc1"); ops.append('st')
                    if role == 0:
                        if (self.tp & 8) and i == self.t1it:
                            self.touch(SW1, (sT, 1, 3))
                    if later and i < 7: later.pop(0)()
                if role == 1:
                    for o in rds: a(o)
                    rds = []
                    extras()
                if i > 0:
                    P_ = SET[(i - 1) % 2]
                    for n in range(4):
                        for tj in range(ntile):
                            c_in = "0" if (i == 1 and n == 0) else v(ACC+16*tj, 16)
                            mfs.append(f"{MF} {v(ACC+16*tj,16)}, {v(P_+16+16*tj+4*n,4)}, {v(P_+4*n,4)}, {c_in}")
                    for tj in range(ntile):
                        for d in range(4): a(f"v_dot2c_f32_bf16 {v(vCs+tj)}, {s(sONES)}, {v(P_+16+16*tj+d)}")
                if i == 7:
                    a(mfs.pop(0)); a(mfs.pop(0))
                    for tj in range(ntile): a(f"ds_write_b32 {v(91)}, {v(vCs+tj)} offset:{1024*tj}")
                nm = max(1, len(mfs))
                for g_ in range(nm):
                    if mfs: a(mfs[g_])
                    for o in rds[g_*len(rds)//nm:(g_+1)*len(rds)//nm]: a(o)
                if role == 0: extras()
                if self.fine and i < 7: self.ts(f"c{i} end")
            self.ts("p1 loop done")
            nafter = len(ops) - 1 - max(k for k, o in enumerate(ops) if o == 'st') + (1 if (role == 0 and (self.tp & 8)) else 0)
            a(f"s_waitcnt vmcnt({nafter})")
            a(f"s_mov_b32 {s(sSPIN)}, 200000")
            a(f"s_and_b32 {s(sT2)}, {s(sTOK+1)}, 0xffff")
            lab = a.loop_label(a.newlabel("SVL")); done = a.newlabel("SVD")
            a(f"v_lshrrev_b32 {v(T)}, 16, {v(vFl+1)}")
            a(f"v_xor_b32 {v(T)}, {s(sT2)}, {v(T)}")
            a(f"v_xor_b32 {v(T2)}, {s(sTOK)}, {v(vFl+3)}")
            a(f"v_or_b32 {v(T)}, {v(T)}, {v(T2)}")
            a(f"v_cmp_ne_u32 vcc, 0, {v(T)}")
            a(f"s_sub_u32 {s(sSPIN)}, {s(sSPIN)}, 1")
            a(f"s_cbranch_scc1 {done}")
            a("s_nop 2")
            a(f"s_cbranch_vccz {done}")
            a("s_sleep 2")
            a(f"buffer_load_dwordx4 {v(vFl,4)}, {v(vSt)}, {s(SWS,4)}, 0 offen sc1")
            a("s_waitcnt vmcnt(0)")
            a(f"s_branch {lab}")
            a.label(done)
            a(f"v_mov_b32 {v(BM)}, {v(vFl)}")
            a(f"v_and_b32 {v(BM+1)}, 0xffff, {v(vFl+1)}")
            a(f"v_mov_b32 {v(vRS)}, {v(vFl+2)}")
            a(f"v_mul_f32 {v(vRS+1)}, {f32bits(28**-0.5*LOG2E):#x}, {v(vFl+2)}")
            a("s_waitcnt lgkmcnt(0)")
            a("s_barrier")
            self.ts("stat barrier")
            S0 = WB
            for tj in range(ntile):
                for k in range(4): a(f"ds_read2_b32 {v(S0+8*tj+2*k,2)}, {v(92+tj)} offset0:{64*k} offset1:{64*k+32}")
            for tj in range(ntile):
                a(f"s_cmp_eq_u32 {s(sU0+tj)}, 1")
                a(f"s_cselect_b64 {s(sSAVE,2)}, -1, 0")
                a(f"v_cndmask_b32 {v(SCL+2*tj)}, {v(vRS)}, {v(vRS+1)}, {s(sSAVE,2)}")
                a(f"v_cndmask_b32 {v(SCL+2*tj+1)}, {v(vRS)}, {v(vRS+1)}, {s(sSAVE,2)}")
            for tj in range(ntile):
                c0 = S0 + 8 * tj
                a(f"s_waitcnt lgkmcnt({4*(ntile-1-tj)})")
                a(f"v_pk_add_f32 {v(c0,2)}, {v(c0,2)}, {v(c0+2,2)}")
                a(f"v_pk_add_f32 {v(c0+4,2)}, {v(c0+4,2)}, {v(c0+6,2)}")
                a(f"v_pk_add_f32 {v(c0,2)}, {v(c0,2)}, {v(c0+4,2)}")
                a(f"v_add_f32 {v(c0)}, {v(c0)}, {v(c0+1)}")
                self.cs_operand(AM + 4 * tj, c0)
                a(f"{MF} {v(ACC+16*tj,16)}, {v(AM+4*tj,4)}, {v(BM,4)}, {v(ACC+16*tj,16)}")
            for tj in range(ntile):
                PK = WB + 8 * tj
                A_ = ACC + 16 * tj
                for h_ in range(2):
                    for k in range(4): a(f"v_pk_mul_f32 {v(A_+8*h_+2*k,2)}, {v(A_+8*h_+2*k,2)}, {v(SCL+2*tj,2)}")
                    for k in range(4): a(f"v_cvt_pk_bf16_f32 {v(PK+4*h_+k)}, {v(A_+8*h_+2*k)}, {v(A_+8*h_+2*k+1)}")
                for h_ in range(2):
                    a(f"v_permlane32_swap_b32 {v(PK+4*h_)}, {v(PK+4*h_+2)}")
                    a(f"v_permlane32_swap_b32 {v(PK+4*h_+1)}, {v(PK+4*h_+3)}")
                    a(f"buffer_store_dwordx4 {v(PK+4*h_,4)}, {v(vSA+tj)}, {s(SWS,4)}, 0 offen offset:{1024*h_} sc1")
            self.ts("qkv stores issued")
            if role == 0: a(f"s_branch {lrj}")
        a.label(lrj)
        if self.stop_after >= 2: self.p2_copy()
        self.publish(0, True)
        self.ts("QKV published")
        if full: self.wo_read()
        self.lpad = lpad


    def stage_rows128(self, srd, rowstride, scol, ldsbase, vsrc=2):
        a = self.a
        a(f"s_mul_i32 {s(sT0)}, {s(sW)}, 56")
        self.rows128_src(vsrc, rowstride, sT0, scol)
        a(f"s_mul_i32 {s(sT1)}, {s(sW)}, 7168")
        for j in range(7):
            a(f"s_mov_b32 {s(sT0)}, {8*j*rowstride}")
            self.dma(vsrc, srd, sT0, (sT1, ldsbase + 1024 * j))

    def move_frags(self, dst, vaddr, nsteps, perm, off0=0):
        a = self.a
        for k in range(nsteps):
            a(f"ds_read_b64_tr_b16 {v(dst+4*k,2)}, {v(vaddr)} offset:{off0+k*2048}")
            a(f"ds_read_b64_tr_b16 {v(dst+4*k+2,2)}, {v(vaddr)} offset:{off0+k*2048+(1024 if perm else 512)}")

    def busy_begin(self):
        a = self.a
        l = a.newlabel("NB")
        a(f"s_cmp_eq_u32 {s(sBUSY)}, 0")
        a(f"s_cbranch_scc1 {l}")
        return l

    def idle_path(self):
        main = self.a
        side = Asm(); side.nlabel = 100000
        self.a = a = side
        lpad = self.lpad
        a("s_nop 15") if False else None
        a.label(lpad)
        if self.cpf:
            a(f"s_getpc_b64 {s(sTS,2)}")
            a.label("L_PC")
            a.raw(f"    s_sub_u32 {s(sTS)}, {s(sTS)}, L_PC-{NAME}_kernel")
            a(f"s_subb_u32 {s(sTS+1)}, {s(sTS+1)}, 0")
            a(f"v_lshlrev_b32 v4, 7, v0")
            a(f"v_mov_b32 v7, {s(sTS+1)}")
            a(f"v_add_co_u32 v6, vcc, {s(sTS)}, v4")
            a(f"v_addc_co_u32 v7, vcc, 0, v7, vcc")
            a.raw(f"    v_cmp_gt_u32 vcc, L_CODE_END-{NAME}_kernel, v4")
            a("s_nop 3")
            a(f"s_and_saveexec_b64 {s(sSAVE,2)}, vcc")
            lx = a.newlabel("CP")
            a(f"s_cbranch_execz {lx}")
            a(f"global_load_dword v86, v[6:7], off")
            a.label(lx)
            a("s_mov_b64 exec, -1")
        a(f"s_lshl_b32 {s(sT0)}, {s(sR)}, 7")
        a(f"s_sub_u32 {s(sT1)}, {s(sC)}, 14")
        a(f"s_lshl_b32 {s(sT1)}, {s(sT1)}, 6")
        a(f"s_add_u32 {s(sT0)}, {s(sT0)}, {s(sT1)}")
        a(f"v_lshrrev_b32 {v(2)}, 3, v0")
        a(f"v_add_u32 {v(2)}, {s(sT0)}, {v(2)}")
        a(f"v_mul_u32_u24 {v(3)}, 896, {v(2)}")
        a(f"v_and_b32 {v(T)}, 7, v0")
        a(f"v_lshl_add_u32 {v(3)}, {v(T)}, 4, {v(3)}")
        for j in range(7): a(f"buffer_load_dwordx4 {v(32+4*j,4)}, {v(3)}, {s(SX,4)}, 0 offen offset:{128*j}")
        self.flag_pretouch()
        self.idle_extra = 0
        a(f"v_mov_b32 v4, 0")
        a(f"v_mov_b32 v5, 0")
        for j in range(7):
            a(f"s_waitcnt vmcnt({7-j})")
            if j == 3: self.token_load(24)
            if j == 6: a("s_waitcnt vmcnt(0)")
            for k in range(4): a(f"v_dot2c_f32_bf16 v4, {s(sONES)}, {v(32+4*j+k)}")
            for k in range(4): a(f"v_dot2c_f32_bf16 v5, {v(32+4*j+k)}, {v(32+4*j+k)}")
        for ctl in ("quad_perm:[1,0,3,2]", "quad_perm:[2,3,0,1]", "row_half_mirror"):
            a(f"v_add_f32_dpp v4, v4, v4 {ctl} row_mask:0xf bank_mask:0xf")
            a(f"v_add_f32_dpp v5, v5, v5 {ctl} row_mask:0xf bank_mask:0xf")
        self.stats_finish(4, 5, 6, 7)
        self.mean_operand(20, 6, 8)
        a(f"v_mov_b32 v22, v7")
        self.token_take(24)
        a(f"s_lshl_b32 {s(sT0)}, {s(sTOK+1)}, 16")
        a(f"v_or_b32 v21, {s(sT0)}, v21")
        a(f"v_mov_b32 v23, {s(sTOK)}")
        a(f"v_lshlrev_b32 v2, 4, v2")
        a(f"v_add_u32 v2, {XS_OFF}, v2")
        self.set_exec(0x0101010101010101)
        a(f"buffer_store_dwordx4 v[20:23], v2, {s(SWS,4)}, 0 offen sc1")
        a("s_mov_b64 exec, -1")
        self.ts("stats stored")
        a(f"s_sub_u32 {s(sT0)}, {s(sC)}, 14")
        a(f"s_lshl_b32 {s(sT0)}, {s(sT0)}, 3")
        a(f"s_add_u32 {s(sT0)}, {s(sT0)}, {s(sW)}")
        a(f"s_lshl_b32 {s(sT0)}, {s(sT0)}, 6")
        a(f"s_lshl_b32 {s(sT1)}, {s(sR)}, 2")
        a(f"s_add_u32 {s(sT0)}, {s(sT0)}, {s(sT1)}")
        a(f"s_lshl_b32 {s(sT0)}, {s(sT0)}, 11")
        a(f"s_add_u32 {s(sT0)}, {s(sT0)}, {O_OFF}")
        a(f"v_lshlrev_b32 {v(T)}, 7, v1")
        a(f"buffer_load_dword {v(86)}, {v(T)}, {s(SWS,4)}, {s(sT0)} offen sc1")
        if self.stop_after >= 2:
            self.p2_pre(); self.p2_copy()
        self.publish(0, True)
        if self.tp & 12:
            l = a.newlabel("M3")
            a(f"s_cmp_eq_u32 {s(sROLE)}, 0")
            a(f"s_cbranch_scc1 {l}")
            self.touch(SW1, (sT, 1, 3))
            a.label(l)
        self.idle_touch_setup()
        if self.tp & 2:
            lI = "L_P2POLL"
            rounds = [(SWO, h) for h in range(3)] + [(SW1, h) for h in range(self.n1)]
            a(f"v_mov_b32 {v(58)}, {L_FLAG}")
            for srd, h in rounds:
                l1_, l2_ = a.newlabel("IR"), a.newlabel("IR")
                a(f"s_cmp_eq_u32 {s(sROLE)}, 0")
                a(f"s_cbranch_scc1 {l1_}")
                a(f"s_mov_b32 {s(sT0)}, {h*131072}")
                a(f"buffer_load_dword {v(86)}, {v(56)}, {s(srd,4)}, {s(sT0)} offen")
                a("s_waitcnt vmcnt(0)")
                a.label(l1_)
                a(f"s_cmp_lg_u32 {s(sW)}, 0")
                a(f"s_cbranch_scc1 {l2_}")
                a(f"buffer_load_dwordx2 {v(62,2)}, {v(61)}, {s(SWS,4)}, 0 offen{self.kvsc}")
                a("s_waitcnt vmcnt(0)")
                self.flag_check(62, 64)
                a(f"s_bcnt1_i32_b64 {s(sT0)}, vcc")
                a(f"v_mov_b32 {v(59)}, {s(sT0)}")
                a(f"ds_write_b32 {v(58)}, {v(59)}")
                a.label(l2_)
                a("s_waitcnt lgkmcnt(0)")
                a("s_barrier")
                a(f"ds_read_b32 {v(59)}, {v(58)}")
                a("s_waitcnt lgkmcnt(0)")
                a(f"v_readfirstlane_b32 {s(sT0)}, {v(59)}")
                a("s_barrier")
                a(f"s_cmp_lt_u32 {s(sT0)}, 50")
                a(f"s_cbranch_scc1 {lI}")
        a("s_nop 7")
        a("s_branch L_P2POLL")
        a.label("L_CODE_END")
        self.a = main
        self.side = side

    def wo_addr(self):
        a = self.a
        if True:
            a(f"s_and_b32 {s(sT1)}, {s(sW)}, 1")
            a(f"s_lshl_b32 {s(sT0)}, {s(sROLE)}, 1")
            a(f"s_add_u32 {s(sT0)}, {s(sT0)}, {s(sT1)}")
            a(f"s_mul_i32 {s(sT0)}, {s(sT0)}, {112*128}")
            a(f"s_add_u32 {s(sT0)}, {s(sT0)}, {L_WO}")
            a(f"s_mov_b32 {s(sU0)}, 0")
            self.tr128_addr(58, False, sT0)
            a(f"v_xor_b32 {v(57)}, 64, {v(58)}")
            a(f"s_lshl_b32 {s(sU0)}, {s(sT1)}, 6")
            a(f"s_and_b32 {s(sT1)}, {s(sW)}, 2")
            a(f"s_lshl_b32 {s(sT1)}, {s(sT1)}, 4")
            a(f"v_and_b32 {v(T)}, 31, v1")
            a(f"v_add_u32 {v(T)}, {s(sT1)}, {v(T)}")
            a(f"s_lshl_b32 {s(sT0)}, {s(sROLE)}, 5")
            a(f"s_add_u32 {s(sT0)}, {s(sT0)}, {s(sU0)}")
            a(f"v_lshrrev_b32 {v(T2)}, 5, v1")
            a(f"v_lshl_add_u32 {v(T2)}, {v(T2)}, 3, {s(sT0)}")
            a(f"v_bfe_u32 {v(59)}, v1, 1, 1")
            a(f"v_lshlrev_b32 {v(59)}, 6, {v(59)}")
            a(f"v_xor_b32 {v(59)}, {v(59)}, {v(T2)}")
            a(f"v_lshl_add_u32 {v(59)}, {v(T)}, 7, {v(59)}")
            a(f"v_add_u32 {v(59)}, {L_XR}, {v(59)}")
            a(f"s_lshl_b32 {s(sT0)}, {s(sR)}, 7")
            a(f"s_lshl_b32 {s(sT1)}, {s(sTH)}, 6")
            a(f"s_add_u32 {s(sT0)}, {s(sT0)}, {s(sT1)}")
            a(f"v_add_u32 {v(T)}, {s(sT0)}, {v(T)}")
            a(f"v_mul_u32_u24 {v(T)}, 896, {v(T)}")
            a(f"s_lshl_b32 {s(sT0)}, {s(sCT)}, 7")
            a(f"v_add3_u32 {v(85)}, {v(T)}, {v(T2)}, {s(sT0)}")

    def wo_read(self):
        a = self.a
        if True:
            for k in range(16):
                ks, n_ = divmod(k, 2)
                d = R_C + 4 * k if k < 14 else 232 + 4 * (k - 14)
                off = (28 * (ks // 2) + 16 * (ks % 2) - 4 * ((ks // 2) & 1)) * 128
                a(f"ds_read_b64_tr_b16 {v(d,2)}, {v(58-n_)} offset:{off}")
                a(f"ds_read_b64_tr_b16 {v(d+2,2)}, {v(58-n_)} offset:{off+512}")
            a(f"ds_read_b64 {v(vHRES,2)}, {v(59)}")
            a(f"ds_read_b64 {v(vHRES+2,2)}, {v(59)} offset:16")

    def p2_pre(self):
        a = self.a
        QF = 72; SR = R_A; OA = 16; KB = 32; vM = 12
        AO = R_A + 80; BN = R_A + 84
        a(f"s_mul_i32 {s(sT0)}, {s(sC)}, 7")
        a(f"s_lshr_b32 {s(sT0)}, {s(sT0)}, 1")
        a(f"v_lshrrev_b32 {v(T)}, 5, v1")
        a(f"v_and_b32 {v(69)}, 31, v1")
        for p_ in range(2):
            a(f"v_add3_u32 {v(T2)}, {v(T)}, {s(sT0)}, {2*p_}")
            a(f"v_lshrrev_b32 {v(65+p_)}, 2, {v(T2)}")
            a(f"v_lshlrev_b32 {v(65+p_)}, 17, {v(65+p_)}")
            a(f"v_and_b32 {v(T2)}, 3, {v(T2)}")
            a(f"v_lshl_add_u32 {v(65+p_)}, {v(T2)}, 9, {v(65+p_)}")
        a(f"s_and_b32 {s(82)}, {s(sW)}, 1")
        a(f"s_cmp_eq_u32 {s(82)}, 1")
        a(f"s_cselect_b64 {s(sSAVE,2)}, -1, 0")
        a(f"v_cndmask_b32 {v(68)}, {v(65)}, {v(66)}, {s(sSAVE,2)}")
        a(f"v_lshl_add_u32 {v(67)}, {v(69)}, 4, {v(68)}")
        a(f"s_lshl_b32 {s(sT1)}, {s(82)}, 1")
        a(f"v_add_u32 {v(T2)}, {s(sT1)}, {v(T)}")
        a(f"v_lshlrev_b32 {v(T2)}, 2, {v(T2)}")
        a(f"v_sub_u32 {v(T2)}, {v(69)}, {v(T2)}")
        a(f"v_and_b32 {v(T2)}, 31, {v(T2)}")
        a(f"v_lshl_add_u32 {v(68)}, {v(T2)}, 4, {v(68)}")
        a(f"v_lshl_add_u32 {v(65)}, {v(69)}, 4, {v(65)}")
        a(f"v_lshl_add_u32 {v(66)}, {v(69)}, 4, {v(66)}")
        a(f"s_lshl_b32 {s(sT1)}, {s(sR)}, 2")
        a(f"s_add_u32 {s(sT2)}, {s(sT1)}, {s(sT)}")
        a(f"s_lshl_b32 {s(72)}, {s(sT2)}, 11")
        a(f"s_lshl_b32 {s(sT3)}, {s(sC)}, 17")
        a(f"s_add_u32 {s(73)}, {s(72)}, {s(sT3)}")
        a(f"s_add_u32 {s(73)}, {s(73)}, {O_OFF}")
        a(f"s_lshr_b32 {s(sT3)}, {s(sW)}, 1")
        a(f"s_mul_i32 {s(sT3)}, {s(sT3)}, 3")
        a(f"s_add_u32 {s(sT1)}, {s(sT1)}, {s(sT3)}")
        a(f"s_add_u32 {s(sT1)}, {s(sT1)}, {14*64-8}")
        a(f"s_lshl_b32 {s(74)}, {s(sT1)}, 11")
        a(f"s_lshl_b32 {s(sT3)}, {s(sT3)}, 11")
        a(f"s_lshl_b32 {s(75)}, {s(82)}, 10")
        a(f"s_add_u32 {s(75)}, {s(75)}, {s(sT3)}")
        vK = 2; vV = 3
        sB = sT4
        a(f"s_lshl_b32 {s(sT0)}, {s(sROLE)}, 2")
        a(f"s_sub_u32 {s(76)}, {s(sT)}, {s(sT0)}")
        a(f"s_add_u32 {s(76)}, {s(76)}, 4")
        a(f"s_lshl_b32 {s(sT0)}, {s(76)}, 11")
        a(f"s_add_u32 {s(sT0)}, {s(sT0)}, {L_K}")
        a(f"v_lshl_add_u32 {v(vK)}, v1, 4, {s(sT0)}")
        a(f"v_bfe_u32 {v(T)}, v1, 4, 1")
        a(f"v_and_b32 {v(vV)}, 3, v1")
        a(f"v_lshl_add_u32 {v(T)}, {v(T)}, 2, {v(vV)}")
        a(f"v_lshrrev_b32 {v(T2)}, 1, {v(T)}")
        a(f"v_lshrrev_b32 {v(vV)}, 5, v1")
        a(f"v_add_u32 {v(vV)}, {v(vV)}, {v(T2)}")
        a(f"v_bfe_u32 {v(vV+1)}, v1, 2, 2")
        a(f"v_lshl_add_u32 {v(8)}, {v(vV)}, 2, {v(vV+1)}")
        a(f"v_lshl_add_u32 {v(T2)}, {v(T2)}, 9, {s(sT0)}")
        a(f"v_and_b32 {v(vV)}, 1, v1")
        a(f"v_lshl_add_u32 {v(T2)}, {v(vV)}, 3, {v(T2)}")
        a(f"v_add_u32 {v(T2)}, {L_V-L_K}, {v(T2)}")
        a(f"s_and_b32 {s(sT1)}, {s(sC)}, 1")
        a(f"s_mul_i32 {s(sT1)}, {s(sT1)}, 7")
        a(f"s_sub_u32 {s(sT1)}, 7, {s(sT1)}")
        a(f"v_cmp_eq_u32 {s(sSAVE,2)}, {s(sT1)}, {v(T)}")
        a(f"v_mov_b32 {v(T)}, {L_ONES}")
        for k in range(4):
            a(f"v_add_u32 {v(vV+k)}, {8*k}, {v(8)}")
            a(f"v_and_b32 {v(vV+k)}, 31, {v(vV+k)}")
            a(f"v_lshl_add_u32 {v(vV+k)}, {v(vV+k)}, 4, {v(T2)}")
            a(f"v_cndmask_b32 {v(vV+k)}, {v(vV+k)}, {v(T)}, {s(sSAVE,2)}")
        sFV = sT5
        a(f"s_lshl_b32 {s(sT0)}, {s(sR)}, 2")
        a(f"s_sub_i32 {s(77)}, 8, {s(sT0)}")
        a(f"s_sub_i32 {s(77)}, {s(77)}, {s(76)}")
        a(f"s_mov_b32 {s(sT0)}, 0")
        a(f"s_lshl_b32 {s(sT2)}, {s(sC)}, 8")
        self.rows128_src(9, 3584, sT0, sT2)
        sWs8, sWl8, sWs4, sWl4 = sKC, sKC + 1, sKC + 2, sKC + 3
        a(f"s_mul_i32 {s(78)}, {s(sW)}, {8*3584}")
        a(f"s_lshl_b32 {s(79)}, {s(sW)}, 10")
        a(f"s_mul_i32 {s(80)}, {s(sT)}, {8*3584}")
        a(f"s_lshl_b32 {s(81)}, {s(sT)}, 10")
        vMA, vMX, vOS = 7, 8, 10
        a(f"s_mul_i32 {s(sT0)}, {s(sT)}, 4608")
        a(f"s_add_u32 {s(sT0)}, {s(sT0)}, {L_MRG}")
        a(f"v_lshl_add_u32 {v(vMA)}, v1, 4, {s(sT0)}")
        a(f"s_lshl_b32 {s(sT1)}, {s(sROLE)}, 8")
        a(f"s_add_u32 {s(sT0)}, {s(sT0)}, {s(sT1)}")
        a(f"s_add_u32 {s(sT0)}, {s(sT0)}, 4096")
        a(f"v_lshl_add_u32 {v(vMX)}, v1, 2, {s(sT0)}")
        a(f"v_xor_b32 {v(11)}, 256, {v(vMX)}")
        assert (L_MRG + 4096) % 512 == 0 and 4608 % 512 == 0
        a(f"v_lshl_add_u32 {v(vOS)}, v1, 4, {s(73)}")
        a(f"v_lshrrev_b32 {v(T)}, 4, v1")
        a(f"v_sub_u32 {v(T)}, {s(sR)}, {v(T)}")
        a(f"v_max_i32 {v(T)}, 0, {v(T)}")
        a(f"v_and_b32 {v(T2)}, 15, v1")
        a(f"v_cmp_le_u32 vcc, 7, {v(T2)}")
        a(f"v_cndmask_b32 {v(62)}, 0, 1, vcc")
        a(f"v_and_b32 {v(60)}, 12, {v(T)}")
        a(f"v_lshl_add_u32 {v(60)}, {v(62)}, 1, {v(60)}")
        a(f"v_bfe_u32 {v(61)}, {v(T)}, 1, 1")
        a(f"v_add_u32 {v(60)}, {v(60)}, {v(61)}")
        a(f"v_and_b32 {v(61)}, 1, {v(T)}")
        a(f"v_sub_u32 {v(61)}, {v(61)}, {v(62)}")
        a(f"v_mad_i32_i24 {v(61)}, {v(61)}, 7, {v(T2)}")
        a(f"v_cmp_le_u32 vcc, 14, {v(T2)}")
        a(f"v_cndmask_b32 {v(60)}, {v(60)}, {v(T)}, vcc")
        a(f"v_cndmask_b32 {v(61)}, {v(61)}, {v(T2)}, vcc")
        a(f"v_mov_b32 {v(62)}, {s(sR)}")
        a(f"v_cmp_le_u32 vcc, 48, v1")
        a(f"v_cndmask_b32 {v(60)}, {v(60)}, {v(62)}, vcc")
        a(f"v_cndmask_b32 {v(61)}, {v(61)}, {v(T2)}, vcc")
        a(f"v_lshl_add_u32 {v(60)}, {v(60)}, 4, {v(61)}")
        a(f"v_lshlrev_b32 {v(T)}, 7, {v(60)}")
        a(f"v_add_u32 {v(61)}, {FL0_OFF}, {v(T)}")

    def p2_copy(self):
        a = self.a
        for d, src in ((sKC+6, 72), (sU1, 73), (sKC+4, 74), (sKC+5, 75), (sT4, 76), (sT5, 77), (sKC, 78), (sKC+1, 79)):
            a(f"s_mov_b32 {s(d)}, {s(src)}")
        a(f"v_mov_b32 {v(T)}, {L_ONES}")
        a(f"v_lshl_add_u32 {v(T)}, v1, 11, {v(T)}")
        a(f"v_mov_b32 {v(70)}, 0x3f80")
        a(f"v_mov_b32 {v(71)}, 0")
        a("s_mov_b64 exec, 31")
        a(f"ds_write_b64 {v(T)}, {v(70,2)}")
        a("s_mov_b64 exec, -1")

    def p2_late(self):
        a = self.a
        OA = 16; AO = R_A + 80; BN = R_A + 84
        a(f"v_mov_b32 {v(T)}, {s(sONES)}")
        a(f"v_cndmask_b32 {v(AO)}, {v(T)}, 0, {s(sHI,2)}")
        for k in range(1, 4): a(f"v_mov_b32 {v(AO+k)}, 0")
        for k in range(1, 4): a(f"v_mov_b32 {v(BN+k)}, 0")
        for k in range(16): a(f"v_mov_b32 {v(OA+k)}, 0")
        self.masks()

    def p2(self):
        a = self.a
        QF = 72
        SR = R_A
        OA = 16
        KB = 32
        vM = 12
        AO = R_A + 80
        BN = R_A + 84
        full = self.stop_after >= 3
        vK = 2; vV = 3; sB = sT4; sFV = sT5
        sWs8, sWl8, sWs4, sWl4 = sKC, sKC + 1, sKC + 2, sKC + 3
        vMA, vMX, vOS = 7, 8, 10
        lw = a.newlabel("P2W"); lw0 = a.newlabel("P2W")
        def w1dma(items, four):
            if not full: return
            l = self.busy_begin()
            for dp, q0 in items:
                a(f"s_add_u32 {s(sT0)}, {s(sWs4 if four else sWs8)}, {q0*8*3584 + 128*dp}")
                self.dma(9, SW1, sT0, (sWl4 if four else sWl8, L_W1B * dp + 1024 * q0))
            a.label(l)
        self.idle_path()
        a.label("L_P2POLL")
        self.ts("pre poll")
        a(f"s_cmp_lg_u32 {s(sW)}, 0")
        a(f"s_cbranch_scc1 {lw}")
        self.poll(61, 62, 64, (1 << 64) - 1, "KV", sleep=self.kvsleep, sc=self.kvsc)
        self.ts("poll done")
        self.set_exec(0xffff << 48)
        a(f"v_lshrrev_b32 {v(63)}, 28, {v(63)}")
        a(f"v_cmp_ne_u32 vcc, {s(sXCC)}, {v(63)}")
        a(f"s_mov_b64 exec, -1")
        a(f"s_cmp_eq_u64 vcc, 0")
        a(f"s_cselect_b32 {s(sT0)}, 1, 0")
        a(f"v_mov_b32 {v(T2)}, {s(sT0)}")
        a(f"v_mov_b32 {v(T)}, {L_FLAG}")
        a(f"ds_write_b32 {v(T)}, {v(T2)}")
        a.label(lw)
        a("s_waitcnt lgkmcnt(0)")
        self.ts("own wait done")
        a("s_barrier")
        self.ts("QKV flags seen")
        for k in range(3):
            a(f"s_add_u32 {s(sT3)}, {s(sKC+4)}, {2048*k}")
            self.dma(67, SWS, sT3, (sKC+5, L_K + 2048 * k), sc1=True)
        for p_ in range(2):
            a(f"buffer_load_dwordx4 {v(QF+4*p_,4)}, {v(65+p_)}, {s(SWS,4)}, {s(sKC+6)} offen sc1")
        a(f"v_mov_b32 {v(T)}, {L_FLAG}")
        a(f"ds_read_b32 {v(13)}, {v(T)}")
        self.p2_late()
        a("s_waitcnt lgkmcnt(0)")
        a(f"v_readfirstlane_b32 {s(sLOCAL)}, {v(13)}")
        a("s_waitcnt vmcnt(0)")
        a("s_barrier")
        self.ts("K landed")
        for k in range(3):
            a(f"s_add_u32 {s(sT3)}, {s(sKC+4)}, {2048*k+14*64*2048}")
            self.dma(68, SWS, sT3, (sKC+5, L_V + 2048 * k), sc1=True)
        NEG = f32bits(-1.0e30)
        def valid_branch(j, lab):
            if j == 4:
                a(f"s_cmp_eq_u32 {s(sROLE)}, 1")
                a(f"s_cbranch_scc1 {lab}")
            else:
                a(f"s_cmp_gt_i32 {s(sFV)}, {j}")
                a(f"s_cbranch_scc1 {lab}")
        for j in range(5):
            for k in range(2):
                a(f"ds_read_b128 {v(KB+8*j+4*k,4)}, {v(vK)} offset:{2048*j+1024*k}")
        def zero_foreign(base):
            lz1, lz2 = a.newlabel("ZF"), a.newlabel("ZF")
            a(f"s_bitcmp1_b32 {s(sC)}, 0")
            a(f"s_cbranch_scc1 {lz1}")
            a(f"v_cndmask_b32 {v(base+6)}, {v(base+6)}, 0, {s(sHI,2)}")
            a(f"v_cndmask_b32 {v(base+7)}, {v(base+7)}, 0, {s(sHI,2)}")
            a(f"s_branch {lz2}")
            a.label(lz1)
            a(f"v_cndmask_b32 {v(base)}, 0, {v(base)}, {s(sHI,2)}")
            a(f"v_cndmask_b32 {v(base+1)}, 0, {v(base+1)}, {s(sHI,2)}")
            a.label(lz2)
        zero_foreign(QF)
        a(f"v_mov_b32 {v(vM)}, {NEG:#x}")
        a(f"v_mov_b32 {v(13)}, {NEG:#x}")
        for j in range(5):
            lsk = a.newlabel("QS")
            a(f"s_waitcnt lgkmcnt({8-2*j})")
            valid_branch(j, lsk)
            a(f"{MF} {v(SR+16*j,16)}, {v(KB+8*j,4)}, {v(QF,4)}, 0")
            a(f"{MF} {v(SR+16*j,16)}, {v(KB+8*j+4,4)}, {v(QF+4,4)}, {v(SR+16*j,16)}")
            a.label(lsk)
        sched = self.w1sched
        rounds = [(0, 8 * k) for k in range(7)] + [(1, 8 * k) for k in range(7)]
        def w1next(n):
            it = [rounds.pop(0) for _ in range(min(n, len(rounds)))]
            if it: w1dma(it, False)
            return len(it)
        npre_max = 0
        a(f"v_mov_b32 {v(T)}, {NEG:#x}")
        for j in range(5):
            lsk = a.newlabel("MX")
            valid_branch(j, lsk)
            b = SR + 16 * j
            if j == 4:
                for k in range(16): a(f"v_cndmask_b32 {v(b+k)}, {v(T)}, {v(b+k)}, {s(sMASK+2*k,2)}")
            if j == 0:
                lm = a.newlabel("MK")
                a(f"s_cmp_eq_u32 {s(sROLE)}, 0")
                a(f"s_cbranch_scc1 {lm}")
                for k in range(16): a(f"v_cndmask_b32 {v(b+k)}, {v(b+k)}, {v(T)}, {s(sMASK+2*k,2)}")
                a.label(lm)
            for k in range(8):
                d = vM if k % 2 == 0 else 13
                a(f"v_max3_f32 {v(d)}, {v(d)}, {v(b+2*k)}, {v(b+2*k+1)}")
            a.label(lsk)
            npre_max += w1next(sched[0][j])
        a(f"v_max_f32 {v(vM)}, {v(vM)}, {v(13)}")
        a(f"v_mov_b32 {v(T)}, {v(vM)}")
        a(f"v_permlane32_swap_b32 {v(T)}, {v(vM)}")
        a(f"v_max_f32 {v(vM)}, {v(vM)}, {v(T)}")
        a(f"ds_write_b32 {v(vMX)}, {v(vM)}")
        assert npre_max <= 11
        lv1, lv2 = a.newlabel("VW"), a.newlabel("VW")
        a(f"s_cmp_eq_u32 {s(sBUSY)}, 1")
        a(f"s_cbranch_scc1 {lv1}")
        a("s_waitcnt vmcnt(0)")
        a.label(lv1)
        a(f"s_waitcnt vmcnt({npre_max if full else 0}) lgkmcnt(0)")
        a("s_barrier")
        a(f"ds_read_b32 {v(T)}, {v(11)}")
        for j in range(5):
            for st in range(2):
                for rr in range(2):
                    a(f"ds_read_b64_tr_b16 {v(KB+8*j+4*st+2*rr,2)}, {v(vV+2*st+rr)} offset:{2048*j}")
        a("s_waitcnt lgkmcnt(15)")
        a(f"v_max_f32 {v(vM)}, {v(vM)}, {v(T)}")
        a(f"v_cvt_pk_bf16_f32 {v(T)}, -{v(vM)}, 0")
        a(f"v_lshlrev_b32 {v(T)}, 16, {v(T)}")
        a(f"v_sub_f32 {v(T)}, -{v(vM)}, {v(T)}")
        a(f"v_cvt_pk_bf16_f32 {v(BN)}, -{v(vM)}, {v(T)}")
        self.ts("max done")
        for j in range(5):
            lsk = a.newlabel("SB")
            valid_branch(j, lsk)
            a(f"{MF} {v(SR+16*j,16)}, {v(AO,4)}, {v(BN,4)}, {v(SR+16*j,16)}")
            a.label(lsk)
        w1next(sched[1])
        a("s_waitcnt lgkmcnt(0)")
        for j in range(5):
            lsk = a.newlabel("PS")
            valid_branch(j, lsk)
            b = SR + 16 * j
            for h_ in range(2):
                for k in range(8): a(f"v_exp_f32 {v(b+8*h_+k)}, {v(b+8*h_+k)}")
                for k in range(4): a(f"v_cvt_pk_bf16_f32 {v(b+8*h_+k)}, {v(b+8*h_+2*k)}, {v(b+8*h_+2*k+1)}")
            a(f"{MF} {v(OA,16)}, {v(KB+8*j,4)}, {v(b,4)}, {v(OA,16)}")
            a(f"{MF} {v(OA,16)}, {v(KB+8*j+4,4)}, {v(b+8,4)}, {v(OA,16)}")
            a.label(lsk)
            w1next(sched[2][j])
        assert not rounds
        self.ts("attn partial done")
        l1 = a.newlabel("MG")
        a(f"s_cmp_eq_u32 {s(sROLE)}, 1")
        a(f"s_cbranch_scc0 {l1}")
        for k in range(4): a(f"ds_write_b128 {v(vMA)}, {v(OA+4*k,4)} offset:{1024*k}")
        a.label(l1)
        a(f"s_lshl_b32 {s(sT1)}, {s(sR)}, 9")
        a(f"s_lshl_b32 {s(sT2)}, {s(sT)}, 7")
        a(f"s_add_u32 {s(sT1)}, {s(sT1)}, {s(sT2)}")
        a(f"s_lshl_b32 {s(sT2)}, {s(sC)}, 3")
        a(f"s_add_u32 {s(sT1)}, {s(sT1)}, {s(sT2)}")
        a(f"s_add_u32 {s(sT1)}, {s(sT1)}, {FLG(1)}")
        a(f"s_lshl_b32 {s(sT2)}, {s(sXCC)}, 28")
        a(f"s_or_b32 {s(sT2)}, {s(sT2)}, {s(sTOK+1)}")
        a(f"v_mov_b32 {v(13)}, {s(sT1)}")
        a(f"v_mov_b32 {v(60)}, {s(sTOK)}")
        a(f"v_mov_b32 {v(61)}, {s(sT2)}")
        a("s_waitcnt vmcnt(0) lgkmcnt(0)")
        a("s_barrier")
        self.ts("merge barrier")
        l2, l3 = a.newlabel("MG"), a.newlabel("MG")
        a(f"s_cmp_eq_u32 {s(sROLE)}, 0")
        a(f"s_cbranch_scc0 {l2}")
        O1 = 32
        for k in (3, 0, 1, 2): a(f"ds_read_b128 {v(O1+4*k,4)}, {v(vMA)} offset:{1024*k}")
        a(f"s_bitcmp1_b32 {s(sC)}, 0")
        a(f"s_cselect_b64 {s(sSAVE,2)}, -1, 0")
        a("s_waitcnt lgkmcnt(2)")
        for k in (6, 7, 0, 1): a(f"v_pk_add_f32 {v(OA+2*k,2)}, {v(OA+2*k,2)}, {v(O1+2*k,2)}")
        a(f"v_cndmask_b32 {v(T)}, {v(OA)}, {v(OA+12)}, {s(sHI,2)}")
        a(f"v_mov_b32 {v(T2)}, {v(T)}")
        a(f"v_permlane32_swap_b32 {v(T)}, {v(T2)}")
        a(f"v_cndmask_b32 {v(T2)}, {v(T2)}, {v(T)}, {s(sSAVE,2)}")
        a(f"v_rcp_f32 {v(T2)}, {v(T2)}")
        a("s_waitcnt lgkmcnt(0)")
        for k in (2, 3, 4, 5): a(f"v_pk_add_f32 {v(OA+2*k,2)}, {v(OA+2*k,2)}, {v(O1+2*k,2)}")
        a(f"v_mov_b32 {v(T)}, {v(T2)}")
        for aa in range(4):
            for k in range(2): a(f"v_pk_mul_f32 {v(OA+4*aa+2*k,2)}, {v(OA+4*aa+2*k,2)}, {v(T,2)}")
            for k in range(2): a(f"v_cvt_pk_bf16_f32 {v(O1+2*aa+k)}, {v(OA+4*aa+2*k)}, {v(OA+4*aa+2*k+1)}")
        zero_foreign(O1)
        for h_ in range(2):
            a(f"v_permlane32_swap_b32 {v(O1+4*h_)}, {v(O1+4*h_+2)}")
            a(f"v_permlane32_swap_b32 {v(O1+4*h_+1)}, {v(O1+4*h_+3)}")
        def ost(sc):
            for h_ in range(2):
                a(f"buffer_store_dwordx4 {v(O1+4*h_,4)}, {v(vOS)}, {s(SWS,4)}, 0 offen offset:{1024*h_}{sc}")
        if self.oplain: self.two_path(ost)
        else: ost(" sc1")
        if full: self.p3_addrA()
        a(f"s_mov_b64 exec, 1")
        a("s_waitcnt vmcnt(0)")
        self.two_path(lambda sc: a(f"buffer_store_dwordx2 {v(60,2)}, {v(13)}, {s(SWS,4)}, 0 offen{sc}"))
        a(f"s_mov_b64 exec, -1")
        self.ts("O flag stored")
        a(f"s_branch {l3}")
        a.label(l2)
        if full:
            self.p3_addrA()
            self.p3_moves()
        self.w1dma = w1dma
        a.label(l3)
        self.ts("O published")

    def w1_move(self, dp, ldsbase):
        a = self.a
        l = a.newlabel("W1M")
        a(f"s_lshr_b32 {s(sT0)}, {s(sT)}, 1")
        a(f"s_cmp_lg_u32 {s(sT0)}, {dp}")
        a(f"s_cbranch_scc1 {l}")
        a(f"s_and_b32 {s(sU0)}, {s(sW)}, 1")
        a(f"s_lshl_b32 {s(sU0)}, {s(sU0)}, 6")
        a(f"s_mov_b32 {s(sT0)}, {ldsbase}")
        self.tr128_addr(3, True, sT0)
        self.move_frags(R_A, 3, 28, True)
        a.label(l)

    def p3_addrA(self):
        a = self.a
        z = lambda k: 64 + k
        sN, sUu, sTile2 = z(0), z(1), z(2)
        a(f"s_and_b32 {s(sN)}, {s(sW)}, 1")
        a(f"s_bfe_u32 {s(sUu)}, {s(sW)}, 0x10001")
        a(f"s_lshl_b32 {s(sTile2)}, {s(sR)}, 2")
        a(f"s_lshl_b32 {s(sT1)}, {s(sTH)}, 1")
        a(f"s_add_u32 {s(sTile2)}, {s(sTile2)}, {s(sT1)}")
        a(f"s_lshl_b32 {s(sT0)}, {s(sROLE)}, 1")
        a(f"s_add_u32 {s(z(3))}, {s(sT0)}, {s(sN)}")
        a(f"s_lshl_b32 {s(sT0)}, {s(z(3))}, 8")
        a(f"s_add_u32 {s(sT2)}, {s(sTile2)}, {s(sUu)}")
        a(f"s_add_u32 {s(sT0)}, {s(sT0)}, {s(sT2)}")
        a(f"s_lshl_b32 {s(z(5))}, {s(sT0)}, 11")
        a(f"s_add_u32 {s(z(5))}, {s(z(5))}, {O_OFF}")
        a(f"s_lshl_b32 {s(sT0)}, {s(sT2)}, 7")
        a(f"s_lshl_b32 {s(sT1)}, {s(z(3))}, 5")
        a(f"s_add_u32 {s(sT0)}, {s(sT0)}, {s(sT1)}")
        a(f"s_add_u32 {s(z(4))}, {s(sT0)}, {FLG(1)}")

    def p3_moves(self):
        a = self.a
        lb = self.busy_begin()
        for k in range(8): a(f"v_mov_b32 {v(4+k)}, {v(232+k)}")
        a(f"s_and_b32 {s(sU0)}, {s(sW)}, 1")
        a(f"s_lshl_b32 {s(sU0)}, {s(sU0)}, 6")
        a(f"s_lshr_b32 {s(sT0)}, {s(sT)}, 1")
        a(f"s_mul_i32 {s(sT0)}, {s(sT0)}, {L_W1B}")
        self.tr128_addr(3, True, sT0)
        self.move_frags(R_A, 3, 28, True)
        a.label(lb)

    def p3_rest(self):
        a = self.a
        z = lambda k: 64 + k
        sN, sUu, sTile2 = z(0), z(1), z(2)
        a(f"s_lshl_b32 {s(sT1)}, {s(sUu)}, 15")
        a(f"s_add_u32 {s(sT1)}, {s(sT1)}, {L_RED3D}")
        a(f"s_lshl_b32 {s(sT0)}, {s(z(3))}, 11")
        a(f"s_add_u32 {s(z(15))}, {s(sT0)}, {s(sT1)}")
        a(f"s_lshl_b32 {s(sT0)}, {s(z(3))}, 13")
        a(f"s_add_u32 {s(z(16))}, {s(sT0)}, {s(sT1)}")
        a(f"s_add_u32 {s(sT0)}, {s(sTile2)}, {s(sUu)}")
        a(f"s_mul_i32 {s(sT0)}, {s(sT0)}, 28")
        a(f"s_lshl_b32 {s(sT1)}, {s(sCT)}, 2")
        a(f"s_add_u32 {s(sT0)}, {s(sT0)}, {s(sT1)}")
        a(f"s_lshl_b32 {s(sT1)}, {s(sN)}, 1")
        a(f"s_add_u32 {s(sT0)}, {s(sT0)}, {s(sT1)}")
        a(f"s_add_u32 {s(sT0)}, {s(sT0)}, {s(sROLE)}")
        a(f"s_lshl_b32 {s(sT1)}, {s(sT0)}, 10")
        a(f"s_add_u32 {s(z(17))}, {s(sT1)}, {H_OFF}")
        a(f"s_lshl_b32 {s(sT1)}, {s(sT0)}, 8")
        a(f"s_add_u32 {s(z(18))}, {s(sT1)}, {HS_OFF}")
        sKQ = z(7); self.sKQ = sKQ
        a(f"s_and_b32 {s(sKQ)}, {s(sW)}, 2")
        a(f"s_add_u32 {s(sKQ)}, {s(sKQ)}, {s(sROLE)}")
        a(f"s_mul_i32 {s(sT0)}, {s(sKQ)}, 448")
        a(f"s_lshl_b32 {s(sT2)}, {s(sN)}, 4")
        a(f"s_add_u32 {s(sT0)}, {s(sT0)}, {s(sT2)}")
        a(f"s_lshl_b32 {s(sT2)}, {s(sCT)}, 7")
        self.rows128_src(84, 896, sT0, sT2)
        sW2m = z(8); self.sW2m = sW2m
        a(f"s_lshl_b32 {s(sT0)}, {s(sKQ)}, 12")
        a(f"s_lshl_b32 {s(sT1)}, {s(sN)}, 11")
        a(f"s_add_u32 {s(sW2m)}, {s(sT0)}, {s(sT1)}")

    def cs1(self, role):
        a = self.a
        a(f"v_mov_b32 {v(86)}, 0")
        a("s_waitcnt lgkmcnt(0)")
        for k in range(56): a(f"v_dot2c_f32_bf16 {v(86)}, {s(sONES)}, {v(R_A+56*role+k)}")

    def p3(self):
        a = self.a
        ACC = 16; FB = 32; XR = 64
        lb_ = a.newlabel("BZ")
        a(f"s_cmp_eq_u32 {s(sBUSY)}, 1")
        a(f"s_cbranch_scc1 {lb_}")
        if self.tp & 2:
            a(f"s_and_b32 {s(sT0)}, {s(sR)}, 1")
            a(f"s_lshl_b32 {s(sT0)}, {s(sT0)}, 1")
            a(f"s_add_u32 {s(sT0)}, {s(sT0)}, {s(sC)}")
            a(f"s_sub_u32 {s(sT0)}, {s(sT0)}, 14")
            a(f"s_mul_i32 {s(sT0)}, {s(sT0)}, {448*896}")
            a(f"s_mul_i32 {s(sT1)}, {s(sW)}, {56*128}")
            a(f"s_add_u32 {s(sT0)}, {s(sT0)}, {s(sT1)}")
            a(f"v_lshl_add_u32 {v(21)}, v1, 7, {s(sT0)}")
            a("s_waitcnt vmcnt(0)")
            a("s_barrier")
            self.set_exec((1 << 56) - 1)
            for k in self.post:
                a(f"s_mov_b32 {s(sT0)}, {k*64*896}")
                a(f"buffer_load_dword {v(86)}, {v(21)}, {s(SW2,4)}, {s(sT0)} offen")
            a("s_mov_b64 exec, -1")
        a(f"s_branch L_FIN")
        a.label(lb_)
        z = lambda k: 64 + k
        sN, sUu, sTile2 = z(0), z(1), z(2)
        ACC = 16; FB = 48
        a(f"v_lshlrev_b32 {v(2)}, 4, v1")
        a(f"v_lshl_add_u32 {v(13)}, v1, 3, {s(z(4))}")
        self.poll(13, T, 12, 15, "O")
        self.ts("O flags seen")
        for hd in range(4):
            a(f"s_add_u32 {s(sT0)}, {s(z(5))}, {hd*64*2048}")
            for h_ in range(2):
                a(f"buffer_load_dwordx4 {v(FB+8*hd+4*h_,4)}, {v(2)}, {s(SWS,4)}, {s(sT0)} offen offset:{1024*h_} sc1")
        wf = lambda k: R_C + 4 * k if k < 14 else 4 + 4 * (k - 14)
        lcs, lcs2 = a.newlabel("CS0"), a.newlabel("CS0")
        a(f"s_cmp_eq_u32 {s(sROLE)}, 1")
        a(f"s_cbranch_scc1 {lcs}")
        self.p3_moves()
        a.label(lcs)
        self.p3_rest()
        for ks in range(8):
            a(f"s_waitcnt vmcnt({7-ks})")
            if ks == 0: self.ts("O stage0 landed")
            for n_ in range(2):
                a(f"{MF} {v(ACC+16*n_,16)}, {v(wf(2*ks+n_),4)}, {v(FB+4*ks,4)}, {'0' if ks==0 else v(ACC+16*n_,16)}")
        self.ts("p3 mfma done")
        XR = FB; RB = FB + 8
        a(f"v_add_u32 {v(12)}, {s(z(15))}, {v(2)}")
        a(f"v_add_u32 {v(13)}, {s(z(16))}, {v(2)}")
        a(f"v_lshlrev_b32 {v(3)}, 2, v1")
        a("s_waitcnt lgkmcnt(0)")
        a("s_barrier")
        for k in range(4):
            a(f"v_lshlrev_b32 {v(XR+2*k)}, 16, {v(vHRES+k)}")
            a(f"v_and_b32 {v(XR+2*k+1)}, 0xffff0000, {v(vHRES+k)}")
        pcs = [(0, L_HR), (1, L_HR + 16384), (2, L_HR + 32768), (3, 81920)][:self.np3] if self.stop_after >= 4 else []
        a(f"v_mov_b32 {v(8)}, {v(84)}")
        a(f"v_add_u32 {v(4)}, {8*896-1024}, {v(84)}")
        for kh_ in range(2):
            for n_ in range(2):
                d = 2 * kh_ + n_
                a(f"ds_write_b128 {v(12)}, {v(ACC+16*n_+8*kh_,4)} offset:{8192*d}")
                a(f"ds_write_b128 {v(12)}, {v(ACC+16*n_+8*kh_+4,4)} offset:{8192*d+1024}")
        for p, loc in pcs[:3]:
            a(f"s_mov_b32 {s(sT1)}, {32*p*896}")
            self.dma(8, SW2, sT1, (self.sW2m, loc))
            self.dma(4, SW2, sT1, None, off=1024)
        a("s_waitcnt lgkmcnt(0)")
        a("s_barrier")
        for sidx in range(4):
            a(f"ds_read_b128 {v(ACC+8*sidx,4)}, {v(13)} offset:{2048*sidx}")
            a(f"ds_read_b128 {v(ACC+8*sidx+4,4)}, {v(13)} offset:{2048*sidx+1024}")
        a("s_waitcnt lgkmcnt(6)")
        for k in range(4): a(f"v_pk_add_f32 {v(XR+2*k,2)}, {v(XR+2*k,2)}, {v(ACC+2*k,2)}")
        a("s_waitcnt lgkmcnt(2)")
        for k in range(4): a(f"v_pk_add_f32 {v(ACC+8+2*k,2)}, {v(ACC+8+2*k,2)}, {v(ACC+16+2*k,2)}")
        a("s_waitcnt lgkmcnt(0)")
        for k in range(4): a(f"v_pk_add_f32 {v(XR+2*k,2)}, {v(XR+2*k,2)}, {v(ACC+24+2*k,2)}")
        for k in range(4): a(f"v_pk_add_f32 {v(XR+2*k,2)}, {v(XR+2*k,2)}, {v(ACC+8+2*k,2)}")
        for k in range(4): a(f"v_cvt_pk_bf16_f32 {v(vHRES+k)}, {v(XR+2*k)}, {v(XR+2*k+1)}")
        a(f"buffer_store_dwordx4 {v(vHRES,4)}, {v(2)}, {s(SWS,4)}, {s(z(17))} offen sc1")
        F2 = RB
        a(f"v_pk_add_f32 {v(F2,2)}, {v(XR,2)}, {v(XR+2,2)}")
        a(f"v_pk_mul_f32 {v(F2+2,2)}, {v(XR,2)}, {v(XR,2)}")
        a(f"v_pk_add_f32 {v(F2+4,2)}, {v(XR+4,2)}, {v(XR+6,2)}")
        a(f"v_pk_fma_f32 {v(F2+2,2)}, {v(XR+2,2)}, {v(XR+2,2)}, {v(F2+2,2)}")
        a(f"v_pk_add_f32 {v(F2,2)}, {v(F2,2)}, {v(F2+4,2)}")
        a(f"v_pk_fma_f32 {v(F2+2,2)}, {v(XR+4,2)}, {v(XR+4,2)}, {v(F2+2,2)}")
        a(f"v_add_f32 {v(F2)}, {v(F2)}, {v(F2+1)}")
        a(f"v_pk_fma_f32 {v(F2+2,2)}, {v(XR+6,2)}, {v(XR+6,2)}, {v(F2+2,2)}")
        a(f"v_add_f32 {v(F2+1)}, {v(F2+2)}, {v(F2+3)}")
        a(f"v_permlane32_swap_b32 {v(F2)}, {v(F2+1)}")
        a(f"v_add_f32 {v(F2)}, {v(F2)}, {v(F2+1)}")
        a(f"buffer_store_dword {v(F2)}, {v(3)}, {s(SWS,4)}, {s(z(18))} offen sc1")
        self.ts("H stores issued")
        nk = 0
        if self.stop_after >= 4: self.p4_setup()
        self.publish(2, keep=nk)
        self.ts("H published")

    def p4_setup(self):
        a = self.a
        z = lambda k: 64 + k
        sN, sUu, sTile2, sKQ = z(0), z(1), z(2), self.sKQ
        a(f"s_lshl_b32 {s(sT0)}, {s(sKQ)}, 12")
        a(f"s_lshl_b32 {s(sU0)}, {s(sN)}, 6")
        self.tr128_addr(9, True, sT0)
        a(f"v_add_u32 {v(10)}, 65536, {v(9)}")
        a(f"s_lshl_b32 {s(sT0)}, {s(sR)}, 2")
        a(f"s_lshl_b32 {s(sT1)}, {s(sROLE)}, 1")
        a(f"s_add_u32 {s(sT0)}, {s(sT0)}, {s(sT1)}")
        a(f"s_mul_i32 {s(sT2)}, {s(sT0)}, 28672")
        a(f"s_lshl_b32 {s(sT1)}, {s(sT)}, 11")
        a(f"s_add_u32 {s(sT2)}, {s(sT2)}, {s(sT1)}")
        a(f"s_add_u32 {s(sT2)}, {s(sT2)}, {H_OFF}")
        a(f"v_add_u32 {v(3)}, {s(sT2)}, {v(2)}")
        a(f"s_lshl_b32 {s(z(9))}, {s(sW)}, 11")
        a(f"s_mul_i32 {s(sT0)}, {s(sT0)}, 112")
        a(f"s_lshl_b32 {s(sT1)}, {s(sC)}, 3")
        a(f"s_add_u32 {s(sT0)}, {s(sT0)}, {s(sT1)}")
        a(f"s_lshl_b32 {s(sT1)}, {s(sT)}, 1")
        a(f"s_add_u32 {s(sT0)}, {s(sT0)}, {s(sT1)}")
        a(f"s_lshl_b32 {s(sT0)}, {s(sT0)}, 10")
        a(f"s_add_u32 {s(sT0)}, {s(sT0)}, {H1_OFF}")
        a(f"v_add_u32 {v(7)}, {s(sT0)}, {v(2)}")
        a(f"v_add_u32 {v(11)}, {112*1024}, {v(7)}")
        a(f"s_lshl_b32 {s(sT0)}, {s(sR)}, 2")
        a(f"s_add_u32 {s(sT0)}, {s(sT0)}, {s(sT)}")
        a(f"s_mul_i32 {s(sT0)}, {s(sT0)}, 28")
        a(f"s_mul_i32 {s(sT1)}, {s(sROLE)}, 14")
        a(f"s_add_u32 {s(sT0)}, {s(sT0)}, {s(sT1)}")
        a(f"s_lshl_b32 {s(sT0)}, {s(sT0)}, 8")
        a(f"s_add_u32 {s(z(10))}, {s(sT0)}, {HS_OFF}")
        a(f"s_lshl_b32 {s(sT0)}, {s(sROLE)}, 13")
        a(f"v_add_u32 {v(5)}, {s(sT0)}, {v(2)}")
        a(f"v_add_u32 {v(6)}, 114688, {v(5)}")
        a(f"s_lshl_b32 {s(sT0)}, {s(sR)}, 11")
        a(f"s_add_u32 {s(sT0)}, {s(sT0)}, {FLG(3)}")
        a(f"s_lshl_b32 {s(sT1)}, {s(sTH)}, 9")
        a(f"s_add_u32 {s(z(12))}, {s(sT0)}, {s(sT1)}")
        a(f"s_lshl_b32 {s(sT1)}, {s(sROLE)}, 9")
        a(f"s_add_u32 {s(sT0)}, {s(sT0)}, {s(sT1)}")
        a(f"s_lshl_b32 {s(sT1)}, {s(sC)}, 5")
        a(f"s_add_u32 {s(sT0)}, {s(sT0)}, {s(sT1)}")
        a(f"s_lshl_b32 {s(sT1)}, {s(sT)}, 3")
        a(f"s_add_u32 {s(z(11))}, {s(sT0)}, {s(sT1)}")
        a(f"s_lshl_b32 {s(z(13))}, {s(sXCC)}, 28")
        a(f"s_or_b32 {s(z(13))}, {s(z(13))}, {s(sTOK+1)}")
        a(f"s_mul_i32 {s(sT0)}, {s(sTile2)}, 112")
        a(f"s_mul_i32 {s(sT2)}, {s(sKQ)}, 28")
        a(f"s_add_u32 {s(sT0)}, {s(sT0)}, {s(sT2)}")
        a(f"s_lshl_b32 {s(sT1)}, {s(sN)}, 1")
        a(f"s_add_u32 {s(sT0)}, {s(sT0)}, {s(sT1)}")
        a(f"s_lshl_b32 {s(sT0)}, {s(sT0)}, 10")
        a(f"s_add_u32 {s(z(14))}, {s(sT0)}, {H1_OFF}")
        a(f"v_lshrrev_b32 {v(T)}, 5, v1")
        a(f"v_lshl_add_u32 {v(85)}, {v(T)}, 3, {v(85)}")

    def stream_gemm(self, N, CH, rd_text, mf_text, pre_barrier, hooks, FB, NB=6):
        a = self.a
        q = []
        def lds(text, tag=None):
            a(text); q.append(tag)
        def wait_for(tag):
            idx = max(k for k, t in enumerate(q) if t == tag)
            a(f"s_waitcnt lgkmcnt({min(15, len(q)-1-idx)})")
        self.lds_wait = wait_for
        def rd(f):
            if f % CH == 0: pre_barrier(f // CH)
            lds(rd_text(f, FB + 4 * (f % NB)), ('f', f))
        for f in range(NB): rd(f)
        for f in range(N):
            wait_for(('f', f))
            a(mf_text(f, FB + 4 * (f % NB)))
            if f + NB < N: rd(f + NB)
            if f in hooks: hooks[f](lds)

    def wave_flag(self, soff_addr, off):
        a = self.a
        a(f"v_mov_b32 {v(T)}, {s(sTOK)}")
        a(f"v_mov_b32 {v(T2)}, {s(64+13)}")
        a(f"s_mov_b64 exec, 1")
        self.two_path(lambda sc: a(f"buffer_store_dwordx2 {v(T,2)}, off, {s(SWS,4)}, {s(soff_addr)} offset:{off}{sc}"))
        a(f"s_mov_b64 exec, -1")

    def w2addr(self, loc):
        return (9, loc) if loc < 65536 else ((10, loc - 65536) if loc < 131072 - 8192 else (73, loc - 131072))

    def p4(self):
        a = self.a
        z = lambda k: 64 + k
        sUu = z(1)
        ACC = 16; FB = 48; BMS = 72
        sW2m, sAm = self.sW2m, z(9)
        S = lambda k: 16384 * k
        def w2dma(p, ldsbase, half=None):
            if half in (None, 0):
                a(f"s_mov_b32 {s(sT1)}, {32*p*896}")
                self.dma(8, SW2, sT1, (sW2m, ldsbase))
            if half == 1: a(f"s_add_u32 m0, {s(sW2m)}, {ldsbase}")
            if half in (None, 1): self.dma(4, SW2, sT1, None, off=1024)
        self.w2dma = w2dma
        vCS = 86
        lcs, lcs2 = a.newlabel("CS0"), a.newlabel("CS0")
        a(f"s_cmp_eq_u32 {s(sROLE)}, 1")
        a(f"s_cbranch_scc1 {lcs}")
        self.cs1(0)
        a(f"s_branch {lcs2}")
        a.label(lcs)
        self.cs1(1)
        a.label(lcs2)
        a(f"v_lshlrev_b32 {v(T)}, 2, v0")
        a(f"v_add_u32 {v(T)}, {L_ST4+8192}, {v(T)}")
        a(f"ds_write_b32 {v(T)}, {v(vCS)}")
        a(f"v_xor_b32 {v(vAM1)}, 1024, {v(T)}")
        self.poll_group(2, 14, 1, "H")
        self.ts("H flags seen")
        def adma(i, half=None):
            if half in (None, 0):
                a(f"s_mov_b32 {s(sT0)}, {8192*i}")
                self.dma(3, SWS, sT0, (sAm, A4SLOT[i % 4]), sc1=True)
            if half == 1: a(f"s_add_u32 m0, {s(sAm)}, {A4SLOT[i % 4]}")
            if half in (None, 1): self.dma(3, SWS, sT0, None, sc1=True, off=1024)
        ops = []
        STB = R_C + 40
        for i in range(3):
            adma(i); ops += [f'A{i}'] * 2
        a(f"ds_read_b32 {v(vAM1+1)}, {v(vAM1)}")
        a(f"s_lshl_b32 {s(sT0)}, {s(sROLE)}, 11")
        a(f"s_add_u32 {s(sT0)}, {s(sT0)}, {L_ST4}")
        a(f"v_lshl_add_u32 {v(12)}, v1, 2, {s(sT0)}")
        a(f"s_lshl_b32 {s(sT0)}, {s(sTH)}, 1")
        a(f"s_add_u32 {s(sT0)}, {s(sT0)}, {s(sUu)}")
        a(f"s_lshl_b32 {s(sT0)}, {s(sT0)}, 10")
        a(f"s_add_u32 {s(sT0)}, {s(sT0)}, {L_ST4}")
        a(f"v_lshl_add_u32 {v(13)}, v1, 2, {s(sT0)}")
        a("s_waitcnt lgkmcnt(0)")
        a(f"v_add_f32 {v(vCS)}, {v(vCS)}, {v(vAM1+1)}")
        a(f"v_mov_b32 {v(T)}, {v(vCS)}")
        a(f"v_permlane32_swap_b32 {v(T)}, {v(vCS)}")
        a(f"v_add_f32 {v(vCS)}, {v(vCS)}, {v(T)}")
        self.cs_operand(vAM1, vCS)
        def vwait(tags):
            last = max(k for k, o in enumerate(ops) if o in tags)
            a(f"s_waitcnt vmcnt({len(ops)-1-last})")
        def pre_barrier(i):
            a.comment(f"---- P4 chunk {i} barrier")
            vwait([f'A{i}', f'p{i-1}'])
            if i == 3: self.lds_wait('stw')
            a("s_barrier")
            if i == 0: self.ts("H chunk0 landed")
            elif self.fine2: self.ts(f"p4 b{i}")
        def rd_text(f, reg):
            i, n = divmod(f, 8)
            slot = A4SLOT[i % 4]
            va, so = (5, slot) if slot < 65536 else (6, slot - 114688)
            return f"ds_read_b128 {v(reg,4)}, {v(va)} offset:{so+n*1024}"
        def mf_text(f, reg):
            tt, ks = divmod(f, 28)
            return f"{MF} {v(ACC+16*tt,16)}, {v(R_A+4*ks,4)}, {v(reg,4)}, {'0' if ks == 0 else v(ACC+16*tt,16)}"
        hooks = {}
        def H(f, fn):
            prev = hooks.get(f)
            hooks[f] = (lambda lds, p=prev, g=fn: (p(lds) if p else None, g(lds)))
        def op(tag): ops.append(tag)
        for j in range(4):
            H(j // 2, lambda lds, j=j: (a(f"buffer_load_dwordx4 {v(STB+4*j,4)}, {v(2)}, {s(SWS,4)}, {s(z(10))} offen offset:{1024*j} sc1"), op('S')))
        for i in range(7):
            b0 = 8 * i
            if i <= 5:
                for k in range(2):
                    def mvh(lds, j=i, k=k):
                        va, off = self.w2addr(L_HR + (j % 3) * 16384 + k * 2048)
                        lds(f"ds_read_b64_tr_b16 {v(R_C+8*j+4*k,2)}, {v(va)} offset:{off}", None)
                        lds(f"ds_read_b64_tr_b16 {v(R_C+8*j+4*k+2,2)}, {v(va)} offset:{off+1024}", None)
                    H(b0 + 3 + k, mvh)
            if i + 3 <= 6:
                H(b0 + 3, lambda lds, i=i: (adma(i + 3, 0), op(f'A{i+3}')))
                H(b0 + 4, lambda lds, i=i: (adma(i + 3, 1), op(f'A{i+3}')))
            if 1 <= i <= 4:
                H(b0 + 5, lambda lds, i=i: (w2dma(i + 2, L_HR + 16384 * ((i - 1) % 3), 0), op(f'p{i+2}')))
                H(b0 + 6, lambda lds, i=i: (w2dma(i + 2, L_HR + 16384 * ((i - 1) % 3), 1), op(f'p{i+2}')))
        self.w2b_loc = {6: S(2), 7: S(5), 8: S(6), 9: S(8), 10: S(0), 11: S(3), 12: S(0), 13: S(3)}
        when = {7: self.w78[0], 8: self.w78[1], 9: 39, 10: 47, 11: 49}
        for p in range(7 + self.nex, 12):
            f0 = when[p]
            H(f0, lambda lds, p=p: (w2dma(p, self.w2b_loc[p], 0), op('q')))
            H(f0 + 1, lambda lds, p=p: (w2dma(p, self.w2b_loc[p], 1), op('q')))
        def st_reduce(lds):
            vwait(['S'])
            for k in range(4): a(f"v_cndmask_b32 {v(STB+12+k)}, {v(STB+12+k)}, 0, {s(sHI,2)}")
            for k in range(2):
                a(f"v_pk_add_f32 {v(STB+2*k,2)}, {v(STB+2*k,2)}, {v(STB+4+2*k,2)}")
                a(f"v_pk_add_f32 {v(STB+8+2*k,2)}, {v(STB+8+2*k,2)}, {v(STB+12+2*k,2)}")
            for k in range(2): a(f"v_pk_add_f32 {v(STB+2*k,2)}, {v(STB+2*k,2)}, {v(STB+8+2*k,2)}")
            a(f"v_lshlrev_b32 {v(T)}, 4, v0")
            a(f"v_add_u32 {v(T)}, {L_ST4}, {v(T)}")
            lds(f"ds_write_b128 {v(T)}, {v(STB,4)}", 'stw')
        H(self.fst, st_reduce)
        def st_gather(lds):
            for tt in range(2):
                for hf in range(2):
                    b = STB + 8 * tt + 4 * hf
                    o = (tt * 1024 + hf * 4096) // 256
                    lds(f"ds_read2st64_b32 {v(b,2)}, {v(12)} offset0:{o} offset1:{o+1}", None)
                    lds(f"ds_read2st64_b32 {v(b+2,2)}, {v(12)} offset0:{o+2} offset1:{o+3}", 'g1')
        H(18, st_gather)
        def st_mean(lds):
            self.lds_wait('g1')
            for tt in range(2):
                b = STB + 8 * tt
                a(f"v_pk_add_f32 {v(b,2)}, {v(b,2)}, {v(b+2,2)}")
                a(f"v_pk_add_f32 {v(b+4,2)}, {v(b+4,2)}, {v(b+6,2)}")
            for tt in range(2): a(f"v_pk_add_f32 {v(STB+8*tt,2)}, {v(STB+8*tt,2)}, {v(STB+8*tt+4,2)}")
            for tt in range(2): a(f"v_add_f32 {v(STB+8*tt)}, {v(STB+8*tt)}, {v(STB+8*tt+1)}")
            for tt in range(2): a(f"v_mul_f32 {v(STB+8*tt)}, {f32bits(-1.0/448):#x}, {v(STB+8*tt)}")
        H(23, st_mean)
        def st_mean2(lds):
            for tt, bm in ((0, BMS), (1, STB + 12)):
                b = STB + 8 * tt
                a(f"v_cvt_pk_bf16_f32 {v(bm)}, {v(b)}, {v(b)}")
                a(f"v_and_b32 {v(b+1)}, 0xffff0000, {v(bm)}")
                a(f"v_sub_f32 {v(b+1)}, {v(b)}, {v(b+1)}")
                a(f"v_cvt_pk_bf16_f32 {v(bm+1)}, {v(b+1)}, 0")
                a(f"v_mov_b32 {v(bm+2)}, 0")
                a(f"v_mov_b32 {v(bm+3)}, 0")
            b = STB
            for hf in range(2):
                lds(f"ds_read2st64_b32 {v(b+4*hf,2)}, {v(13)} offset0:{16*hf} offset1:{16*hf+1}", None)
                lds(f"ds_read2st64_b32 {v(b+4*hf+2,2)}, {v(13)} offset0:{16*hf+2} offset1:{16*hf+3}", 'g2')
        H(25, st_mean2)
        H(27, lambda lds: a(f"{MF} {v(ACC,16)}, {v(vAM1,4)}, {v(BMS,4)}, {v(ACC,16)}"))
        def epi(tt, sp):
            A_ = ACC + 16 * tt
            for k in range(4): a(f"v_cvt_pk_bf16_f32 {v(A_+8*sp+k)}, {v(A_+8*sp+2*k)}, {v(A_+8*sp+2*k+1)}")
            for k in range(4): a(f"v_pk_max_i16 {v(A_+8*sp+k)}, {v(A_+8*sp+k)}, 0")
            a(f"buffer_store_dwordx4 {v(A_+8*sp,4)}, {v(7 if tt==0 else 11)}, {s(SWS,4)}, 0 offen offset:{1024*sp} sc1")
            op(f'st{tt}')
        H(31, lambda lds: epi(0, 0))
        H(32, lambda lds: epi(0, 1))
        def st_rstd(lds):
            self.lds_wait('g2')
            b = STB
            a(f"v_pk_add_f32 {v(b,2)}, {v(b,2)}, {v(b+2,2)}")
            a(f"v_pk_add_f32 {v(b+4,2)}, {v(b+4,2)}, {v(b+6,2)}")
            a(f"v_pk_add_f32 {v(b,2)}, {v(b,2)}, {v(b+4,2)}")
            a(f"v_add_f32 {v(b)}, {v(b)}, {v(b+1)}")
            a(f"v_mov_b32 {v(b+1)}, {v(b)}")
            a(f"v_permlane32_swap_b32 {v(b)}, {v(b+1)}")
            self.stats_finish(b, b + 1, b + 2, vRSTD)
        H(33, st_rstd)
        H(self.fflag, lambda lds: (self.ts("preflag") if self.fine2 else None, vwait(['st0']), self.wave_flag(z(11), 0), op('fl'), self.ts("postflag") if self.fine2 else None))
        self.stream_gemm(56, 8, rd_text, mf_text, pre_barrier, hooks, FB)
        self.ts("p4 loop done")
        a(f"{MF} {v(ACC+16,16)}, {v(vAM1,4)}, {v(STB+12,4)}, {v(ACC+16,16)}")
        a(f"s_lshl_b32 {s(sT0)}, {s(self.sKQ)}, 12")
        a(f"v_add_u32 {v(5)}, {s(sT0)}, {v(2)}")
        a(f"v_add_u32 {v(6)}, 65536, {v(5)}")
        a(f"v_add_u32 {v(72)}, 131072, {v(5)}")
        a(f"v_add_u32 {v(73)}, 131072, {v(9)}")
        a(f"v_lshl_add_u32 {v(13)}, v1, 3, {s(z(12))}")
        for p in (7, 8):
            va, off = self.w2addr(self.w2b_loc[p])
            self.move_frags(R_A + 8 * (p - 7), va, 2, True, off0=off)
        self.ops4 = ops; self.epi = epi

    def p5(self):
        a = self.a
        z = lambda k: 64 + k
        sN, sUu, sKQ = z(0), z(1), self.sKQ
        ACC = 16; FB = 48
        S = lambda k: 16384 * k
        ops = self.ops4
        def vwait(tags):
            last = max(k for k, o in enumerate(ops) if o in tags)
            a(f"s_waitcnt vmcnt({len(ops)-1-last})")
        lp = a.newlabel("PA")
        a(f"s_cmp_lg_u32 {s(sW)}, 0")
        a(f"s_cbranch_scc1 {lp}")
        self.poll(13, T, 12, (1 << 56) - 1, "HA")
        a.label(lp)
        vwait(['q', 'p6'])
        a("s_waitcnt lgkmcnt(0)")
        a("s_barrier")
        self.ts("H1A flags seen")
        sAm = self.sW2m
        cslot = [S(4), S(1), S(7), S(9), S(5), S(6), S(2), S(8), S(4), S(1), S(7), S(9), S(5), S(2)]
        def adma(c_, half=None):
            src = (c_ % 7) * 4096 + (c_ // 7) * 112 * 1024
            if half in (None, 0):
                a(f"s_add_u32 {s(sT0)}, {s(z(14))}, {src}")
                self.dma(2, SWS, sT0, (sAm, cslot[c_]), sc1=True); ops.append(f'C{c_}')
            if half == 1: a(f"s_add_u32 m0, {s(sAm)}, {cslot[c_]}")
            if half in (None, 1):
                self.dma(2, SWS, sT0, None, sc1=True, off=1024); ops.append(f'C{c_}')
        for c_ in range(self.nC): adma(c_)
        self.epi(1, 0); self.epi(1, 1)
        self.ts("H1 stores issued")
        for p in (6, 9, 10, 11):
            va, off = self.w2addr(self.w2b_loc[p])
            self.move_frags(R_C + 48 if p == 6 else R_A + 8 * (p - 7), va, 2, True, off0=off)
        a(f"s_mul_i32 {s(sT1)}, {s(sN)}, {S(8)-S(6)}")
        a(f"s_add_u32 {s(sT1)}, {s(sT1)}, {S(6)}")
        a(f"s_lshl_b32 {s(sT0)}, {s(sKQ)}, 11")
        a(f"s_add_u32 {s(sT0)}, {s(sT0)}, {s(sT1)}")
        a(f"v_add_u32 {v(74)}, {s(sT0)}, {v(2)}")
        a(f"s_lshl_b32 {s(sT0)}, {s(sROLE)}, 13")
        a(f"s_add_u32 {s(sT0)}, {s(sT0)}, {s(sT1)}")
        a(f"v_add_u32 {v(75)}, {s(sT0)}, {v(2)}")
        a(f"v_add_u32 {v(13)}, 1024, {v(13)}")
        a("s_waitcnt lgkmcnt(0)")
        def pre_barrier(i):
            a.comment(f"---- P5 chunk {i} barrier")
            tags = [f'C{i}'] + (['q2'] if i == 5 else [])
            vwait(tags)
            if i == self.cB:
                l = a.newlabel("PB")
                a(f"s_cmp_lg_u32 {s(sW)}, 0")
                a(f"s_cbranch_scc1 {l}")
                vwait(['pb'])
                self.set_exec((1 << 56) - 1)
                self.flag_check(78, 12)
                a("s_mov_b64 exec, -1")
                a("s_nop 3")
                a(f"s_cbranch_vccz {l}")
                self.poll(13, T, 12, (1 << 56) - 1, "HB")
                a.label(l)
            if i == 13: self.lds_wait('rw')
            a("s_barrier")
            if i == 0: self.ts("H1 chunk0 landed")
            elif self.fine2: self.ts(f"p5 b{i}")
        def rd_text(f, reg):
            i, n = divmod(f, 4)
            slot = cslot[i]
            va, so = (5, 6, 72)[slot // 65536], slot % 65536
            return f"ds_read_b128 {v(reg,4)}, {v(va)} offset:{so+n*1024}"
        def mf_text(f, reg):
            tt, kk = divmod(f, 28)
            wreg = R_C + 4 * kk if kk < 14 else R_A + 4 * (kk - 14)
            return f"{MF} {v(ACC+16*tt,16)}, {v(wreg,4)}, {v(reg,4)}, {'0' if kk == 0 else v(ACC+16*tt,16)}"
        hooks = {}
        def H(f, fn):
            prev = hooks.get(f)
            hooks[f] = (lambda lds, p=prev, g=fn: (p(lds) if p else None, g(lds)))
        fB = 4 * self.cB - 6
        sched = [(2 * k, it) for k, it in enumerate([('c', c_) for c_ in range(self.nC, 7)] + [('w', 12), ('w', 13)])]
        f = max(10, fB)
        for c_ in range(7, 14):
            if c_ >= 8: f = max(f, 4 * ((c_ - 8 if c_ < 13 else 6) + 3) - 6)
            sched.append((f, ('c', c_))); f += self.p5gap
        for f0, (kind, x) in sched:
            if kind == 'c':
                H(f0, lambda lds, x=x: adma(x, 0)); H(f0 + 1, lambda lds, x=x: adma(x, 1))
            else:
                H(f0, lambda lds, x=x: (self.w2dma(x, self.w2b_loc[x], 0), ops.append('q2')))
                H(f0 + 1, lambda lds, x=x: (self.w2dma(x, self.w2b_loc[x], 1), ops.append('q2')))
        for p in (12, 13):
            def mv(lds, p=p):
                va, off = self.w2addr(self.w2b_loc[p])
                for k in range(2):
                    lds(f"ds_read_b64_tr_b16 {v(R_A+8*(p-7)+4*k,2)}, {v(va)} offset:{off+k*2048}", None)
                    lds(f"ds_read_b64_tr_b16 {v(R_A+8*(p-7)+4*k+2,2)}, {v(va)} offset:{off+k*2048+1024}", None)
            H(3 + p, mv)
        XR = R_B
        RB = R_B + 8
        def red_write(lds, tt, tag):
            for d in range(2):
                lds(f"ds_write_b128 {v(74)}, {v(ACC+16*tt+8*d,4)} offset:{8192*d}", None)
                lds(f"ds_write_b128 {v(74)}, {v(ACC+16*tt+8*d+4,4)} offset:{8192*d+1024}", tag if d == 1 else None)
        def fin(tt, lds=None):
            l = a.newlabel("FN")
            a(f"s_cmp_lg_u32 {s(sUu)}, {tt}")
            a(f"s_cbranch_scc1 {l}")
            for sidx in range(4):
                a(f"ds_read_b128 {v(RB+8*sidx,4)}, {v(75)} offset:{2048*sidx}")
                a(f"ds_read_b128 {v(RB+8*sidx+4,4)}, {v(75)} offset:{2048*sidx+1024}")
            a("s_waitcnt lgkmcnt(4)")
            for k in range(4): a(f"v_pk_add_f32 {v(RB+2*k,2)}, {v(RB+2*k,2)}, {v(RB+8+2*k,2)}")
            a("s_waitcnt lgkmcnt(0)")
            for k in range(4): a(f"v_pk_add_f32 {v(RB+16+2*k,2)}, {v(RB+16+2*k,2)}, {v(RB+24+2*k,2)}")
            for k in range(4): a(f"v_pk_add_f32 {v(RB+2*k,2)}, {v(RB+2*k,2)}, {v(RB+16+2*k,2)}")
            for k in range(4): a(f"v_pk_fma_f32 {v(XR+2*k,2)}, {v(RB+2*k,2)}, {v(76,2)}, {v(XR+2*k,2)}")
            for k in range(4): a(f"v_cvt_pk_bf16_f32 {v(RB+k)}, {v(XR+2*k)}, {v(XR+2*k+1)}")
            a(f"v_permlane32_swap_b32 {v(RB)}, {v(RB+2)}")
            a(f"v_permlane32_swap_b32 {v(RB+1)}, {v(RB+3)}")
            a(f"buffer_store_dwordx4 {v(RB,4)}, {v(85)}, {s(SOUT,4)}, 0 offen")
            a.label(l)
        def prep(lds):
            for k in range(4):
                a(f"v_lshlrev_b32 {v(XR+2*k)}, 16, {v(vHRES+k)}")
                a(f"v_and_b32 {v(XR+2*k+1)}, 0xffff0000, {v(vHRES+k)}")
            a(f"v_mov_b32 {v(76)}, {v(vRSTD)}")
            a(f"v_mov_b32 {v(77)}, {v(vRSTD)}")
        H(self.fB, lambda lds: (vwait(['st1']), self.wave_flag(z(11), 1024), ops.append('fl')))
        def pbload(lds):
            a(f"s_cmp_eq_u32 {s(sW)}, 0")
            a(f"s_cselect_b32 exec_lo, -1, 1")
            a(f"s_cselect_b32 exec_hi, 0xffffff, 0")
            a(f"buffer_load_dwordx2 {v(78,2)}, {v(13)}, {s(SWS,4)}, 0 offen sc1"); ops.append('pb')
            a("s_mov_b64 exec, -1")
        H(4 * self.cB - 6 - self.pbl, pbload)
        H(20, prep)
        for q_ in range(4):
            H(35 + 2 * q_, lambda lds, q_=q_: lds(f"ds_write_b128 {v(74)}, {v(ACC+4*q_,4)} offset:{8192*(q_//2)+1024*(q_%2)}", 'rw' if q_ == 3 else None))
        H(47, lambda lds: fin(0))
        self.stream_gemm(56, 4, rd_text, mf_text, pre_barrier, hooks, FB)
        self.ts("p5 loop done")
        a(f"v_subrev_u32 {v(74)}, {S(6)}, {v(74)}")
        a(f"v_subrev_u32 {v(75)}, {S(6)}, {v(75)}")
        a(f"s_mul_i32 {s(sT0)}, {s(sN)}, {S(3)-S(2)}")
        a(f"v_add_u32 {v(74)}, {s(sT0)}, {v(74)}")
        a(f"v_add_u32 {v(75)}, {s(sT0)}, {v(75)}")
        red_write(lambda t, g=None: a(t), 1, None)
        a("s_waitcnt lgkmcnt(0)")
        a("s_barrier")
        fin(1)

    def epilogue(self):
        a = self.a
        a.label("L_FIN")
        if self.prof:
            self.ts("end")
            a(f"s_lshl_b32 {s(sT0)}, s2, 3")
            a(f"s_add_u32 {s(sT0)}, {s(sT0)}, {s(sW)}")
            a(f"s_lshl_b32 {s(sT0)}, {s(sT0)}, 8")
            a(f"s_add_u32 {s(sT0)}, {s(sT0)}, {TS_OFF}")
            a(f"v_lshlrev_b32 v14, 2, v1")
            a(f"v_add_u32 v14, {s(sT0)}, v14")
            a(f"buffer_store_dword {v(vTS)}, v14, {s(SWS,4)}, 0 offen")
            a("s_waitcnt vmcnt(0)")
        a.label("L_END")
        a("s_endpgm")

    def build(self):
        self.prologue()
        self.p1()
        if self.stop_after >= 2: self.p2()
        if self.stop_after >= 3: self.p3()
        if self.stop_after >= 4: self.p4()
        if self.stop_after >= 5: self.p5()
        self.epilogue()
        head = f"""; Generated by dev/gen.py -- fused persistent kernel: LN1+QKV -> sliding attention -> WO+res -> LN2+FF1 -> FF2+res
; @launch grid=(256,1,1) block=(512,1,1) lds={LDS_TOTAL}
.amdgcn_target "amdgcn-amd-amdhsa--gfx950"
.text
.globl {NAME}_kernel
.p2align 8
.type {NAME}_kernel,@function
{NAME}_kernel:
"""
        tail = f"""
.section .rodata,"a"
.p2align 6
.amdhsa_kernel {NAME}_kernel
  .amdhsa_next_free_vgpr 256
  .amdhsa_next_free_sgpr 102
  .amdhsa_accum_offset 256
  .amdhsa_group_segment_fixed_size 0
  .amdhsa_kernarg_size 72
  .amdhsa_user_sgpr_count 2
  .amdhsa_user_sgpr_kernarg_segment_ptr 1
  .amdhsa_system_sgpr_workgroup_id_x 1
.end_amdhsa_kernel
"""
        return head + self.a.text() + (self.side.text() if hasattr(self,'side') else '') + tail

if __name__ == "__main__":
    import argparse
    ap = argparse.ArgumentParser()
    ap.add_argument("-o", default="k.s"); ap.add_argument("--stop", type=int, default=5)
    ap.add_argument("--prof", action="store_true"); ap.add_argument("--cyc", action="store_true"); ap.add_argument("--fine", action="store_true"); ap.add_argument("--tlb", type=int, default=0); ap.add_argument("--p1local", action="store_true"); ap.add_argument("--pd1", type=int, default=2); ap.add_argument("--norot", action="store_true"); ap.add_argument("--tp", type=int, default=2); ap.add_argument("--n1", type=int, default=9); ap.add_argument("--m2", default="[(SW1,3)]"); ap.add_argument("--post", default="[0,1,3,4,2,5,6]"); ap.add_argument("--npre", type=int, default=3); ap.add_argument("--p5gap", type=int, default=2); ap.add_argument("--oplain", type=int, default=1); ap.add_argument("--pre0", type=int, default=1); ap.add_argument("--t1it", type=int, default=6); ap.add_argument("--nex", type=int, default=0); ap.add_argument("--exp", type=int, default=0); ap.add_argument("--fflag", type=int, default=45); ap.add_argument("--cB", type=int, default=5); ap.add_argument("--fB", type=int, default=8); ap.add_argument("--w78", default="(15,23)"); ap.add_argument("--nC", type=int, default=4); ap.add_argument("--cpf", type=int, default=1); ap.add_argument("--rotg", type=int, default=4); ap.add_argument("--kvsc", default="sc1"); ap.add_argument("--kvst", default="sc1"); ap.add_argument("--kvsleep", type=int, default=1); ap.add_argument("--w1sched", default="([1,1,1,1,1],4,[3,2,0,0,0])")
    args = ap.parse_args()
    g = Gen(args.stop, args.prof, args.cyc, args.fine, args.tlb, args.p1local, args.pd1, args.norot, args.tp, args.n1, args.m2, args.post, args.npre, args.p5gap, args.oplain, args.pre0, args.t1it, args.nex, args.exp, args.fflag, args.cB, args.fB, args.nC, args.cpf, args.w78, args.rotg, args.kvsc, args.kvst, args.kvsleep, args.w1sched)
    open(args.o, "w").write(g.build())
    print("instrs", g.a.ninstr, "nops", g.a.nnops, "ts", list(g.tsn.keys()))
```
